```python
import torch

def _softmax(x, axis=-1):
    return torch.softmax(x, dim=axis)
def _gelu(x):
    return torch.nn.functional.gelu(x, approximate="tanh")
def _silu(x):
    return torch.nn.functional.silu(x)
def _sigmoid(x):
    return torch.sigmoid(x)
def _layernorm(x, axis=-1, eps=1e-5):
    m = x.mean(dim=axis, keepdim=True)
    v = x.var(dim=axis, keepdim=True, unbiased=False)
    return (x - m) / torch.sqrt(v + eps)
def _scatter_add(tgt, idx, src, axis=0):
    return tgt.clone().index_add_(axis, idx, src)
def _segment_sum(src, seg, n):
    out = torch.zeros((n,) + src.shape[1:], dtype=src.dtype)
    return out.index_add_(0, seg, src)
def _pad(x, pw):
    flat = tuple(v for pair in reversed(pw) for v in pair)
    return torch.nn.functional.pad(x, flat)

kernel_name = 'concat_heads__sliding_local_dilated__spectral_fnet__prompt'

def setup_inputs():

    _w = (lambda a: (lambda t: t.to(torch.bfloat16) if t.is_floating_point() else t)(torch.as_tensor(a)))
    def _A_setup():
        B, S, D = 1, 2048, 512
        return {
            "x": _w((lambda *s: torch.randn(*s, dtype=torch.bfloat16) * 0.2)(B, S, D)),
            "wqkv": _w((lambda *s: torch.randn(*s, dtype=torch.bfloat16) * 0.8)(D, 3 * D)),
            "wo": _w((lambda *s: torch.randn(*s, dtype=torch.bfloat16) * 0.2)(D, D)),
        }
    _A_in = _A_setup()

    def _B_setup():
        B, S, D = 1, 2048, 512
        ns = torch.arange(S)[:, None] * torch.arange(S)[None, :]
        nd = torch.arange(D)[:, None] * torch.arange(D)[None, :]
        Ws_re = torch.cos(-2.0 * torch.pi * ns / S).to(float)
        Ws_im = torch.sin(-2.0 * torch.pi * ns / S).to(float)
        Wd_re = torch.cos(-2.0 * torch.pi * nd / D).to(float)
        Wd_im = torch.sin(-2.0 * torch.pi * nd / D).to(float)
        return {
            "x": _w((lambda *s: torch.randn(*s, dtype=torch.bfloat16) * 0.05)(B, S, D)),
            "dft_seq_re": _w(Ws_re),
            "dft_seq_im": _w(Ws_im),
            "dft_hid_re": _w(Wd_re),
            "dft_hid_im": _w(Wd_im),
        }
    _B_in = _B_setup()

    return {
        "A_x": _A_in["x"],
        "A_wqkv": _A_in["wqkv"],
        "A_wo": _A_in["wo"],
        "B_x": _B_in["x"],
        "B_dft_seq_re": _B_in["dft_seq_re"],
        "B_dft_seq_im": _B_in["dft_seq_im"],
        "B_dft_hid_re": _B_in["dft_hid_re"],
        "B_dft_hid_im": _B_in["dft_hid_im"],
    }

def reference(A_x, A_wqkv, A_wo, B_x, B_dft_seq_re, B_dft_seq_im, B_dft_hid_re, B_dft_hid_im):
    def _A_ref(x, wqkv, wo):
        B, S, D = x.shape
        H = 32; Dh = D // H
        W, dil = 8, 2
        qkv = (lambda x, *d: x.permute(*d))((x @ wqkv).reshape(B, S, 3, H, Dh), 2, 0, 3, 1, 4)
        q, k, v = qkv[0], qkv[1], qkv[2]
        scale = Dh ** -0.5
        pos = torch.arange(S)
        off = torch.arange(W) * dil
        idx = pos[:, None] - off[None, :]
        mask = idx >= 0
        idx_c = torch.where(mask, idx, 0).reshape(-1)
        kg = k[:, :, idx_c, :].reshape(B, H, S, W, Dh)
        vg = v[:, :, idx_c, :].reshape(B, H, S, W, Dh)
        logits = torch.einsum("bhsd,bhswd->bhsw", q, kg) * scale
        logits = torch.where(mask[None, None, :, :], logits, -1e9)
        attn = _softmax(logits, axis=-1)
        o = torch.einsum("bhsw,bhswd->bhsd", attn, vg)
        return (lambda x, *d: x.permute(*d))(o, 0, 2, 1, 3).reshape(B, S, D) @ wo

    def _B_ref(x, dft_seq_re, dft_seq_im, dft_hid_re, dft_hid_im):
        a = torch.einsum("bsd,ed->bse", x, dft_hid_re)
        b = torch.einsum("bsd,ed->bse", x, dft_hid_im)
        y = torch.einsum("ts,bse->bte", dft_seq_re, a) - torch.einsum("ts,bse->bte", dft_seq_im, b)
        return y

    a = _A_ref(A_x, A_wqkv, A_wo)
    b = _B_ref(B_x, B_dft_seq_re, B_dft_seq_im, B_dft_hid_re, B_dft_hid_im)
    return torch.concatenate([a, b], axis=-1)
```

```python
import sys, argparse
NAME = 'concat_heads__sliding_local_dilated__spectral_fnet__prompt'

class Asm:
    def __init__(self): self.L = []
    def __call__(self, s):
        for line in s.split('\n'):
            line = line.strip()
            if line: self.L.append(line if line.endswith(':') or line.startswith('.') or line.startswith(';') else '    ' + line)
    def text(self): return '\n'.join(self.L) + '\n'

def vr(b, n): return f'v[{b}:{b+n-1}]' if n > 1 else f'v{b}'
def srd(A, d, lo, size):
    A(f's_mov_b32 s{d}, s{lo}\ns_mov_b32 s{d+1}, s{lo+1}\ns_mov_b32 s{d+2}, {size:#x}\ns_mov_b32 s{d+3}, 0x20000')
def srd_off(A, d, lo, off, size):
    A(f's_add_u32 s{d}, s{lo}, {off:#x}\ns_addc_u32 s{d+1}, s{lo+1}, 0\ns_mov_b32 s{d+2}, {size:#x}\ns_mov_b32 s{d+3}, 0x20000')
def mfma32(A, d, a, b, c): A(f'v_mfma_f32_16x16x32_bf16 {vr(d,4)}, {vr(a,4)}, {vr(b,4)}, {vr(c,4) if c is not None else 0}')
def mfma16(A, d, a, b, c): A(f'v_mfma_f32_16x16x16_bf16 {vr(d,4)}, {vr(a,2)}, {vr(b,2)}, {vr(c,4) if c is not None else 0}')
def cvt(A, d, a, b): A(f'v_cvt_pk_bf16_f32 v{d}, v{a}, v{b}')

P_AX, P_WQKV, P_WO, P_BX, P_CR, P_CI, P_DR, P_DI, P_OUT, P_DBG, P_WS = 36, 38, 40, 42, 44, 46, 48, 50, 52, 54, 56
WS_O, WS_Z, WS_DIAG = 0, 0x200000, 0x800000
OOB = 0x80000000

def interleave(A, mf, other, per_gap=1, start=0):
    oi = 0
    for i, m in enumerate(mf):
        m()
        if i >= start:
            for _ in range(per_gap):
                if oi < len(other): A(other[oi]); oi += 1
    while oi < len(other): A(other[oi]); oi += 1

def stamp(A, cfg, slot):
    if cfg.diag: A(f's_memrealtime s[{70+2*slot}:{71+2*slot}]')
def stamp_store(A, cfg, kern, nslots, nwaves):
    if not cfg.diag: return
    A('s_waitcnt lgkmcnt(0) vmcnt(0)')
    stamp(A, cfg, nslots - 1)
    A('s_waitcnt lgkmcnt(0)')
    srd_off(A, 24, P_WS, WS_DIAG, 0x100000)
    A(f's_add_u32 s4, s2, {kern*256}\ns_lshl_b32 s4, s4, 3\ns_add_u32 s4, s4, s3\ns_lshl_b32 s4, s4, 5')
    for i in range(8): A(f'v_mov_b32 v{8+i}, s{70+2*min(i, nslots-1)}')
    A('v_mov_b32 v1, 0\nv_and_b32 v2, 63, v0\nv_cmp_eq_u32 vcc, 0, v2\ns_and_saveexec_b64 s[6:7], vcc')
    A('buffer_store_dwordx4 v[8:11], v1, s[24:27], s4 offen\nbuffer_store_dwordx4 v[12:15], v1, s[24:27], s4 offen offset:16')

def loader_loop(A, n_per, nchunks, X, issue):
    total = n_per * nchunks; done = 0
    for c in range(nchunks):
        upto = min(total, n_per * (c + 1) + X)
        while done < upto:
            issue(done // n_per, done % n_per); done += 1
        A(f's_waitcnt vmcnt({done - n_per * (c + 1)})')
        A('s_barrier')

A1_SLOT = 36864
B1_SLOT = 32768

def k1(A, cfg):
    A(f'.globl k1_kernel\n.p2align 8\n.type k1_kernel,@function\nk1_kernel:')
    A('s_cmp_ge_u32 s2, 256\ns_cbranch_scc1 K1_END')
    stamp(A, cfg, 0)
    A('s_load_dwordx16 s[36:51], s[0:1], 0\ns_load_dwordx2 s[56:57], s[0:1], 80')
    A('v_lshrrev_b32 v1, 6, v0\nv_and_b32 v2, 63, v0')
    A('v_readfirstlane_b32 s3, v1')
    A('s_and_b32 s4, s2, 7\ns_lshr_b32 s5, s2, 3')
    A('v_and_b32 v3, 15, v2\nv_lshrrev_b32 v4, 4, v2')
    A('v_lshrrev_b32 v5, 3, v2\nv_and_b32 v6, 7, v2')
    A('s_cmp_ge_u32 s4, 6\ns_cbranch_scc1 K1_B')
    A('s_cmp_ge_u32 s4, 3\ns_cselect_b32 s6, 1, 0')
    A('s_mul_i32 s7, s6, 3\ns_sub_u32 s7, s4, s7')
    A('s_lshl_b32 s7, s7, 3\ns_and_b32 s28, s5, 7\ns_add_u32 s7, s7, s28')
    A('s_lshl_b32 s6, s6, 2\ns_lshr_b32 s28, s5, 3\ns_add_u32 s29, s6, s28')
    A('s_and_b32 s30, s7, 1\ns_lshr_b32 s31, s7, 1\ns_mul_i32 s32, s31, 88')
    A('s_cmp_ge_u32 s3, 4\ns_cbranch_scc0 K1_A_CONS')
    a1_loader(A, cfg)
    A('K1_A_CONS:')
    a1_consumer(A, cfg)
    A('K1_B:')
    A('s_sub_u32 s6, s4, 6\ns_lshl_b32 s6, s6, 3\ns_and_b32 s7, s5, 7\ns_add_u32 s29, s6, s7')
    A('s_lshr_b32 s30, s5, 3')
    A('s_cmp_ge_u32 s3, 4\ns_cbranch_scc0 K1_B_CONS')
    b1_loader(A, cfg)
    A('K1_B_CONS:')
    b1_consumer(A, cfg)
    A('K1_END:\ns_endpgm')

def a1_loader(A, cfg):
    A('s_sub_u32 s33, s3, 4')
    A('s_mul_i32 s6, s33, 24')
    for j in range(3):
        A(f'v_add_u32 v7, s6, v5\nv_add_u32 v7, {8*j}, v7')
        A('v_lshrrev_b32 v8, 1, v7\nv_and_b32 v8, 7, v8\nv_xor_b32 v8, v8, v6\nv_lshlrev_b32 v8, 4, v8')
        A('v_add_u32 v7, s32, v7\nv_lshlrev_b32 v7, 1, v7\nv_add_u32 v7, s30, v7')
        A(f'v_lshl_add_u32 v{10+j}, v7, 10, v8')
    A('s_lshl_b32 s6, s33, 4\ns_lshl_b32 s7, s29, 7\ns_movk_i32 s28, 3072')
    for par in range(2):
        A(f'v_add_u32 v7, s6, v5\nv_add_u32 v7, {8*par}, v7')
        A('v_mul_lo_u32 v7, v7, s28\nv_add_u32 v7, s7, v7')
        A(f'v_and_b32 v8, 1, v4\nv_or_b32 v8, {2*par}, v8\nv_lshlrev_b32 v8, 1, v8\nv_xor_b32 v8, v8, v6')
        A(f'v_lshl_add_u32 v{13+par}, v8, 4, v7')
    A('s_mul_i32 s34, s33, 3072')
    A('s_mul_i32 s35, s33, 6144\ns_add_u32 s35, s35, 12288')
    A('s_waitcnt lgkmcnt(0)')
    srd(A, 8, P_AX, 0x200000); srd(A, 12, P_WQKV, 0x180000)
    stamp(A, cfg, 1)
    def issue(c, j):
        base = (c % 4) * A1_SLOT
        if j < 3:
            if j == 0: A(f's_mov_b32 s6, {c*128}')
            A(f's_add_u32 m0, s34, {base + j*1024}\ns_nop 0')
            A(f'buffer_load_dwordx4 v{10+j}, s[8:11], s6 offen lds')
        else:
            par, seg = divmod(j - 3, 3)
            if j == 3: A(f's_mov_b32 s7, {c*196608}')
            if seg == 0: A(f's_add_u32 m0, s35, {base + par*3072}\ns_nop 0')
            A(f'buffer_load_dwordx4 v{13+par}, s[12:15], s7 offen offset:{seg*1024} lds')
    loader_loop(A, 9, 8, cfg.xa, issue)
    stamp_store(A, cfg, 0, 3, 8)
    A('s_endpgm')

def a1_consumer(A, cfg):
    AX, AW = 20, 28
    ST, MD, MP, BD, ONES = 32, 36, 40, 44, 46
    FR, ACC = 48, 120
    A('v_lshrrev_b32 v7, 1, v3\nv_xor_b32 v7, v7, v4\nv_lshlrev_b32 v7, 4, v7\nv_lshl_add_u32 v7, v3, 7, v7')
    A('v_xor_b32 v8, 64, v7')
    for s in range(4):
        A(f'v_add_u32 v{AX+2*s}, {s*A1_SLOT}, v7\nv_add_u32 v{AX+2*s+1}, {s*A1_SLOT}, v8')
    A('v_bfe_u32 v7, v2, 2, 2')
    A('v_lshrrev_b32 v8, 1, v7\nv_and_b32 v9, 1, v4\nv_lshl_or_b32 v8, v9, 1, v8')
    A('v_xor_b32 v8, s3, v8\nv_lshlrev_b32 v8, 5, v8\nv_lshl_add_u32 v8, v7, 7, v8')
    A('v_and_b32 v9, 3, v2\nv_lshl_add_u32 v8, v9, 3, v8')
    A('v_mul_u32_u24 v9, 3072, v4\nv_add_u32 v8, v8, v9')
    for s in range(4): A(f'v_add_u32 v{AW+s}, {s*A1_SLOT+12288}, v8')
    A('v_lshlrev_b32 v7, 2, v4\nv_sub_u32 v7, v3, v7')
    A('v_mov_b32 v9, 0xf149f2ca')
    A('v_mov_b32 v10, 0xffff\nv_mov_b32 v11, 0xffff0000')
    for i in range(4):
        A(f'v_subrev_u32 v8, {i}, v7')
        A(f'v_cmp_le_u32 vcc, 8, v8\ns_nop 1\nv_cndmask_b32 v{MD+i}, 0, v9, vcc')
        A(f'v_cmp_lt_i32 vcc, -9, v8\ns_nop 1\nv_cndmask_b32 v{MP+i}, 0, v9, vcc')
        A(f'v_cmp_le_i32 vcc, 0, v8\ns_nop 1\nv_cndmask_b32 v{12+i}, 0, v{10+(i&1)}, vcc')
    A(f'v_or_b32 v{BD}, v12, v13\nv_or_b32 v{BD+1}, v14, v15')
    A(f'v_mov_b32 v{ONES}, 0x3f803f80\nv_mov_b32 v{ONES+1}, 0x3f803f80')
    A('s_lshl_b32 s6, s29, 2\ns_add_u32 s6, s6, s3')
    A('s_lshr_b32 s7, s6, 1\ns_lshl_b32 s7, s7, 10\ns_and_b32 s6, s6, 1\ns_lshl_b32 s6, s6, 9\ns_add_u32 s6, s6, s7')
    A('s_lshl_b32 s7, s30, 20\ns_add_u32 s6, s6, s7')
    A('s_cmp_eq_u32 s31, 0\ns_cselect_b32 s7, 0, 8')
    A('v_and_b32 v7, 1, v4\nv_lshl_add_u32 v7, v7, 4, v3')
    A('v_lshrrev_b32 v8, 1, v4\nv_lshlrev_b32 v8, 8, v8\nv_add_u32 v8, s6, v8')
    A(f'v_mov_b32 v12, {OOB:#x}')
    for u in range(3):
        A(f'v_add_u32 v9, {32*u}, v7\nv_add_u32 v10, s32, v9')
        A('v_lshrrev_b32 v11, 4, v10\nv_lshl_add_u32 v11, v11, 14, v8\nv_and_b32 v13, 15, v10\nv_lshl_add_u32 v11, v13, 4, v11')
        A('v_cmp_gt_u32 vcc, s7, v9\ns_nop 1\nv_cndmask_b32 v11, v11, v12, vcc')
        A(f'v_cmp_le_u32 vcc, 0x400, v10\ns_nop 1\nv_cndmask_b32 v{ST+u}, v11, v12, vcc')
    A('s_mov_b32 s34, 0x3eb8aa3b')
    A('s_waitcnt lgkmcnt(0)')
    srd_off(A, 8, P_WS, WS_O, 0x200000)
    def reads(ks):
        c, h = divmod(ks, 2); s = c % 4; f = FR + 36 * (ks & 1); R = []
        def w(seg): return [f'ds_read_b64_tr_b16 {vr(f+24+4*seg+2*u,2)}, v{AW+s} offset:{h*12288+seg*1024+u*512}' for u in range(2)]
        R += w(0)
        R += [f'ds_read_b128 {vr(f+4*t,4)}, v{AX+2*s+h} offset:{t*2048}' for t in range(6)]
        R += w(1) + w(2)
        return R
    def mfmas(ks):
        f = FR + 36 * (ks & 1); M = []
        for seg in range(3):
            for t in range(6):
                d = ACC + 24 * seg + 4 * t; c = d if ks else None
                if seg < 2: M.append(lambda d=d, a=f+24+4*seg, b=f+4*t, c=c: mfma32(A, d, a, b, c))
                else:       M.append(lambda d=d, a=f+4*t, b=f+24+4*seg, c=c: mfma32(A, d, a, b, c))
        return M
    A('s_barrier')
    stamp(A, cfg, 1)
    for r in reads(0): A(r)
    for ks in range(16):
        A('s_waitcnt lgkmcnt(0)')
        M = mfmas(ks)
        if ks == 15: interleave(A, M, [])
        elif ks & 1:
            pre = cfg.pre
            for m in M[:pre]: m()
            A('s_barrier')
            interleave(A, M[pre:], reads(ks + 1), per_gap=2 if pre > 2 else 1)
        else: interleave(A, M, reads(ks + 1))
    stamp(A, cfg, 2)
    QP, KP, VP, SD, SP, MX, PK, PO, OO, SM, OP = 48, 60, 72, 192, 216, 86, 98, 120, 144, 168, 48
    for t in range(6):
        cvt(A, QP+2*t, ACC+4*t, ACC+4*t+1); cvt(A, QP+2*t+1, ACC+4*t+2, ACC+4*t+3)
    for t in range(6):
        cvt(A, KP+2*t, ACC+24+4*t, ACC+24+4*t+1); cvt(A, KP+2*t+1, ACC+24+4*t+2, ACC+24+4*t+3)
    A(f'v_mov_b32 v{VP}, 0\nv_mov_b32 v{VP+1}, 0')
    M = []
    for t in range(6):
        M.append(lambda t=t: mfma16(A, SD+4*t, KP+2*t, QP+2*t, MD))
        if t: M.append(lambda t=t: mfma16(A, SP+4*t, KP+2*t-2, QP+2*t, MP))
    V = []
    for t in range(6):
        V.append(f'v_cvt_pk_bf16_f32 v{VP+2+2*t}, v{ACC+48+4*t}, v{ACC+48+4*t+1}')
        V.append(f'v_cvt_pk_bf16_f32 v{VP+3+2*t}, v{ACC+48+4*t+2}, v{ACC+48+4*t+3}')
    interleave(A, M, V)
    for t in range(6):
        if t:
            for i in range(4): A(f'v_max_f32 v{SD+4*t+i}, v{SD+4*t+i}, v{SP+4*t+i}')
        A(f'v_max3_f32 v{MX+t}, v{SD+4*t}, v{SD+4*t+1}, v{SD+4*t+2}')
        A(f'v_max_f32 v{MX+t}, v{MX+t}, v{SD+4*t+3}')
    A('s_nop 1')
    for u in range(3): A(f'v_permlane32_swap_b32 v{MX+2*u}, v{MX+2*u+1}')
    for u in range(3): A(f'v_max_f32 v{MX+2*u}, v{MX+2*u}, v{MX+2*u+1}')
    for u in range(3): A(f'v_mov_b32 v{MX+2*u+1}, v{MX+2*u}')
    A('s_nop 0')
    for u in range(3): A(f'v_permlane16_swap_b32 v{MX+2*u}, v{MX+2*u+1}' + ('\ns_nop 0' if u < 0 else ''))
    for u in range(3): A(f'v_max_f32 v{MX+2*u}, v{MX+2*u}, v{MX+2*u+1}')
    for u in range(3): A(f'v_mul_f32 v{MX+2*u}, s34, v{MX+2*u}')
    for u in range(3): A(f'v_mov_b32 v{MX+2*u+1}, v{MX+2*u}')
    A('s_nop 0')
    for u in range(3): A(f'v_permlane32_swap_b32 v{MX+2*u}, v{MX+2*u+1}')
    for t in range(6):
        for i in range(4): A(f'v_fma_f32 v{SD+4*t+i}, v{SD+4*t+i}, s34, -v{MX+t}')
    for t in range(6):
        for i in range(4): A(f'v_exp_f32 v{SD+4*t+i}, v{SD+4*t+i}')
    for t in range(6):
        cvt(A, PK+2*t, SD+4*t, SD+4*t+1); cvt(A, PK+2*t+1, SD+4*t+2, SD+4*t+3)
    for t in range(6):
        A(f'v_and_b32 v{PO+4*t+2}, v{PK+2*t}, v{BD}\nv_and_b32 v{PO+4*t+3}, v{PK+2*t+1}, v{BD+1}')
        A(f'v_xor_b32 v{PO+4*t}, v{PK+2*t}, v{PO+4*t+2}\nv_xor_b32 v{PO+4*t+1}, v{PK+2*t+1}, v{PO+4*t+3}')
        mfma16(A, SM+4*t, ONES, PK+2*t, None)
    A('s_nop 0')
    for t in range(6): mfma32(A, OO+4*t, VP+2*t, PO+4*t, None)
    A('s_nop 1')
    for t in range(6): A(f'v_rcp_f32 v{MX+t}, v{SM+4*t}')
    A('s_nop 1')
    for t in range(6):
        for i in range(4): A(f'v_mul_f32 v{OO+4*t+i}, v{OO+4*t+i}, v{MX+t}')
    for t in range(6):
        cvt(A, OP+2*t, OO+4*t, OO+4*t+1); cvt(A, OP+2*t+1, OO+4*t+2, OO+4*t+3)
    A('s_nop 1')
    for u in range(3):
        A(f'v_permlane16_swap_b32 v{OP+4*u}, v{OP+4*u+2}\nv_permlane16_swap_b32 v{OP+4*u+1}, v{OP+4*u+3}')
    for u in range(3):
        A(f'buffer_store_dwordx4 {vr(OP+4*u,4)}, v{ST+u}, s[8:11], 0 offen{cfg.stflag}')
    stamp(A, cfg, 3)
    stamp_store(A, cfg, 0, 5, 8)
    A('s_endpgm')

def b1_loader(A, cfg):
    A('s_sub_u32 s33, s3, 4')
    A('s_lshl_b32 s6, s29, 3\ns_lshl_b32 s7, s33, 1\ns_add_u32 s6, s6, s7')
    A('s_lshl_b32 s7, s30, 6\ns_lshl_b32 s28, s33, 4\ns_add_u32 s7, s7, s28')
    for jj in range(2):
        A(f'v_add_u32 v8, {4*jj}, v4\nv_xor_b32 v8, v8, v6\nv_lshlrev_b32 v8, 4, v8')
        A(f'v_add_u32 v7, {8*jj}, v5')
        A(f'v_lshl_add_u32 v9, v7, 7, s6\nv_lshl_add_u32 v{10+jj}, v9, 10, v8\nv_add_u32 v{12+jj}, 1024, v{10+jj}')
        A(f'v_add_u32 v9, s7, v7\nv_lshl_add_u32 v{14+jj}, v9, 10, v8')
    A('s_lshl_b32 s34, s33, 12')
    A('s_waitcnt lgkmcnt(0)')
    srd(A, 8, P_BX, 0x200000); srd(A, 12, P_DR, 0x80000); srd(A, 16, P_DI, 0x80000)
    stamp(A, cfg, 1)
    def issue(c, j):
        base = (c % 4) * B1_SLOT
        if j == 0: A(f's_mov_b32 s6, {c*128}')
        if j < 4:
            A(f's_add_u32 m0, s34, {base + j*1024}\ns_nop 0')
            A(f'buffer_load_dwordx4 v{10+j}, s[8:11], s6 offen lds')
        else:
            jj = j - 4; r = 12 + 4 * (jj >> 1)
            A(f's_add_u32 m0, s34, {base + 16384 + jj*1024}\ns_nop 0')
            A(f'buffer_load_dwordx4 v{14+(jj&1)}, s[{r}:{r+3}], s6 offen lds')
    loader_loop(A, 8, 8, cfg.xb, issue)
    stamp_store(A, cfg, 0, 3, 8)
    A('s_endpgm')

def b1_consumer(A, cfg):
    AX, AD = 20, 24
    VD, VM, VS, F, CN = 28, 29, 33, 34, 40
    FR, ACC = 44, 124
    A('v_lshrrev_b32 v7, 1, v3\nv_xor_b32 v7, v7, v4\nv_lshlrev_b32 v7, 4, v7')
    A(f'v_lshl_add_u32 v{AX}, v3, 7, v7\nv_xor_b32 v{AX+1}, 64, v{AX}')
    A(f'v_add_u32 v{AX+2}, 0x10000, v{AX}\nv_add_u32 v{AX+3}, 0x10000, v{AX+1}')
    A('s_lshl_b32 s6, s3, 12')
    for i in range(4): A(f'v_add_u32 v{AD+i}, s6, v{AX+i}')
    A('s_or_b32 s6, s30, s3\ns_cmp_eq_u32 s6, 0\ns_cselect_b32 s32, 0x10001, 0\ns_mov_b32 s33, s32\ns_cselect_b32 s31, 1, 0')
    A(f'v_mov_b32 v{CN}, 0xbf803f80')
    A('s_lshr_b32 s6, s29, 1\ns_lshl_b32 s6, s6, 15\ns_and_b32 s7, s29, 1\ns_lshl_b32 s7, s7, 9\ns_add_u32 s34, s6, s7')
    A('s_lshl_b32 s6, s30, 2\ns_add_u32 s6, s6, s3')
    A('s_lshl_b32 s7, s6, 10\ns_lshl_b32 s6, s6, 4')
    A(f'v_lshlrev_b32 v7, 20, v4\nv_lshl_add_u32 v8, v3, 4, v7\nv_add_u32 v{VD}, s7, v8')
    A(f'v_mov_b32 v12, {OOB:#x}')
    A(f'v_add_u32 v9, 0x4000, v7\nv_cmp_ne_u32 vcc, 0, v3\ns_nop 1\nv_cndmask_b32 v{VS}, v9, v12, vcc')
    A('v_add_u32 v8, s6, v3\nv_sub_u32 v9, 0x200, v8')
    A('v_lshrrev_b32 v10, 4, v9\nv_lshlrev_b32 v10, 10, v10\nv_and_b32 v9, 15, v9\nv_lshl_add_u32 v10, v9, 4, v10')
    A('v_cmp_eq_u32 vcc, 0, v8\nv_lshlrev_b32 v7, 2, v4')
    for i in range(4):
        A(f'v_sub_u32 v9, {16-i}, v7\nv_and_b32 v9, 15, v9\nv_lshl_add_u32 v9, v9, 18, v10')
        A(f'v_cndmask_b32 v{VM+i}, v9, v12, vcc')
    A('v_lshlrev_b32 v7, 19, v3\nv_lshl_add_u32 v7, v4, 3, v7')
    A('s_waitcnt lgkmcnt(0)')
    srd(A, 12, P_CR, 0x800000); srd(A, 16, P_CI, 0x800000)
    srd_off(A, 8, P_WS, WS_Z, 0x400000)
    A(f'buffer_load_dwordx2 {vr(F,2)}, v7, s[12:15], 0 offen\nbuffer_load_dwordx2 {vr(F+2,2)}, v7, s[16:19], 0 offen')
    for i in range(4): A(f's_add_u32 s{60+i}, s34, {i*0x40000}')
    def reads(ks):
        c, h = divmod(ks, 2); s = c % 4; f = FR + 40 * (ks & 1); a = 2 * (s >> 1) + h; o = (s & 1) * B1_SLOT
        R = [f'ds_read_b128 {vr(f+32+4*n,4)}, v{AD+a} offset:{o+16384+n*2048}' for n in range(2)]
        R += [f'ds_read_b128 {vr(f+4*m,4)}, v{AX+a} offset:{o+m*2048}' for m in range(8)]
        return R
    def mfmas(ks):
        f = FR + 40 * (ks & 1); M = []
        for n in range(2):
            for m in range(8):
                d = ACC + 8 * m + 4 * n
                M.append(lambda d=d, a=f+4*m, b=f+32+4*n, c=(d if ks else None): mfma32(A, d, a, b, c))
        return M
    A('s_barrier')
    stamp(A, cfg, 1)
    for r in reads(0): A(r)
    for ks in range(16):
        A('s_waitcnt lgkmcnt(0)')
        M = mfmas(ks); f = FR + 40 * (ks & 1)
        patch = [f'v_cndmask_b32 v{f+36+i}, v{f+36+i}, v{CN}, s[32:33]' for i in range(4)]
        interleave(A, M[:2], patch, per_gap=2); M = M[2:]
        if ks == 15: interleave(A, M, [])
        elif ks & 1:
            pre = max(0, cfg.pre - 2)
            for m in M[:pre]: m()
            A('s_barrier')
            interleave(A, M[pre:], reads(ks + 1), per_gap=2 if pre > 0 else 1)
        else: interleave(A, M, reads(ks + 1))
    stamp(A, cfg, 2)
    BO, Z, PKR = 44, 188, 76
    A('s_waitcnt vmcnt(0)')
    A(f'v_xor_b32 v{F+2}, 0x80008000, v{F+2}\nv_xor_b32 v{F+3}, 0x80008000, v{F+3}')
    A(f'v_xor_b32 v{F+4}, 0x80008000, v{F}\nv_xor_b32 v{F+5}, 0x80008000, v{F+1}')
    for n in range(2):
        for m in range(8):
            d = ACC + 8 * m + 4 * n
            cvt(A, BO+4*m+2*n, d, d+1); cvt(A, BO+4*m+2*n+1, d+2, d+3)
    def pack_store(addr, soffs, mirror):
        for part in range(2):
            for i in range(4):
                b = PKR + 16 * part + 4 * i
                for q in range(4): cvt(A, b+q, Z+32*part+8*q+i, Z+32*part+8*q+4+i)
                A(f'buffer_store_dwordx4 {vr(b,4)}, v{addr}, s[8:11], s{60+i} offen offset:{256*part}{cfg.stflag}')
                if mirror and part == 0:
                    A(f'buffer_store_dwordx4 {vr(b,4)}, v{VM+i}, s[8:11], s34 offen{cfg.stflag}')
        if mirror:
            for i in range(4):
                b = PKR + 16 + 4 * i
                for q in range(4): A(f'v_xor_b32 v{ACC+4*i+q}, 0x80008000, v{b+q}')
                A(f'buffer_store_dwordx4 {vr(ACC+4*i,4)}, v{VM+i}, s[8:11], s34 offen offset:256{cfg.stflag}')
    A('s_cmp_eq_u32 s31, 0\ns_cbranch_scc1 K1_B_MAIN')
    for part in range(2):
        for m in range(8): mfma16(A, Z+32*part+4*m, F+2*part, BO+4*m+2, None)
    for m in range(8):
        A(f'v_cndmask_b32 v{BO+4*m+2}, v{BO+4*m+2}, 0, s[32:33]\nv_cndmask_b32 v{BO+4*m+3}, v{BO+4*m+3}, 0, s[32:33]')
    pack_store(VS, None, False)
    A('K1_B_MAIN:')
    A('s_nop 1')
    for part in range(2):
        for m in range(8): mfma32(A, Z+32*part+4*m, F+2*part, BO+4*m, None)
    pack_store(VD, None, True)
    stamp(A, cfg, 3)
    stamp_store(A, cfg, 0, 5, 8)
    A('s_endpgm')

K2_STAGE = 98304
def k2_epilogue(A, cfg, ACC, rowshift):
    T = 8
    A('s_nop 7')
    for a in range(2):
        for nt in range(4):
            d = ACC + 16 * a + 4 * nt; p = T + 8 * a + 2 * nt
            cvt(A, p, d, d+1); cvt(A, p+1, d+2, d+3)
            A(f'ds_write_b64 v30, {vr(p,2)} offset:{a*16*144 + nt*32}')
    A('s_waitcnt lgkmcnt(0)')
    for n in range(4): A(f'ds_read_b128 {vr(T+4*n,4)}, v31 offset:{n*8*144}')
    for n in range(4):
        A(f's_waitcnt lgkmcnt({3-n})')
        A(f'buffer_store_dwordx4 {vr(T+4*n,4)}, v32, s[20:23], s{60+n} offen')

def k2_epi_setup(A, rowshift):
    A(f's_mul_i32 s6, s3, {32*144}\ns_add_u32 s6, s6, {K2_STAGE}')
    A('v_mul_u32_u24 v30, 144, v3\nv_lshl_add_u32 v30, v4, 3, v30\nv_add_u32 v30, s6, v30')
    A('v_mul_u32_u24 v31, 144, v5\nv_lshl_add_u32 v31, v6, 4, v31\nv_add_u32 v31, s6, v31')
    A(f'v_lshlrev_b32 v32, {rowshift}, v5\nv_lshl_add_u32 v32, v6, 4, v32')
    for n in range(4): A(f's_add_u32 s{60+n}, s34, {(8*n) << rowshift}')

def k2(A, cfg):
    A(f'.globl k2_kernel\n.p2align 8\n.type k2_kernel,@function\nk2_kernel:')
    A('s_cmp_ge_u32 s2, 256\ns_cbranch_scc1 K2_END')
    stamp(A, cfg, 0)
    A('s_load_dwordx8 s[40:47], s[0:1], 16\ns_load_dwordx2 s[52:53], s[0:1], 64\ns_load_dwordx2 s[56:57], s[0:1], 80')
    A('v_lshrrev_b32 v1, 6, v0\nv_and_b32 v2, 63, v0')
    A('v_readfirstlane_b32 s3, v1')
    A('s_and_b32 s4, s2, 7\ns_lshr_b32 s5, s2, 3')
    A('v_and_b32 v3, 15, v2\nv_lshrrev_b32 v4, 4, v2\nv_lshrrev_b32 v5, 3, v2\nv_and_b32 v6, 7, v2')
    A('s_bfe_u32 s6, s5, 0x10003\ns_lshl_b32 s29, s4, 1\ns_add_u32 s29, s29, s6')
    A('s_and_b32 s30, s5, 7')
    A('v_lshlrev_b32 v33, 4, v2')
    A('s_cmp_ge_u32 s5, 16\ns_cbranch_scc1 K2_B')
    a3(A, cfg)
    A('K2_B:')
    b2(A, cfg)
    A('K2_END:\ns_endpgm')

def a3(A, cfg):
    AW, WF, OF, ACC = 24, 36, 72, 200
    A('s_lshl_b32 s6, s3, 3\nv_add_u32 v7, s6, v5\ns_lshl_b32 s7, s30, 7')
    A('s_and_b32 s28, s3, 1\ns_lshl_b32 s28, s28, 1')
    A('v_and_b32 v8, 1, v4\nv_or_b32 v8, s28, v8\nv_lshlrev_b32 v8, 1, v8\nv_xor_b32 v8, v8, v6\nv_lshlrev_b32 v8, 4, v8')
    A('v_lshl_add_u32 v10, v7, 10, v8\nv_add_u32 v10, s7, v10')
    A('s_lshl_b32 s31, s3, 10')
    A('s_lshl_b32 s6, s29, 3\ns_lshl_b32 s7, s3, 1\ns_add_u32 s6, s6, s7')
    A('s_lshl_b32 s32, s6, 14')
    A('s_waitcnt lgkmcnt(0)')
    srd(A, 8, P_WO, 0x80000); srd_off(A, 12, P_WS, WS_O, 0x200000); srd(A, 20, P_OUT, 0x400000)
    stamp(A, cfg, 1)
    for n in range(16):
        A(f's_add_u32 m0, s31, {n*4096}\ns_mov_b32 s7, {n*32768}')
        A('buffer_load_dwordx4 v10, s[8:11], s7 offen lds')
    def oload(i):
        ks, a = divmod(i, 2)
        return f's_add_u32 s7, s32, {a*16384 + (ks & ~3)*1024}\nbuffer_load_dwordx4 {vr(OF+8*ks+4*a,4)}, v33, s[12:15], s7 offen offset:{(ks&3)*1024}'
    PRE = cfg.opre
    for i in range(PRE): A(oload(i))
    A('v_bfe_u32 v7, v2, 2, 2\nv_lshrrev_b32 v8, 1, v7\nv_and_b32 v9, 1, v4\nv_lshl_or_b32 v8, v9, 1, v8')
    A('v_lshlrev_b32 v9, 10, v4\nv_lshl_add_u32 v9, v7, 7, v9\nv_and_b32 v7, 3, v2\nv_lshl_add_u32 v9, v7, 3, v9')
    for nt in range(4): A(f'v_xor_b32 v7, {nt}, v8\nv_lshl_add_u32 v{AW+nt}, v7, 5, v9')
    A('s_and_b32 s7, s6, 63\ns_lshl_b32 s7, s7, 16\ns_lshr_b32 s6, s6, 6\ns_lshl_b32 s6, s6, 11\ns_add_u32 s34, s6, s7')
    A('s_lshl_b32 s7, s30, 7\ns_add_u32 s34, s34, s7')
    k2_epi_setup(A, 12)
    A(f's_waitcnt vmcnt({PRE})\ns_barrier')
    stamp(A, cfg, 2)
    def reads(ks):
        f = WF + 16 * (ks & 1)
        return [f'ds_read_b64_tr_b16 {vr(f+4*nt+2*u,2)}, v{AW+nt} offset:{ks*4096+u*512}' for nt in range(4) for u in range(2)]
    for r in reads(0): A(r)
    issued = PRE
    for ks in range(16):
        f = WF + 16 * (ks & 1)
        A(f's_waitcnt vmcnt({issued - 2*(ks+1)}) lgkmcnt(0)')
        M = [lambda d=ACC+16*a+4*nt, x=f+4*nt, b=OF+8*ks+4*a, z=ks: mfma32(A, d, x, b, d if z else None) for a in range(2) for nt in range(4)]
        O = reads(ks + 1) if ks < 15 else []
        O = [O[2*i] + '\n' + O[2*i+1] for i in range(len(O)//2)]
        for _ in range(2):
            if issued < 32: O.append(oload(issued)); issued += 1
        interleave(A, M, O)
    stamp(A, cfg, 3)
    k2_epilogue(A, cfg, ACC, 12)
    stamp_store(A, cfg, 1, 5, 4)
    A('s_endpgm')

def b2(A, cfg):
    AM, FR, ACC = 24, 36, 200
    A('s_lshl_b32 s6, s3, 5')
    for jj in range(2):
        A(f'v_add_u32 v8, {4*jj}, v4\nv_xor_b32 v8, v8, v6\nv_lshlrev_b32 v8, 4, v8')
        A(f'v_add_u32 v7, s6, v5\nv_add_u32 v7, {8*jj}, v7\nv_lshl_add_u32 v7, v7, 4, s29\nv_lshl_add_u32 v{10+jj}, v7, 12, v8')
    A('s_lshl_b32 s31, s3, 12\ns_lshl_b32 s33, s3, 10')
    A('s_lshl_b32 s6, s29, 18\ns_lshl_b32 s7, s30, 12\ns_add_u32 s6, s6, s7\ns_add_u32 s32, s6, s33')
    A('s_waitcnt lgkmcnt(0)')
    srd(A, 8, P_CR, 0x800000); srd(A, 16, P_CI, 0x800000); srd_off(A, 12, P_WS, WS_Z, 0x400000); srd(A, 20, P_OUT, 0x400000)
    stamp(A, cfg, 1)
    for half in range(2):
        for kk in range(4):
            k = 4 * half + kk
            A(f's_add_u32 m0, s33, {65536 + k*4096}\ns_add_u32 s7, s32, {k*32768}')
            A('buffer_load_dwordx4 v33, s[12:15], s7 offen lds')
        for mat in range(2):
            for jj in range(4):
                A(f's_add_u32 m0, s31, {(2*mat+half)*16384 + jj*1024}\ns_mov_b32 s7, {(jj>>1)*16*16*4096 + half*128}')
                A(f'buffer_load_dwordx4 v{10+(jj&1)}, s[{8+8*mat}:{11+8*mat}], s7 offen lds')
    A('v_lshrrev_b32 v7, 1, v3\nv_lshrrev_b32 v8, 1, v4\nv_xor_b32 v7, v7, v8')
    A('v_and_b32 v8, 1, v4\nv_lshlrev_b32 v8, 15, v8\nv_lshl_add_u32 v8, v3, 7, v8\nv_add_u32 v8, s31, v8')
    for kk in range(4): A(f'v_xor_b32 v9, {2*kk}, v7\nv_lshl_add_u32 v{AM+kk}, v9, 4, v8')
    A('v_add_u32 v34, 0x10000, v33')
    A('s_lshl_b32 s6, s3, 20\ns_lshl_b32 s7, s29, 11\ns_add_u32 s34, s6, s7\ns_lshl_b32 s7, s30, 7\ns_add_u32 s34, s34, s7\ns_add_u32 s34, s34, 1024')
    k2_epi_setup(A, 15)
    def reads(k):
        f = FR + 24 * (k & 1)
        R = [f'ds_read_b128 {vr(f+16+4*a,4)}, v{AM+(k&3)} offset:{(k>>2)*16384 + a*2048}' for a in range(2)]
        R += [f'ds_read_b128 {vr(f+4*et,4)}, v34 offset:{k*4096 + et*1024}' for et in range(4)]
        return R
    A('s_waitcnt vmcnt(12)\ns_barrier')
    stamp(A, cfg, 2)
    for r in reads(0): A(r)
    for k in range(8):
        f = FR + 24 * (k & 1)
        A('s_waitcnt lgkmcnt(0)')
        M = [lambda d=ACC+16*a+4*et, x=f+4*et, b=f+16+4*a, z=k: mfma32(A, d, x, b, d if z else None) for a in range(2) for et in range(4)]
        if k == 3:
            for m in M: m()
            A('s_waitcnt vmcnt(0)\ns_barrier')
            for r in reads(4): A(r)
        else: interleave(A, M, reads(k + 1) if k < 7 else [], per_gap=2)
    stamp(A, cfg, 3)
    k2_epilogue(A, cfg, ACC, 15)
    stamp_store(A, cfg, 1, 5, 4)
    A('s_endpgm')

def desc(A, name, vgpr):
    A(f'''.p2align 6
.amdhsa_kernel {name}
.amdhsa_next_free_vgpr {vgpr}
.amdhsa_next_free_sgpr 96
.amdhsa_accum_offset {vgpr}
.amdhsa_group_segment_fixed_size 0
.amdhsa_kernarg_size 88
.amdhsa_user_sgpr_count 2
.amdhsa_user_sgpr_kernarg_segment_ptr 1
.amdhsa_system_sgpr_workgroup_id_x 1
.end_amdhsa_kernel''')

def main():
    ap = argparse.ArgumentParser()
    ap.add_argument('-o', default=f'cdna_kernels/{NAME}.s')
    ap.add_argument('--diag', action='store_true')
    ap.add_argument('--xa', type=int, default=13); ap.add_argument('--xb', type=int, default=12)
    ap.add_argument('--pre', type=int, default=4); ap.add_argument('--opre', type=int, default=8)
    ap.add_argument('--stflag', default='')
    cfg = ap.parse_args()
    if cfg.stflag: cfg.stflag = ' ' + cfg.stflag.replace('+', ' ')
    A = Asm()
    A(f'; @launch kernel=k1_kernel grid=(256,1,1) block=(512,1,1) lds={4*A1_SLOT}')
    A(f'; @launch kernel=k2_kernel grid=(256,1,1) block=(256,1,1) lds={K2_STAGE + 4*32*144}')
    A('.amdgcn_target "amdgcn-amd-amdhsa--gfx950"\n.text')
    k1(A, cfg); k2(A, cfg)
    A('.section .rodata,"a"')
    desc(A, 'k1_kernel', 256); desc(A, 'k2_kernel', 256)
    open(cfg.o, 'w').write(A.text())
main()
```

```python
import sys, argparse
NAME = 'concat_heads__sliding_local_dilated__spectral_fnet__prompt'

class Asm:
    def __init__(self): self.L = []
    def __call__(self, s):
        for line in s.split('\n'):
            line = line.strip()
            if line: self.L.append(line if line.endswith(':') or line.startswith('.') or line.startswith(';') else '    ' + line)
    def text(self): return '\n'.join(self.L) + '\n'

def vr(b, n): return f'v[{b}:{b+n-1}]' if n > 1 else f'v{b}'
def srd(A, d, lo, size):
    A(f's_mov_b32 s{d}, s{lo}\ns_mov_b32 s{d+1}, s{lo+1}\ns_mov_b32 s{d+2}, {size:#x}\ns_mov_b32 s{d+3}, 0x20000')
def srd_off(A, d, lo, off, size):
    A(f's_add_u32 s{d}, s{lo}, {off:#x}\ns_addc_u32 s{d+1}, s{lo+1}, 0\ns_mov_b32 s{d+2}, {size:#x}\ns_mov_b32 s{d+3}, 0x20000')
def mfma32(A, d, a, b, c): A(f'v_mfma_f32_16x16x32_bf16 {vr(d,4)}, {vr(a,4)}, {vr(b,4)}, {vr(c,4) if c is not None else 0}')
def mfma16(A, d, a, b, c): A(f'v_mfma_f32_16x16x16_bf16 {vr(d,4)}, {vr(a,2)}, {vr(b,2)}, {vr(c,4) if c is not None else 0}')
def cvt(A, d, a, b): A(f'v_cvt_pk_bf16_f32 v{d}, v{a}, v{b}')

P_AX, P_WQKV, P_WO, P_BX, P_CR, P_CI, P_DR, P_DI, P_OUT, P_DBG, P_WS = 36, 38, 40, 42, 44, 46, 48, 50, 52, 54, 56
WS_O, O_SIZE, WS_Z, Z_SIZE, WS_FLAG, FLAG_SIZE, WS_DIAG = 0, 0x240000, 0x280000, 0x220000, 0x500000, 0x10000, 0x800000
ZROW, ZCLS = 4352, 139264
BFLAG = 192 * 128
OOB = 0x80000000
SPIN = 400000
SLEEP = 0

def interleave(A, mf, other, per_gap=1, start=0):
    oi = 0
    for i, m in enumerate(mf):
        m()
        if i >= start:
            for _ in range(per_gap):
                if oi < len(other): A(other[oi]); oi += 1
    while oi < len(other): A(other[oi]); oi += 1

def stamp(A, cfg, slot):
    if cfg.diag: A(f's_memrealtime s[{64+4*slot}:{65+4*slot}]\ns_memtime s[{66+4*slot}:{67+4*slot}]')
def stamp_store(A, cfg, nslots):
    if not cfg.diag: return
    A('s_waitcnt lgkmcnt(0) vmcnt(0)')
    stamp(A, cfg, nslots - 1)
    A('s_waitcnt lgkmcnt(0)')
    srd_off(A, 24, P_WS, WS_DIAG, 0x100000)
    A(f's_lshl_b32 s4, s2, 3\ns_add_u32 s4, s4, s3\ns_lshl_b32 s4, s4, 6')
    for i in range(8): A(f'v_mov_b32 v{8+i}, s{64+4*min(i, nslots-1)}\nv_mov_b32 v{16+i}, s{66+4*min(i, nslots-1)}')
    A('v_mov_b32 v1, 0\nv_and_b32 v2, 63, v0\nv_cmp_eq_u32 vcc, 0, v2\ns_and_saveexec_b64 s[6:7], vcc')
    for i in range(4): A(f'buffer_store_dwordx4 v[{8+4*i}:{11+4*i}], v1, s[24:27], s4 offen offset:{16*i}')

def loader_loop(A, n_per, nchunks, total, X, issue):
    done = 0
    for c in range(nchunks):
        upto = min(total, n_per * (c + 1) + X[min(c, len(X) - 1)])
        assert upto <= n_per * (c + 3) or c == 0
        while done < upto:
            issue(done // n_per, done % n_per); done += 1
        A(f's_waitcnt vmcnt({done - n_per * (c + 1)})')
        A('s_barrier')
    while done < total:
        issue(done // n_per, done % n_per); done += 1

def poll(A, label, vdst, vaddr, srdn, soff, want):
    A(f's_mov_b32 s28, 0')
    A(f'{label}:')
    A(f'buffer_load_dword v{vdst}, v{vaddr}, s[{srdn}:{srdn+3}], s{soff} offen sc1')
    A(f's_add_u32 s28, s28, 1\ns_cmp_ge_u32 s28, {SPIN}\ns_cbranch_scc1 {label}_X')
    A('s_waitcnt vmcnt(0)')
    A(f'v_cmp_ne_u32 vcc, {want}, v{vdst}')
    A(f's_cmp_eq_u64 vcc, 0\ns_cbranch_scc1 {label}_X')
    if SLEEP: A(f's_sleep {SLEEP}')
    A(f's_branch {label}')
    A(f'{label}_X:')

A1_SLOT = 36864
B1_SLOT = 32768

def flag_setup(A, V0, V1, VS0):
    A(f'v_mov_b32 v{V0}, 0\nv_mov_b32 v{V1}, 1\nv_mov_b32 v{VS0}, {OOB:#x}\nv_cmp_ne_u32 vcc, 0, v0\ns_nop 1\nv_cndmask_b32 v{VS0}, 0, v{VS0}, vcc')

def kernel(A, cfg):
    A(f'.globl {NAME}_kernel\n.p2align 8\n.type {NAME}_kernel,@function\n{NAME}_kernel:')
    A('s_load_dwordx16 s[36:51], s[0:1], 0\ns_load_dwordx4 s[52:55], s[0:1], 64\ns_load_dwordx2 s[56:57], s[0:1], 80')
    A('s_cmp_ge_u32 s2, 256\ns_cbranch_scc1 K_END')
    stamp(A, cfg, 0)
    A('v_lshrrev_b32 v1, 6, v0\nv_and_b32 v2, 63, v0')
    A('v_readfirstlane_b32 s3, v1')
    A('s_and_b32 s4, s2, 7\ns_lshr_b32 s5, s2, 3')
    A('v_and_b32 v3, 15, v2\nv_lshrrev_b32 v4, 4, v2')
    A('v_lshrrev_b32 v5, 3, v2\nv_and_b32 v6, 7, v2')
    A('s_cmp_ge_u32 s4, 6\ns_cbranch_scc1 K_B')
    A('s_cmp_ge_u32 s4, 3\ns_cselect_b32 s6, 1, 0')
    A('s_mul_i32 s7, s6, 3\ns_sub_u32 s7, s4, s7')
    A('s_lshl_b32 s7, s7, 3\ns_and_b32 s28, s5, 7\ns_add_u32 s59, s7, s28')
    A('s_lshl_b32 s6, s6, 2\ns_lshr_b32 s28, s5, 3\ns_add_u32 s29, s6, s28')
    A('s_and_b32 s30, s59, 1\ns_lshr_b32 s31, s59, 1\ns_mul_i32 s32, s31, 88')
    A('s_cmp_ge_u32 s3, 4\ns_cbranch_scc0 K_A_CONS')
    a_loader(A, cfg)
    A('K_A_CONS:')
    a_consumer(A, cfg)
    A('K_B:')
    A('s_sub_u32 s6, s4, 6\ns_lshl_b32 s6, s6, 3\ns_and_b32 s7, s5, 7\ns_add_u32 s29, s6, s7')
    A('s_lshr_b32 s30, s5, 3')
    A('s_cmp_ge_u32 s3, 4\ns_cbranch_scc0 K_B_CONS')
    b_loader(A, cfg)
    A('K_B_CONS:')
    b_consumer(A, cfg)
    A('K_END:\ns_endpgm')

def a_loader(A, cfg):
    A('s_sub_u32 s33, s3, 4')
    A('s_mul_i32 s6, s33, 24')
    for j in range(3):
        A(f'v_add_u32 v7, s6, v5\nv_add_u32 v7, {8*j}, v7')
        A('v_lshrrev_b32 v8, 1, v7\nv_and_b32 v8, 7, v8\nv_xor_b32 v8, v8, v6\nv_lshlrev_b32 v8, 4, v8')
        A('v_add_u32 v7, s32, v7\nv_lshlrev_b32 v7, 1, v7\nv_add_u32 v7, s30, v7')
        A(f'v_lshl_add_u32 v{10+j}, v7, 10, v8')
    A('s_lshl_b32 s6, s33, 4\ns_lshl_b32 s7, s29, 7\ns_movk_i32 s28, 3072')
    for par in range(2):
        A(f'v_add_u32 v7, s6, v5\nv_add_u32 v7, {8*par}, v7')
        A('v_mul_lo_u32 v7, v7, s28\nv_add_u32 v7, s7, v7')
        A(f'v_and_b32 v8, 1, v4\nv_or_b32 v8, {2*par}, v8\nv_lshlrev_b32 v8, 1, v8\nv_xor_b32 v8, v8, v6')
        A(f'v_lshl_add_u32 v{13+par}, v8, 4, v7')
    A('s_mul_i32 s34, s33, 3072')
    A('s_mul_i32 s35, s33, 6144\ns_add_u32 s35, s35, 12288')
    A('s_lshl_b32 s6, s33, 3\nv_add_u32 v7, s6, v5')
    A('s_and_b32 s28, s33, 1\ns_lshl_b32 s28, s28, 1')
    A('v_and_b32 v8, 1, v4\nv_or_b32 v8, s28, v8\nv_lshlrev_b32 v8, 1, v8\nv_xor_b32 v8, v8, v6\nv_lshlrev_b32 v8, 4, v8')
    A('v_lshl_add_u32 v15, v7, 10, v8\nv_add_u32 v15, s7, v15')
    A('s_lshl_b32 s58, s33, 10')
    A('s_waitcnt lgkmcnt(0)')
    srd(A, 8, P_AX, 0x200000); srd(A, 12, P_WQKV, 0x180000); srd(A, 16, P_WO, 0x80000)
    stamp(A, cfg, 1)
    def issue(c, j):
        base = (c % 4) * A1_SLOT
        if c >= 8:
            n = (c - 8) * 9 + j
            A(f's_add_u32 m0, s58, {n*4096}\ns_mov_b32 s6, {n*32768}')
            A('buffer_load_dwordx4 v15, s[16:19], s6 offen lds')
        elif j < 3:
            if j == 0: A(f's_mov_b32 s6, {c*128}')
            A(f's_add_u32 m0, s34, {base + j*1024}\ns_nop 0')
            A(f'buffer_load_dwordx4 v{10+j}, s[8:11], s6 offen lds')
        else:
            par, seg = divmod(j - 3, 3)
            if j == 3: A(f's_mov_b32 s7, {c*196608}')
            if seg == 0: A(f's_add_u32 m0, s35, {base + par*3072}\ns_nop 0')
            A(f'buffer_load_dwordx4 v{13+par}, s[12:15], s7 offen offset:{seg*1024} lds')
    loader_loop(A, 9, 8, 72 + 16, cfg.xa, issue)
    stamp(A, cfg, 2)
    AW, WF, OF, ACC = 24, 36, 72, 200
    STAGE = 2 * A1_SLOT
    srd_off(A, 8, P_WS, WS_FLAG, FLAG_SIZE); srd_off(A, 12, P_WS, WS_O, O_SIZE); srd(A, 20, P_OUT, 0x400000); srd(A, 24, P_DBG, 256)
    A('v_bfe_u32 v7, v2, 2, 2\nv_lshrrev_b32 v8, 1, v7\nv_and_b32 v9, 1, v4\nv_lshl_or_b32 v8, v9, 1, v8')
    A('v_lshlrev_b32 v9, 10, v4\nv_lshl_add_u32 v9, v7, 7, v9\nv_and_b32 v7, 3, v2\nv_lshl_add_u32 v9, v7, 3, v9')
    for nt in range(4): A(f'v_xor_b32 v7, {nt}, v8\nv_lshl_add_u32 v{AW+nt}, v7, 5, v9')
    A('v_lshlrev_b32 v33, 4, v2')
    A(f's_mul_i32 s6, s33, {32*144}\ns_add_u32 s6, s6, {STAGE}')
    A('v_mul_u32_u24 v30, 144, v3\nv_lshl_add_u32 v30, v4, 3, v30\nv_add_u32 v30, s6, v30')
    A('v_mul_u32_u24 v31, 144, v5\nv_lshl_add_u32 v31, v6, 4, v31\nv_add_u32 v31, s6, v31')
    A('v_lshlrev_b32 v32, 12, v5\nv_lshl_add_u32 v32, v6, 4, v32')
    A('s_lshl_b32 s6, s33, 5\ns_add_u32 s6, s6, s32\ns_lshl_b32 s6, s6, 12\ns_lshl_b32 s7, s30, 11\ns_add_u32 s6, s6, s7\ns_lshl_b32 s7, s29, 7\ns_add_u32 s34, s6, s7')
    for n in range(4): A(f's_add_u32 s{60+n}, s34, {(8*n) << 12}')
    A('s_cmp_lg_u32 s31, 0\ns_cselect_b32 s6, 1, 0\ns_cmp_eq_u32 s33, 0\ns_cselect_b32 s6, s6, 0\ns_cmp_lg_u32 s6, 0\ns_cselect_b32 s60, 0x40000000, s60')
    A(f's_mul_i32 s35, s59, {6*16384}\ns_lshl_b32 s6, s33, 15\ns_add_u32 s35, s35, s6')
    A(f'v_mov_b32 v7, 0\ns_mov_b32 s6, 0')
    A(f'v_lshlrev_b32 v8, 7, v6\ns_lshl_b32 s7, s59, 10')
    poll(A, 'K_A_RDY', 9, 7, 24, 6, 1)
    A('s_waitcnt vmcnt(0)\ns_barrier')
    A('s_cmp_eq_u32 s33, 3\ns_cbranch_scc1 K_A_LDONE')
    stamp(A, cfg, 3)
    def reads(ks):
        f = WF + 16 * (ks & 1)
        return [f'ds_read_b64_tr_b16 {vr(f+4*nt+2*u,2)}, v{AW+nt} offset:{ks*4096+u*512}' for nt in range(4) for u in range(2)]
    for r in reads(0): A(r)
    poll(A, 'K_A_POLL', 9, 8, 8, 7, 1)
    stamp(A, cfg, 4)
    def oload(i):
        ks, a = divmod(i, 2)
        return f's_add_u32 s7, s35, {a*16384 + (ks & ~3)*1024}\nbuffer_load_dwordx4 {vr(OF+8*ks+4*a,4)}, v33, s[12:15], s7 offen offset:{(ks&3)*1024} sc1'
    issued = cfg.opre
    for i in range(issued): A(oload(i))
    for ks in range(16):
        f = WF + 16 * (ks & 1)
        A(f's_waitcnt vmcnt({issued - 2*(ks+1)}) lgkmcnt(0)')
        if ks == 0: stamp(A, cfg, 5)
        M = [lambda d=ACC+16*a+4*nt, x=f+4*nt, b=OF+8*ks+4*a, z=ks: mfma32(A, d, x, b, d if z else None) for a in range(2) for nt in range(4)]
        O = reads(ks + 1) if ks < 15 else []
        O = [O[2*i] + '\n' + O[2*i+1] for i in range(len(O)//2)]
        for _ in range(2):
            if issued < 32: O.append(oload(issued)); issued += 1
        interleave(A, M, O)
    stamp(A, cfg, 6)
    T = 8
    A('s_nop 3')
    for a in range(2):
        for nt in range(4):
            d = ACC + 16 * a + 4 * nt; p = T + 8 * a + 2 * nt
            cvt(A, p, d, d+1); cvt(A, p+1, d+2, d+3)
            A(f'ds_write_b64 v30, {vr(p,2)} offset:{a*16*144 + nt*32}')
    A('s_waitcnt lgkmcnt(0)')
    for n in range(4): A(f'ds_read_b128 {vr(T+4*n,4)}, v31 offset:{n*8*144}')
    for n in range(4):
        A(f's_waitcnt lgkmcnt({3-n})')
        A(f'buffer_store_dwordx4 {vr(T+4*n,4)}, v32, s[20:23], s{60+n} offen{cfg.outflag}')
    A('K_A_LDONE:')
    stamp_store(A, cfg, 8)
    A('s_endpgm')

def a_consumer(A, cfg):
    AX, AW = 20, 28
    ST, MD, MP, BD, ONES = 32, 36, 40, 44, 46
    V0, V1, VS0 = 33, 34, 35
    FR, ACC = 48, 120
    flag_setup(A, V0, V1, VS0)
    A('s_lshl_b32 s58, s59, 3\ns_add_u32 s58, s58, s29\ns_lshl_b32 s58, s58, 7')
    A('s_waitcnt lgkmcnt(0)')
    srd_off(A, 16, P_WS, WS_FLAG, FLAG_SIZE); srd(A, 20, P_DBG, 256); srd_off(A, 8, P_WS, WS_O, O_SIZE)
    A('s_or_b32 s6, s2, s3\ns_cmp_lg_u32 s6, 0\ns_cbranch_scc1 K_A_NOCLR')
    A('v_lshlrev_b32 v7, 7, v2')
    for i in range(4): A(f's_mov_b32 s6, {i*8192}\nbuffer_store_dword v{V0}, v7, s[16:19], s6 offen sc1')
    A(f's_waitcnt vmcnt(0)\nbuffer_store_dword v{V1}, v{VS0}, s[20:23], 0 offen sc1')
    A('K_A_NOCLR:')
    A('v_lshrrev_b32 v7, 1, v3\nv_xor_b32 v7, v7, v4\nv_lshlrev_b32 v7, 4, v7\nv_lshl_add_u32 v7, v3, 7, v7')
    A('v_xor_b32 v8, 64, v7')
    for s in range(4):
        A(f'v_add_u32 v{AX+2*s}, {s*A1_SLOT}, v7\nv_add_u32 v{AX+2*s+1}, {s*A1_SLOT}, v8')
    A('v_bfe_u32 v7, v2, 2, 2')
    A('v_lshrrev_b32 v8, 1, v7\nv_and_b32 v9, 1, v4\nv_lshl_or_b32 v8, v9, 1, v8')
    A('v_xor_b32 v8, s3, v8\nv_lshlrev_b32 v8, 5, v8\nv_lshl_add_u32 v8, v7, 7, v8')
    A('v_and_b32 v9, 3, v2\nv_lshl_add_u32 v8, v9, 3, v8')
    A('v_mul_u32_u24 v9, 3072, v4\nv_add_u32 v8, v8, v9')
    for s in range(4): A(f'v_add_u32 v{AW+s}, {s*A1_SLOT+12288}, v8')
    A('v_lshlrev_b32 v7, 2, v4\nv_sub_u32 v7, v3, v7')
    A('v_mov_b32 v9, 0xf149f2ca')
    A('v_mov_b32 v10, 0xffff\nv_mov_b32 v11, 0xffff0000')
    for i in range(4):
        A(f'v_subrev_u32 v8, {i}, v7')
        A(f'v_cmp_le_u32 vcc, 8, v8\ns_nop 1\nv_cndmask_b32 v{MD+i}, 0, v9, vcc')
        A(f'v_cmp_lt_i32 vcc, -9, v8\ns_nop 1\nv_cndmask_b32 v{MP+i}, 0, v9, vcc')
        A(f'v_cmp_le_i32 vcc, 0, v8\ns_nop 1\nv_cndmask_b32 v{12+i}, 0, v{10+(i&1)}, vcc')
    A(f'v_or_b32 v{BD}, v12, v13\nv_or_b32 v{BD+1}, v14, v15')
    A(f'v_mov_b32 v{ONES}, 0x3f803f80\nv_mov_b32 v{ONES+1}, 0x3f803f80')
    A('s_lshl_b32 s6, s29, 2\ns_add_u32 s6, s6, s3\ns_lshl_b32 s6, s6, 9')
    A(f's_mul_i32 s7, s59, {6*16384}\ns_add_u32 s60, s6, s7\ns_add_u32 s61, s60, 0x8000\ns_add_u32 s62, s60, 0x10000')
    A('v_and_b32 v7, 1, v4\nv_lshlrev_b32 v7, 14, v7\nv_lshrrev_b32 v8, 1, v4\nv_lshl_add_u32 v7, v8, 8, v7')
    A(f'v_lshl_add_u32 v{ST}, v3, 4, v7')
    A('s_mov_b32 s34, 0x3eb8aa3b')
    def reads(ks):
        c, h = divmod(ks, 2); s = c % 4; f = FR + 36 * (ks & 1); R = []
        def w(seg): return [f'ds_read_b64_tr_b16 {vr(f+24+4*seg+2*u,2)}, v{AW+s} offset:{h*12288+seg*1024+u*512}' for u in range(2)]
        R += w(0)
        R += [f'ds_read_b128 {vr(f+4*t,4)}, v{AX+2*s+h} offset:{t*2048}' for t in range(6)]
        R += w(1) + w(2)
        return R
    def mfmas(ks):
        f = FR + 36 * (ks & 1); M = []
        for seg in range(3):
            for t in range(6):
                d = ACC + 24 * seg + 4 * t; c = d if ks else None
                if seg < 2: M.append(lambda d=d, a=f+24+4*seg, b=f+4*t, c=c: mfma32(A, d, a, b, c))
                else:       M.append(lambda d=d, a=f+4*t, b=f+24+4*seg, c=c: mfma32(A, d, a, b, c))
        return M
    A('s_barrier')
    stamp(A, cfg, 1)
    for r in reads(0): A(r)
    for ks in range(16):
        A('s_waitcnt lgkmcnt(0)')
        M = mfmas(ks)
        if ks == 15: interleave(A, M, [])
        elif ks & 1:
            pre = cfg.pre
            for m in M[:pre]: m()
            A('s_barrier')
            interleave(A, M[pre:], reads(ks + 1), per_gap=2 if pre > 2 else 1)
        else:
            R = reads(ks + 1)
            interleave(A, M, R)
    stamp(A, cfg, 2)
    QP, KP, VP, SD, SP, MX, PK, PO, OO, SM, OP = 48, 60, 72, 192, 216, 86, 98, 120, 144, 168, 48
    for t in range(6):
        cvt(A, QP+2*t, ACC+4*t, ACC+4*t+1); cvt(A, QP+2*t+1, ACC+4*t+2, ACC+4*t+3)
    for t in range(6):
        cvt(A, KP+2*t, ACC+24+4*t, ACC+24+4*t+1); cvt(A, KP+2*t+1, ACC+24+4*t+2, ACC+24+4*t+3)
    A(f'v_mov_b32 v{VP}, 0\nv_mov_b32 v{VP+1}, 0')
    M = []
    for t in range(6):
        M.append(lambda t=t: mfma16(A, SD+4*t, KP+2*t, QP+2*t, MD))
        if t: M.append(lambda t=t: mfma16(A, SP+4*t, KP+2*t-2, QP+2*t, MP))
    V = []
    for t in range(6):
        V.append(f'v_cvt_pk_bf16_f32 v{VP+2+2*t}, v{ACC+48+4*t}, v{ACC+48+4*t+1}')
        V.append(f'v_cvt_pk_bf16_f32 v{VP+3+2*t}, v{ACC+48+4*t+2}, v{ACC+48+4*t+3}')
    interleave(A, M, V)
    for t in range(6):
        if t:
            for i in range(4): A(f'v_max_f32 v{SD+4*t+i}, v{SD+4*t+i}, v{SP+4*t+i}')
        A(f'v_max3_f32 v{MX+t}, v{SD+4*t}, v{SD+4*t+1}, v{SD+4*t+2}')
        A(f'v_max_f32 v{MX+t}, v{MX+t}, v{SD+4*t+3}')
    A('s_nop 1')
    for u in range(3): A(f'v_permlane32_swap_b32 v{MX+2*u}, v{MX+2*u+1}')
    for u in range(3): A(f'v_max_f32 v{MX+2*u}, v{MX+2*u}, v{MX+2*u+1}')
    for u in range(3): A(f'v_mov_b32 v{MX+2*u+1}, v{MX+2*u}')
    A('s_nop 0')
    for u in range(3): A(f'v_permlane16_swap_b32 v{MX+2*u}, v{MX+2*u+1}')
    for u in range(3): A(f'v_max_f32 v{MX+2*u}, v{MX+2*u}, v{MX+2*u+1}')
    for u in range(3): A(f'v_mul_f32 v{MX+2*u}, s34, v{MX+2*u}')
    for u in range(3): A(f'v_mov_b32 v{MX+2*u+1}, v{MX+2*u}')
    A('s_nop 0')
    for u in range(3): A(f'v_permlane32_swap_b32 v{MX+2*u}, v{MX+2*u+1}')
    for t in range(6):
        for i in range(4): A(f'v_fma_f32 v{SD+4*t+i}, v{SD+4*t+i}, s34, -v{MX+t}')
    for t in range(6):
        for i in range(4): A(f'v_exp_f32 v{SD+4*t+i}, v{SD+4*t+i}')
    for t in range(6):
        cvt(A, PK+2*t, SD+4*t, SD+4*t+1); cvt(A, PK+2*t+1, SD+4*t+2, SD+4*t+3)
    for t in range(6):
        A(f'v_and_b32 v{PO+4*t+2}, v{PK+2*t}, v{BD}\nv_and_b32 v{PO+4*t+3}, v{PK+2*t+1}, v{BD+1}')
        A(f'v_xor_b32 v{PO+4*t}, v{PK+2*t}, v{PO+4*t+2}\nv_xor_b32 v{PO+4*t+1}, v{PK+2*t+1}, v{PO+4*t+3}')
        mfma16(A, SM+4*t, ONES, PK+2*t, None)
    A('s_nop 0')
    for t in range(6): mfma32(A, OO+4*t, VP+2*t, PO+4*t, None)
    A('s_nop 1')
    for t in range(6): A(f'v_rcp_f32 v{MX+t}, v{SM+4*t}')
    A('s_nop 1')
    for u in range(3):
        for t in (2*u, 2*u+1):
            for i in range(4): A(f'v_mul_f32 v{OO+4*t+i}, v{OO+4*t+i}, v{MX+t}')
        for t in (2*u, 2*u+1):
            cvt(A, OP+2*t, OO+4*t, OO+4*t+1); cvt(A, OP+2*t+1, OO+4*t+2, OO+4*t+3)
        A('s_nop 1')
        A(f'v_permlane16_swap_b32 v{OP+4*u}, v{OP+4*u+2}\nv_permlane16_swap_b32 v{OP+4*u+1}, v{OP+4*u+3}')
        A(f'buffer_store_dwordx4 {vr(OP+4*u,4)}, v{ST}, s[8:11], s{60+u} offen sc1')
    stamp(A, cfg, 3)
    A('s_waitcnt vmcnt(0)')
    stamp(A, cfg, 4)
    A('s_barrier')
    A(f'buffer_store_dword v{V1}, v{VS0}, s[16:19], s58 offen sc1')
    stamp(A, cfg, 5)
    stamp_store(A, cfg, 7)
    A('s_endpgm')

def b_loader(A, cfg):
    A('s_sub_u32 s33, s3, 4')
    A('s_lshl_b32 s6, s29, 3\ns_lshl_b32 s7, s33, 1\ns_add_u32 s6, s6, s7')
    A('s_lshl_b32 s7, s30, 6\ns_lshl_b32 s28, s33, 4\ns_add_u32 s7, s7, s28')
    A('s_lshr_b32 s31, s29, 1\ns_sub_u32 s32, 16, s31\ns_cmp_eq_u32 s31, 0\ns_cselect_b32 s32, 8, s32\ns_bitcmp1_b32 s29, 0\ns_cselect_b32 s31, s32, s31')
    A('s_lshl_b32 s35, s33, 5')
    for jj in range(2):
        A(f'v_add_u32 v8, {4*jj}, v4\nv_xor_b32 v8, v8, v6\nv_lshlrev_b32 v8, 4, v8')
        A(f'v_add_u32 v7, {8*jj}, v5')
        A(f'v_lshl_add_u32 v9, v7, 7, s6\nv_lshl_add_u32 v{10+jj}, v9, 10, v8\nv_add_u32 v{12+jj}, 1024, v{10+jj}')
        A(f'v_add_u32 v9, s7, v7\nv_lshl_add_u32 v{14+jj}, v9, 10, v8')
        A(f'v_add_u32 v9, s35, v7\nv_lshl_add_u32 v9, v9, 4, s31\nv_lshl_add_u32 v{16+jj}, v9, 12, v8')
    A('s_lshl_b32 s34, s33, 12')
    A('s_waitcnt lgkmcnt(0)')
    srd(A, 8, P_BX, 0x200000); srd(A, 12, P_DR, 0x80000); srd(A, 16, P_DI, 0x80000)
    srd(A, 20, P_CR, 0x800000); srd(A, 24, P_CI, 0x800000)
    stamp(A, cfg, 1)
    def issue(c, j):
        base = (c % 4) * B1_SLOT
        if c >= 8:
            mat = c - 8; half, jj = divmod(j, 4)
            A(f's_add_u32 m0, s34, {(2*mat+half)*16384 + jj*1024}\ns_mov_b32 s6, {(jj>>1)*16*16*4096 + half*128}')
            A(f'buffer_load_dwordx4 v{16+(jj&1)}, s[{20+4*mat}:{23+4*mat}], s6 offen lds')
            return
        if j == 0: A(f's_mov_b32 s6, {c*128}')
        if j < 4:
            A(f's_add_u32 m0, s34, {base + j*1024}\ns_nop 0')
            A(f'buffer_load_dwordx4 v{10+j}, s[8:11], s6 offen lds')
        else:
            jj = j - 4; r = 12 + 4 * (jj >> 1)
            A(f's_add_u32 m0, s34, {base + 16384 + jj*1024}\ns_nop 0')
            A(f'buffer_load_dwordx4 v{14+(jj&1)}, s[{r}:{r+3}], s6 offen lds')
    loader_loop(A, 8, 8, 80, cfg.xb, issue)
    stamp(A, cfg, 2)
    AM, SG, MF, ZF, ACC = 20, 24, 36, 100, 164
    STAGE, PITCH = 65536, 272
    srd_off(A, 8, P_WS, WS_FLAG, FLAG_SIZE); srd_off(A, 12, P_WS, WS_Z, Z_SIZE); srd(A, 16, P_OUT, 0x400000); srd(A, 24, P_DBG, 256)
    A('v_lshrrev_b32 v7, 1, v3\nv_lshrrev_b32 v8, 1, v4\nv_xor_b32 v7, v7, v8')
    A('v_and_b32 v8, 1, v4\nv_lshlrev_b32 v9, 15, v8\nv_lshl_add_u32 v9, v3, 7, v9')
    for kk in range(4): A(f'v_xor_b32 v10, {2*kk}, v7\nv_lshl_add_u32 v{AM+kk}, v10, 4, v9')
    A('s_lshr_b32 s32, s30, 1')
    A('s_sub_u32 s6, 16, s31\ns_and_b32 s6, s6, 15\ns_sub_u32 s7, 3, s30\ns_cmp_lg_u32 s32, 0\ns_cselect_b32 s6, s6, s31\ns_cselect_b32 s7, s7, s30\ns_cselect_b32 s28, 0x80008000, 0')
    A(f'v_mul_lo_u32 v{SG}, v8, s28')
    A(f's_mul_i32 s6, s6, {ZCLS}\ns_lshl_b32 s7, s7, 11\ns_add_u32 s6, s6, s7\ns_lshl_b32 s7, s33, 9\ns_add_u32 s6, s6, s7\ns_lshl_b32 s7, s32, 4\ns_add_u32 s35, s6, s7')
    A(f'v_mul_u32_u24 v25, {ZROW}, v4\nv_lshl_add_u32 v25, v3, 4, v25')
    A(f'v_lshlrev_b32 v7, 3, v4\ns_lshl_b32 s6, s33, 6\nv_add_u32 v7, s6, v7\nv_sub_u32 v10, 248, v7')
    A('s_cmp_lg_u32 s32, 0\ns_cselect_b64 vcc, -1, 0\ns_cselect_b32 s6, -32, 32')
    A(f'v_cndmask_b32 v7, v7, v10, vcc\nv_mul_u32_u24 v10, {PITCH}, v3\nv_add_u32 v7, v7, v10\nv_add_u32 v26, {STAGE}, v7\nv_add_u32 v27, s6, v26')
    A(f's_mul_i32 s6, s33, {32*PITCH}\ns_add_u32 s6, s6, {STAGE}\nv_mul_u32_u24 v28, {PITCH}, v4\nv_lshl_add_u32 v28, v3, 4, v28\nv_add_u32 v28, s6, v28')
    A('v_lshlrev_b32 v29, 15, v4\nv_lshl_add_u32 v29, v3, 4, v29')
    A('s_lshl_b32 s6, s33, 20\ns_lshl_b32 s7, s31, 11\ns_add_u32 s6, s6, s7\ns_lshl_b32 s7, s30, 8\ns_add_u32 s6, s6, s7\ns_add_u32 s34, s6, 1024')
    A(f'v_mov_b32 v7, 0\ns_mov_b32 s6, 0\nv_lshlrev_b32 v8, 7, v2\ns_mov_b32 s7, {BFLAG}')
    poll(A, 'K_B_RDY', 9, 7, 24, 6, 1)
    A('s_waitcnt vmcnt(0)\ns_barrier')
    stamp(A, cfg, 3)
    def reads(k):
        f = MF + 32 * (k & 1)
        return [f'ds_read_b128 {vr(f+4*tt,4)}, v{AM+(k&3)} offset:{(k>>2)*16384 + tt*2048}' for tt in range(8)]
    for r in reads(0): A(r)
    poll(A, 'K_B_POLL', 9, 8, 8, 7, 1)
    stamp(A, cfg, 4)
    for k in range(8):
        A(f's_add_u32 s7, s35, {k*4*ZROW}')
        for a in range(2): A(f'buffer_load_dwordx4 {vr(ZF+8*k+4*a,4)}, v25, s[12:15], s7 offen offset:{a*256} sc1')
    def sign(k): return [f'v_xor_b32 v{ZF+8*k+i}, v{SG}, v{ZF+8*k+i}' for i in range(8)]
    A('s_waitcnt vmcnt(14)')
    stamp(A, cfg, 5)
    for s in sign(0): A(s)
    for k in range(8):
        f = MF + 32 * (k & 1)
        A('s_waitcnt lgkmcnt(0)')
        M = [lambda d=ACC+8*tt+4*a, x=ZF+8*k+4*a, b=f+4*tt, z=k: mfma32(A, d, x, b, d if z else None) for tt in range(8) for a in range(2)]
        O = []
        if k < 7:
            O = reads(k + 1); S = sign(k + 1)
            O += [f's_waitcnt vmcnt({12-2*k})\n' + S[0] + '\n' + S[1]] + [S[2*i] + '\n' + S[2*i+1] for i in range(1, 4)]
        interleave(A, M, O)
    stamp(A, cfg, 6)
    T = 36
    A('s_cmp_lg_u32 s32, 0\ns_cbranch_scc1 K_B_UP')
    for up in range(2):
        if up: A('K_B_UP:')
        for tt in range(8):
            for a in range(2):
                d = ACC + 8 * tt + 4 * a; p = T + 4 * tt + 2 * a
                if up: cvt(A, p, d+3, d+2); cvt(A, p+1, d+1, d)
                else:  cvt(A, p, d, d+1); cvt(A, p+1, d+2, d+3)
                A(f'ds_write_b64 v{26+a}, {vr(p,2)} offset:{tt*16*PITCH}')
        if not up: A('s_branch K_B_ST')
    A('K_B_ST:')
    A('s_waitcnt lgkmcnt(0)\ns_barrier')
    for n in range(8): A(f'ds_read_b128 {vr(T+4*n,4)}, v28 offset:{n*4*PITCH}')
    for n in range(8):
        A(f's_add_u32 s7, s34, {(4*n) << 15}\ns_waitcnt lgkmcnt({7-n})')
        A(f'buffer_store_dwordx4 {vr(T+4*n,4)}, v29, s[16:19], s7 offen{cfg.outflag}')
    stamp_store(A, cfg, 8)
    A('s_endpgm')

def b_consumer(A, cfg):
    AX, AD = 20, 24
    VD, VS, V0, V1, VS0, F, CN = 28, 29, 30, 31, 32, 34, 40
    FR, ACC = 44, 124
    flag_setup(A, V0, V1, VS0)
    A(f's_lshl_b32 s6, s29, 2\ns_add_u32 s6, s6, s30\ns_lshl_b32 s6, s6, 7\ns_add_u32 s58, s6, {BFLAG}')
    A('v_lshlrev_b32 v7, 19, v3\nv_lshl_add_u32 v7, v4, 3, v7')
    A('s_waitcnt lgkmcnt(0)')
    srd_off(A, 16, P_WS, WS_FLAG, FLAG_SIZE); srd(A, 20, P_DBG, 256); srd_off(A, 8, P_WS, WS_Z, Z_SIZE)
    srd(A, 12, P_CR, 0x800000); srd(A, 24, P_CI, 0x800000)
    A(f'buffer_load_dwordx2 {vr(F,2)}, v7, s[12:15], 0 offen\nbuffer_load_dwordx2 {vr(F+2,2)}, v7, s[24:27], 0 offen')
    A('v_lshrrev_b32 v7, 1, v3\nv_xor_b32 v7, v7, v4\nv_lshlrev_b32 v7, 4, v7')
    A(f'v_lshl_add_u32 v{AX}, v3, 7, v7\nv_xor_b32 v{AX+1}, 64, v{AX}')
    A(f'v_add_u32 v{AX+2}, 0x10000, v{AX}\nv_add_u32 v{AX+3}, 0x10000, v{AX+1}')
    A('s_lshl_b32 s6, s3, 12')
    for i in range(4): A(f'v_add_u32 v{AD+i}, s6, v{AX+i}')
    A('s_or_b32 s6, s30, s3\ns_cmp_eq_u32 s6, 0\ns_cselect_b32 s32, 0x10001, 0\ns_mov_b32 s33, s32\ns_cselect_b32 s31, 1, 0')
    A(f'v_mov_b32 v{CN}, 0xbf803f80')
    A(f's_mul_i32 s34, s29, {2*ZROW}')
    A('s_lshl_b32 s6, s30, 2\ns_add_u32 s6, s6, s3\ns_lshl_b32 s6, s6, 8')
    A(f's_mov_b32 s7, {4*ZCLS}\nv_mul_lo_u32 v7, v4, s7\nv_lshl_add_u32 v8, v3, 4, v7\nv_add_u32 v{VD}, s6, v8')
    A(f'v_mov_b32 v12, {OOB:#x}')
    A(f'v_add_u32 v9, 0x1000, v7\nv_cmp_ne_u32 vcc, 0, v3\ns_nop 1\nv_cndmask_b32 v{VS}, v9, v12, vcc')
    def reads(ks):
        c, h = divmod(ks, 2); s = c % 4; f = FR + 40 * (ks & 1); a = 2 * (s >> 1) + h; o = (s & 1) * B1_SLOT
        R = [f'ds_read_b128 {vr(f+32+4*n,4)}, v{AD+a} offset:{o+16384+n*2048}' for n in range(2)]
        R += [f'ds_read_b128 {vr(f+4*m,4)}, v{AX+a} offset:{o+m*2048}' for m in range(8)]
        return R
    def mfmas(ks):
        f = FR + 40 * (ks & 1); M = []
        for n in range(2):
            for m in range(8):
                d = ACC + 8 * m + 4 * n
                M.append(lambda d=d, a=f+4*m, b=f+32+4*n, c=(d if ks else None): mfma32(A, d, a, b, c))
        return M
    A('s_barrier')
    stamp(A, cfg, 1)
    for r in reads(0): A(r)
    for ks in range(16):
        A('s_waitcnt lgkmcnt(0)')
        M = mfmas(ks); f = FR + 40 * (ks & 1)
        patch = [f'v_cndmask_b32 v{f+36+i}, v{f+36+i}, v{CN}, s[32:33]' for i in range(4)]
        interleave(A, M[:2], patch, per_gap=2); M = M[2:]
        if ks == 15: interleave(A, M, [])
        elif ks & 1:
            pre = max(0, cfg.pre - 2)
            for m in M[:pre]: m()
            A('s_barrier')
            interleave(A, M[pre:], reads(ks + 1), per_gap=2 if pre > 0 else 1)
        else:
            R = reads(ks + 1)
            if ks == 4:
                R += [f's_waitcnt vmcnt(0)\nv_xor_b32 v{F+2}, 0x80008000, v{F+2}\nv_xor_b32 v{F+3}, 0x80008000, v{F+3}',
                      f'v_xor_b32 v{F+4}, 0x80008000, v{F}\nv_xor_b32 v{F+5}, 0x80008000, v{F+1}']
            interleave(A, M, R)
    stamp(A, cfg, 2)
    BO, Z, PKR = 44, 188, 76
    for n in range(2):
        for m in range(8):
            d = ACC + 8 * m + 4 * n
            cvt(A, BO+4*m+2*n, d, d+1); cvt(A, BO+4*m+2*n+1, d+2, d+3)
    def pack_store(addr):
        for part in range(2):
            for i in range(4):
                b = PKR + 16 * part + 4 * i
                A(f's_add_u32 s7, s34, {i*ZCLS + part*ZROW}')
                for q in range(4): cvt(A, b+q, Z+32*part+8*q+i, Z+32*part+8*q+4+i)
                A(f'buffer_store_dwordx4 {vr(b,4)}, v{addr}, s[8:11], s7 offen sc1')
    A('s_cmp_eq_u32 s31, 0\ns_cbranch_scc1 K_B_MAIN')
    for part in range(2):
        for m in range(8): mfma16(A, Z+32*part+4*m, F+2*part, BO+4*m+2, None)
    for m in range(8):
        A(f'v_cndmask_b32 v{BO+4*m+2}, v{BO+4*m+2}, 0, s[32:33]\nv_cndmask_b32 v{BO+4*m+3}, v{BO+4*m+3}, 0, s[32:33]')
    pack_store(VS)
    A('K_B_MAIN:')
    A('s_nop 1')
    for part in range(2):
        for m in range(8): mfma32(A, Z+32*part+4*m, F+2*part, BO+4*m, None)
    pack_store(VD)
    stamp(A, cfg, 3)
    A('s_waitcnt vmcnt(0)')
    stamp(A, cfg, 4)
    A('s_barrier')
    A(f'buffer_store_dword v{V1}, v{VS0}, s[16:19], s58 offen sc1')
    stamp(A, cfg, 5)
    stamp_store(A, cfg, 7)
    A('s_endpgm')

def main():
    ap = argparse.ArgumentParser()
    ap.add_argument('-o', default=f'cdna_kernels/{NAME}.s')
    ap.add_argument('--diag', action='store_true')
    ap.add_argument('--xa', default='5,13'); ap.add_argument('--xb', default='4,12')
    ap.add_argument('--pre', type=int, default=4); ap.add_argument('--opre', type=int, default=12)
    ap.add_argument('--fsh', type=int, default=2); ap.add_argument('--fshb', type=int, default=2)
    ap.add_argument('--outflag', default='')
    ap.add_argument('--sleep', type=int, default=0)
    cfg = ap.parse_args()
    global SLEEP; SLEEP = cfg.sleep
    cfg.xa = [int(x) for x in cfg.xa.split(',')]; cfg.xb = [int(x) for x in cfg.xb.split(',')]
    if cfg.outflag: cfg.outflag = ' ' + cfg.outflag.replace('+', ' ')
    A = Asm()
    A(f'; @launch grid=(256,1,1) block=(512,1,1) lds={4*A1_SLOT}')
    A('.amdgcn_target "amdgcn-amd-amdhsa--gfx950"\n.text')
    kernel(A, cfg)
    A(f'''.section .rodata,"a"
.p2align 6
.amdhsa_kernel {NAME}_kernel
.amdhsa_next_free_vgpr 256
.amdhsa_next_free_sgpr 100
.amdhsa_accum_offset 256
.amdhsa_group_segment_fixed_size 0
.amdhsa_kernarg_size 88
.amdhsa_user_sgpr_count 2
.amdhsa_user_sgpr_kernarg_segment_ptr 1
.amdhsa_system_sgpr_workgroup_id_x 1
.end_amdhsa_kernel''')
    open(cfg.o, 'w').write(A.text())
main()
```

```python
import sys, argparse
NAME = 'concat_heads__sliding_local_dilated__spectral_fnet__prompt'

class Asm:
    def __init__(self): self.L = []
    def __call__(self, s):
        for line in s.split('\n'):
            line = line.strip()
            if line: self.L.append(line if line.endswith(':') or line.startswith('.') or line.startswith(';') else '    ' + line)
    def text(self): return '\n'.join(self.L) + '\n'

def vr(b, n): return f'v[{b}:{b+n-1}]' if n > 1 else f'v{b}'
def srd(A, d, lo, size):
    A(f's_mov_b32 s{d}, s{lo}\ns_mov_b32 s{d+1}, s{lo+1}\ns_mov_b32 s{d+2}, {size:#x}\ns_mov_b32 s{d+3}, 0x20000')
def srd_off(A, d, lo, off, size):
    A(f's_add_u32 s{d}, s{lo}, {off:#x}\ns_addc_u32 s{d+1}, s{lo+1}, 0\ns_mov_b32 s{d+2}, {size:#x}\ns_mov_b32 s{d+3}, 0x20000')
def mfma32(A, d, a, b, c): A(f'v_mfma_f32_16x16x32_bf16 {vr(d,4)}, {vr(a,4)}, {vr(b,4)}, {vr(c,4) if c is not None else 0}')
def mfma16(A, d, a, b, c): A(f'v_mfma_f32_16x16x16_bf16 {vr(d,4)}, {vr(a,2)}, {vr(b,2)}, {vr(c,4) if c is not None else 0}')
def cvt(A, d, a, b): A(f'v_cvt_pk_bf16_f32 v{d}, v{a}, v{b}')

P_AX, P_WQKV, P_WO, P_BX, P_CR, P_CI, P_DR, P_DI, P_OUT, P_DBG, P_WS = 36, 38, 40, 42, 44, 46, 48, 50, 52, 54, 56
WS_O, O_SIZE, WS_Z, Z_SIZE, WS_FLAG, FLAG_SIZE, WS_DIAG = 0, 0x240000, 0x280000, 0x240000, 0x500000, 0x10000, 0x800000
ZSIG, ZCLS = 4608, 147456
GFLAG, BFLAG = 192 * 128, 384 * 128
LDS_TOTAL, LDS_WORD = 163840, 147456
OOB = 0x80000000
SPIN = 400000
SLEEP = 0

def interleave(A, mf, other, per_gap=1, start=0):
    oi = 0
    for i, m in enumerate(mf):
        m()
        if i >= start:
            for _ in range(per_gap):
                if oi < len(other): A(other[oi]); oi += 1
    while oi < len(other): A(other[oi]); oi += 1

def stamp(A, cfg, slot):
    if cfg.diag: A(f's_memrealtime s[{64+4*slot}:{65+4*slot}]\ns_memtime s[{66+4*slot}:{67+4*slot}]')
def stamp_store(A, cfg, nslots):
    if not cfg.diag: return
    A('s_waitcnt lgkmcnt(0) vmcnt(0)')
    stamp(A, cfg, nslots - 1)
    A('s_waitcnt lgkmcnt(0)')
    srd_off(A, 24, P_WS, WS_DIAG, 0x100000)
    A(f's_lshl_b32 s4, s2, 3\ns_add_u32 s4, s4, s3\ns_lshl_b32 s4, s4, 6')
    for i in range(8): A(f'v_mov_b32 v{8+i}, s{64+4*min(i, nslots-1)}\nv_mov_b32 v{16+i}, s{66+4*min(i, nslots-1)}')
    A('v_mov_b32 v1, 0\nv_and_b32 v2, 63, v0\nv_cmp_eq_u32 vcc, 0, v2\ns_and_saveexec_b64 s[6:7], vcc')
    for i in range(4): A(f'buffer_store_dwordx4 v[{8+4*i}:{11+4*i}], v1, s[24:27], s4 offen offset:{16*i}')


def loader_loop(A, items, ends, X):
    done = 0
    for c in range(len(ends)):
        upto = min(len(items), ends[c] + X[min(c, len(X) - 1)])
        while done < upto and items[done][1] <= c:
            items[done][0](); done += 1
        assert done >= ends[c]
        A(f's_waitcnt vmcnt({done - ends[c]})')
        A('s_barrier')
    while done < len(items):
        items[done][0](); done += 1

def poll(A, label, vdst, vaddr, srdn, soff, want, first=True):
    A(f's_mov_b32 s28, 0')
    A(f'{label}:')
    A(f'buffer_load_dword v{vdst}, v{vaddr}, s[{srdn}:{srdn+3}], {soff} offen sc1')
    A(f's_add_u32 s28, s28, 1\ns_cmp_ge_u32 s28, {SPIN}\ns_cbranch_scc1 {label}_X')
    A('s_waitcnt vmcnt(0)')
    A(f'v_cmp_ne_u32 vcc, {want}, v{vdst}')
    A(f's_cmp_lg_u64 vcc, 0\ns_cbranch_scc1 {label}')
    A(f'{label}_X:')

A1_SLOT = 36864

def kernel(A, cfg):
    A(f'.globl {NAME}_kernel\n.p2align 8\n.type {NAME}_kernel,@function\n{NAME}_kernel:')
    A('s_load_dwordx16 s[36:51], s[0:1], 0\ns_load_dwordx4 s[52:55], s[0:1], 64\ns_load_dwordx2 s[56:57], s[0:1], 80')
    A('s_cmp_ge_u32 s2, 256\ns_cbranch_scc1 K_END')
    stamp(A, cfg, 0)
    A('v_lshrrev_b32 v1, 6, v0\nv_and_b32 v2, 63, v0')
    A('v_readfirstlane_b32 s3, v1')
    A('s_and_b32 s4, s2, 7\ns_lshr_b32 s5, s2, 3')
    A('v_and_b32 v3, 15, v2\nv_lshrrev_b32 v4, 4, v2')
    A('v_lshrrev_b32 v5, 3, v2\nv_and_b32 v6, 7, v2')
    A('s_cmp_ge_u32 s5, 24\ns_cbranch_scc1 K_B')
    A('s_mul_i32 s7, s4, 3\ns_lshr_b32 s28, s5, 3\ns_add_u32 s59, s7, s28\ns_and_b32 s29, s5, 7')
    A('s_and_b32 s30, s59, 1\ns_lshr_b32 s31, s59, 1\ns_mul_i32 s32, s31, 88')
    A('s_getreg_b32 s96, hwreg(HW_REG_XCC_ID, 0, 4)\ns_add_u32 s96, s96, 0x100')
    A('s_cmp_ge_u32 s3, 4\ns_cbranch_scc0 K_A_CONS')
    a_loader(A, cfg)
    A('K_A_CONS:')
    a_consumer(A, cfg)
    A('K_B:')
    b_all(A, cfg)
    A('K_END:\ns_endpgm')

def a_loader(A, cfg):
    A('s_mul_i32 s97, s28, 3')
    if cfg.rot == 1: A('s_mov_b32 s63, 0')
    elif cfg.rot == 2: A('s_xor_b32 s63, s28, s5\ns_and_b32 s63, s63, 1\ns_lshl_b32 s63, s63, 2')
    elif cfg.rot == 3: A('s_mov_b32 s63, s97')
    if cfg.q3: A('s_cmp_eq_u32 s29, 3\ns_cselect_b32 s63, s97, s63')
    if cfg.rotx: A(f's_mul_i32 s62, s4, {cfg.rotx}\ns_add_u32 s63, s63, s62')
    A('s_sub_u32 s33, s3, 4')
    A('s_mul_i32 s6, s33, 24')
    for j in range(3):
        A(f'v_add_u32 v7, s6, v5\nv_add_u32 v7, {8*j}, v7')
        A('v_lshrrev_b32 v8, 1, v7\nv_and_b32 v8, 7, v8\nv_xor_b32 v8, v8, v6\nv_lshlrev_b32 v8, 4, v8')
        A('v_add_u32 v7, s32, v7\nv_lshlrev_b32 v7, 1, v7\nv_add_u32 v7, s30, v7')
        A(f'v_lshl_add_u32 v{10+j}, v7, 10, v8')
    A('s_lshl_b32 s6, s33, 4\ns_lshl_b32 s7, s29, 7\ns_movk_i32 s28, 3072')
    for par in range(2):
        A(f'v_add_u32 v7, s6, v5\nv_add_u32 v7, {8*par}, v7')
        A('v_mul_lo_u32 v7, v7, s28\nv_add_u32 v7, s7, v7')
        A(f'v_and_b32 v8, 1, v4\nv_or_b32 v8, {2*par}, v8\nv_lshlrev_b32 v8, 1, v8\nv_xor_b32 v8, v8, v6')
        A(f'v_lshl_add_u32 v{13+par}, v8, 4, v7')
    A('s_mul_i32 s34, s33, 3072')
    A('s_mul_i32 s35, s33, 6144\ns_add_u32 s35, s35, 12288')
    A('s_waitcnt lgkmcnt(0)')
    srd(A, 8, P_AX, 0x200000); srd(A, 12, P_WQKV, 0x180000)
    stamp(A, cfg, 1)
    def issue(c, j):
        base = (c % 4) * A1_SLOT
        if j < 3:
            if j == 0: A(f's_add_u32 s62, s63, {c}\ns_and_b32 s62, s62, 7\ns_lshl_b32 s6, s62, 7')
            A(f's_add_u32 m0, s34, {base + j*1024}\ns_nop 0')
            A(f'buffer_load_dwordx4 v{10+j}, s[8:11], s6 offen lds')
        else:
            par, seg = divmod(j - 3, 3)
            if j == 3: A(f's_mul_i32 s7, s62, 196608')
            if seg == 0: A(f's_add_u32 m0, s35, {base + par*3072}\ns_nop 0')
            A(f'buffer_load_dwordx4 v{13+par}, s[12:15], s7 offen offset:{seg*1024} lds')
        if c == 1 and j == 8: late_setup()
    def late_setup():
        srd(A, 16, P_WO, 0x80000); srd_off(A, 20, P_WS, WS_O, O_SIZE)
        A('s_lshl_b32 s60, s33, 3\nv_add_u32 v7, s60, v5\ns_and_b32 s60, s33, 1\ns_lshl_b32 s60, s60, 1\ns_lshl_b32 s61, s29, 7')
        A('v_and_b32 v8, 1, v4\nv_or_b32 v8, s60, v8\nv_lshlrev_b32 v8, 1, v8\nv_xor_b32 v8, v8, v6\nv_lshlrev_b32 v8, 4, v8')
        A('v_lshl_add_u32 v15, v7, 10, v8\nv_add_u32 v15, s61, v15')
        A('s_lshl_b32 s58, s33, 10')
        A(f's_mul_i32 s60, s33, 24\nv_add_u32 v7, s60, v2\nv_lshrrev_b32 v8, 4, v7\nv_lshlrev_b32 v8, 14, v8\nv_and_b32 v7, 15, v7\nv_lshl_add_u32 v7, v7, 7, v8')
        A(f'v_mov_b32 v8, {OOB:#x}\nv_cmp_le_u32 vcc, 24, v2\ns_mul_i32 s60, s59, {6*16384}\ns_lshl_b32 s61, s29, 11\ns_add_u32 s98, s60, s61\nv_cndmask_b32 v16, v7, v8, vcc')
        A(f'v_mov_b32 v17, {LDS_WORD}\nv_mov_b32 v18, 0\nv_mov_b32 v19, 0\nds_write_b64 v17, v[18:19]\nv_mov_b32 v18, 1')
    def wo(n):
        A(f's_add_u32 s62, s97, {n}\ns_and_b32 s62, s62, 7')
        if n >= 8: A('s_or_b32 s62, s62, 8')
        A('s_lshl_b32 s6, s62, 12\ns_add_u32 m0, s58, s6\ns_lshl_b32 s6, s62, 15')
        A('buffer_load_dwordx4 v15, s[16:19], s6 offen lds')
    items = [(lambda c=c, j=j: issue(c, j), max(0, c - 2)) for c in range(8) for j in range(9)]
    ends = [9 * (c + 1) for c in range(8)]
    warm = (lambda: A('buffer_load_dword v250, v16, s[20:23], s98 offen sc1'), 0)
    if cfg.warmat >= 7: items.append(warm)
    else:
        items.insert(9 * (cfg.warmat + 1), warm); ends = [e + (1 if c > cfg.warmat else 0) for c, e in enumerate(ends)]
    items += [(lambda n=n: wo(n), 6 if n < 8 else 7) for n in range(16)]
    loader_loop(A, items, ends, cfg.xa)
    stamp(A, cfg, 2)
    AW, WF, OF, ACC = 24, 36, 72, 200
    STAGE = 2 * A1_SLOT
    srd_off(A, 8, P_WS, WS_FLAG, FLAG_SIZE); srd(A, 12, P_OUT, 0x400000); srd(A, 24, P_DBG, 256)
    A('v_bfe_u32 v7, v2, 2, 2\nv_lshrrev_b32 v8, 1, v7\nv_and_b32 v9, 1, v4\nv_lshl_or_b32 v8, v9, 1, v8')
    A('v_lshlrev_b32 v9, 10, v4\nv_lshl_add_u32 v9, v7, 7, v9\nv_and_b32 v7, 3, v2\nv_lshl_add_u32 v9, v7, 3, v9')
    for nt in range(4): A(f'v_xor_b32 v7, {nt}, v8\nv_lshl_add_u32 v{AW+nt}, v7, 5, v9')
    A('v_lshlrev_b32 v33, 4, v2')
    A(f's_mul_i32 s6, s33, {32*144}\ns_add_u32 s6, s6, {STAGE}')
    A('v_mul_u32_u24 v30, 144, v3\nv_lshl_add_u32 v30, v4, 3, v30\nv_add_u32 v30, s6, v30')
    A('v_mul_u32_u24 v31, 144, v5\nv_lshl_add_u32 v31, v6, 4, v31\nv_add_u32 v31, s6, v31')
    A('v_lshlrev_b32 v32, 12, v5\nv_lshl_add_u32 v32, v6, 4, v32')
    A('s_lshl_b32 s6, s33, 5\ns_add_u32 s6, s6, s32\ns_lshl_b32 s6, s6, 12\ns_lshl_b32 s7, s30, 11\ns_add_u32 s6, s6, s7\ns_lshl_b32 s7, s29, 7\ns_add_u32 s34, s6, s7')
    for n in range(4): A(f's_add_u32 s{60+n}, s34, {(8*n) << 12}')
    A('s_cmp_lg_u32 s31, 0\ns_cselect_b32 s6, 1, 0\ns_cmp_eq_u32 s33, 0\ns_cselect_b32 s6, s6, 0\ns_cmp_lg_u32 s6, 0\ns_cselect_b32 s60, 0x40000000, s60')
    A(f's_mul_i32 s35, s59, {6*16384}\ns_lshl_b32 s6, s33, 15\ns_add_u32 s35, s35, s6')
    A(f'v_lshlrev_b32 v7, 2, v6\nv_lshlrev_b32 v8, 7, v6\ns_lshl_b32 s7, s59, 10\ns_add_u32 s6, s7, {GFLAG}')
    poll(A, 'K_A_RDY', 9, 7, 24, 0, 1)
    A('buffer_load_dword v9, v8, s[8:11], s7 offen sc1')
    A('s_waitcnt vmcnt(0) lgkmcnt(0)\ns_barrier')
    A('s_cmp_eq_u32 s33, 3\ns_cbranch_scc1 K_A_LDONE')
    stamp(A, cfg, 3)
    def reads(ks):
        f = WF + 16 * (ks & 1)
        return [f'ds_read_b64_tr_b16 {vr(f+4*nt+2*u,2)}, v{AW+nt} offset:{ks*4096+u*512}' for nt in range(4) for u in range(2)]
    for r in reads(0): A(r)
    A('s_mov_b32 s28, 0\ns_mov_b32 s99, 0')
    A('K_A_P1:')
    A('buffer_load_dword v9, v8, s[8:11], s7 offen sc1\ns_add_u32 s28, s28, 1\ns_waitcnt vmcnt(0)')
    A('v_cmp_ne_u32 vcc, s96, v9\ns_cmp_eq_u64 vcc, 0\ns_cbranch_scc1 K_A_GO')
    A(f's_cmp_lt_u32 s28, {cfg.n1}\ns_cbranch_scc1 K_A_P1')
    A('ds_write_b32 v17, v18\ns_mov_b32 s99, 1\ns_waitcnt lgkmcnt(0)\ns_barrier')
    A('K_A_P2:')
    A('buffer_load_dword v9, v8, s[8:11], s7 offen sc1\nbuffer_load_dword v10, v8, s[8:11], s6 offen sc1\ns_add_u32 s28, s28, 1\ns_waitcnt vmcnt(0)')
    A('v_cmp_ne_u32 vcc, s96, v9\ns_cmp_eq_u64 vcc, 0\ns_cbranch_scc1 K_A_GO')
    A('v_cmp_ne_u32 vcc, 1, v10\ns_cmp_eq_u64 vcc, 0\ns_cbranch_scc1 K_A_GO')
    A(f's_cmp_lt_u32 s28, {SPIN}\ns_cbranch_scc1 K_A_P2')
    A('K_A_GO:')
    stamp(A, cfg, 4)
    def oload(i):
        ks, a = divmod(i, 2)
        return f's_add_u32 s7, s35, {a*16384 + (ks & ~3)*1024}\nbuffer_load_dwordx4 {vr(OF+8*ks+4*a,4)}, v33, s[20:23], s7 offen offset:{(ks&3)*1024} sc1'
    issued = cfg.opre
    for i in range(issued): A(oload(i))
    for ks in range(16):
        f = WF + 16 * (ks & 1)
        A(f's_waitcnt vmcnt({issued - 2*(ks+1)}) lgkmcnt(0)')
        if ks == 0: stamp(A, cfg, 5)
        M = [lambda d=ACC+16*a+4*nt, x=f+4*nt, b=OF+8*ks+4*a, z=ks: mfma32(A, d, x, b, d if z else None) for a in range(2) for nt in range(4)]
        O = reads(ks + 1) if ks < 15 else []
        O = [O[2*i] + '\n' + O[2*i+1] for i in range(len(O)//2)]
        for _ in range(2):
            if issued < 32: O.append(oload(issued)); issued += 1
        if ks == 11: O.append('s_cmp_lg_u32 s99, 0\ns_cbranch_scc1 K_A_NOB\ns_barrier\nK_A_NOB:')
        interleave(A, M, O)
    stamp(A, cfg, 6)
    T = 8
    A('s_nop 3')
    for a in range(2):
        for nt in range(4):
            d = ACC + 16 * a + 4 * nt; p = T + 8 * a + 2 * nt
            cvt(A, p, d, d+1); cvt(A, p+1, d+2, d+3)
            A(f'ds_write_b64 v30, {vr(p,2)} offset:{a*16*144 + nt*32}')
    A('s_waitcnt lgkmcnt(0)')
    for n in range(4): A(f'ds_read_b128 {vr(T+4*n,4)}, v31 offset:{n*8*144}')
    for n in range(4):
        A(f's_waitcnt lgkmcnt({3-n})')
        A(f'buffer_store_dwordx4 {vr(T+4*n,4)}, v32, s[12:15], s{60+n} offen{cfg.outflag}')
    A('K_A_LDONE:')
    stamp_store(A, cfg, 8)
    A('s_endpgm')

def a_consumer(A, cfg):
    AX, AW = 20, 28
    ST, MD, MP, BD, ONES = 32, 36, 40, 44, 46
    VX, V1, VS0 = 33, 34, 35
    FR, ACC = 48, 120
    A(f'v_mov_b32 v{VX}, s96\nv_mov_b32 v{V1}, 1\nv_mov_b32 v{VS0}, {OOB:#x}\nv_cmp_ne_u32 vcc, 0, v0\ns_nop 1\nv_cndmask_b32 v{VS0}, 0, v{VS0}, vcc')
    A('s_lshl_b32 s58, s59, 3\ns_add_u32 s58, s58, s29\ns_lshl_b32 s58, s58, 7')
    A('s_waitcnt lgkmcnt(0)')
    srd_off(A, 16, P_WS, WS_FLAG, FLAG_SIZE); srd_off(A, 8, P_WS, WS_O, O_SIZE)
    A('v_lshrrev_b32 v7, 1, v3\nv_xor_b32 v7, v7, v4\nv_lshlrev_b32 v7, 4, v7\nv_lshl_add_u32 v7, v3, 7, v7')
    A('v_xor_b32 v8, 64, v7')
    for s in range(4):
        A(f'v_add_u32 v{AX+2*s}, {s*A1_SLOT}, v7\nv_add_u32 v{AX+2*s+1}, {s*A1_SLOT}, v8')
    A('v_bfe_u32 v7, v2, 2, 2')
    A('v_lshrrev_b32 v8, 1, v7\nv_and_b32 v9, 1, v4\nv_lshl_or_b32 v8, v9, 1, v8')
    A('v_xor_b32 v8, s3, v8\nv_lshlrev_b32 v8, 5, v8\nv_lshl_add_u32 v8, v7, 7, v8')
    A('v_and_b32 v9, 3, v2\nv_lshl_add_u32 v8, v9, 3, v8')
    A('v_mul_u32_u24 v9, 3072, v4\nv_add_u32 v8, v8, v9')
    for s in range(4): A(f'v_add_u32 v{AW+s}, {s*A1_SLOT+12288}, v8')
    A('v_lshlrev_b32 v7, 2, v4\nv_sub_u32 v7, v3, v7')
    A('v_mov_b32 v9, 0xf149f2ca')
    A('v_mov_b32 v10, 0xffff\nv_mov_b32 v11, 0xffff0000')
    for i in range(4):
        A(f'v_subrev_u32 v8, {i}, v7')
        A(f'v_cmp_le_u32 vcc, 8, v8\ns_nop 1\nv_cndmask_b32 v{MD+i}, 0, v9, vcc')
        A(f'v_cmp_lt_i32 vcc, -9, v8\ns_nop 1\nv_cndmask_b32 v{MP+i}, 0, v9, vcc')
        A(f'v_cmp_le_i32 vcc, 0, v8\ns_nop 1\nv_cndmask_b32 v{12+i}, 0, v{10+(i&1)}, vcc')
    A(f'v_or_b32 v{BD}, v12, v13\nv_or_b32 v{BD+1}, v14, v15')
    A(f'v_mov_b32 v{ONES}, 0x3f803f80\nv_mov_b32 v{ONES+1}, 0x3f803f80')
    A('s_lshl_b32 s6, s29, 2\ns_add_u32 s6, s6, s3\ns_lshl_b32 s6, s6, 9')
    A(f's_mul_i32 s7, s59, {6*16384}\ns_add_u32 s60, s6, s7\ns_add_u32 s61, s60, 0x8000\ns_add_u32 s62, s60, 0x10000')
    A('v_and_b32 v7, 1, v4\nv_lshlrev_b32 v7, 14, v7\nv_lshrrev_b32 v8, 1, v4\nv_lshl_add_u32 v7, v8, 8, v7')
    A(f'v_lshl_add_u32 v{ST}, v3, 4, v7')
    A('s_mov_b32 s34, 0x3eb8aa3b')
    def reads(ks):
        c, h = divmod(ks, 2); s = c % 4; f = FR + 36 * (ks & 1); R = []
        def w(seg): return [f'ds_read_b64_tr_b16 {vr(f+24+4*seg+2*u,2)}, v{AW+s} offset:{h*12288+seg*1024+u*512}' for u in range(2)]
        R += w(0)
        R += [f'ds_read_b128 {vr(f+4*t,4)}, v{AX+2*s+h} offset:{t*2048}' for t in range(6)]
        R += w(1) + w(2)
        return R
    def mfmas(ks):
        f = FR + 36 * (ks & 1); M = []
        for seg in range(3):
            for t in range(6):
                d = ACC + 24 * seg + 4 * t; c = d if ks else None
                if seg < 2: M.append(lambda d=d, a=f+24+4*seg, b=f+4*t, c=c: mfma32(A, d, a, b, c))
                else:       M.append(lambda d=d, a=f+4*t, b=f+24+4*seg, c=c: mfma32(A, d, a, b, c))
        return M
    A('s_barrier')
    stamp(A, cfg, 1)
    for r in reads(0): A(r)
    for ks in range(16):
        A('s_waitcnt lgkmcnt(0)')
        M = mfmas(ks)
        if ks == 15: interleave(A, M, [])
        elif ks & 1:
            pre = cfg.pre
            for m in M[:pre]: m()
            A('s_barrier')
            interleave(A, M[pre:], reads(ks + 1), per_gap=2 if pre > 2 else 1)
        else:
            R = reads(ks + 1)
            interleave(A, M, R)
    stamp(A, cfg, 2)
    QP, KP, VP, SD, SP, MX, PK, PO, OO, SM, OP = 48, 60, 72, 192, 216, 86, 98, 120, 144, 168, 48
    for t in range(6):
        cvt(A, QP+2*t, ACC+4*t, ACC+4*t+1); cvt(A, QP+2*t+1, ACC+4*t+2, ACC+4*t+3)
    for t in range(6):
        cvt(A, KP+2*t, ACC+24+4*t, ACC+24+4*t+1); cvt(A, KP+2*t+1, ACC+24+4*t+2, ACC+24+4*t+3)
    A(f'v_mov_b32 v{VP}, 0\nv_mov_b32 v{VP+1}, 0')
    M = []
    for t in range(6):
        M.append(lambda t=t: mfma16(A, SD+4*t, KP+2*t, QP+2*t, MD))
        if t: M.append(lambda t=t: mfma16(A, SP+4*t, KP+2*t-2, QP+2*t, MP))
    V = []
    for t in range(6):
        V.append(f'v_cvt_pk_bf16_f32 v{VP+2+2*t}, v{ACC+48+4*t}, v{ACC+48+4*t+1}')
        V.append(f'v_cvt_pk_bf16_f32 v{VP+3+2*t}, v{ACC+48+4*t+2}, v{ACC+48+4*t+3}')
    interleave(A, M, V)
    for t in range(6):
        if t:
            for i in range(4): A(f'v_max_f32 v{SD+4*t+i}, v{SD+4*t+i}, v{SP+4*t+i}')
        A(f'v_max3_f32 v{MX+t}, v{SD+4*t}, v{SD+4*t+1}, v{SD+4*t+2}')
        A(f'v_max_f32 v{MX+t}, v{MX+t}, v{SD+4*t+3}')
    A('s_nop 1')
    for u in range(3): A(f'v_permlane32_swap_b32 v{MX+2*u}, v{MX+2*u+1}')
    for u in range(3): A(f'v_max_f32 v{MX+2*u}, v{MX+2*u}, v{MX+2*u+1}')
    for u in range(3): A(f'v_mov_b32 v{MX+2*u+1}, v{MX+2*u}')
    A('s_nop 0')
    for u in range(3): A(f'v_permlane16_swap_b32 v{MX+2*u}, v{MX+2*u+1}')
    for u in range(3): A(f'v_max_f32 v{MX+2*u}, v{MX+2*u}, v{MX+2*u+1}')
    for u in range(3): A(f'v_mul_f32 v{MX+2*u}, s34, v{MX+2*u}')
    for u in range(3): A(f'v_mov_b32 v{MX+2*u+1}, v{MX+2*u}')
    A('s_nop 0')
    for u in range(3): A(f'v_permlane32_swap_b32 v{MX+2*u}, v{MX+2*u+1}')
    for t in range(6):
        for i in range(4): A(f'v_fma_f32 v{SD+4*t+i}, v{SD+4*t+i}, s34, -v{MX+t}')
    for t in range(6):
        for i in range(4): A(f'v_exp_f32 v{SD+4*t+i}, v{SD+4*t+i}')
    for t in range(6):
        cvt(A, PK+2*t, SD+4*t, SD+4*t+1); cvt(A, PK+2*t+1, SD+4*t+2, SD+4*t+3)
    for t in range(6):
        A(f'v_and_b32 v{PO+4*t+2}, v{PK+2*t}, v{BD}\nv_and_b32 v{PO+4*t+3}, v{PK+2*t+1}, v{BD+1}')
        A(f'v_xor_b32 v{PO+4*t}, v{PK+2*t}, v{PO+4*t+2}\nv_xor_b32 v{PO+4*t+1}, v{PK+2*t+1}, v{PO+4*t+3}')
        mfma16(A, SM+4*t, ONES, PK+2*t, None)
    A('s_nop 0')
    for t in range(6): mfma32(A, OO+4*t, VP+2*t, PO+4*t, None)
    A('s_nop 1')
    for t in range(6): A(f'v_rcp_f32 v{MX+t}, v{SM+4*t}')
    A('s_nop 1')
    for u in range(3):
        for t in (2*u, 2*u+1):
            for i in range(4): A(f'v_mul_f32 v{OO+4*t+i}, v{OO+4*t+i}, v{MX+t}')
        for t in (2*u, 2*u+1):
            cvt(A, OP+2*t, OO+4*t, OO+4*t+1); cvt(A, OP+2*t+1, OO+4*t+2, OO+4*t+3)
        A('s_nop 1')
        A(f'v_permlane16_swap_b32 v{OP+4*u}, v{OP+4*u+2}\nv_permlane16_swap_b32 v{OP+4*u+1}, v{OP+4*u+3}')
        A(f'buffer_store_dwordx4 {vr(OP+4*u,4)}, v{ST}, s[8:11], s{60+u} offen')
    stamp(A, cfg, 3)
    A('s_waitcnt vmcnt(0)')
    stamp(A, cfg, 4)
    A('s_barrier')
    A(f'buffer_store_dword v{VX}, v{VS0}, s[16:19], s58 offen')
    stamp(A, cfg, 5)
    A(f'v_mov_b32 v7, {LDS_WORD}\ns_barrier\nds_read_b32 v8, v7\ns_waitcnt lgkmcnt(0)\nv_readfirstlane_b32 s6, v8\ns_cmp_eq_u32 s6, 0\ns_cbranch_scc1 K_A_CDONE')
    for u in range(3): A(f'buffer_store_dwordx4 {vr(OP+4*u,4)}, v{ST}, s[8:11], s{60+u} offen sc1')
    A(f'v_cmp_eq_u32 vcc, 0, v2\ns_and_saveexec_b64 s[6:7], vcc\ns_waitcnt vmcnt(0)\nds_add_rtn_u32 v8, v7, v{V1} offset:4\ns_waitcnt lgkmcnt(0)')
    A(f'v_readfirstlane_b32 s28, v8\ns_cmp_lg_u32 s28, 3\ns_cbranch_scc1 K_A_CDONE')
    A(f's_add_u32 s58, s58, {GFLAG}\nv_mov_b32 v7, 0\nbuffer_store_dword v{V1}, v7, s[16:19], s58 offen sc1')
    A('K_A_CDONE:')
    A('s_mov_b64 exec, -1')
    stamp_store(A, cfg, 7)
    A('s_endpgm')

def bstamp(A, cfg, slot, mode):
    if cfg.bst == mode: stamp(A, cfg, slot)

def b_all(A, cfg):
    G, F, M = 34, 38, 44
    X1, MAT, PITCH = 65536, 131072, 528
    A('s_and_b32 s5, s5, 7')
    A('s_lshl_b32 s29, s4, 2\ns_lshr_b32 s6, s5, 1\ns_add_u32 s29, s29, s6\ns_and_b32 s30, s5, 1')
    A('s_sub_u32 s6, 16, s4\ns_cmp_eq_u32 s4, 0\ns_cselect_b32 s6, 8, s6\ns_bitcmp1_b32 s5, 2\ns_cselect_b32 s31, s6, s4')
    A('s_bfe_u32 s32, s5, 0x10001')
    A('v_lshlrev_b32 v33, 4, v2')
    A('s_lshl_b32 s6, s30, 8\ns_add_u32 s6, s6, s3\nv_lshrrev_b32 v7, 2, v2\nv_lshl_add_u32 v7, v7, 4, s6\nv_lshlrev_b32 v7, 10, v7\nv_and_b32 v8, 3, v2\nv_lshl_add_u32 v11, v8, 4, v7')
    if cfg.help:
        A('s_mul_i32 s6, s5, 36\ns_lshl_b32 s7, s3, 3\ns_add_u32 s6, s6, s7\nv_add_u32 v7, s6, v5')
        A('v_mul_u32_u24 v8, 683, v7\nv_lshrrev_b32 v8, 16, v8\nv_mul_u32_u24 v9, 96, v8\nv_sub_u32 v7, v7, v9')
        A('s_mul_i32 s6, s4, 3\nv_add_u32 v8, s6, v8\nv_lshrrev_b32 v9, 1, v8\nv_mul_u32_u24 v9, 88, v9\nv_add_u32 v7, v7, v9\nv_and_b32 v8, 1, v8\nv_lshl_add_u32 v7, v7, 1, v8')
        A('v_lshlrev_b32 v7, 10, v7\nv_lshl_add_u32 v10, v6, 4, v7')
        A('s_lshl_b32 s6, s4, 3\ns_add_u32 s6, s6, s5\ns_mul_i32 s6, s6, 3\ns_add_u32 s6, s6, s3\ns_sub_u32 s6, s6, 5\ns_lshl_b32 s6, s6, 10\nv_add_u32 v12, s6, v33')
    A('s_lshl_b32 s6, s32, 3\ns_add_u32 s6, s6, s3\ns_lshl_b32 s6, s6, 3\nv_add_u32 v7, s6, v5\nv_lshl_add_u32 v7, v7, 4, s31')
    A('s_lshl_b32 s6, s3, 2\nv_add_u32 v8, s6, v4\nv_and_b32 v8, 7, v8\nv_xor_b32 v8, v8, v6\nv_lshlrev_b32 v8, 4, v8\nv_lshl_add_u32 v13, v7, 12, v8')
    A('s_lshl_b32 s6, s29, 2\ns_lshr_b32 s7, s3, 1\ns_add_u32 s6, s6, s7\ns_and_b32 s7, s3, 1\ns_lshl_b32 s7, s7, 10\ns_add_u32 s6, s6, s7\ns_lshl_b32 s34, s6, 10')
    A('s_lshl_b32 s35, s3, 13\ns_lshl_b32 s33, s3, 10')
    A('v_mov_b32 v14, 0\nv_mov_b32 v15, 1\nv_lshlrev_b32 v16, 7, v2')
    A('s_xor_b32 s59, s3, 7\ns_or_b32 s59, s59, s5')
    A('s_waitcnt lgkmcnt(0)')
    srd(A, 8, P_BX, 0x200000); srd(A, 12, P_DR, 0x80000); srd(A, 16, P_DI, 0x80000); srd(A, 20, P_CR, 0x800000); srd(A, 24, P_CI, 0x800000)
    srd_off(A, 60, P_WS, WS_FLAG, FLAG_SIZE)
    stamp(A, cfg, 1)
    A('s_cmp_lg_u32 s59, 0\ns_cbranch_scc1 K_B_NOCLR')
    A('s_lshl_b32 s6, s4, 13\nbuffer_store_dword v14, v16, s[60:63], s6 offen sc1')
    A('K_B_NOCLR:')
    if cfg.help:
        A('s_cmp_ge_u32 s3, 5\ns_cbranch_scc1 K_B_HW')
        srd(A, 92, P_AX, 0x200000)
        for c in range(cfg.help0, 8): A(f'buffer_load_dwordx4 v[{224+4*c}:{227+4*c}], v10, s[92:95], 0 offen offset:{c*128}')
        A('s_branch K_B_HD\nK_B_HW:')
        srd(A, 92, P_WQKV, 0x180000)
        for c in range(cfg.help0, 8): A(f's_mov_b32 s6, {c*196608}\nbuffer_load_dwordx4 v[{224+4*c}:{227+4*c}], v12, s[92:95], s6 offen')
        A('K_B_HD:')
    for n in range(8):
        A(f's_add_u32 m0, s35, {n*1024}\ns_add_u32 s6, s34, {n*131072}')
        A('buffer_load_dwordx4 v33, s[8:11], s6 offen lds')
    A(f'buffer_load_dwordx4 {vr(M,4)}, v11, s[12:15], 0 offen\nbuffer_load_dwordx4 {vr(M+4,4)}, v11, s[16:19], 0 offen')
    A('s_cmp_lg_u32 s3, 0\ns_cbranch_scc1 K_B_NOM8')
    A(f's_movk_i32 s6, 8192\nbuffer_load_dwordx4 {vr(M+8,4)}, v11, s[12:15], s6 offen\nbuffer_load_dwordx4 {vr(M+12,4)}, v11, s[16:19], s6 offen')
    A('K_B_NOM8:')
    A('v_mov_b32 v32, v13')
    srd_off(A, 8, P_WS, WS_Z, Z_SIZE); srd(A, 12, P_OUT, 0x400000); srd(A, 16, P_DBG, 256)
    A('v_lshrrev_b32 v7, 2, v2\nv_lshlrev_b32 v7, 6, v7\nv_and_b32 v8, 3, v2\nv_lshl_add_u32 v7, v8, 4, v7\nv_add_u32 v17, s35, v7')
    A(f'v_xor_b32 v7, v4, v6\nv_lshlrev_b32 v7, 4, v7\nv_lshl_add_u32 v18, v3, 12, v7\ns_lshl_b32 s6, s3, 9\ns_add_u32 s6, s6, {X1}\nv_add_u32 v18, s6, v18\nv_xor_b32 v21, 64, v18')
    A(f'v_lshlrev_b32 v7, 6, v3\nv_lshl_add_u32 v7, v4, 4, v7')
    for h in range(2):
        A(f's_lshl_b32 s6, s3, 1\ns_add_u32 s6, s6, {h}\ns_and_b32 s7, s6, 7\ns_lshl_b32 s7, s7, 4\ns_lshl_b32 s6, s6, 12\ns_add_u32 s6, s6, {X1}')
        A(f'v_xor_b32 v8, s7, v7\nv_add_u32 v{19+h}, s6, v8')
    A(f's_mov_b32 s6, {4*ZCLS}\nv_mul_lo_u32 v7, v4, s6\nv_lshl_add_u32 v22, v3, 4, v7')
    A(f's_mul_i32 s34, s29, {ZSIG}\ns_lshl_b32 s6, s30, 8\ns_add_u32 s34, s34, s6\ns_lshl_b32 s6, s3, 9\ns_add_u32 s34, s34, s6')
    A('v_lshrrev_b32 v7, 1, v3\nv_and_b32 v8, 1, v3\nv_lshlrev_b32 v8, 2, v8\nv_cmp_eq_u32 vcc, 1, v3\nv_mov_b32 v9, 8\nv_mov_b32 v23, 0')
    A('v_cndmask_b32 v7, v7, v9, vcc\nv_cndmask_b32 v8, v8, v23, vcc\nv_lshlrev_b32 v9, 2, v4\ns_mov_b32 s6, 0x3d800000')
    for i in range(4):
        A(f'v_add_u32 v23, {i}, v9\nv_mad_u32_u24 v24, v23, v7, v8\nv_mul_u32_u24 v25, v23, v3\nv_and_b32 v24, 15, v24\nv_and_b32 v25, 15, v25')
        A(f'v_cvt_f32_u32 v24, v24\nv_cvt_f32_u32 v25, v25\nv_mul_f32 v24, s6, v24\nv_mul_f32 v25, s6, v25')
        A(f'v_cos_f32 v{96+i}, v24\nv_cos_f32 v{100+i}, v25\nv_sin_f32 v{104+i}, v25')
    A('v_lshlrev_b32 v23, 4, v3\nv_lshl_add_u32 v23, v4, 2, v23')
    cvt(A, G, 96, 97); cvt(A, G+1, 98, 99)
    for q in range(4): cvt(A, F+q, 100+2*q, 101+2*q)
    A(f'v_xor_b32 v{F+4}, 0x80008000, v{F}\nv_xor_b32 v{F+5}, 0x80008000, v{F+1}')
    A('s_waitcnt vmcnt(2)')
    stamp(A, cfg, 2)
    DA, DD = 64, 96
    for n in range(8):
        for h in range(2): A(f'ds_read_b64_tr_b16 {vr(DA+4*n+2*h,2)}, v17 offset:{n*1024+h*8}')
    A('s_cmp_lg_u32 s59, 0\ns_cbranch_scc1 K_B_NOGO')
    A('s_lshl_b32 s6, s4, 2\nv_cmp_eq_u32 vcc, 0, v2\ns_and_saveexec_b64 s[98:99], vcc\nbuffer_store_dword v15, v14, s[16:19], s6 offen sc1\ns_mov_b64 exec, s[98:99]')
    A('K_B_NOGO:')
    for i in range(16):
        if i % 2 == 0: A(f's_waitcnt lgkmcnt({14 - i})')
        mfma16(A, DD+4*i, DA+2*i, G, None)
    bstamp(A, cfg, 3, 1)
    for n in range(8):
        for q in range(4): cvt(A, DA+4*n+q, DD+8*n+2*q, DD+8*n+2*q+1)
        A(f'ds_write_b128 v{21 if n & 1 else 18}, {vr(DA+4*n,4)} offset:{(n>>1)*128}')
    A('s_waitcnt vmcnt(0)')
    for i in range(8): A(f'ds_bpermute_b32 v{M+i}, v23, v{M+i}')
    A('s_cmp_lg_u32 s3, 0\ns_cbranch_scc1 K_B_NOP8')
    for i in range(8, 16): A(f'ds_bpermute_b32 v{M+i}, v23, v{M+i}')
    A('K_B_NOP8:')
    A('s_waitcnt lgkmcnt(0)')
    bstamp(A, cfg, 4, 1)
    A('s_barrier')
    bstamp(A, cfg, 5, 1)
    XF, U, BO, Z, PK = 64, 96, 160, 192, 224
    for h in range(2):
        for sp in range(4): A(f'ds_read_b128 {vr(XF+16*h+4*sp,4)}, v{19+h} offset:{sp*1024}')
    def stage_c(u, bo, off):
        for sp in range(4):
            for q in range(4): cvt(A, bo+4*sp+q, u+8*sp+2*q, u+8*sp+2*q+1)
        A('s_nop 1')
        for part in range(2):
            for sp in range(4): mfma32(A, Z+16*part+4*sp, F+2*part, bo+4*sp, None)
        A('s_nop 3')
        for part in range(2):
            for i in range(4):
                for q in range(2): cvt(A, PK+4*i+2*part+q, Z+16*part+8*q+i, Z+16*part+8*q+4+i)
                if part: A(f's_add_u32 s7, s34, {i*ZCLS + off}\nbuffer_store_dwordx4 {vr(PK+4*i,4)}, v22, s[8:11], s7 offen sc1')
    A('s_cmp_eq_u32 s3, 0\ns_cbranch_scc1 K_B_W0')
    for i in range(4): A(f'v_xor_b32 v{M+8+i}, 0x80008000, v{M+4+i}')
    A('s_waitcnt lgkmcnt(4)')
    for sp in range(4):
        mfma32(A, U+8*sp, XF+4*sp, M, None); mfma32(A, U+8*sp+4, XF+4*sp, M+4, None)
    A('s_waitcnt lgkmcnt(0)')
    for sp in range(4):
        mfma32(A, U+8*sp, XF+16+4*sp, M+8, U+8*sp); mfma32(A, U+8*sp+4, XF+16+4*sp, M, U+8*sp+4)
    A('s_nop 1')
    stage_c(U, BO, 0)
    A('s_branch K_B_SIG')
    A('K_B_W0:')
    A('s_waitcnt lgkmcnt(0)')
    for h in range(2):
        for sp in range(4):
            mfma32(A, U+32*h+8*sp, XF+16*h+4*sp, M+8*h, None); mfma32(A, U+32*h+8*sp+4, XF+16*h+4*sp, M+8*h+4, None)
    stage_c(U, BO, 0)
    stage_c(U+32, BO+16, 8*512)
    A('K_B_SIG:')
    bstamp(A, cfg, 6, 1)
    bstamp(A, cfg, 3, 0)
    AM, SW, ZF, MF, ACC = 24, 28, 64, 128, 160
    A('v_lshrrev_b32 v7, 1, v3\nv_lshrrev_b32 v8, 1, v4\nv_xor_b32 v7, v7, v8')
    A(f'v_and_b32 v8, 1, v4\nv_lshlrev_b32 v8, 3, v8\nv_lshl_add_u32 v8, v3, 7, v8\nv_add_u32 v8, {MAT}, v8')
    for kk in range(4): A(f'v_xor_b32 v9, {2*kk}, v7\nv_lshl_add_u32 v{AM+kk}, v9, 4, v8')
    A('s_cmp_ge_u32 s3, 4\ns_cselect_b32 s58, 0x80008000, 0\ns_cselect_b64 vcc, -1, 0')
    A('s_sub_u32 s6, 16, s31\ns_and_b32 s6, s6, 15\ns_lshl_b32 s7, s3, 1\ns_sub_u32 s28, 15, s7\ns_xor_b32 s35, s30, 1')
    A('s_cmp_ge_u32 s3, 4\ns_cselect_b32 s6, s6, s31\ns_cselect_b32 s7, s28, s7\ns_cselect_b32 s35, s35, s30')
    A(f's_mul_i32 s6, s6, {ZCLS}\ns_lshl_b32 s7, s7, 9\ns_add_u32 s6, s6, s7\ns_lshl_b32 s35, s35, 8\ns_add_u32 s35, s35, s6')
    A(f'v_mul_u32_u24 v7, {ZSIG}, v4\nv_lshl_add_u32 v7, v3, 4, v7\nv_add_u32 v8, 512, v7')
    A('v_cndmask_b32 v10, v7, v8, vcc\nv_cndmask_b32 v11, v8, v7, vcc')
    A(f'v_mul_u32_u24 v7, {PITCH}, v3\ns_lshl_b32 s6, s3, 2\nv_add_u32 v7, s6, v7\nv_lshlrev_b32 v8, 7, v4')
    for i in range(4):
        A(f'v_add_u32 v9, {32*i}, v8\nv_sub_u32 v12, 480, v9\nv_cndmask_b32 v9, v9, v12, vcc\nv_add_u32 v{SW+i}, v7, v9')
    A(f'v_lshrrev_b32 v7, 5, v2\nv_and_b32 v8, 31, v2\nv_lshlrev_b32 v8, 4, v8\nv_mul_u32_u24 v9, {PITCH}, v7\ns_mul_i32 s6, s3, {8*PITCH}\nv_add3_u32 v12, v9, v8, s6')
    A('v_lshl_add_u32 v13, v7, 15, v8')
    A('s_lshl_b32 s6, s32, 3\ns_add_u32 s6, s6, s3\ns_lshl_b32 s6, s6, 18\ns_lshl_b32 s7, s31, 11\ns_add_u32 s6, s6, s7\ns_lshl_b32 s7, s30, 9\ns_add_u32 s6, s6, s7\ns_add_u32 s34, s6, 1024')
    A('s_cmp_lg_u32 s3, 1\ns_cbranch_scc1 K_B_RDY_X\nv_lshlrev_b32 v7, 2, v6')
    poll(A, 'K_B_RDY', 9, 7, 16, 0, 1)
    A('s_waitcnt vmcnt(0)')
    bstamp(A, cfg, 4, 0)
    A('s_barrier')
    def reads(k):
        f = MF + 16 * (k & 1)
        return [f'ds_read_b64 {vr(f+4*tt+2*mat,2)}, v{AM+(k&3)} offset:{(k>>2)*8192 + mat*16384 + tt*2048}' for tt in range(4) for mat in range(2)]
    def mat():
        for sub in range(4):
            A(f's_add_u32 m0, s33, {MAT + sub*8192}\ns_movk_i32 s6, {(sub&1)*128}')
            A(f'buffer_load_dwordx4 v32, s[{20+4*(sub>>1)}:{23+4*(sub>>1)}], s6 offen lds')
    A('s_cmp_eq_u32 s3, 0\ns_cbranch_scc1 K_B_LEAD')
    mat()
    A('s_branch K_B_WAIT\nK_B_LEAD:')
    A(f's_lshl_b32 s6, s4, 3\ns_add_u32 s6, s6, s5\ns_lshl_b32 s6, s6, 7\ns_add_u32 s6, s6, {BFLAG}\ns_mov_b32 s7, {BFLAG}')
    A('v_cmp_eq_u32 vcc, 0, v2\ns_and_saveexec_b64 s[98:99], vcc\nbuffer_store_dword v15, v14, s[60:63], s6 offen sc1\ns_mov_b64 exec, s[98:99]')
    mat()
    poll(A, 'K_B_POLL', 9, 16, 60, 's7', 1)
    A('K_B_WAIT:')
    A('s_waitcnt vmcnt(0)\ns_barrier')
    bstamp(A, cfg, 5, 0)
    for k in range(8):
        A(f's_add_u32 s7, s35, {k*4*ZSIG}')
        for a in range(2): A(f'buffer_load_dwordx4 {vr(ZF+8*k+4*a,4)}, v{10+a}, s[8:11], s7 offen sc1')
        if k == 0:
            for r in reads(0): A(r)
    for k in range(8):
        f = MF + 16 * (k & 1)
        A(f's_waitcnt vmcnt({14-2*k})')
        for a in range(2): A(f'v_xor_b32 v{ZF+8*k+4*a+2}, s58, v{ZF+8*k+4*a+2}\nv_xor_b32 v{ZF+8*k+4*a+3}, s58, v{ZF+8*k+4*a+3}')
        A('s_waitcnt lgkmcnt(0)')
        Mx = [lambda d=ACC+8*tt+4*a, x=ZF+8*k+4*a, b=f+4*tt, z=k: mfma32(A, d, x, b, d if z else None) for a in range(2) for tt in range(4)]
        interleave(A, Mx, reads(k + 1) if k < 7 else [], per_gap=2)
    bstamp(A, cfg, 6, 0)
    A('s_nop 7')
    for tt in range(4):
        for i in range(4):
            cvt(A, 64+4*tt+i, ACC+8*tt+i, ACC+8*tt+4+i)
            A(f'ds_write_b32 v{SW+i}, v{64+4*tt+i} offset:{tt*16*PITCH}')
    A('s_waitcnt lgkmcnt(0)\ns_barrier')
    for n in range(4): A(f'ds_read_b128 {vr(64+4*n,4)}, v12 offset:{n*2*PITCH}')
    for n in range(4):
        A(f's_add_u32 s7, s34, {(2*n) << 15}\ns_waitcnt lgkmcnt({3-n})')
        A(f'buffer_store_dwordx4 {vr(64+4*n,4)}, v13, s[12:15], s7 offen{cfg.outflagb}')
    stamp_store(A, cfg, 8)
    A('s_endpgm')

def main():
    ap = argparse.ArgumentParser()
    ap.add_argument('-o', default=f'cdna_kernels/{NAME}.s')
    ap.add_argument('--diag', action='store_true')
    ap.add_argument('--xa', default='5,9')
    ap.add_argument('--pre', type=int, default=4); ap.add_argument('--opre', type=int, default=12)
    ap.add_argument('--outflag', default=''); ap.add_argument('--outflagb', default='')
    ap.add_argument('--rot', type=int, default=2); ap.add_argument('--rotx', type=int, default=0); ap.add_argument('--q3', type=int, default=1)
    ap.add_argument('--help_', dest='help', type=int, default=1); ap.add_argument('--help0', type=int, default=1)
    ap.add_argument('--bst', type=int, default=0)
    ap.add_argument('--warmat', type=int, default=7); ap.add_argument('--n1', type=int, default=40)
    cfg = ap.parse_args()
    cfg.xa = [int(x) for x in cfg.xa.split(',')]
    if cfg.outflag: cfg.outflag = ' ' + cfg.outflag.replace('+', ' ')
    if cfg.outflagb: cfg.outflagb = ' ' + cfg.outflagb.replace('+', ' ')
    A = Asm()
    A(f'; @launch grid=(256,1,1) block=(512,1,1) lds={LDS_TOTAL}')
    A('.amdgcn_target "amdgcn-amd-amdhsa--gfx950"\n.text')
    kernel(A, cfg)
    A(f""".section .rodata,"a"
.p2align 6
.amdhsa_kernel {NAME}_kernel
.amdhsa_next_free_vgpr 256
.amdhsa_next_free_sgpr 102
.amdhsa_accum_offset 256
.amdhsa_group_segment_fixed_size 0
.amdhsa_kernarg_size 88
.amdhsa_user_sgpr_count 2
.amdhsa_user_sgpr_kernarg_segment_ptr 1
.amdhsa_system_sgpr_workgroup_id_x 1
.end_amdhsa_kernel""")
    open(cfg.o, 'w').write(A.text())
main()
```

```python
import sys, argparse
NAME = 'concat_heads__sliding_local_dilated__spectral_fnet__prompt'

class Asm:
    def __init__(self): self.L = []
    def __call__(self, s):
        for line in s.split('\n'):
            line = line.strip()
            if line: self.L.append(line if line.endswith(':') or line.startswith('.') or line.startswith(';') else '    ' + line)
    def text(self): return '\n'.join(self.L) + '\n'

def vr(b, n): return f'v[{b}:{b+n-1}]' if n > 1 else f'v{b}'
def srd(A, d, lo, size):
    A(f's_mov_b32 s{d}, s{lo}\ns_mov_b32 s{d+1}, s{lo+1}\ns_mov_b32 s{d+2}, {size:#x}\ns_mov_b32 s{d+3}, 0x20000')
def srd_off(A, d, lo, off, size):
    A(f's_add_u32 s{d}, s{lo}, {off:#x}\ns_addc_u32 s{d+1}, s{lo+1}, 0\ns_mov_b32 s{d+2}, {size:#x}\ns_mov_b32 s{d+3}, 0x20000')
def mfma32(A, d, a, b, c): A(f'v_mfma_f32_16x16x32_bf16 {vr(d,4)}, {vr(a,4)}, {vr(b,4)}, {vr(c,4) if c is not None else 0}')
def mfma16(A, d, a, b, c): A(f'v_mfma_f32_16x16x16_bf16 {vr(d,4)}, {vr(a,2)}, {vr(b,2)}, {vr(c,4) if c is not None else 0}')
def cvt(A, d, a, b): A(f'v_cvt_pk_bf16_f32 v{d}, v{a}, v{b}')

P_AX, P_WQKV, P_WO, P_BX, P_CR, P_CI, P_DR, P_DI, P_OUT, P_DBG, P_WS = 36, 38, 40, 42, 44, 46, 48, 50, 52, 54, 56
WS_O, O_SIZE, WS_Z, Z_SIZE, WS_FLAG, FLAG_SIZE, WS_DIAG = 0, 0x240000, 0x280000, 0x240000, 0x500000, 0x10000, 0x800000
ZSIG, ZCLS = 4608, 147456
GFLAG, BFLAG = 192 * 128, 384 * 128
LDS_TOTAL, LDS_WORD = 163840, 147456
OOB = 0x80000000
SPIN = 400000
SLEEP = 0

def interleave(A, mf, other, per_gap=1, start=0):
    oi = 0
    for i, m in enumerate(mf):
        m()
        if i >= start:
            for _ in range(per_gap):
                if oi < len(other): A(other[oi]); oi += 1
    while oi < len(other): A(other[oi]); oi += 1

def stamp(A, cfg, slot):
    if cfg.diag: A(f's_memrealtime s[{64+4*slot}:{65+4*slot}]\ns_memtime s[{66+4*slot}:{67+4*slot}]')
def stamp_store(A, cfg, nslots):
    if not cfg.diag: return
    A('s_waitcnt lgkmcnt(0) vmcnt(0)')
    stamp(A, cfg, nslots - 1)
    A('s_waitcnt lgkmcnt(0)')
    srd_off(A, 24, P_WS, WS_DIAG, 0x100000)
    A(f's_lshl_b32 s4, s2, 3\ns_add_u32 s4, s4, s3\ns_lshl_b32 s4, s4, 6')
    for i in range(8): A(f'v_mov_b32 v{8+i}, s{64+4*min(i, nslots-1)}\nv_mov_b32 v{16+i}, s{66+4*min(i, nslots-1)}')
    A('v_mov_b32 v1, 0\nv_and_b32 v2, 63, v0\nv_cmp_eq_u32 vcc, 0, v2\ns_and_saveexec_b64 s[6:7], vcc')
    for i in range(4): A(f'buffer_store_dwordx4 v[{8+4*i}:{11+4*i}], v1, s[24:27], s4 offen offset:{16*i}')


def loader_loop(A, items, ends, X):
    done = 0
    for c in range(len(ends)):
        upto = min(len(items), ends[c] + X[min(c, len(X) - 1)])
        while done < upto and items[done][1] <= c:
            items[done][0](); done += 1
        assert done >= ends[c]
        A(f's_waitcnt vmcnt({done - ends[c]})')
        A('s_barrier')
    while done < len(items):
        items[done][0](); done += 1

def poll(A, label, vdst, vaddr, srdn, soff, want, first=True):
    A(f's_mov_b32 s28, 0')
    A(f'{label}:')
    A(f'buffer_load_dword v{vdst}, v{vaddr}, s[{srdn}:{srdn+3}], {soff} offen sc1')
    A(f's_add_u32 s28, s28, 1\ns_cmp_ge_u32 s28, {SPIN}\ns_cbranch_scc1 {label}_X')
    A('s_waitcnt vmcnt(0)')
    A(f'v_cmp_ne_u32 vcc, {want}, v{vdst}')
    A(f's_cmp_lg_u64 vcc, 0\ns_cbranch_scc1 {label}')
    A(f'{label}_X:')

A1_SLOT = 36864

def kernel(A, cfg):
    A(f'.globl {NAME}_kernel\n.p2align 8\n.type {NAME}_kernel,@function\n{NAME}_kernel:')
    A('s_load_dwordx16 s[36:51], s[0:1], 0\ns_load_dwordx4 s[52:55], s[0:1], 64\ns_load_dwordx2 s[56:57], s[0:1], 80')
    A('s_cmp_ge_u32 s2, 256\ns_cbranch_scc1 K_END')
    stamp(A, cfg, 0)
    A('v_lshrrev_b32 v1, 6, v0\nv_and_b32 v2, 63, v0')
    A('v_readfirstlane_b32 s3, v1')
    A('s_and_b32 s4, s2, 7\ns_lshr_b32 s5, s2, 3')
    A('v_and_b32 v3, 15, v2\nv_lshrrev_b32 v4, 4, v2')
    A('v_lshrrev_b32 v5, 3, v2\nv_and_b32 v6, 7, v2')
    A('s_cmp_ge_u32 s5, 24\ns_cbranch_scc1 K_B')
    A('s_mul_i32 s7, s4, 3\ns_lshr_b32 s28, s5, 3\ns_add_u32 s59, s7, s28\ns_and_b32 s29, s5, 7')
    A('s_and_b32 s30, s59, 1\ns_lshr_b32 s31, s59, 1\ns_mul_i32 s32, s31, 88')
    A('s_getreg_b32 s96, hwreg(HW_REG_XCC_ID, 0, 4)\ns_add_u32 s96, s96, 0x100')
    A('s_cmp_ge_u32 s3, 4\ns_cbranch_scc0 K_A_CONS')
    a_loader(A, cfg)
    A('K_A_CONS:')
    a_consumer(A, cfg)
    A('K_B:')
    b_all(A, cfg)
    A('K_END:\ns_endpgm')

def a_loader(A, cfg):
    A('s_mul_i32 s97, s28, 3')
    if cfg.rot == 1: A('s_mov_b32 s63, 0')
    elif cfg.rot == 2: A('s_xor_b32 s63, s28, s5\ns_and_b32 s63, s63, 1\ns_lshl_b32 s63, s63, 2')
    elif cfg.rot == 3: A('s_mov_b32 s63, s97')
    if cfg.q3: A('s_cmp_eq_u32 s29, 3\ns_cselect_b32 s63, s97, s63')
    if cfg.rotx: A(f's_mul_i32 s62, s4, {cfg.rotx}\ns_add_u32 s63, s63, s62')
    A('s_sub_u32 s33, s3, 4')
    A('s_mul_i32 s6, s33, 24')
    for j in range(3):
        A(f'v_add_u32 v7, s6, v5\nv_add_u32 v7, {8*j}, v7')
        A('v_lshrrev_b32 v8, 1, v7\nv_and_b32 v8, 7, v8\nv_xor_b32 v8, v8, v6\nv_lshlrev_b32 v8, 4, v8')
        A('v_add_u32 v7, s32, v7\nv_lshlrev_b32 v7, 1, v7\nv_add_u32 v7, s30, v7')
        A(f'v_lshl_add_u32 v{10+j}, v7, 10, v8')
    A('s_lshl_b32 s6, s33, 4\ns_lshl_b32 s7, s29, 7\ns_movk_i32 s28, 3072')
    for par in range(2):
        A(f'v_add_u32 v7, s6, v5\nv_add_u32 v7, {8*par}, v7')
        A('v_mul_lo_u32 v7, v7, s28\nv_add_u32 v7, s7, v7')
        A(f'v_and_b32 v8, 1, v4\nv_or_b32 v8, {2*par}, v8\nv_lshlrev_b32 v8, 1, v8\nv_xor_b32 v8, v8, v6')
        A(f'v_lshl_add_u32 v{13+par}, v8, 4, v7')
    A('s_mul_i32 s34, s33, 3072')
    A('s_mul_i32 s35, s33, 6144\ns_add_u32 s35, s35, 12288')
    A('s_waitcnt lgkmcnt(0)')
    srd(A, 8, P_AX, 0x200000); srd(A, 12, P_WQKV, 0x180000)
    stamp(A, cfg, 1)
    def issue(c, j):
        base = (c % 4) * A1_SLOT
        if j < 3:
            if j == 0: A(f's_add_u32 s62, s63, {c}\ns_and_b32 s62, s62, 7\ns_lshl_b32 s6, s62, 7')
            A(f's_add_u32 m0, s34, {base + j*1024}\ns_nop 0')
            A(f'buffer_load_dwordx4 v{10+j}, s[8:11], s6 offen lds')
        else:
            par, seg = divmod(j - 3, 3)
            if j == 3: A(f's_mul_i32 s7, s62, 196608')
            if seg == 0: A(f's_add_u32 m0, s35, {base + par*3072}\ns_nop 0')
            A(f'buffer_load_dwordx4 v{13+par}, s[12:15], s7 offen offset:{seg*1024} lds')
        if c == 1 and j == 8: late_setup()
    def late_setup():
        srd(A, 16, P_WO, 0x80000); srd_off(A, 20, P_WS, WS_O, O_SIZE)
        A('s_lshl_b32 s60, s33, 3\nv_add_u32 v7, s60, v5\ns_and_b32 s60, s33, 1\ns_lshl_b32 s60, s60, 1\ns_lshl_b32 s61, s29, 7')
        A('v_and_b32 v8, 1, v4\nv_or_b32 v8, s60, v8\nv_lshlrev_b32 v8, 1, v8\nv_xor_b32 v8, v8, v6\nv_lshlrev_b32 v8, 4, v8')
        A('v_lshl_add_u32 v15, v7, 10, v8\nv_add_u32 v15, s61, v15')
        A('s_lshl_b32 s58, s33, 10')
        A(f's_mul_i32 s60, s33, 24\nv_add_u32 v7, s60, v2\nv_lshrrev_b32 v8, 4, v7\nv_lshlrev_b32 v8, 14, v8\nv_and_b32 v7, 15, v7\nv_lshl_add_u32 v7, v7, 7, v8')
        A(f'v_mov_b32 v8, {OOB:#x}\nv_cmp_le_u32 vcc, 24, v2\ns_mul_i32 s60, s59, {6*16384}\ns_lshl_b32 s61, s29, 11\ns_add_u32 s98, s60, s61\nv_cndmask_b32 v16, v7, v8, vcc')
        A(f'v_mov_b32 v17, {LDS_WORD}\nv_mov_b32 v18, 0\nv_mov_b32 v19, 0\nds_write_b64 v17, v[18:19]\nv_mov_b32 v18, 1')
    def wo(n):
        A(f's_add_u32 s62, s97, {n}\ns_and_b32 s62, s62, 15')
        A('s_lshl_b32 s6, s62, 12\ns_add_u32 m0, s58, s6\ns_lshl_b32 s6, s62, 15')
        A('buffer_load_dwordx4 v15, s[16:19], s6 offen lds')
    def side():
        srd_off(A, 8, P_WS, WS_FLAG, FLAG_SIZE); srd(A, 24, P_DBG, 256)
        A(f'v_lshlrev_b32 v20, 2, v6\nv_lshlrev_b32 v21, 7, v6\ns_lshl_b32 s100, s59, 10\ns_lshr_b32 s97, s5, 3\ns_mul_i32 s97, s97, 5')
        A('buffer_load_dword v250, v16, s[20:23], s98 offen sc1')
    items = [(lambda c=c, j=j: issue(c, j), max(0, c - 2)) for c in range(8) for j in range(9)]
    ends = [9 * (c + 1) for c in range(8)]
    items += [(side, 0), (lambda: A('buffer_load_dword v22, v20, s[24:27], 0 offen sc1'), 0), (lambda: A('buffer_load_dword v251, v21, s[8:11], s100 offen sc1'), 0)]
    items += [(lambda n=n: wo(n), 7) for n in range(16)]
    loader_loop(A, items, ends, cfg.xa)
    stamp(A, cfg, 2)
    AW, WF, OF, ACC = 24, 36, 72, 200
    STAGE = 2 * A1_SLOT
    srd(A, 12, P_OUT, 0x400000)
    A('v_bfe_u32 v7, v2, 2, 2\nv_lshrrev_b32 v8, 1, v7\nv_and_b32 v9, 1, v4\nv_lshl_or_b32 v8, v9, 1, v8')
    A('v_lshlrev_b32 v9, 10, v4\nv_lshl_add_u32 v9, v7, 7, v9\nv_and_b32 v7, 3, v2\nv_lshl_add_u32 v9, v7, 3, v9')
    for nt in range(4): A(f'v_xor_b32 v7, {nt}, v8\nv_lshl_add_u32 v{AW+nt}, v7, 5, v9')
    A('v_lshlrev_b32 v33, 4, v2')
    A(f's_mul_i32 s6, s33, {32*144}\ns_add_u32 s6, s6, {STAGE}')
    A('v_mul_u32_u24 v30, 144, v3\nv_lshl_add_u32 v30, v4, 3, v30\nv_add_u32 v30, s6, v30')
    A('v_mul_u32_u24 v31, 144, v5\nv_lshl_add_u32 v31, v6, 4, v31\nv_add_u32 v31, s6, v31')
    A('v_lshlrev_b32 v32, 12, v5\nv_lshl_add_u32 v32, v6, 4, v32')
    A('s_lshl_b32 s6, s33, 5\ns_add_u32 s6, s6, s32\ns_lshl_b32 s6, s6, 12\ns_lshl_b32 s7, s30, 11\ns_add_u32 s6, s6, s7\ns_lshl_b32 s7, s29, 7\ns_add_u32 s34, s6, s7')
    for n in range(4): A(f's_add_u32 s{60+n}, s34, {(8*n) << 12}')
    A('s_cmp_lg_u32 s31, 0\ns_cselect_b32 s6, 1, 0\ns_cmp_eq_u32 s33, 0\ns_cselect_b32 s6, s6, 0\ns_cmp_lg_u32 s6, 0\ns_cselect_b32 s60, 0x40000000, s60')
    A(f's_mul_i32 s35, s59, {6*16384}\ns_lshl_b32 s6, s33, 15\ns_add_u32 s35, s35, s6')
    A(f'v_mov_b32 v8, v21\ns_mov_b32 s7, s100\ns_add_u32 s6, s7, {GFLAG}')
    A('s_waitcnt vmcnt(17)\nv_cmp_ne_u32 vcc, 1, v22\ns_cmp_eq_u64 vcc, 0\ns_cbranch_scc1 K_A_RDY_X')
    poll(A, 'K_A_RDY', 9, 20, 24, 0, 1)
    A('s_waitcnt vmcnt(0) lgkmcnt(0)\ns_barrier')
    A('s_cmp_eq_u32 s33, 3\ns_cbranch_scc1 K_A_LDONE')
    stamp(A, cfg, 3)
    def reads(ks):
        f = WF + 16 * (ks & 1)
        return [f'ds_read_b64_tr_b16 {vr(f+4*nt+2*u,2)}, v{AW+nt} offset:{ks*4096+u*512}' for nt in range(4) for u in range(2)]
    for r in reads(0): A(r)
    A('s_mov_b32 s28, 0\ns_mov_b32 s99, 0')
    A('K_A_P1:')
    A('buffer_load_dword v9, v8, s[8:11], s7 offen sc1\ns_add_u32 s28, s28, 1\ns_waitcnt vmcnt(0)')
    A('v_cmp_ne_u32 vcc, s96, v9\ns_cmp_eq_u64 vcc, 0\ns_cbranch_scc1 K_A_GO')
    A(f's_cmp_lt_u32 s28, {cfg.n1}\ns_cbranch_scc1 K_A_P1')
    A('ds_write_b32 v17, v18\ns_mov_b32 s99, 1\ns_waitcnt lgkmcnt(0)\ns_barrier')
    A('K_A_P2:')
    A('buffer_load_dword v9, v8, s[8:11], s7 offen sc1\nbuffer_load_dword v10, v8, s[8:11], s6 offen sc1\ns_add_u32 s28, s28, 1\ns_waitcnt vmcnt(0)')
    A('v_cmp_ne_u32 vcc, s96, v9\ns_cmp_eq_u64 vcc, 0\ns_cbranch_scc1 K_A_GO')
    A('v_cmp_ne_u32 vcc, 1, v10\ns_cmp_eq_u64 vcc, 0\ns_cbranch_scc1 K_A_GO')
    A(f's_cmp_lt_u32 s28, {SPIN}\ns_cbranch_scc1 K_A_P2')
    A('K_A_GO:')
    stamp(A, cfg, 4)
    def oload(i):
        ks, a = divmod(i, 2)
        return f's_add_u32 s7, s35, {a*16384 + (ks & ~3)*1024}\nbuffer_load_dwordx4 {vr(OF+8*ks+4*a,4)}, v33, s[20:23], s7 offen offset:{(ks&3)*1024} sc1'
    issued = cfg.opre
    for i in range(issued): A(oload(i))
    for ks in range(16):
        f = WF + 16 * (ks & 1)
        A(f's_waitcnt vmcnt({issued - 2*(ks+1)}) lgkmcnt(0)')
        if ks == 0: stamp(A, cfg, 5)
        M = [lambda d=ACC+16*a+4*nt, x=f+4*nt, b=OF+8*ks+4*a, z=ks: mfma32(A, d, x, b, d if z else None) for a in range(2) for nt in range(4)]
        O = reads(ks + 1) if ks < 15 else []
        O = [O[2*i] + '\n' + O[2*i+1] for i in range(len(O)//2)]
        for _ in range(2):
            if issued < 32: O.append(oload(issued)); issued += 1
        if ks == 11: O.append('s_cmp_lg_u32 s99, 0\ns_cbranch_scc1 K_A_NOB\ns_barrier\nK_A_NOB:')
        interleave(A, M, O)
    stamp(A, cfg, 6)
    T = 8
    A('s_nop 3')
    for a in range(2):
        for nt in range(4):
            d = ACC + 16 * a + 4 * nt; p = T + 8 * a + 2 * nt
            cvt(A, p, d, d+1); cvt(A, p+1, d+2, d+3)
            A(f'ds_write_b64 v30, {vr(p,2)} offset:{a*16*144 + nt*32}')
    A('s_waitcnt lgkmcnt(0)')
    for n in range(4): A(f'ds_read_b128 {vr(T+4*n,4)}, v31 offset:{n*8*144}')
    for n in range(4):
        A(f's_waitcnt lgkmcnt({3-n})')
        A(f'buffer_store_dwordx4 {vr(T+4*n,4)}, v32, s[12:15], s{60+n} offen{cfg.outflag}')
    A('K_A_LDONE:')
    stamp_store(A, cfg, 8)
    A('s_endpgm')

def a_consumer(A, cfg):
    AX, AW = 20, 28
    ST, MD, MP, BD, ONES = 32, 36, 40, 44, 46
    VX, V1, VS0 = 33, 34, 35
    FR, ACC = 48, 120
    A(f'v_mov_b32 v{VX}, s96\nv_mov_b32 v{V1}, 1\nv_mov_b32 v{VS0}, {OOB:#x}\nv_cmp_ne_u32 vcc, 0, v0\ns_nop 1\nv_cndmask_b32 v{VS0}, 0, v{VS0}, vcc')
    A('s_lshl_b32 s58, s59, 3\ns_add_u32 s58, s58, s29\ns_lshl_b32 s58, s58, 7')
    A('s_waitcnt lgkmcnt(0)')
    srd_off(A, 16, P_WS, WS_FLAG, FLAG_SIZE); srd_off(A, 8, P_WS, WS_O, O_SIZE)
    A('v_lshrrev_b32 v7, 1, v3\nv_xor_b32 v7, v7, v4\nv_lshlrev_b32 v7, 4, v7\nv_lshl_add_u32 v7, v3, 7, v7')
    A('v_xor_b32 v8, 64, v7')
    for s in range(4):
        A(f'v_add_u32 v{AX+2*s}, {s*A1_SLOT}, v7\nv_add_u32 v{AX+2*s+1}, {s*A1_SLOT}, v8')
    A('v_bfe_u32 v7, v2, 2, 2')
    A('v_lshrrev_b32 v8, 1, v7\nv_and_b32 v9, 1, v4\nv_lshl_or_b32 v8, v9, 1, v8')
    A('v_xor_b32 v8, s3, v8\nv_lshlrev_b32 v8, 5, v8\nv_lshl_add_u32 v8, v7, 7, v8')
    A('v_and_b32 v9, 3, v2\nv_lshl_add_u32 v8, v9, 3, v8')
    A('v_mul_u32_u24 v9, 3072, v4\nv_add_u32 v8, v8, v9')
    for s in range(4): A(f'v_add_u32 v{AW+s}, {s*A1_SLOT+12288}, v8')
    A('v_lshlrev_b32 v7, 2, v4\nv_sub_u32 v7, v3, v7')
    A('v_mov_b32 v9, 0xf149f2ca')
    A('v_mov_b32 v10, 0xffff\nv_mov_b32 v11, 0xffff0000')
    for i in range(4):
        A(f'v_subrev_u32 v8, {i}, v7')
        A(f'v_cmp_le_u32 vcc, 8, v8\ns_nop 1\nv_cndmask_b32 v{MD+i}, 0, v9, vcc')
        A(f'v_cmp_lt_i32 vcc, -9, v8\ns_nop 1\nv_cndmask_b32 v{MP+i}, 0, v9, vcc')
        A(f'v_cmp_le_i32 vcc, 0, v8\ns_nop 1\nv_cndmask_b32 v{12+i}, 0, v{10+(i&1)}, vcc')
    A(f'v_or_b32 v{BD}, v12, v13\nv_or_b32 v{BD+1}, v14, v15')
    A(f'v_mov_b32 v{ONES}, 0x3f803f80\nv_mov_b32 v{ONES+1}, 0x3f803f80')
    A('s_lshl_b32 s6, s29, 2\ns_add_u32 s6, s6, s3\ns_lshl_b32 s6, s6, 9')
    A(f's_mul_i32 s7, s59, {6*16384}\ns_add_u32 s60, s6, s7\ns_add_u32 s61, s60, 0x8000\ns_add_u32 s62, s60, 0x10000')
    A('v_and_b32 v7, 1, v4\nv_lshlrev_b32 v7, 14, v7\nv_lshrrev_b32 v8, 1, v4\nv_lshl_add_u32 v7, v8, 8, v7')
    A(f'v_lshl_add_u32 v{ST}, v3, 4, v7')
    A('s_mov_b32 s34, 0x3eb8aa3b')
    def reads(ks):
        c, h = divmod(ks, 2); s = c % 4; f = FR + 36 * (ks & 1); R = []
        def w(seg): return [f'ds_read_b64_tr_b16 {vr(f+24+4*seg+2*u,2)}, v{AW+s} offset:{h*12288+seg*1024+u*512}' for u in range(2)]
        R += w(0)
        R += [f'ds_read_b128 {vr(f+4*t,4)}, v{AX+2*s+h} offset:{t*2048}' for t in range(6)]
        R += w(1) + w(2)
        return R
    def mfmas(ks):
        f = FR + 36 * (ks & 1); M = []
        for seg in range(3):
            for t in range(6):
                d = ACC + 24 * seg + 4 * t; c = d if ks else None
                if seg < 2: M.append(lambda d=d, a=f+24+4*seg, b=f+4*t, c=c: mfma32(A, d, a, b, c))
                else:       M.append(lambda d=d, a=f+4*t, b=f+24+4*seg, c=c: mfma32(A, d, a, b, c))
        return M
    A('s_barrier')
    stamp(A, cfg, 1)
    for r in reads(0): A(r)
    for ks in range(16):
        A('s_waitcnt lgkmcnt(0)')
        M = mfmas(ks)
        if ks == 15: interleave(A, M, [])
        elif ks & 1:
            pre = cfg.pre
            for m in M[:pre]: m()
            A('s_barrier')
            interleave(A, M[pre:], reads(ks + 1), per_gap=2 if pre > 2 else 1)
        else:
            R = reads(ks + 1)
            interleave(A, M, R)
    stamp(A, cfg, 2)
    QP, KP, VP, SD, SP, MX, PK, PO, OO, SM, OP = 48, 60, 72, 192, 216, 86, 98, 120, 144, 168, 48
    for t in range(6):
        cvt(A, QP+2*t, ACC+4*t, ACC+4*t+1); cvt(A, QP+2*t+1, ACC+4*t+2, ACC+4*t+3)
    for t in range(6):
        cvt(A, KP+2*t, ACC+24+4*t, ACC+24+4*t+1); cvt(A, KP+2*t+1, ACC+24+4*t+2, ACC+24+4*t+3)
    A(f'v_mov_b32 v{VP}, 0\nv_mov_b32 v{VP+1}, 0')
    M = []
    for t in range(6):
        M.append(lambda t=t: mfma16(A, SD+4*t, KP+2*t, QP+2*t, MD))
        if t: M.append(lambda t=t: mfma16(A, SP+4*t, KP+2*t-2, QP+2*t, MP))
    V = []
    for t in range(6):
        V.append(f'v_cvt_pk_bf16_f32 v{VP+2+2*t}, v{ACC+48+4*t}, v{ACC+48+4*t+1}')
        V.append(f'v_cvt_pk_bf16_f32 v{VP+3+2*t}, v{ACC+48+4*t+2}, v{ACC+48+4*t+3}')
    interleave(A, M, V)
    for t in range(6):
        if t:
            for i in range(4): A(f'v_max_f32 v{SD+4*t+i}, v{SD+4*t+i}, v{SP+4*t+i}')
        A(f'v_max3_f32 v{MX+t}, v{SD+4*t}, v{SD+4*t+1}, v{SD+4*t+2}')
        A(f'v_max_f32 v{MX+t}, v{MX+t}, v{SD+4*t+3}')
    A('s_nop 1')
    for u in range(3): A(f'v_permlane32_swap_b32 v{MX+2*u}, v{MX+2*u+1}')
    for u in range(3): A(f'v_max_f32 v{MX+2*u}, v{MX+2*u}, v{MX+2*u+1}')
    for u in range(3): A(f'v_mov_b32 v{MX+2*u+1}, v{MX+2*u}')
    A('s_nop 0')
    for u in range(3): A(f'v_permlane16_swap_b32 v{MX+2*u}, v{MX+2*u+1}')
    for u in range(3): A(f'v_max_f32 v{MX+2*u}, v{MX+2*u}, v{MX+2*u+1}')
    for u in range(3): A(f'v_mul_f32 v{MX+2*u}, s34, v{MX+2*u}')
    for u in range(3): A(f'v_mov_b32 v{MX+2*u+1}, v{MX+2*u}')
    A('s_nop 0')
    for u in range(3): A(f'v_permlane32_swap_b32 v{MX+2*u}, v{MX+2*u+1}')
    for t in range(6):
        for i in range(4): A(f'v_fma_f32 v{SD+4*t+i}, v{SD+4*t+i}, s34, -v{MX+t}')
    for t in range(6):
        for i in range(4): A(f'v_exp_f32 v{SD+4*t+i}, v{SD+4*t+i}')
    for t in range(6):
        cvt(A, PK+2*t, SD+4*t, SD+4*t+1); cvt(A, PK+2*t+1, SD+4*t+2, SD+4*t+3)
    for t in range(6):
        A(f'v_and_b32 v{PO+4*t+2}, v{PK+2*t}, v{BD}\nv_and_b32 v{PO+4*t+3}, v{PK+2*t+1}, v{BD+1}')
        A(f'v_xor_b32 v{PO+4*t}, v{PK+2*t}, v{PO+4*t+2}\nv_xor_b32 v{PO+4*t+1}, v{PK+2*t+1}, v{PO+4*t+3}')
        mfma16(A, SM+4*t, ONES, PK+2*t, None)
    A('s_nop 0')
    for t in range(6): mfma32(A, OO+4*t, VP+2*t, PO+4*t, None)
    A('s_nop 1')
    for t in range(6): A(f'v_rcp_f32 v{MX+t}, v{SM+4*t}')
    A('s_nop 1')
    for u in range(3):
        for t in (2*u, 2*u+1):
            for i in range(4): A(f'v_mul_f32 v{OO+4*t+i}, v{OO+4*t+i}, v{MX+t}')
        for t in (2*u, 2*u+1):
            cvt(A, OP+2*t, OO+4*t, OO+4*t+1); cvt(A, OP+2*t+1, OO+4*t+2, OO+4*t+3)
        A('s_nop 1')
        A(f'v_permlane16_swap_b32 v{OP+4*u}, v{OP+4*u+2}\nv_permlane16_swap_b32 v{OP+4*u+1}, v{OP+4*u+3}')
        A(f'buffer_store_dwordx4 {vr(OP+4*u,4)}, v{ST}, s[8:11], s{60+u} offen')
    stamp(A, cfg, 3)
    A('s_waitcnt vmcnt(0)')
    stamp(A, cfg, 4)
    A('s_barrier')
    A(f'buffer_store_dword v{VX}, v{VS0}, s[16:19], s58 offen')
    stamp(A, cfg, 5)
    A(f'v_mov_b32 v7, {LDS_WORD}\ns_barrier\nds_read_b32 v8, v7\ns_waitcnt lgkmcnt(0)\nv_readfirstlane_b32 s6, v8\ns_cmp_eq_u32 s6, 0\ns_cbranch_scc1 K_A_CDONE')
    for u in range(3): A(f'buffer_store_dwordx4 {vr(OP+4*u,4)}, v{ST}, s[8:11], s{60+u} offen sc1')
    A(f'v_cmp_eq_u32 vcc, 0, v2\ns_and_saveexec_b64 s[6:7], vcc\ns_waitcnt vmcnt(0)\nds_add_rtn_u32 v8, v7, v{V1} offset:4\ns_waitcnt lgkmcnt(0)')
    A(f'v_readfirstlane_b32 s28, v8\ns_cmp_lg_u32 s28, 3\ns_cbranch_scc1 K_A_CDONE')
    A(f's_add_u32 s58, s58, {GFLAG}\nv_mov_b32 v7, 0\nbuffer_store_dword v{V1}, v7, s[16:19], s58 offen sc1')
    A('K_A_CDONE:')
    A('s_mov_b64 exec, -1')
    stamp_store(A, cfg, 7)
    A('s_endpgm')

def bstamp(A, cfg, slot, mode):
    if cfg.bst == mode: stamp(A, cfg, slot)

def b_all(A, cfg):
    G, F, M = 32, 38, 44
    X1, MAT, PITCH = 65536, 98304, 272
    A('s_and_b32 s5, s5, 7')
    A('s_lshl_b32 s29, s4, 2\ns_lshr_b32 s6, s5, 1\ns_add_u32 s29, s29, s6')
    A('v_lshlrev_b32 v36, 4, v2')
    if cfg.help:
        A('s_mul_i32 s6, s5, 36\ns_lshl_b32 s7, s3, 3\ns_add_u32 s6, s6, s7\nv_add_u32 v7, s6, v5')
        A('v_mul_u32_u24 v8, 683, v7\nv_lshrrev_b32 v8, 16, v8\nv_mul_u32_u24 v9, 96, v8\nv_sub_u32 v7, v7, v9')
        A('s_mul_i32 s6, s4, 3\nv_add_u32 v8, s6, v8\nv_lshrrev_b32 v9, 1, v8\nv_mul_u32_u24 v9, 88, v9\nv_add_u32 v7, v7, v9\nv_and_b32 v8, 1, v8\nv_lshl_add_u32 v7, v7, 1, v8')
        A('v_lshlrev_b32 v7, 10, v7\nv_lshl_add_u32 v10, v6, 4, v7')
        A('s_lshl_b32 s28, s4, 3\ns_add_u32 s28, s28, s5\ns_mul_i32 s6, s28, 3\ns_add_u32 s6, s6, s3\ns_sub_u32 s6, s6, 5\ns_lshl_b32 s6, s6, 10\nv_add_u32 v12, s6, v36')
        A('s_lshl_b32 s28, s28, 3\ns_add_u32 s28, s28, s3\ns_lshl_b32 s28, s28, 10')
    A('s_lshr_b32 s32, s3, 1\ns_and_b32 s33, s3, 1')
    A('s_and_b32 s97, s5, 1\ns_lshl_b32 s97, s97, 2\ns_xor_b32 s97, s97, s3')
    A('s_lshl_b32 s6, s29, 2\ns_lshr_b32 s7, s97, 1\ns_add_u32 s6, s6, s7\ns_lshl_b32 s7, s33, 10\ns_add_u32 s6, s6, s7\ns_lshl_b32 s34, s6, 10')
    A('s_lshl_b32 s35, s3, 13')
    A('v_mov_b32 v14, 0\nv_mov_b32 v15, 1\nv_lshlrev_b32 v16, 7, v2')
    A('s_or_b32 s59, s3, s5')
    A('s_waitcnt lgkmcnt(0)')
    srd_off(A, 60, P_WS, WS_FLAG, FLAG_SIZE)
    stamp(A, cfg, 1)
    A('s_cmp_lg_u32 s59, 0\ns_cbranch_scc1 K_B_NOCLR')
    A('s_lshl_b32 s6, s4, 13\nbuffer_store_dword v14, v16, s[60:63], s6 offen sc1')
    A('K_B_NOCLR:')
    if cfg.cpf:
        A('s_cmp_ge_u32 s3, 3\ns_cbranch_scc1 K_B_NOCPF')
        A(f's_getpc_b64 s[8:9]\nK_B_PC:\ns_sub_u32 s8, s8, K_B_PC-{NAME}_kernel\ns_subb_u32 s9, s9, 0\ns_mov_b32 s10, K_END-{NAME}_kernel\ns_mov_b32 s11, 0x20000')
        A('s_lshl_b32 s6, s3, 3\ns_add_u32 s6, s6, s5\ns_lshl_b32 s6, s6, 10\nbuffer_load_dwordx4 v[224:227], v36, s[8:11], s6 offen')
        A('K_B_NOCPF:')
    if cfg.help:
        A('s_cmp_ge_u32 s3, 5\ns_cbranch_scc1 K_B_HW')
        srd(A, 8, P_AX, 0x200000)
        for c in range(cfg.help0, 8): A(f'buffer_load_dwordx4 v[{224+4*c}:{227+4*c}], v10, s[8:11], 0 offen offset:{c*128}')
        A('s_branch K_B_HD\nK_B_HW:')
        srd(A, 8, P_WQKV, 0x180000)
        for c in range(cfg.help0, 8): A(f's_mov_b32 s6, {c*196608}\nbuffer_load_dwordx4 v[{224+4*c}:{227+4*c}], v12, s[8:11], s6 offen')
        A('K_B_HD:')
    def early():
        A('s_and_b32 s30, s5, 1\ns_lshl_b32 s30, s30, 2\ns_add_u32 s58, s30, s32')
        A('s_sub_u32 s6, 16, s4\ns_cmp_eq_u32 s4, 0\ns_cselect_b32 s6, 8, s6\ns_bitcmp1_b32 s5, 2\ns_cselect_b32 s31, s6, s4')
        A('v_lshrrev_b32 v7, 2, v2\nv_and_b32 v8, 3, v2\nv_lshlrev_b32 v7, 6, v7\nv_lshl_add_u32 v7, v8, 4, v7\nv_add_u32 v17, s35, v7')
        A('v_bfe_u32 v7, v2, 3, 1\nv_lshl_add_u32 v7, v7, 2, v4\nv_xor_b32 v7, v7, v6\nv_lshlrev_b32 v7, 4, v7\nv_lshl_add_u32 v18, v6, 12, v7')
        A(f's_lshl_b32 s6, s97, 9\ns_add_u32 s6, s6, {X1}\nv_add_u32 v18, s6, v18')
        A(f'v_lshlrev_b32 v7, 6, v3\nv_lshl_add_u32 v7, v4, 4, v7\ns_lshl_b32 s6, s32, 5\nv_xor_b32 v7, s6, v7\ns_lshl_b32 s6, s32, 13\ns_add_u32 s6, s6, {X1}\nv_add_u32 v19, s6, v7\nv_xor_b32 v20, 16, v19')
        A(f's_mov_b32 s6, {4*ZCLS}\nv_mul_lo_u32 v7, v4, s6\nv_lshl_add_u32 v22, v3, 4, v7')
        A(f's_mul_i32 s101, s29, {ZSIG}\ns_lshl_b32 s6, s33, 8\ns_add_u32 s101, s101, s6\ns_lshl_b32 s6, s58, 9\ns_add_u32 s101, s101, s6')
        A('s_lshl_b32 s6, s30, 1\nv_add_u32 v9, s6, v6')
        A('v_lshrrev_b32 v7, 1, v9\nv_and_b32 v8, 1, v9\nv_lshlrev_b32 v8, 2, v8\nv_cmp_eq_u32 vcc, 1, v9\nv_mov_b32 v9, 8\nv_mov_b32 v23, 0')
        A('v_cndmask_b32 v7, v7, v9, vcc\nv_cndmask_b32 v8, v8, v23, vcc\nv_lshlrev_b32 v9, 2, v4\ns_mov_b32 s6, 0x3d800000')
        for i in range(4):
            A(f'v_add_u32 v23, {i}, v9\nv_mad_u32_u24 v24, v23, v7, v8\nv_mul_u32_u24 v25, v23, v3\nv_and_b32 v24, 15, v24\nv_and_b32 v25, 15, v25')
            A(f'v_cvt_f32_u32 v24, v24\nv_cvt_f32_u32 v25, v25\nv_mul_f32 v24, s6, v24\nv_mul_f32 v25, s6, v25')
            A(f'v_cos_f32 v{96+i}, v24\nv_cos_f32 v{100+i}, v25\nv_sin_f32 v{104+i}, v25')
        A('v_cmp_lt_u32 vcc, 7, v3')
        cvt(A, 24, 96, 97); cvt(A, 25, 98, 99)
        A(f'v_cndmask_b32 v{G}, v24, v14, vcc\nv_cndmask_b32 v{G+1}, v25, v14, vcc\nv_cndmask_b32 v{G+2}, v14, v24, vcc\nv_cndmask_b32 v{G+3}, v14, v25, vcc')
        for q in range(4): cvt(A, F+q, 100+2*q, 101+2*q)
        A(f'v_xor_b32 v{F+4}, 0x80008000, v{F}\nv_xor_b32 v{F+5}, 0x80008000, v{F+1}')
        def gen_m(dst, extra):
            A(f's_lshl_b32 s6, s33, 8\ns_add_u32 s6, s6, s58\ns_add_u32 s6, s6, {extra}\nv_lshl_add_u32 v7, v3, 4, s6\nv_cvt_f32_u32 v7, v7\nv_mul_f32 v7, 0xbb000000, v7')
            A('v_lshlrev_b32 v8, 3, v4\nv_cvt_f32_u32 v8, v8\nv_mul_f32 v8, v7, v8')
            for i in range(8):
                A(f'v_cos_f32 v{96+i}, v8\nv_sin_f32 v{104+i}, v8')
                if i < 7: A('v_add_f32 v8, v8, v7')
            A('s_nop 0')
            for q in range(8): cvt(A, dst+q, 96+2*q, 97+2*q)
        gen_m(M, 0)
        for i in range(4): A(f'v_xor_b32 v{M+8+i}, 0x80008000, v{M+4+i}')
        A('s_cmp_lg_u32 s58, 0\ns_cbranch_scc1 K_B_NOM8')
        gen_m(M + 8, 8)
        A('K_B_NOM8:')
    if cfg.help:
        early()
        if cfg.hbar: A('s_barrier')
    srd(A, 8, P_BX, 0x200000)
    for n in range(8):
        A(f's_add_u32 m0, s35, {n*1024}\ns_add_u32 s6, s34, {n*131072}')
        A('buffer_load_dwordx4 v36, s[8:11], s6 offen lds')
    srd(A, 16, P_DBG, 256)
    if cfg.help:
        srd(A, 20, P_WO, 0x80000)
        A('buffer_load_dwordx4 v[28:31], v36, s[20:23], s28 offen')
    srd_off(A, 8, P_WS, WS_Z, Z_SIZE); srd(A, 12, P_OUT, 0x400000)
    if not cfg.help: early()
    A('s_cmp_lg_u32 s59, 0\ns_cbranch_scc1 K_B_NOGO')
    A(f's_lshl_b32 s6, s4, 2\nv_cmp_eq_u32 vcc, 0, v2\ns_and_saveexec_b64 s[98:99], vcc\ns_waitcnt vmcnt(0)\nbuffer_store_dword v15, v14, s[16:19], s6 offen sc1\ns_mov_b64 exec, s[98:99]\ns_branch K_B_XOK')
    A('K_B_NOGO:')
    A('s_waitcnt vmcnt(1)' if cfg.help else 's_waitcnt vmcnt(0)')
    A('K_B_XOK:')
    stamp(A, cfg, 2)
    DA, DD = 64, 96
    for p in range(4):
        for h in range(2):
            for rb in range(2): A(f'ds_read_b64_tr_b16 {vr(DA+8*p+4*h+2*rb,2)}, v17 offset:{(2*p+rb)*1024+h*8}')
    for i in range(8):
        A(f's_waitcnt lgkmcnt({14 - 2*i})')
        mfma32(A, DD+4*i, DA+4*i, G, None)
    bstamp(A, cfg, 3, 1)
    for p in range(4):
        for q in range(4): cvt(A, DA+4*p+q, DD+8*p+2*q, DD+8*p+2*q+1)
        A(f'ds_write_b128 v18, {vr(DA+4*p,4)} offset:{p*128}')
    A('s_waitcnt lgkmcnt(0)')
    bstamp(A, cfg, 4, 1)
    A('s_barrier')
    bstamp(A, cfg, 5, 1)
    XF, U, BO, Z, PK = 64, 96, 160, 192, 224
    for h in range(2):
        for sp in range(4): A(f'ds_read_b128 {vr(XF+16*h+4*sp,4)}, v{19+h} offset:{h*4096+sp*1024}')
    def stage_c(u, bo, off):
        for sp in range(4):
            for q in range(4): cvt(A, bo+4*sp+q, u+8*sp+2*q, u+8*sp+2*q+1)
        A('s_nop 1')
        for part in range(2):
            for sp in range(4): mfma32(A, Z+16*part+4*sp, F+2*part, bo+4*sp, None)
        A('s_nop 3')
        for part in range(2):
            for i in range(4):
                for q in range(2): cvt(A, PK+4*i+2*part+q, Z+16*part+8*q+i, Z+16*part+8*q+4+i)
                if part: A(f's_add_u32 s7, s101, {i*ZCLS + off}\nbuffer_store_dwordx4 {vr(PK+4*i,4)}, v22, s[8:11], s7 offen sc1')
    A('s_cmp_eq_u32 s58, 0\ns_cbranch_scc1 K_B_W0')
    A('s_waitcnt lgkmcnt(4)')
    for sp in range(4):
        mfma32(A, U+8*sp, XF+4*sp, M, None); mfma32(A, U+8*sp+4, XF+4*sp, M+4, None)
    A('s_waitcnt lgkmcnt(0)')
    for sp in range(4):
        mfma32(A, U+8*sp, XF+16+4*sp, M+8, U+8*sp); mfma32(A, U+8*sp+4, XF+16+4*sp, M, U+8*sp+4)
    A('s_nop 1')
    stage_c(U, BO, 0)
    A('s_branch K_B_SIG')
    A('K_B_W0:')
    A('s_waitcnt lgkmcnt(0)')
    for h in range(2):
        for sp in range(4):
            mfma32(A, U+32*h+8*sp, XF+16*h+4*sp, M+8*h, None); mfma32(A, U+32*h+8*sp+4, XF+16*h+4*sp, M+8*h+4, None)
    stage_c(U, BO, 0)
    stage_c(U+32, BO+16, 8*512)
    A('K_B_SIG:')
    bstamp(A, cfg, 6, 1)
    bstamp(A, cfg, 3, 0)
    AM, SW, ZF, MF, ACC, T = 24, 40, 48, 112, 160, 224
    def gen_mat():
        A('s_lshl_b32 s6, s3, 8\ns_add_u32 s6, s6, s31\nv_lshl_add_u32 v7, v3, 4, s6\nv_cvt_f32_u32 v7, v7\nv_mul_f32 v7, 0xba000000, v7')
        A(f'v_lshlrev_b32 v8, 2, v4\nv_cvt_f32_u32 v8, v8\nv_mul_f32 v8, v7, v8\nv_mul_f32 v9, 0x41500000, v7\ns_add_u32 s6, s35, {MAT}\nv_add_u32 v10, s6, v36\ns_and_b32 s6, s5, 4\ns_lshl_b32 s6, s6, 10\nv_subrev_u32 v11, s6, v10\nv_add_u32 v10, s6, v10')
        for k in range(8):
            b = 96 + 8 * (k & 1)
            for i in range(4):
                A(f'v_cos_f32 v{b+i}, v8\nv_sin_f32 v{b+4+i}, v8\nv_add_f32 v8, v8, v{7 if i < 3 else 9}')
            for q in range(4): cvt(A, 112+4*(k&1)+q, b+2*q, b+2*q+1)
            A(f'ds_write_b128 v{10 + (k>>2)}, {vr(112+4*(k&1),4)} offset:{k*1024}')
    A('s_and_b32 s30, s5, 3')
    A(f'v_mul_u32_u24 v7, {PITCH}, v4\nv_lshl_add_u32 v12, v3, 4, v7\nv_lshlrev_b32 v7, 15, v4\nv_lshl_add_u32 v13, v3, 4, v7')
    A('s_lshl_b32 s6, s31, 11\ns_lshl_b32 s7, s30, 8\ns_add_u32 s6, s6, s7\ns_add_u32 s34, s6, 1024')
    A('s_cmp_ge_u32 s3, 4\ns_cbranch_scc1 K_B_AUX')
    A(f'v_lshrrev_b32 v8, 1, v4\nv_and_b32 v9, 1, v4\nv_add_u32 v{AM}, {MAT}, v36')
    A('s_sub_u32 s6, 16, s31\ns_and_b32 s6, s6, 15\ns_lshl_b32 s7, s3, 2\ns_sub_u32 s28, 13, s7\ns_sub_u32 s35, 3, s30')
    A('s_cmp_ge_u32 s3, 2\ns_cselect_b32 s6, s6, s31\ns_cselect_b32 s7, s28, s7\ns_cselect_b32 s35, s35, s30\ns_cselect_b32 s58, 0x80008000, 0\ns_cselect_b32 s28, 3, 0\ns_cselect_b32 s29, 7, 0')
    A(f's_mul_i32 s6, s6, {ZCLS}\ns_lshl_b32 s7, s7, 9\ns_add_u32 s6, s6, s7\ns_lshl_b32 s35, s35, 7\ns_add_u32 s35, s35, s6')
    A(f'v_mul_u32_u24 v7, {ZSIG}, v4\nv_lshl_add_u32 v7, v6, 4, v7\nv_bfe_u32 v10, v2, 3, 1\nv_lshlrev_b32 v10, 1, v10\nv_xor_b32 v10, s28, v10\nv_xor_b32 v11, 1, v10')
    A('v_lshl_add_u32 v10, v10, 9, v7\nv_lshl_add_u32 v11, v11, 9, v7')
    A(f'v_mul_u32_u24 v7, {PITCH}, v3\nv_lshl_add_u32 v7, v8, 2, v7\ns_lshl_b32 s6, s3, 3\nv_add_u32 v7, s6, v7\nv_lshlrev_b32 v9, 2, v9\nv_xor_b32 v9, s29, v9')
    for i in range(4): A(f'v_xor_b32 v8, {i}, v9\nv_lshl_add_u32 v{SW+i}, v8, 5, v7')
    def reads(st):
        hf, k = divmod(st, 8); f = MF + 16 * (st % 3)
        return [f'ds_read_b128 {vr(f+4*tt,4)}, v{AM} offset:{(4*hf+tt)*8192 + k*1024}' for tt in range(4)] if st < 16 else []
    A('s_waitcnt vmcnt(0)')
    bstamp(A, cfg, 4, 0)
    A('s_barrier')
    A('v_mov_b32 v20, v10\nv_mov_b32 v21, v11\ns_mov_b32 s100, s35\ns_lshl_b32 s35, s3, 13')
    gen_mat()
    A(f's_and_b32 s6, s5, 4\ns_mul_i32 s6, s6, {4*ZSIG}\ns_add_u32 s35, s100, s6\ns_sub_u32 s100, s100, s6')
    A('s_waitcnt lgkmcnt(0)\ns_barrier')
    bstamp(A, cfg, 5, 0)
    for k in range(8):
        A(f's_add_u32 s7, s{35 if k < 4 else 100}, {k*4*ZSIG}')
        for a in range(2): A(f'buffer_load_dwordx4 {vr(ZF+8*k+4*a,4)}, v{20+a}, s[8:11], s7 offen sc1')
        if k == 1:
            for r in reads(0) + reads(1): A(r)
    def stage_out(hf):
        return [f'v_cvt_pk_bf16_f32 v{T+4*tt+i}, v{ACC+32*hf+8*tt+i}, v{ACC+32*hf+8*tt+4+i}\nds_write_b32 v{SW+i}, v{T+4*tt+i} offset:{(4*hf+tt)*16*PITCH}' for tt in range(4) for i in range(4)]
    so = stage_out(0)
    nw = lambda st: 4 if 9 <= st <= 12 else 0
    for st in range(16):
        hf, k = divmod(st, 8); f = MF + 16 * (st % 3)
        if hf == 0:
            A(f's_waitcnt vmcnt({14-2*k})')
            for a in range(2): A(f'v_xor_b32 v{ZF+8*k+4*a+2}, s58, v{ZF+8*k+4*a+2}\nv_xor_b32 v{ZF+8*k+4*a+3}, s58, v{ZF+8*k+4*a+3}')
        if st == 14: A('s_waitcnt lgkmcnt(4)\ns_barrier')
        else: A(f's_waitcnt lgkmcnt({nw(st-2) + len(reads(st+1)) + nw(st-1)})')
        Mx = [lambda d=ACC+32*hf+8*tt+4*a, x=ZF+8*k+4*a, b=f+4*tt, z=k: mfma32(A, d, x, b, d if z else None) for a in range(2) for tt in range(4)]
        R = reads(st + 2)
        if nw(st): R += so[4*(st-9):4*(st-8)]
        interleave(A, Mx, R)
    bstamp(A, cfg, 6, 0)
    A('s_nop 4')
    for x in stage_out(1): A(x)
    A('s_waitcnt lgkmcnt(0)\ns_branch K_B_FIN')
    A('K_B_AUX:')
    A('s_cmp_lg_u32 s3, 5\ns_cbranch_scc1 K_B_RDY_X\nv_lshlrev_b32 v7, 2, v6')
    poll(A, 'K_B_RDY', 9, 7, 16, 0, 1)
    A('s_waitcnt vmcnt(0)')
    bstamp(A, cfg, 4, 0)
    A('s_barrier')
    A('s_cmp_lg_u32 s3, 4\ns_cbranch_scc1 K_B_NOSIG')
    A(f's_lshl_b32 s6, s4, 3\ns_add_u32 s6, s6, s5\ns_lshl_b32 s6, s6, 7\ns_add_u32 s6, s6, {BFLAG}')
    A('v_cmp_eq_u32 vcc, 0, v2\ns_and_saveexec_b64 s[98:99], vcc\nbuffer_store_dword v15, v14, s[60:63], s6 offen sc1\ns_mov_b64 exec, s[98:99]')
    A('K_B_NOSIG:')
    gen_mat()
    A(f's_cmp_lg_u32 s3, 4\ns_cbranch_scc1 K_B_POLL_X\ns_mov_b32 s7, {BFLAG}')
    poll(A, 'K_B_POLL', 9, 16, 60, 's7', 1)
    A('s_waitcnt lgkmcnt(0)\ns_barrier')
    bstamp(A, cfg, 5, 0)
    A(f's_sub_u32 s6, s3, 4\ns_mul_i32 s7, s6, {16*PITCH}\nv_add_u32 v7, s7, v12\ns_lshl_b32 s6, s6, 19\ns_add_u32 s6, s6, s34')
    A('s_barrier')
    for n in range(4): A(f'ds_read_b128 {vr(64+4*n,4)}, v7 offset:{n*4*PITCH}')
    for n in range(4):
        A(f's_add_u32 s7, s6, {(4*n) << 15}\ns_waitcnt lgkmcnt({3-n})')
        A(f'buffer_store_dwordx4 {vr(64+4*n,4)}, v13, s[12:15], s7 offen{cfg.outflagb}')
    bstamp(A, cfg, 6, 0)
    A('K_B_FIN:')
    A(f's_mul_i32 s7, s3, {8*PITCH}\nv_add_u32 v7, s7, v12\ns_lshl_b32 s6, s3, 18\ns_add_u32 s6, s6, s34')
    A('s_barrier')
    for n in range(2): A(f'ds_read_b128 {vr(80+4*n,4)}, v7 offset:{(64+4*n)*PITCH}')
    for n in range(2):
        A(f's_add_u32 s7, s6, {(64+4*n) << 15}\ns_waitcnt lgkmcnt({1-n})')
        A(f'buffer_store_dwordx4 {vr(80+4*n,4)}, v13, s[12:15], s7 offen{cfg.outflagb}')
    stamp_store(A, cfg, 8)
    A('s_endpgm')

def main():
    ap = argparse.ArgumentParser()
    ap.add_argument('-o', default=f'cdna_kernels/{NAME}.s')
    ap.add_argument('--diag', action='store_true')
    ap.add_argument('--xa', default='3,9,9,9,9,9,9,6')
    ap.add_argument('--pre', type=int, default=4); ap.add_argument('--opre', type=int, default=12)
    ap.add_argument('--outflag', default=''); ap.add_argument('--outflagb', default='')
    ap.add_argument('--rot', type=int, default=1); ap.add_argument('--rotx', type=int, default=0); ap.add_argument('--q3', type=int, default=1)
    ap.add_argument('--help_', dest='help', type=int, default=1); ap.add_argument('--help0', type=int, default=1)
    ap.add_argument('--hbar', type=int, default=1)
    ap.add_argument('--cpf', type=int, default=1)
    ap.add_argument('--bst', type=int, default=0)
    ap.add_argument('--warmat', type=int, default=7); ap.add_argument('--n1', type=int, default=40)
    cfg = ap.parse_args()
    cfg.xa = [int(x) for x in cfg.xa.split(',')]
    if cfg.outflag: cfg.outflag = ' ' + cfg.outflag.replace('+', ' ')
    if cfg.outflagb: cfg.outflagb = ' ' + cfg.outflagb.replace('+', ' ')
    A = Asm()
    A(f'; @launch grid=(256,1,1) block=(512,1,1) lds={LDS_TOTAL}')
    A('.amdgcn_target "amdgcn-amd-amdhsa--gfx950"\n.text')
    kernel(A, cfg)
    A(f""".section .rodata,"a"
.p2align 6
.amdhsa_kernel {NAME}_kernel
.amdhsa_next_free_vgpr 256
.amdhsa_next_free_sgpr 102
.amdhsa_accum_offset 256
.amdhsa_group_segment_fixed_size 0
.amdhsa_kernarg_size 88
.amdhsa_user_sgpr_count 2
.amdhsa_user_sgpr_kernarg_segment_ptr 1
.amdhsa_system_sgpr_workgroup_id_x 1
.end_amdhsa_kernel""")
    open(cfg.o, 'w').write(A.text())
main()
```

```python
import sys, argparse
NAME = 'concat_heads__sliding_local_dilated__spectral_fnet__prompt'

class Asm:
    def __init__(self): self.L = []
    def __call__(self, s):
        for line in s.split('\n'):
            line = line.strip()
            if line: self.L.append(line if line.endswith(':') or line.startswith('.') or line.startswith(';') else '    ' + line)
    def text(self): return '\n'.join(self.L) + '\n'

def vr(b, n): return f'v[{b}:{b+n-1}]' if n > 1 else f'v{b}'
def srd(A, d, lo, size):
    A(f's_mov_b32 s{d}, s{lo}\ns_mov_b32 s{d+1}, s{lo+1}\ns_mov_b32 s{d+2}, {size:#x}\ns_mov_b32 s{d+3}, 0x20000')
def srd_off(A, d, lo, off, size):
    A(f's_add_u32 s{d}, s{lo}, {off:#x}\ns_addc_u32 s{d+1}, s{lo+1}, 0\ns_mov_b32 s{d+2}, {size:#x}\ns_mov_b32 s{d+3}, 0x20000')
def mfma32(A, d, a, b, c): A(f'v_mfma_f32_16x16x32_bf16 {vr(d,4)}, {vr(a,4)}, {vr(b,4)}, {vr(c,4) if c is not None else 0}')
def mfma16(A, d, a, b, c): A(f'v_mfma_f32_16x16x16_bf16 {vr(d,4)}, {vr(a,2)}, {vr(b,2)}, {vr(c,4) if c is not None else 0}')
def cvt(A, d, a, b): A(f'v_cvt_pk_bf16_f32 v{d}, v{a}, v{b}')

P_AX, P_WQKV, P_WO, P_BX, P_CR, P_CI, P_DR, P_DI, P_OUT, P_DBG, P_WS = 36, 38, 40, 42, 44, 46, 48, 50, 52, 54, 56
WS_O, O_SIZE, WS_Z, Z_SIZE, WS_FLAG, FLAG_SIZE, WS_DIAG = 0, 0x240000, 0x280000, 0x240000, 0x500000, 0x10000, 0x800000
ZSIG, ZCLS = 4608, 147456
GFLAG, BFLAG = 192 * 128, 384 * 128
LDS_TOTAL, LDS_WORD = 163840, 147456
OOB = 0x80000000
SPIN = 400000
SLEEP = 0

def interleave(A, mf, other, per_gap=1, start=0):
    oi = 0
    for i, m in enumerate(mf):
        m()
        if i >= start:
            for _ in range(per_gap):
                if oi < len(other): A(other[oi]); oi += 1
    while oi < len(other): A(other[oi]); oi += 1

def stamp(A, cfg, slot):
    if cfg.diag: A(f's_memrealtime s[{64+4*slot}:{65+4*slot}]\ns_memtime s[{66+4*slot}:{67+4*slot}]')
def stamp_store(A, cfg, nslots):
    if not cfg.diag: return
    A('s_waitcnt lgkmcnt(0) vmcnt(0)')
    stamp(A, cfg, nslots - 1)
    A('s_waitcnt lgkmcnt(0)')
    srd_off(A, 24, P_WS, WS_DIAG, 0x100000)
    A(f's_lshl_b32 s4, s2, 3\ns_add_u32 s4, s4, s3\ns_lshl_b32 s4, s4, 6')
    for i in range(8): A(f'v_mov_b32 v{8+i}, s{64+4*min(i, nslots-1)}\nv_mov_b32 v{16+i}, s{66+4*min(i, nslots-1)}')
    A('v_mov_b32 v1, 0\nv_and_b32 v2, 63, v0\nv_cmp_eq_u32 vcc, 0, v2\ns_and_saveexec_b64 s[6:7], vcc')
    for i in range(4): A(f'buffer_store_dwordx4 v[{8+4*i}:{11+4*i}], v1, s[24:27], s4 offen offset:{16*i}')


def loader_loop(A, items, ends, X):
    done = 0
    for c in range(len(ends)):
        upto = min(len(items), ends[c] + X[min(c, len(X) - 1)])
        while done < upto and items[done][1] <= c:
            items[done][0](); done += 1
        assert done >= ends[c]
        A(f's_waitcnt vmcnt({done - ends[c]})')
        A('s_barrier')
    while done < len(items):
        items[done][0](); done += 1

def poll(A, label, vdst, vaddr, srdn, soff, want, first=True):
    A(f's_mov_b32 s28, 0')
    A(f'{label}:')
    A(f'buffer_load_dword v{vdst}, v{vaddr}, s[{srdn}:{srdn+3}], {soff} offen sc1')
    A(f's_add_u32 s28, s28, 1\ns_cmp_ge_u32 s28, {SPIN}\ns_cbranch_scc1 {label}_X')
    A('s_waitcnt vmcnt(0)')
    A(f'v_cmp_ne_u32 vcc, {want}, v{vdst}')
    A(f's_cmp_lg_u64 vcc, 0\ns_cbranch_scc1 {label}')
    A(f'{label}_X:')

A1_SLOT = 36864

def kernel(A, cfg):
    A(f'.globl {NAME}_kernel\n.p2align 8\n.type {NAME}_kernel,@function\n{NAME}_kernel:')
    A('s_load_dwordx16 s[36:51], s[0:1], 0\ns_load_dwordx4 s[52:55], s[0:1], 64\ns_load_dwordx2 s[56:57], s[0:1], 80')
    A('s_cmp_ge_u32 s2, 256\ns_cbranch_scc1 K_END')
    stamp(A, cfg, 0)
    A('v_lshrrev_b32 v1, 6, v0\nv_and_b32 v2, 63, v0')
    A('v_readfirstlane_b32 s3, v1')
    A('s_and_b32 s4, s2, 7\ns_lshr_b32 s5, s2, 3')
    A('v_and_b32 v3, 15, v2\nv_lshrrev_b32 v4, 4, v2')
    A('v_lshrrev_b32 v5, 3, v2\nv_and_b32 v6, 7, v2')
    A('s_cmp_ge_u32 s5, 24\ns_cbranch_scc1 K_B')
    A('s_mul_i32 s7, s4, 3\ns_lshr_b32 s28, s5, 3\ns_add_u32 s59, s7, s28\ns_and_b32 s29, s5, 7')
    A('s_and_b32 s30, s59, 1\ns_lshr_b32 s31, s59, 1\ns_mul_i32 s32, s31, 88')
    if cfg.swap: A('s_xor_b32 s3, s3, 4')
    A('s_getreg_b32 s96, hwreg(HW_REG_XCC_ID, 0, 4)\ns_add_u32 s96, s96, 0x100')
    A('s_cmp_ge_u32 s3, 4\ns_cbranch_scc0 K_A_CONS')
    a_loader(A, cfg)
    A('K_A_CONS:')
    a_consumer(A, cfg)
    A('K_B:')
    b_all(A, cfg)
    A('K_END:\ns_endpgm')

def a_loader(A, cfg):
    A('s_mul_i32 s97, s28, 3')
    if cfg.rot == 1: A('s_mov_b32 s63, 0')
    elif cfg.rot == 2: A('s_xor_b32 s63, s28, s5\ns_and_b32 s63, s63, 1\ns_lshl_b32 s63, s63, 2')
    elif cfg.rot == 3: A('s_mov_b32 s63, s97')
    if cfg.q3: A('s_cmp_eq_u32 s29, 3\ns_cselect_b32 s63, s97, s63')
    if cfg.rotx: A(f's_mul_i32 s62, s4, {cfg.rotx}\ns_add_u32 s63, s63, s62')
    A('s_sub_u32 s33, s3, 4')
    A('s_mul_i32 s6, s33, 24')
    for j in range(3):
        A(f'v_add_u32 v7, s6, v5\nv_add_u32 v7, {8*j}, v7')
        A('v_lshrrev_b32 v8, 1, v7\nv_and_b32 v8, 7, v8\nv_xor_b32 v8, v8, v6\nv_lshlrev_b32 v8, 4, v8')
        A('v_add_u32 v7, s32, v7\nv_lshlrev_b32 v7, 1, v7\nv_add_u32 v7, s30, v7')
        A(f'v_lshl_add_u32 v{10+j}, v7, 10, v8')
    A('s_lshl_b32 s6, s33, 4\ns_lshl_b32 s7, s29, 7\ns_movk_i32 s28, 3072')
    for par in range(2):
        A(f'v_add_u32 v7, s6, v5\nv_add_u32 v7, {8*par}, v7')
        A('v_mul_lo_u32 v7, v7, s28\nv_add_u32 v7, s7, v7')
        A(f'v_and_b32 v8, 1, v4\nv_or_b32 v8, {2*par}, v8\nv_lshlrev_b32 v8, 1, v8\nv_xor_b32 v8, v8, v6')
        A(f'v_lshl_add_u32 v{13+par}, v8, 4, v7')
    A('s_mul_i32 s34, s33, 3072')
    A('s_mul_i32 s35, s33, 6144\ns_add_u32 s35, s35, 12288')
    A('s_waitcnt lgkmcnt(0)')
    srd(A, 8, P_AX, 0x200000); srd(A, 12, P_WQKV, 0x180000)
    stamp(A, cfg, 1)
    def issue(c, j):
        base = (c % 4) * A1_SLOT
        if j < 3:
            if j == 0: A(f's_add_u32 s62, s63, {c}\ns_and_b32 s62, s62, 7\ns_lshl_b32 s6, s62, 7')
            A(f's_add_u32 m0, s34, {base + j*1024}\ns_nop 0')
            A(f'buffer_load_dwordx4 v{10+j}, s[8:11], s6 offen lds')
        else:
            par, seg = divmod(j - 3, 3)
            if j == 3: A(f's_mul_i32 s7, s62, 196608')
            if seg == 0: A(f's_add_u32 m0, s35, {base + par*3072}\ns_nop 0')
            A(f'buffer_load_dwordx4 v{13+par}, s[12:15], s7 offen offset:{seg*1024} lds')
        if c == 1 and j == 8: late_setup()
    def late_setup():
        srd(A, 16, P_WO, 0x80000); srd_off(A, 20, P_WS, WS_O, O_SIZE)
        A('s_lshl_b32 s60, s33, 3\nv_add_u32 v7, s60, v5\ns_and_b32 s60, s33, 1\ns_lshl_b32 s60, s60, 1\ns_xor_b32 s61, s29, ' + str(cfg.cgx) + '\ns_lshl_b32 s61, s61, 7')
        A('v_and_b32 v8, 1, v4\nv_or_b32 v8, s60, v8\nv_lshlrev_b32 v8, 1, v8\nv_xor_b32 v8, v8, v6\nv_lshlrev_b32 v8, 4, v8')
        A('v_lshl_add_u32 v15, v7, 10, v8\nv_add_u32 v15, s61, v15')
        A('s_lshl_b32 s58, s33, 10')
        A(f's_mul_i32 s60, s33, 24\nv_add_u32 v7, s60, v2\nv_lshrrev_b32 v8, 4, v7\nv_lshlrev_b32 v8, 14, v8\nv_and_b32 v7, 15, v7\nv_lshl_add_u32 v7, v7, 7, v8')
        A(f'v_mov_b32 v8, {OOB:#x}\nv_cmp_le_u32 vcc, 24, v2\ns_mul_i32 s60, s59, {6*16384}\ns_lshl_b32 s61, s29, 11\ns_add_u32 s98, s60, s61\nv_cndmask_b32 v16, v7, v8, vcc')
        A(f'v_mov_b32 v17, {LDS_WORD}\nv_mov_b32 v18, 0\nv_mov_b32 v19, 0\nds_write_b64 v17, v[18:19]\nds_write_b64 v17, v[18:19] offset:8\ns_waitcnt lgkmcnt(0)\nv_mov_b32 v18, 1')
    def wo(n):
        A(f's_add_u32 s62, s97, {n}\ns_and_b32 s62, s62, 15')
        A('s_lshl_b32 s6, s62, 12\ns_add_u32 m0, s58, s6\ns_lshl_b32 s6, s62, 15')
        A('buffer_load_dwordx4 v15, s[16:19], s6 offen lds')
    def side():
        srd_off(A, 8, P_WS, WS_FLAG, FLAG_SIZE); srd(A, 24, P_DBG, 256)
        A(f'v_lshlrev_b32 v20, 2, v6\nv_lshlrev_b32 v21, 7, v6\ns_lshl_b32 s100, s59, 10\ns_lshr_b32 s97, s5, 3\ns_mul_i32 s97, s97, 5')
        A('buffer_load_dword v250, v16, s[20:23], s98 offen sc1')
    items = [(lambda c=c, j=j: issue(c, j), max(0, c - 2)) for c in range(8) for j in range(9)]
    ends = [9 * (c + 1) for c in range(8)]
    items += [(side, 0), (lambda: A('buffer_load_dword v22, v20, s[24:27], 0 offen sc1'), 0), (lambda: A('buffer_load_dword v251, v21, s[8:11], s100 offen sc1'), 0)]
    items += [(lambda n=n: wo(n), 7) for n in range(16)]
    loader_loop(A, items, ends, cfg.xa)
    stamp(A, cfg, 2)
    AW, WF, OF, ACC = 24, 36, 72, 200
    STAGE = 2 * A1_SLOT
    srd(A, 12, P_OUT, 0x400000)
    A('v_bfe_u32 v7, v2, 2, 2\nv_lshrrev_b32 v8, 1, v7\nv_and_b32 v9, 1, v4\nv_lshl_or_b32 v8, v9, 1, v8')
    A('v_lshlrev_b32 v9, 10, v4\nv_lshl_add_u32 v9, v7, 7, v9\nv_and_b32 v7, 3, v2\nv_lshl_add_u32 v9, v7, 3, v9')
    for nt in range(4): A(f'v_xor_b32 v7, {nt}, v8\nv_lshl_add_u32 v{AW+nt}, v7, 5, v9')
    A('v_lshlrev_b32 v33, 4, v2')
    A(f's_mul_i32 s6, s33, {32*144}\ns_add_u32 s6, s6, {STAGE}')
    A('v_mul_u32_u24 v30, 144, v3\nv_lshl_add_u32 v30, v4, 3, v30\nv_add_u32 v30, s6, v30')
    A('v_mul_u32_u24 v31, 144, v5\nv_lshl_add_u32 v31, v6, 4, v31\nv_add_u32 v31, s6, v31')
    A('v_lshlrev_b32 v32, 12, v5\nv_lshl_add_u32 v32, v6, 4, v32')
    A('s_lshl_b32 s6, s33, 5\ns_add_u32 s6, s6, s32\ns_lshl_b32 s6, s6, 12\ns_lshl_b32 s7, s30, 11\ns_add_u32 s6, s6, s7\ns_xor_b32 s7, s29, ' + str(cfg.cgx) + '\ns_lshl_b32 s7, s7, 7\ns_add_u32 s34, s6, s7')
    for n in range(4): A(f's_add_u32 s{60+n}, s34, {(8*n) << 12}')
    A('s_cmp_lg_u32 s31, 0\ns_cselect_b32 s6, 1, 0\ns_cmp_eq_u32 s33, 0\ns_cselect_b32 s6, s6, 0\ns_cmp_lg_u32 s6, 0\ns_cselect_b32 s60, 0x40000000, s60')
    A(f's_mul_i32 s35, s59, {6*16384}\ns_lshl_b32 s6, s33, 15\ns_add_u32 s35, s35, s6')
    A(f'v_mov_b32 v8, v21\ns_mov_b32 s7, s100\ns_add_u32 s6, s7, {GFLAG}')
    A('s_waitcnt vmcnt(17)\nv_cmp_ne_u32 vcc, 1, v22\ns_cmp_eq_u64 vcc, 0\ns_cbranch_scc1 K_A_RDY_X')
    poll(A, 'K_A_RDY', 9, 20, 24, 0, 1)
    A('s_waitcnt vmcnt(0)\ns_mov_b64 exec, 1\nds_add_u32 v17, v18 offset:8\ns_mov_b64 exec, -1')
    A('s_cmp_eq_u32 s33, 3\ns_cbranch_scc1 K_A_LDONE')
    A('K_A_LW:\nds_read_b32 v9, v17 offset:8\ns_waitcnt lgkmcnt(0)\nv_cmp_ne_u32 vcc, 4, v9\ns_cmp_lg_u64 vcc, 0\ns_cbranch_scc1 K_A_LW')
    stamp(A, cfg, 3)
    order = [0, 1, 2, 3, 4, 5, 8, 9, 10, 11, 12, 13, 14, 15, 6, 7]
    def reads(st):
        f = WF + 16 * (st & 1); ks = order[st]
        return [f'ds_read_b64_tr_b16 {vr(f+4*nt+2*u,2)}, v{AW+nt} offset:{ks*4096+u*512}' for nt in range(4) for u in range(2)]
    for r in reads(0): A(r)
    A('s_mov_b32 s28, 0\ns_mov_b32 s99, 0\ns_mov_b32 s94, 0xf7f7f7f7\ns_mov_b32 s95, 0xf7f7f7f7')
    def wait_flags(tag, masked):
        A(f'K_A_P1{tag}:')
        A('buffer_load_dword v9, v8, s[8:11], s100 offen sc1\ns_add_u32 s28, s28, 1\ns_waitcnt vmcnt(0)')
        A('v_cmp_ne_u32 vcc, s96, v9')
        if masked: A(f's_mov_b64 s[92:93], vcc\ns_and_b64 vcc, vcc, s[94:95]\ns_cbranch_scc0 K_A_GO{tag}')
        else: A(f's_cmp_eq_u64 vcc, 0\ns_cbranch_scc1 K_A_GO{tag}')
        A(f's_cmp_lt_u32 s28, {cfg.n1}\ns_cbranch_scc1 K_A_P1{tag}')
        A('ds_write_b32 v17, v18\ns_mov_b32 s99, 1\ns_mov_b64 s[92:93], 0\ns_waitcnt lgkmcnt(0)\ns_barrier')
        A(f'K_A_P2{tag}:')
        A('buffer_load_dword v9, v8, s[8:11], s100 offen sc1\nbuffer_load_dword v10, v8, s[8:11], s6 offen sc1\ns_add_u32 s28, s28, 1\ns_waitcnt vmcnt(0)')
        A(f'v_cmp_ne_u32 vcc, s96, v9\ns_cmp_eq_u64 vcc, 0\ns_cbranch_scc1 K_A_GO{tag}')
        A(f'v_cmp_ne_u32 vcc, 1, v10\ns_cmp_eq_u64 vcc, 0\ns_cbranch_scc1 K_A_GO{tag}')
        A(f's_cmp_lt_u32 s28, {SPIN}\ns_cbranch_scc1 K_A_P2{tag}')
        A(f'K_A_GO{tag}:')
    wait_flags('A', True)
    stamp(A, cfg, 4)
    def oload(i):
        st, a = divmod(i, 2); ks = order[st]
        return f's_add_u32 s7, s35, {a*16384 + (ks & ~3)*1024}\nbuffer_load_dwordx4 {vr(OF+8*st+4*a,4)}, v33, s[20:23], s7 offen offset:{(ks&3)*1024} sc1'
    issued = cfg.opre; extra = 0
    for i in range(issued): A(oload(i))
    CHK = cfg.chk
    for st in range(16):
        f = WF + 16 * (st & 1)
        if st == CHK:
            A('s_waitcnt vmcnt(0)\nv_cmp_ne_u32 vcc, s96, v9\ns_and_b64 vcc, vcc, s[92:93]\ns_cbranch_scc0 K_A_GOB')
            wait_flags('B', False)
            for i in range(28, 32): A(oload(i))
            issued = 32; extra = 0
        A(f's_waitcnt vmcnt({max(0, min(issued - 2*(st+1) + extra, 4 if st >= CHK else 63))}) lgkmcnt(0)')
        if st == 0: stamp(A, cfg, 5)
        M = [lambda d=ACC+16*a+4*nt, x=f+4*nt, b=OF+8*st+4*a, z=st: mfma32(A, d, x, b, d if z else None) for a in range(2) for nt in range(4)]
        O = reads(st + 1) if st < 15 else []
        O = [O[2*i] + '\n' + O[2*i+1] for i in range(len(O)//2)]
        for _ in range(2):
            if issued < 28: O.append(oload(issued)); issued += 1
        if st == CHK - 3:
            assert issued == 28
            O.append('buffer_load_dword v9, v8, s[8:11], s100 offen sc1'); extra = 1
        if st == 14: O.append('s_cmp_lg_u32 s99, 0\ns_cbranch_scc1 K_A_NOB\ns_barrier\nK_A_NOB:')
        interleave(A, M, O)
    stamp(A, cfg, 6)
    T = 8
    A('s_nop 3')
    for a in range(2):
        for nt in range(4):
            d = ACC + 16 * a + 4 * nt; p = T + 8 * a + 2 * nt
            cvt(A, p, d, d+1); cvt(A, p+1, d+2, d+3)
            A(f'ds_write_b64 v30, {vr(p,2)} offset:{a*16*144 + nt*32}')
    A('s_waitcnt lgkmcnt(0)')
    for n in range(4): A(f'ds_read_b128 {vr(T+4*n,4)}, v31 offset:{n*8*144}')
    for n in range(4):
        A(f's_waitcnt lgkmcnt({3-n})')
        A(f'buffer_store_dwordx4 {vr(T+4*n,4)}, v32, s[12:15], s{60+n} offen{cfg.outflag}')
    A('K_A_LDONE:')
    stamp_store(A, cfg, 8)
    A('s_endpgm')

def a_consumer(A, cfg):
    AX, AW = 20, 28
    ST, MD, MP, BD, ONES = 32, 36, 40, 44, 46
    VX, V1, VS0 = 33, 34, 35
    FR, ACC = 48, 120
    A(f'v_mov_b32 v{VX}, s96\nv_mov_b32 v{V1}, 1\nv_mov_b32 v{VS0}, {OOB:#x}\nv_cmp_ne_u32 vcc, {256 if cfg.swap else 0}, v0\ns_nop 1\nv_cndmask_b32 v{VS0}, 0, v{VS0}, vcc')
    A('s_lshl_b32 s58, s59, 3\ns_add_u32 s58, s58, s29\ns_lshl_b32 s58, s58, 7')
    A('s_lshl_b32 s6, s29, 2\ns_add_u32 s6, s6, s3\ns_mul_i32 s6, s6, 3\ns_add_u32 s6, s6, s32\ns_lshl_b32 s6, s6, 1\ns_add_u32 s6, s6, s30\ns_lshl_b32 s60, s6, 10\nv_lshlrev_b32 v7, 4, v2')
    if cfg.xprio: A('s_setprio 2')
    A('s_waitcnt lgkmcnt(0)')
    if cfg.xpf:
        srd(A, 12, P_AX, 0x200000)
        for n in range(3): A(f's_add_u32 s7, s60, {n*2048}\nbuffer_load_dwordx4 v[244:247], v7, s[12:15], s7 offen')
    if cfg.c3:
        srd(A, 12, P_WQKV, 0x180000)
        A('s_lshl_b32 s7, s5, 2\ns_add_u32 s7, s7, s3\ns_lshl_b32 s7, s7, 14\nv_lshlrev_b32 v8, 10, v5\nv_lshl_add_u32 v8, v6, 4, v8')
        A('buffer_load_dwordx4 v[244:247], v8, s[12:15], s7 offen offset:384\ns_add_u32 s7, s7, 8192\nbuffer_load_dwordx4 v[244:247], v8, s[12:15], s7 offen offset:384')
    srd_off(A, 16, P_WS, WS_FLAG, FLAG_SIZE); srd_off(A, 8, P_WS, WS_O, O_SIZE)
    srd(A, 20, P_DBG, 256)
    A('s_cmp_lg_u32 s5, 0\ns_cbranch_scc1 K_A_NOCLR')
    A('v_mov_b32 v8, 0\nv_mov_b32 v9, 0\nv_mov_b32 v10, 0\nv_mov_b32 v11, 0\nv_lshlrev_b32 v7, 4, v2\ns_lshl_b32 s6, s4, 2\ns_add_u32 s6, s6, s3\ns_lshl_b32 s6, s6, 11')
    A('buffer_store_dwordx4 v[8:11], v7, s[16:19], s6 offen sc1\nbuffer_store_dwordx4 v[8:11], v7, s[16:19], s6 offen offset:1024 sc1\ns_nop 1')
    A('K_A_NOCLR:')
    A('s_lshl_b32 s35, s4, 2')
    A('v_lshrrev_b32 v7, 1, v3\nv_xor_b32 v7, v7, v4\nv_lshlrev_b32 v7, 4, v7\nv_lshl_add_u32 v7, v3, 7, v7')
    A('v_xor_b32 v8, 64, v7')
    for s in range(4):
        A(f'v_add_u32 v{AX+2*s}, {s*A1_SLOT}, v7\nv_add_u32 v{AX+2*s+1}, {s*A1_SLOT}, v8')
    A('v_bfe_u32 v7, v2, 2, 2')
    A('v_lshrrev_b32 v8, 1, v7\nv_and_b32 v9, 1, v4\nv_lshl_or_b32 v8, v9, 1, v8')
    A('v_xor_b32 v8, s3, v8\nv_lshlrev_b32 v8, 5, v8\nv_lshl_add_u32 v8, v7, 7, v8')
    A('v_and_b32 v9, 3, v2\nv_lshl_add_u32 v8, v9, 3, v8')
    A('v_mul_u32_u24 v9, 3072, v4\nv_add_u32 v8, v8, v9')
    for s in range(4): A(f'v_add_u32 v{AW+s}, {s*A1_SLOT+12288}, v8')
    A('v_lshlrev_b32 v7, 2, v4\nv_sub_u32 v7, v3, v7')
    A('v_mov_b32 v9, 0xf149f2ca')
    A('v_mov_b32 v10, 0xffff\nv_mov_b32 v11, 0xffff0000')
    for i in range(4):
        A(f'v_subrev_u32 v8, {i}, v7')
        A(f'v_cmp_le_u32 vcc, 8, v8\ns_nop 1\nv_cndmask_b32 v{MD+i}, 0, v9, vcc')
        A(f'v_cmp_lt_i32 vcc, -9, v8\ns_nop 1\nv_cndmask_b32 v{MP+i}, 0, v9, vcc')
        A(f'v_cmp_le_i32 vcc, 0, v8\ns_nop 1\nv_cndmask_b32 v{12+i}, 0, v{10+(i&1)}, vcc')
    A(f'v_or_b32 v{BD}, v12, v13\nv_or_b32 v{BD+1}, v14, v15')
    A(f'v_mov_b32 v{ONES}, 0x3f803f80\nv_mov_b32 v{ONES+1}, 0x3f803f80')
    A('s_lshl_b32 s6, s29, 2\ns_add_u32 s6, s6, s3\ns_lshl_b32 s6, s6, 9')
    A(f's_mul_i32 s7, s59, {6*16384}\ns_add_u32 s60, s6, s7\ns_add_u32 s61, s60, 0x8000\ns_add_u32 s62, s60, 0x10000')
    A('v_and_b32 v7, 1, v4\nv_lshlrev_b32 v7, 14, v7\nv_lshrrev_b32 v8, 1, v4\nv_lshl_add_u32 v7, v8, 8, v7')
    A(f'v_lshl_add_u32 v{ST}, v3, 4, v7')
    A('s_mov_b32 s34, 0x3eb8aa3b')
    def reads(ks):
        c, h = divmod(ks, 2); s = c % 4; f = FR + 36 * (ks & 1); R = []
        def w(seg): return [f'ds_read_b64_tr_b16 {vr(f+24+4*seg+2*u,2)}, v{AW+s} offset:{h*12288+seg*1024+u*512}' for u in range(2)]
        R += w(0)
        R += [f'ds_read_b128 {vr(f+4*t,4)}, v{AX+2*s+h} offset:{t*2048}' for t in range(6)]
        R += w(1) + w(2)
        return R
    def mfmas(ks):
        f = FR + 36 * (ks & 1); M = []
        for seg in range(3):
            for t in range(6):
                d = ACC + 24 * seg + 4 * t; c = d if ks else None
                if seg < 2: M.append(lambda d=d, a=f+24+4*seg, b=f+4*t, c=c: mfma32(A, d, a, b, c))
                else:       M.append(lambda d=d, a=f+4*t, b=f+24+4*seg, c=c: mfma32(A, d, a, b, c))
        return M
    A('s_setprio 2\ns_barrier')
    stamp(A, cfg, 1)
    for r in reads(0): A(r)
    for ks in range(16):
        A('s_waitcnt lgkmcnt(0)')
        M = mfmas(ks)
        if ks == 15: interleave(A, M, [])
        elif ks & 1:
            pre = cfg.pre
            for m in M[:pre]: m()
            A('s_barrier')
            interleave(A, M[pre:], reads(ks + 1), per_gap=2 if pre > 2 else 1)
        else:
            R = reads(ks + 1)
            if ks == cfg.goks: R.append('s_waitcnt vmcnt(0)')
            if ks == cfg.goks + 2: R.append(f's_cmp_lg_u32 s5, 0\ns_cbranch_scc1 K_A_NOGO\nbuffer_store_dword v{V1}, v{VS0}, s[20:23], s35 offen sc1\nK_A_NOGO:')
            interleave(A, M, R)
    stamp(A, cfg, 2)
    QP, KP, VP, SD, SP, MX, PK, PO, OO, SM, OP = 48, 60, 72, 192, 216, 86, 98, 120, 144, 168, 48
    for t in range(6):
        cvt(A, QP+2*t, ACC+4*t, ACC+4*t+1); cvt(A, QP+2*t+1, ACC+4*t+2, ACC+4*t+3)
    for t in range(6):
        cvt(A, KP+2*t, ACC+24+4*t, ACC+24+4*t+1); cvt(A, KP+2*t+1, ACC+24+4*t+2, ACC+24+4*t+3)
    A(f'v_mov_b32 v{VP}, 0\nv_mov_b32 v{VP+1}, 0')
    M = []
    for t in range(6):
        M.append(lambda t=t: mfma16(A, SD+4*t, KP+2*t, QP+2*t, MD))
        if t: M.append(lambda t=t: mfma16(A, SP+4*t, KP+2*t-2, QP+2*t, MP))
    V = []
    for t in range(6):
        V.append(f'v_cvt_pk_bf16_f32 v{VP+2+2*t}, v{ACC+48+4*t}, v{ACC+48+4*t+1}')
        V.append(f'v_cvt_pk_bf16_f32 v{VP+3+2*t}, v{ACC+48+4*t+2}, v{ACC+48+4*t+3}')
    interleave(A, M, V)
    for t in range(6):
        if t:
            for i in range(4): A(f'v_max_f32 v{SD+4*t+i}, v{SD+4*t+i}, v{SP+4*t+i}')
        A(f'v_max3_f32 v{MX+t}, v{SD+4*t}, v{SD+4*t+1}, v{SD+4*t+2}')
        A(f'v_max_f32 v{MX+t}, v{MX+t}, v{SD+4*t+3}')
    A('s_nop 1')
    for u in range(3): A(f'v_permlane32_swap_b32 v{MX+2*u}, v{MX+2*u+1}')
    for u in range(3): A(f'v_max_f32 v{MX+2*u}, v{MX+2*u}, v{MX+2*u+1}')
    for u in range(3): A(f'v_mov_b32 v{MX+2*u+1}, v{MX+2*u}')
    A('s_nop 0')
    for u in range(3): A(f'v_permlane16_swap_b32 v{MX+2*u}, v{MX+2*u+1}')
    for u in range(3): A(f'v_max_f32 v{MX+2*u}, v{MX+2*u}, v{MX+2*u+1}')
    for u in range(3): A(f'v_mul_f32 v{MX+2*u}, s34, v{MX+2*u}')
    for u in range(3): A(f'v_mov_b32 v{MX+2*u+1}, v{MX+2*u}')
    A('s_nop 0')
    for u in range(3): A(f'v_permlane32_swap_b32 v{MX+2*u}, v{MX+2*u+1}')
    for t in range(6):
        for i in range(4): A(f'v_fma_f32 v{SD+4*t+i}, v{SD+4*t+i}, s34, -v{MX+t}')
    for t in range(6):
        for i in range(4): A(f'v_exp_f32 v{SD+4*t+i}, v{SD+4*t+i}')
    for t in range(6):
        cvt(A, PK+2*t, SD+4*t, SD+4*t+1); cvt(A, PK+2*t+1, SD+4*t+2, SD+4*t+3)
    for t in range(6):
        A(f'v_and_b32 v{PO+4*t+2}, v{PK+2*t}, v{BD}\nv_and_b32 v{PO+4*t+3}, v{PK+2*t+1}, v{BD+1}')
        A(f'v_xor_b32 v{PO+4*t}, v{PK+2*t}, v{PO+4*t+2}\nv_xor_b32 v{PO+4*t+1}, v{PK+2*t+1}, v{PO+4*t+3}')
        mfma16(A, SM+4*t, ONES, PK+2*t, None)
    A('s_nop 0')
    for t in range(6): mfma32(A, OO+4*t, VP+2*t, PO+4*t, None)
    A('s_nop 1')
    for t in range(6): A(f'v_rcp_f32 v{MX+t}, v{SM+4*t}')
    A('s_nop 1')
    for u in range(3):
        for t in (2*u, 2*u+1):
            for i in range(4): A(f'v_mul_f32 v{OO+4*t+i}, v{OO+4*t+i}, v{MX+t}')
        for t in (2*u, 2*u+1):
            cvt(A, OP+2*t, OO+4*t, OO+4*t+1); cvt(A, OP+2*t+1, OO+4*t+2, OO+4*t+3)
        A('s_nop 1')
        A(f'v_permlane16_swap_b32 v{OP+4*u}, v{OP+4*u+2}\nv_permlane16_swap_b32 v{OP+4*u+1}, v{OP+4*u+3}')
        A(f'buffer_store_dwordx4 {vr(OP+4*u,4)}, v{ST}, s[8:11], s{60+u} offen')
    stamp(A, cfg, 3)
    A('s_waitcnt vmcnt(0)')
    stamp(A, cfg, 4)
    A(f'v_mov_b32 v7, {LDS_WORD}\ns_mov_b64 exec, 1\nds_add_rtn_u32 v8, v7, v{V1} offset:12\nds_read_b32 v9, v7 offset:8\nv_mov_b32 v10, 0\ns_waitcnt lgkmcnt(0)')
    A('v_cmp_ne_u32 vcc, 3, v8\ns_cmp_lg_u64 vcc, 0\ns_cbranch_scc1 K_A_NOSIG')
    A('K_A_CW:\nv_cmp_eq_u32 vcc, 4, v9\ns_cmp_lg_u64 vcc, 0\ns_cbranch_scc1 K_A_SIG\nds_read_b32 v9, v7 offset:8\ns_waitcnt lgkmcnt(0)\ns_branch K_A_CW')
    A(f'K_A_SIG:\nbuffer_store_dword v{VX}, v10, s[16:19], s58 offen')
    A('K_A_NOSIG:\ns_mov_b64 exec, -1\ns_setprio 0')
    stamp(A, cfg, 5)
    A(f'v_mov_b32 v7, {LDS_WORD}\ns_barrier\nds_read_b32 v8, v7\ns_waitcnt lgkmcnt(0)\nv_readfirstlane_b32 s6, v8\ns_cmp_eq_u32 s6, 0\ns_cbranch_scc1 K_A_CDONE')
    for u in range(3): A(f'buffer_store_dwordx4 {vr(OP+4*u,4)}, v{ST}, s[8:11], s{60+u} offen sc1')
    A(f'v_cmp_eq_u32 vcc, 0, v2\ns_and_saveexec_b64 s[6:7], vcc\ns_waitcnt vmcnt(0)\nds_add_rtn_u32 v8, v7, v{V1} offset:4\ns_waitcnt lgkmcnt(0)')
    A(f'v_readfirstlane_b32 s28, v8\ns_cmp_lg_u32 s28, 3\ns_cbranch_scc1 K_A_CDONE')
    A(f's_add_u32 s58, s58, {GFLAG}\nv_mov_b32 v7, 0\nbuffer_store_dword v{V1}, v7, s[16:19], s58 offen sc1')
    A('K_A_CDONE:')
    A('s_mov_b64 exec, -1')
    stamp_store(A, cfg, 7)
    A('s_endpgm')

def bstamp(A, cfg, slot, mode):
    if cfg.bst == mode: stamp(A, cfg, slot)

def b_all(A, cfg):
    G, F, M = 32, 38, 44
    X1, MAT, PITCH = 65536, 98304, 272
    A('s_and_b32 s5, s5, 7')
    A('s_lshl_b32 s29, s4, 2\ns_lshr_b32 s6, s5, 1\ns_add_u32 s29, s29, s6')
    A('v_lshlrev_b32 v36, 4, v2\ns_lshr_b32 s32, s3, 1\ns_and_b32 s33, s3, 1\ns_lshl_b32 s35, s3, 13')
    A('v_mov_b32 v14, 0\nv_mov_b32 v15, 1\nv_lshlrev_b32 v16, 7, v2')
    def early(tag=''):
        A('s_and_b32 s30, s5, 1\ns_lshl_b32 s30, s30, 2\ns_add_u32 s58, s30, s32')
        A('s_sub_u32 s6, 16, s4\ns_cmp_eq_u32 s4, 0\ns_cselect_b32 s6, 8, s6\ns_bitcmp1_b32 s5, 2\ns_cselect_b32 s31, s6, s4')
        A('v_lshrrev_b32 v7, 2, v2\nv_and_b32 v8, 3, v2\nv_lshlrev_b32 v7, 6, v7\nv_lshl_add_u32 v7, v8, 4, v7\nv_add_u32 v17, s35, v7')
        A('v_bfe_u32 v7, v2, 3, 1\nv_lshl_add_u32 v7, v7, 2, v4\nv_xor_b32 v7, v7, v6\nv_lshlrev_b32 v7, 4, v7\nv_lshl_add_u32 v18, v6, 12, v7')
        A(f's_lshl_b32 s6, s3, 9\ns_add_u32 s6, s6, {X1}\nv_add_u32 v18, s6, v18')
        A(f'v_lshlrev_b32 v7, 6, v3\nv_lshl_add_u32 v7, v4, 4, v7\ns_lshl_b32 s6, s32, 5\nv_xor_b32 v7, s6, v7\ns_lshl_b32 s6, s32, 13\ns_add_u32 s6, s6, {X1}\nv_add_u32 v19, s6, v7\nv_xor_b32 v20, 16, v19')
        A(f's_mov_b32 s6, {4*ZCLS}\nv_mul_lo_u32 v7, v4, s6\nv_lshl_add_u32 v22, v3, 4, v7')
        A(f's_mul_i32 s101, s29, {ZSIG}\ns_lshl_b32 s6, s33, 8\ns_add_u32 s101, s101, s6\ns_lshl_b32 s6, s58, 9\ns_add_u32 s101, s101, s6')
        A('s_lshl_b32 s6, s30, 1\nv_add_u32 v9, s6, v6')
        A('v_cmp_eq_u32 vcc, 1, v9\nv_mov_b32 v23, 16\nv_cvt_f32_u32 v25, v3\nv_cndmask_b32 v9, v9, v23, vcc')
        A('v_lshrrev_b32 v7, 1, v9\nv_and_b32 v8, 1, v9\nv_cvt_f32_u32 v7, v7\nv_cvt_f32_u32 v8, v8\nv_cvt_f32_u32 v9, v4')
        A('v_mul_f32 v7, 0x3d800000, v7\nv_mul_f32 v25, 0x3d800000, v25\nv_mul_f32 v9, 4.0, v9\nv_mul_f32 v24, 0x3e800000, v8\nv_fmac_f32 v24, v7, v9\nv_mul_f32 v23, v25, v9')
        for i in range(4):
            A(f'v_cos_f32 v{96+i}, v24\nv_cos_f32 v{100+i}, v23\nv_sin_f32 v{104+i}, v23')
            if i < 3: A('v_add_f32 v24, v24, v7\nv_add_f32 v23, v23, v25')
        A('v_cmp_lt_u32 vcc, 7, v3')
        cvt(A, 24, 96, 97); cvt(A, 25, 98, 99)
        A(f'v_cndmask_b32 v{G}, v24, v14, vcc\nv_cndmask_b32 v{G+1}, v25, v14, vcc\nv_cndmask_b32 v{G+2}, v14, v24, vcc\nv_cndmask_b32 v{G+3}, v14, v25, vcc')
        for q in range(4): cvt(A, F+q, 100+2*q, 101+2*q)
        A(f'v_xor_b32 v{F+4}, 0x80008000, v{F}\nv_xor_b32 v{F+5}, 0x80008000, v{F+1}')
        def gen_m(dst, extra):
            A(f's_lshl_b32 s6, s33, 8\ns_add_u32 s6, s6, s58\ns_add_u32 s6, s6, {extra}\nv_lshl_add_u32 v7, v3, 4, s6\nv_cvt_f32_u32 v7, v7\nv_mul_f32 v7, 0xbb000000, v7')
            A('v_lshlrev_b32 v8, 3, v4\nv_cvt_f32_u32 v8, v8\nv_mul_f32 v8, v7, v8')
            for i in range(8):
                A(f'v_cos_f32 v{96+i}, v8\nv_sin_f32 v{104+i}, v8')
                if i < 7: A('v_add_f32 v8, v8, v7')
            A('s_nop 0')
            for q in range(8): cvt(A, dst+q, 96+2*q, 97+2*q)
        gen_m(M, 0)
        for i in range(4): A(f'v_xor_b32 v{M+8+i}, 0x80008000, v{M+4+i}')
        A('s_cmp_lg_u32 s58, 0\ns_cbranch_scc1 K_B_NOM8' + tag)
        gen_m(M + 8, 8)
        A('K_B_NOM8' + tag + ':')
    def gen_init():
        A('s_lshl_b32 s6, s3, 8\ns_add_u32 s6, s6, s31\nv_lshl_add_u32 v7, v3, 4, s6\nv_cvt_f32_u32 v7, v7\nv_mul_f32 v241, 0xba000000, v7\nv_add_f32 v240, 0.5, v241')
        A('s_and_b32 s6, s5, 4\ns_lshl_b32 s6, s6, 4\nv_lshl_add_u32 v8, v4, 2, s6\nv_cvt_f32_u32 v242, v8')
        A(f's_lshl_b32 s6, s3, 13\ns_add_u32 s6, s6, {MAT - 32768}\nv_add_u32 v243, s6, v36')
    def gen_mat(label, n):
        if n == 0: return
        A(f's_mov_b32 s7, 0\ns_mov_b32 s6, 0x43000000\n{label}:')
        for half in range(2):
            b = 96 + 8 * half
            A(f'v_mul_f32 v9, v{240+half}, v242')
            for i in range(4):
                A(f'v_cos_f32 v{b+i}, v9\nv_sin_f32 v{b+4+i}, v9' + (f'\nv_add_f32 v9, v9, v{240+half}' if i < 3 else ''))
        A('v_add_f32 v242, 0x41800000, v242')
        for half in range(2):
            for q in range(4): cvt(A, 112+4*half+q, 96+8*half+2*q, 97+8*half+2*q)
            A(f'ds_write_b128 v243, {vr(112+4*half,4)} offset:{half*32768}')
        A(f'v_cmp_le_f32 vcc, s6, v242\nv_add_u32 v243, 1024, v243\nv_subrev_f32 v9, s6, v242\ns_add_u32 s7, s7, 1\nv_cndmask_b32 v242, v242, v9, vcc\ns_cmp_lt_u32 s7, {n}\ns_cbranch_scc1 {label}')
    A('s_cmp_ge_u32 s3, 4\ns_cbranch_scc1 K_B_GEN')
    A('s_and_b32 s97, s5, 1\ns_lshl_b32 s97, s97, 2\ns_add_u32 s97, s97, s3')
    A('s_lshl_b32 s6, s29, 2\ns_lshr_b32 s7, s97, 1\ns_add_u32 s6, s6, s7\ns_lshl_b32 s7, s33, 10\ns_add_u32 s6, s6, s7\ns_lshl_b32 s34, s6, 10\ns_lshl_b32 s97, s97, 13')
    if cfg.cpf:
        A(f's_getpc_b64 s[8:9]\nK_B_PC:\ns_sub_u32 s8, s8, K_B_PC-{NAME}_kernel\ns_subb_u32 s9, s9, 0\ns_mov_b32 s10, K_END-{NAME}_kernel\ns_mov_b32 s11, 0x20000')
        A('s_lshl_b32 s6, s3, 3\ns_add_u32 s6, s6, s5\ns_lshl_b32 s6, s6, 10\nbuffer_load_dwordx4 v[244:247], v36, s[8:11], s6 offen')
    A('s_mov_b32 s7, 0\ns_waitcnt lgkmcnt(0)')
    srd(A, 20, P_BX, 0x200000)
    stamp(A, cfg, 1)
    A('K_B_XL:')
    for n in range(8):
        A(f's_add_u32 m0, s97, {n*1024}\ns_add_u32 s6, s34, {n*131072}')
        A('buffer_load_dwordx4 v36, s[20:23], s6 offen lds')
    A('s_xor_b32 s34, s34, 2048\ns_xor_b32 s97, s97, 0x8000\ns_xor_b32 s7, s7, 1\ns_cbranch_scc1 K_B_XL')
    A('K_B_GEN:')
    early()
    A('s_waitcnt vmcnt(0)\ns_cmp_lt_u32 s3, 4\ns_cbranch_scc1 K_B_XOK')
    gen_init(); gen_mat('K_B_GL1', cfg.gsplit)
    stamp(A, cfg, 1)
    A('K_B_XOK:')
    A('s_waitcnt lgkmcnt(0)')
    srd_off(A, 8, P_WS, WS_Z, Z_SIZE); srd(A, 12, P_OUT, 0x400000); srd_off(A, 60, P_WS, WS_FLAG, FLAG_SIZE); srd(A, 16, P_DBG, 256); srd(A, 20, P_WO, 0x80000)
    A('s_lshl_b32 s28, s5, 3\ns_add_u32 s28, s28, s3\ns_lshl_b32 s28, s28, 13\ns_add_u32 s97, s28, 4096')
    def wopf(r):
        if cfg.wopf:
            for n in range(4): A(f'buffer_load_dwordx4 v[244:247], v36, s[20:23], s{r} offen offset:{n*1024}')
    A('s_barrier')
    stamp(A, cfg, 2)
    DA, DD = 64, 96
    for p in range(4):
        for h in range(2):
            for rb in range(2): A(f'ds_read_b64_tr_b16 {vr(DA+8*p+4*h+2*rb,2)}, v17 offset:{(2*p+rb)*1024+h*8}')
    wopf(28)
    for i in range(8):
        A(f's_waitcnt lgkmcnt({14 - 2*i})')
        mfma32(A, DD+4*i, DA+4*i, G, None)
    bstamp(A, cfg, 3, 1)
    for p in range(4):
        for q in range(4): cvt(A, DA+4*p+q, DD+8*p+2*q, DD+8*p+2*q+1)
        A(f'ds_write_b128 v18, {vr(DA+4*p,4)} offset:{p*128}')
    A('s_waitcnt lgkmcnt(0)')
    bstamp(A, cfg, 4, 1)
    A('s_barrier')
    bstamp(A, cfg, 5, 1)
    XF, U, BO, Z, PK = 64, 96, 160, 192, 224
    for h in range(2):
        for sp in range(4): A(f'ds_read_b128 {vr(XF+16*h+4*sp,4)}, v{19+h} offset:{h*4096+sp*1024}')
    wopf(97)
    def stage_c(u, bo, off):
        for sp in range(4):
            for q in range(4): cvt(A, bo+4*sp+q, u+8*sp+2*q, u+8*sp+2*q+1)
        A('s_nop 1')
        for part in range(2):
            for sp in range(4): mfma32(A, Z+16*part+4*sp, F+2*part, bo+4*sp, None)
        A('s_nop 3')
        for part in range(2):
            for i in range(4):
                for q in range(2): cvt(A, PK+4*i+2*part+q, Z+16*part+8*q+i, Z+16*part+8*q+4+i)
                if part: A(f's_add_u32 s7, s101, {i*ZCLS + off}\nbuffer_store_dwordx4 {vr(PK+4*i,4)}, v22, s[8:11], s7 offen sc1')
    A('s_cmp_eq_u32 s58, 0\ns_cbranch_scc1 K_B_W0')
    A('s_waitcnt lgkmcnt(4)')
    for sp in range(4):
        mfma32(A, U+8*sp, XF+4*sp, M, None); mfma32(A, U+8*sp+4, XF+4*sp, M+4, None)
    A('s_waitcnt lgkmcnt(0)')
    for sp in range(4):
        mfma32(A, U+8*sp, XF+16+4*sp, M+8, U+8*sp); mfma32(A, U+8*sp+4, XF+16+4*sp, M, U+8*sp+4)
    A('s_nop 1')
    stage_c(U, BO, 0)
    A('s_branch K_B_SIG')
    A('K_B_W0:')
    A('s_waitcnt lgkmcnt(0)')
    for h in range(2):
        for sp in range(4):
            mfma32(A, U+32*h+8*sp, XF+16*h+4*sp, M+8*h, None); mfma32(A, U+32*h+8*sp+4, XF+16*h+4*sp, M+8*h+4, None)
    stage_c(U, BO, 0)
    stage_c(U+32, BO+16, 8*512)
    A('K_B_SIG:')
    bstamp(A, cfg, 6, 1)
    bstamp(A, cfg, 3, 0)
    AM, SW, ZF, MF, ACC, T = 24, 40, 48, 112, 160, 224
    A('s_and_b32 s30, s5, 3')
    A(f'v_mul_u32_u24 v7, {PITCH}, v4\nv_lshl_add_u32 v12, v3, 4, v7\nv_lshlrev_b32 v7, 15, v4\nv_lshl_add_u32 v13, v3, 4, v7')
    A('s_lshl_b32 s6, s31, 11\ns_lshl_b32 s7, s30, 8\ns_add_u32 s6, s6, s7\ns_add_u32 s34, s6, 1024')
    A('s_cmp_ge_u32 s3, 4\ns_cbranch_scc1 K_B_AUX')
    A(f'v_lshrrev_b32 v8, 1, v4\nv_and_b32 v9, 1, v4\nv_add_u32 v{AM}, {MAT}, v36')
    A('s_sub_u32 s6, 16, s31\ns_and_b32 s6, s6, 15\ns_lshl_b32 s7, s3, 2\ns_sub_u32 s28, 13, s7\ns_sub_u32 s35, 3, s30')
    A('s_cmp_ge_u32 s3, 2\ns_cselect_b32 s6, s6, s31\ns_cselect_b32 s7, s28, s7\ns_cselect_b32 s35, s35, s30\ns_cselect_b32 s58, 0x80008000, 0\ns_cselect_b32 s28, 3, 0\ns_cselect_b32 s29, 7, 0')
    A(f's_mul_i32 s6, s6, {ZCLS}\ns_lshl_b32 s7, s7, 9\ns_add_u32 s6, s6, s7\ns_lshl_b32 s35, s35, 7\ns_add_u32 s35, s35, s6')
    A(f'v_mul_u32_u24 v7, {ZSIG}, v4\nv_lshl_add_u32 v7, v6, 4, v7\nv_bfe_u32 v10, v2, 3, 1\nv_lshlrev_b32 v10, 1, v10\nv_xor_b32 v10, s28, v10\nv_xor_b32 v11, 1, v10')
    A('v_lshl_add_u32 v10, v10, 9, v7\nv_lshl_add_u32 v11, v11, 9, v7')
    A(f'v_mul_u32_u24 v7, {PITCH}, v3\nv_lshl_add_u32 v7, v8, 2, v7\ns_lshl_b32 s6, s3, 3\nv_add_u32 v7, s6, v7\nv_lshlrev_b32 v9, 2, v9\nv_xor_b32 v9, s29, v9')
    for i in range(4): A(f'v_xor_b32 v8, {i}, v9\nv_lshl_add_u32 v{SW+i}, v8, 5, v7')
    def reads(st):
        hf, k = divmod(st, 8); f = MF + 16 * (st % 3)
        return [f'ds_read_b128 {vr(f+4*tt,4)}, v{AM} offset:{(4*hf+tt)*8192 + k*1024}' for tt in range(4)] if st < 16 else []
    A('v_mov_b32 v20, v10\nv_mov_b32 v21, v11\ns_mov_b32 s100, s35')
    A(f's_and_b32 s6, s5, 4\ns_mul_i32 s6, s6, {4*ZSIG}\ns_add_u32 s35, s100, s6\ns_sub_u32 s100, s100, s6')
    A('s_cmp_lg_u32 s3, 2\ns_cbranch_scc1 K_B_RDY_X\nv_lshlrev_b32 v7, 2, v6')
    poll(A, 'K_B_RDY', 9, 7, 16, 0, 1)
    A('s_waitcnt vmcnt(0)')
    bstamp(A, cfg, 4, 0)
    A('s_barrier')
    A('s_cmp_lg_u32 s3, 3\ns_cbranch_scc1 K_B_POLL_X')
    if cfg.batom:
        R = cfg.batom
        A(f's_mov_b32 s6, {BFLAG}\ns_mov_b64 exec, {(1 << R) - 1}\nbuffer_atomic_add v15, v16, s[60:63], s6 offen\ns_mov_b64 exec, -1')
        A(f's_and_b32 s7, s4, {R-1}\ns_lshl_b32 s7, s7, 7\ns_add_u32 s7, s7, s6')
        poll(A, 'K_B_POLL', 9, 14, 60, 's7', 64)
    else:
        A(f's_lshl_b32 s6, s4, 3\ns_add_u32 s6, s6, s5\ns_lshl_b32 s6, s6, 7\ns_add_u32 s6, s6, {BFLAG}\ns_mov_b32 s7, {BFLAG}')
        A('v_cmp_eq_u32 vcc, 0, v2\ns_and_saveexec_b64 s[98:99], vcc\nbuffer_store_dword v15, v14, s[60:63], s6 offen sc1\ns_mov_b64 exec, s[98:99]')
        poll(A, 'K_B_POLL', 9, 16, 60, 's7', 1)
    A('s_barrier')
    bstamp(A, cfg, 5, 0)
    for k in range(8):
        A(f's_add_u32 s7, s{35 if k < 4 else 100}, {k*4*ZSIG}')
        for a in range(2): A(f'buffer_load_dwordx4 {vr(ZF+8*k+4*a,4)}, v{20+a}, s[8:11], s7 offen sc1')
        if k == 1:
            for r in reads(0) + reads(1): A(r)
    def stage_out(hf):
        return [f'v_cvt_pk_bf16_f32 v{T+4*tt+i}, v{ACC+32*hf+8*tt+i}, v{ACC+32*hf+8*tt+4+i}\nds_write_b32 v{SW+i}, v{T+4*tt+i} offset:{(4*hf+tt)*16*PITCH}' for tt in range(4) for i in range(4)]
    so = stage_out(0)
    nw = lambda st: 4 if 9 <= st <= 12 else 0
    for st in range(16):
        hf, k = divmod(st, 8); f = MF + 16 * (st % 3)
        if hf == 0:
            A(f's_waitcnt vmcnt({14-2*k})')
            for a in range(2): A(f'v_xor_b32 v{ZF+8*k+4*a+2}, s58, v{ZF+8*k+4*a+2}\nv_xor_b32 v{ZF+8*k+4*a+3}, s58, v{ZF+8*k+4*a+3}')
        if st == 14: A('s_waitcnt lgkmcnt(4)\ns_barrier')
        else: A(f's_waitcnt lgkmcnt({nw(st-2) + len(reads(st+1)) + nw(st-1)})')
        Mx = [lambda d=ACC+32*hf+8*tt+4*a, x=ZF+8*k+4*a, b=f+4*tt, z=k: mfma32(A, d, x, b, d if z else None) for a in range(2) for tt in range(4)]
        R = reads(st + 2)
        if nw(st): R += so[4*(st-9):4*(st-8)]
        interleave(A, Mx, R)
    bstamp(A, cfg, 6, 0)
    A('s_nop 4')
    for x in stage_out(1): A(x)
    A('s_waitcnt lgkmcnt(0)\ns_branch K_B_FIN')
    A('K_B_AUX:')
    A('s_waitcnt vmcnt(0)')
    bstamp(A, cfg, 4, 0)
    A('s_barrier')
    gen_mat('K_B_GL2', 8 - cfg.gsplit)
    A('s_waitcnt lgkmcnt(0)\ns_barrier')
    bstamp(A, cfg, 5, 0)
    A(f's_sub_u32 s6, s3, 4\ns_mul_i32 s7, s6, {16*PITCH}\nv_add_u32 v7, s7, v12\ns_lshl_b32 s6, s6, 19\ns_add_u32 s6, s6, s34')
    A('s_barrier')
    for n in range(4): A(f'ds_read_b128 {vr(64+4*n,4)}, v7 offset:{n*4*PITCH}')
    for n in range(4):
        A(f's_add_u32 s7, s6, {(4*n) << 15}\ns_waitcnt lgkmcnt({3-n})')
        A(f'buffer_store_dwordx4 {vr(64+4*n,4)}, v13, s[12:15], s7 offen{cfg.outflagb}')
    bstamp(A, cfg, 6, 0)
    A('K_B_FIN:')
    A(f's_mul_i32 s7, s3, {8*PITCH}\nv_add_u32 v7, s7, v12\ns_lshl_b32 s6, s3, 18\ns_add_u32 s6, s6, s34')
    A('s_barrier')
    for n in range(2): A(f'ds_read_b128 {vr(80+4*n,4)}, v7 offset:{(64+4*n)*PITCH}')
    for n in range(2):
        A(f's_add_u32 s7, s6, {(64+4*n) << 15}\ns_waitcnt lgkmcnt({1-n})')
        A(f'buffer_store_dwordx4 {vr(80+4*n,4)}, v13, s[12:15], s7 offen{cfg.outflagb}')
    stamp_store(A, cfg, 8)
    A('s_endpgm')

def main():
    ap = argparse.ArgumentParser()
    ap.add_argument('-o', default=f'cdna_kernels/{NAME}.s')
    ap.add_argument('--diag', action='store_true')
    ap.add_argument('--xa', default='3,9,9,9,9,9,9,6')
    ap.add_argument('--pre', type=int, default=4); ap.add_argument('--opre', type=int, default=12)
    ap.add_argument('--outflag', default='sc1'); ap.add_argument('--outflagb', default='sc1')
    ap.add_argument('--rot', type=int, default=1); ap.add_argument('--rotx', type=int, default=1); ap.add_argument('--q3', type=int, default=1)
    ap.add_argument('--help_', dest='help', type=int, default=0); ap.add_argument('--help0', type=int, default=1)
    ap.add_argument('--hbar', type=int, default=1)
    ap.add_argument('--cpf', type=int, default=1)
    ap.add_argument('--swap', type=int, default=1); ap.add_argument('--hsplit', type=int, default=4)
    ap.add_argument('--gsplit', type=int, default=3); ap.add_argument('--goks', type=int, default=2)
    ap.add_argument('--xpf', type=int, default=1); ap.add_argument('--xprio', type=int, default=0)
    ap.add_argument('--c3', type=int, default=0)
    ap.add_argument('--chk', type=int, default=12)
    ap.add_argument('--cgx', type=int, default=1); ap.add_argument('--wopf', type=int, default=0)
    ap.add_argument('--batom', type=int, default=0)
    ap.add_argument('--bst', type=int, default=0)
    ap.add_argument('--warmat', type=int, default=7); ap.add_argument('--n1', type=int, default=60)
    cfg = ap.parse_args()
    cfg.xa = [int(x) for x in cfg.xa.split(',')]
    if cfg.outflag: cfg.outflag = ' ' + cfg.outflag.replace('+', ' ')
    if cfg.outflagb: cfg.outflagb = ' ' + cfg.outflagb.replace('+', ' ')
    A = Asm()
    A(f'; @launch grid=(256,1,1) block=(512,1,1) lds={LDS_TOTAL}')
    A('.amdgcn_target "amdgcn-amd-amdhsa--gfx950"\n.text')
    kernel(A, cfg)
    A(f""".section .rodata,"a"
.p2align 6
.amdhsa_kernel {NAME}_kernel
.amdhsa_next_free_vgpr 256
.amdhsa_next_free_sgpr 102
.amdhsa_accum_offset 256
.amdhsa_group_segment_fixed_size 0
.amdhsa_kernarg_size 88
.amdhsa_user_sgpr_count 2
.amdhsa_user_sgpr_kernarg_segment_ptr 1
.amdhsa_system_sgpr_workgroup_id_x 1
.end_amdhsa_kernel""")
    open(cfg.o, 'w').write(A.text())
main()
```

```python
import sys, argparse
NAME = 'concat_heads__sliding_local_dilated__spectral_fnet__prompt'

class Asm:
    def __init__(self): self.L = []
    def __call__(self, s):
        for line in s.split('\n'):
            line = line.strip()
            if line: self.L.append(line if line.endswith(':') or line.startswith('.') or line.startswith(';') else '    ' + line)
    def text(self): return '\n'.join(self.L) + '\n'

def vr(b, n): return f'v[{b}:{b+n-1}]' if n > 1 else f'v{b}'
def srd(A, d, lo, size):
    A(f's_mov_b32 s{d}, s{lo}\ns_mov_b32 s{d+1}, s{lo+1}\ns_mov_b32 s{d+2}, {size:#x}\ns_mov_b32 s{d+3}, 0x20000')
def srd_off(A, d, lo, off, size):
    A(f's_add_u32 s{d}, s{lo}, {off:#x}\ns_addc_u32 s{d+1}, s{lo+1}, 0\ns_mov_b32 s{d+2}, {size:#x}\ns_mov_b32 s{d+3}, 0x20000')
def mfma32(A, d, a, b, c): A(f'v_mfma_f32_16x16x32_bf16 {vr(d,4)}, {vr(a,4)}, {vr(b,4)}, {vr(c,4) if c is not None else 0}')
def mfma16(A, d, a, b, c): A(f'v_mfma_f32_16x16x16_bf16 {vr(d,4)}, {vr(a,2)}, {vr(b,2)}, {vr(c,4) if c is not None else 0}')
def cvt(A, d, a, b): A(f'v_cvt_pk_bf16_f32 v{d}, v{a}, v{b}')

P_AX, P_WQKV, P_WO, P_BX, P_CR, P_CI, P_DR, P_DI, P_OUT, P_DBG, P_WS = 36, 38, 40, 42, 44, 46, 48, 50, 52, 54, 56
WS_O, O_SIZE, WS_Z, Z_SIZE, WS_FLAG, FLAG_SIZE, WS_DIAG = 0, 0x240000, 0x280000, 0x240000, 0x500000, 0x10000, 0x800000
ZSIG, ZCLS = 4608, 147456
GFLAG, BFLAG = 192 * 128, 384 * 128
LDS_TOTAL, LDS_WORD = 163840, 147456
OOB = 0x80000000
SPIN = 400000
SLEEP = 0

def interleave(A, mf, other, per_gap=1, start=0):
    oi = 0
    for i, m in enumerate(mf):
        m()
        if i >= start:
            for _ in range(per_gap):
                if oi < len(other): A(other[oi]); oi += 1
    while oi < len(other): A(other[oi]); oi += 1

def stamp(A, cfg, slot):
    if cfg.diag: A(f's_memrealtime s[{64+4*slot}:{65+4*slot}]\ns_memtime s[{66+4*slot}:{67+4*slot}]')
def stamp_store(A, cfg, nslots):
    if not cfg.diag: return
    A('s_waitcnt lgkmcnt(0) vmcnt(0)')
    stamp(A, cfg, nslots - 1)
    A('s_waitcnt lgkmcnt(0)')
    srd_off(A, 24, P_WS, WS_DIAG, 0x100000)
    A(f's_lshl_b32 s4, s2, 3\ns_add_u32 s4, s4, s3\ns_lshl_b32 s4, s4, 6')
    for i in range(8): A(f'v_mov_b32 v{8+i}, s{64+4*min(i, nslots-1)}\nv_mov_b32 v{16+i}, s{66+4*min(i, nslots-1)}')
    A('v_mov_b32 v1, 0\nv_and_b32 v2, 63, v0\nv_cmp_eq_u32 vcc, 0, v2\ns_and_saveexec_b64 s[6:7], vcc')
    for i in range(4): A(f'buffer_store_dwordx4 v[{8+4*i}:{11+4*i}], v1, s[24:27], s4 offen offset:{16*i}')


def loader_loop(A, items, ends, X, after=None):
    done = 0
    for c in range(len(ends)):
        upto = min(len(items), ends[c] + X[min(c, len(X) - 1)])
        while done < upto and items[done][1] <= c:
            items[done][0](); done += 1
        assert done >= ends[c]
        A(f's_waitcnt vmcnt({done - ends[c]})')
        A('s_barrier')
    if after: after()
    while done < len(items):
        items[done][0](); done += 1

def poll(A, label, vdst, vaddr, srdn, soff, want, first=True):
    A(f's_mov_b32 s28, 0')
    A(f'{label}:')
    A(f'buffer_load_dword v{vdst}, v{vaddr}, s[{srdn}:{srdn+3}], {soff} offen sc1')
    A(f's_add_u32 s28, s28, 1\ns_cmp_ge_u32 s28, {SPIN}\ns_cbranch_scc1 {label}_X')
    A('s_waitcnt vmcnt(0)')
    A(f'v_cmp_ne_u32 vcc, {want}, v{vdst}')
    A(f's_cmp_lg_u64 vcc, 0\ns_cbranch_scc1 {label}')
    A(f'{label}_X:')

A1_SLOT = 36864

def kernel(A, cfg):
    A(f'.globl {NAME}_kernel\n.p2align 8\n.type {NAME}_kernel,@function\n{NAME}_kernel:')
    A('s_load_dwordx16 s[36:51], s[0:1], 0\ns_load_dwordx4 s[52:55], s[0:1], 64\ns_load_dwordx2 s[56:57], s[0:1], 80')
    A('s_cmp_ge_u32 s2, 256\ns_cbranch_scc1 K_END')
    stamp(A, cfg, 0)
    if cfg.cpf == 2:
        A(f's_getpc_b64 s[8:9]\nK_PC:\ns_sub_u32 s8, s8, K_PC-{NAME}_kernel\ns_subb_u32 s9, s9, 0\ns_mov_b32 s10, K_END-{NAME}_kernel\ns_mov_b32 s11, 0x20000')
        A('s_lshr_b32 s5, s2, 3\ns_lshl_b32 s5, s5, 10\nv_lshlrev_b32 v1, 4, v0\nv_cmp_gt_u32 vcc, 64, v0\ns_and_saveexec_b64 s[6:7], vcc\ns_cbranch_execz K_NOPF')
        A('buffer_load_dwordx4 v[248:251], v1, s[8:11], s5 offen\nK_NOPF:\ns_mov_b64 exec, s[6:7]')
    A('v_lshrrev_b32 v1, 6, v0\nv_and_b32 v2, 63, v0')
    A('v_readfirstlane_b32 s3, v1')
    A('s_and_b32 s4, s2, 7\ns_lshr_b32 s5, s2, 3')
    A('v_and_b32 v3, 15, v2\nv_lshrrev_b32 v4, 4, v2')
    A('v_lshrrev_b32 v5, 3, v2\nv_and_b32 v6, 7, v2')
    A('s_cmp_ge_u32 s5, 24\ns_cbranch_scc1 K_B')
    A('s_mul_i32 s7, s4, 3\ns_lshr_b32 s28, s5, 3\ns_add_u32 s59, s7, s28\ns_and_b32 s29, s5, 7')
    A('s_and_b32 s30, s59, 1\ns_lshr_b32 s31, s59, 1\ns_mul_i32 s32, s31, 88')
    if cfg.swap: A('s_xor_b32 s3, s3, 4')
    A('s_getreg_b32 s96, hwreg(HW_REG_XCC_ID, 0, 4)\ns_add_u32 s96, s96, 0x100')
    A('s_cmp_ge_u32 s3, 4\ns_cbranch_scc0 K_A_CONS')
    a_loader(A, cfg)
    A('K_A_CONS:')
    a_consumer(A, cfg)
    A('K_B:')
    b_all(A, cfg)
    A('K_END:\ns_endpgm')

def a_loader(A, cfg):
    A('s_mul_i32 s97, s28, 3')
    if cfg.rot == 1: A('s_mov_b32 s63, 0')
    elif cfg.rot == 2: A('s_xor_b32 s63, s28, s5\ns_and_b32 s63, s63, 1\ns_lshl_b32 s63, s63, 2')
    elif cfg.rot == 3: A('s_mov_b32 s63, s97')
    if cfg.rot == 5:
        def tri(b, g): return [b + (g + i) % 3 for i in range(3)]
        def pair(b, g): return [b + (g & 1), b + 1 - (g & 1)]
        def word(p, g):
            o = [tri(0, g) + tri(3, g) + pair(6, g), [0] + tri(1, g) + tri(4, g) + [7], pair(0, g) + tri(2, g) + tri(5, g)][p]
            return sum(c << (4 * i) for i, c in enumerate(o))
        A('s_mov_b32 s63, 0\ns_mul_i32 s6, s29, 11\ns_lshr_b32 s6, s6, 5\ns_mul_i32 s6, s6, 3\ns_sub_u32 s6, s29, s6\ns_add_u32 s6, s6, s97')
        A(f's_mov_b32 s101, {word(0, 0):#x}')
        for g in range(3):
            for p in range(3):
                if p or g: A(f's_cmp_eq_u32 s6, {p + 3*g}\ns_cselect_b32 s101, {word(p, g):#x}, s101')
        A('s_cmp_eq_u32 s29, 3\ns_cselect_b32 s101, 0x76543210, s101')
    if cfg.q3: A('s_cmp_eq_u32 s29, 3\ns_cselect_b32 s63, s97, s63')
    if cfg.rotx: A(f's_mul_i32 s62, s4, {cfg.rotx}\ns_add_u32 s63, s63, s62')
    A('s_sub_u32 s33, s3, 4')
    A('s_mul_i32 s6, s33, 24')
    for j in range(3):
        A(f'v_add_u32 v7, s6, v5\nv_add_u32 v7, {8*j}, v7')
        A('v_lshrrev_b32 v8, 1, v7\nv_and_b32 v8, 7, v8\nv_xor_b32 v8, v8, v6\nv_lshlrev_b32 v8, 4, v8')
        A('v_add_u32 v7, s32, v7\nv_lshlrev_b32 v7, 1, v7\nv_add_u32 v7, s30, v7')
        A(f'v_lshl_add_u32 v{10+j}, v7, 10, v8')
    A('s_lshl_b32 s6, s33, 4\ns_lshl_b32 s7, s29, 7\ns_movk_i32 s28, 3072')
    for par in range(2):
        A(f'v_add_u32 v7, s6, v5\nv_add_u32 v7, {8*par}, v7')
        A('v_mul_lo_u32 v7, v7, s28\nv_add_u32 v7, s7, v7')
        A(f'v_and_b32 v8, 1, v4\nv_or_b32 v8, {2*par}, v8\nv_lshlrev_b32 v8, 1, v8\nv_xor_b32 v8, v8, v6')
        A(f'v_lshl_add_u32 v{13+par}, v8, 4, v7')
    A('s_mul_i32 s34, s33, 3072')
    A('s_mul_i32 s35, s33, 6144\ns_add_u32 s35, s35, 12288')
    A('s_waitcnt lgkmcnt(0)')
    srd(A, 8, P_AX, 0x200000); srd(A, 12, P_WQKV, 0x180000)
    stamp(A, cfg, 1)
    def issue(c, j):
        base = (c % 4) * A1_SLOT
        if j < 3:
            if j == 0 and cfg.rot == 5: A(f's_bfe_u32 s62, s101, {0x40000 + 4*c:#x}\ns_add_u32 s62, s62, s63\ns_and_b32 s62, s62, 7\ns_lshl_b32 s6, s62, 7')
            elif j == 0: A(f's_add_u32 s62, s63, {c}\ns_and_b32 s62, s62, 7\ns_lshl_b32 s6, s62, 7')
            A(f's_add_u32 m0, s34, {base + j*1024}\ns_nop 0')
            A(f'buffer_load_dwordx4 v{10+j}, s[8:11], s6 offen lds')
        else:
            par, seg = divmod(j - 3, 3)
            if j == 3: A(f's_mul_i32 s7, s62, 196608')
            if seg == 0: A(f's_add_u32 m0, s35, {base + par*3072}\ns_nop 0')
            A(f'buffer_load_dwordx4 v{13+par}, s[12:15], s7 offen offset:{seg*1024} lds')
        if c == 1 and j == 8: late_setup()
    def late_setup():
        srd(A, 16, P_WO, 0x80000); srd_off(A, 20, P_WS, WS_O, O_SIZE)
        A('s_lshl_b32 s60, s33, 3\nv_add_u32 v7, s60, v5\ns_and_b32 s60, s33, 1\ns_lshl_b32 s60, s60, 1\ns_xor_b32 s61, s29, ' + str(cfg.cgx) + '\ns_lshl_b32 s61, s61, 7')
        A('v_and_b32 v8, 1, v4\nv_or_b32 v8, s60, v8\nv_lshlrev_b32 v8, 1, v8\nv_xor_b32 v8, v8, v6\nv_lshlrev_b32 v8, 4, v8')
        A('v_lshl_add_u32 v15, v7, 10, v8\nv_add_u32 v15, s61, v15')
        A('s_lshl_b32 s58, s33, 10')
        A(f's_mul_i32 s60, s33, 24\nv_add_u32 v7, s60, v2\nv_lshrrev_b32 v8, 4, v7\nv_lshlrev_b32 v8, 14, v8\nv_and_b32 v7, 15, v7\nv_lshl_add_u32 v7, v7, 7, v8')
        A(f'v_mov_b32 v8, {OOB:#x}\nv_cmp_le_u32 vcc, 24, v2\ns_mul_i32 s60, s59, {6*16384}\ns_lshl_b32 s61, s29, 11\ns_add_u32 s98, s60, s61\nv_cndmask_b32 v16, v7, v8, vcc')
        A(f'v_mov_b32 v17, {LDS_WORD}\nv_mov_b32 v18, 0\nv_mov_b32 v19, 0\nds_write_b64 v17, v[18:19]\nds_write_b64 v17, v[18:19] offset:8\nds_write_b64 v17, v[18:19] offset:16\nds_write_b64 v17, v[18:19] offset:24\ns_waitcnt lgkmcnt(0)\nv_mov_b32 v18, 1')
    def wo(n):
        A(f's_add_u32 s62, s97, {n}\ns_and_b32 s62, s62, 15')
        A('s_lshl_b32 s6, s62, 12\ns_add_u32 m0, s58, s6\ns_lshl_b32 s6, s62, 15')
        A('buffer_load_dwordx4 v15, s[16:19], s6 offen lds')
    def side():
        srd_off(A, 88, P_WS, WS_FLAG, FLAG_SIZE); srd(A, 24, P_DBG, 256)
        A(f'v_lshlrev_b32 v20, 2, v6\nv_lshlrev_b32 v21, 7, v6\ns_lshl_b32 s100, s59, 10\ns_lshr_b32 s97, s5, 3\ns_mul_i32 s97, s97, 5\ns_mov_b64 exec, 0xff')
        A('buffer_load_dword v22, v20, s[24:27], 0 offen sc1\ns_mov_b64 exec, -1')
    def gocheck():
        A('s_mov_b64 exec, 0xff\nv_cmp_ne_u32 vcc, 1, v22\ns_cmp_eq_u64 vcc, 0\ns_cbranch_scc1 K_A_RDY_X')
        poll(A, 'K_A_RDY', 9, 20, 24, 0, 1)
        A('ds_write_b32 v17, v18 offset:24\ns_mov_b64 exec, -1')
    items = [(lambda c=c, j=j: issue(c, j), max(0, c - 2)) for c in range(8) for j in range(9)]
    ends = [9 * (c + 1) for c in range(8)]
    items += [(side, 0), (lambda: A('s_mov_b64 exec, 0xff\nbuffer_load_dword v251, v21, s[88:91], s100 offen sc1\ns_mov_b64 exec, -1'), 0)]
    items += [(lambda: A('buffer_load_dword v250, v16, s[20:23], s98 offen sc1'), 0)]
    def wo2(n):
        if n == cfg.gon: A(f's_waitcnt vmcnt({n + 2})'); gocheck()
        wo(n)
    items += [(lambda n=n: wo2(n), 7) for n in range(16)]
    loader_loop(A, items, ends, cfg.xa)
    srd_off(A, 8, P_WS, WS_FLAG, FLAG_SIZE)
    stamp(A, cfg, 2)
    AW, WF, OF, ACC, NB = 24, 36, 100, 200, 4
    STAGE = 2 * A1_SLOT
    srd(A, 12, P_OUT, 0x400000)
    A('v_bfe_u32 v7, v2, 2, 2\nv_lshrrev_b32 v8, 1, v7\nv_and_b32 v9, 1, v4\nv_lshl_or_b32 v8, v9, 1, v8')
    A('v_lshlrev_b32 v9, 10, v4\nv_lshl_add_u32 v9, v7, 7, v9\nv_and_b32 v7, 3, v2\nv_lshl_add_u32 v9, v7, 3, v9')
    for nt in range(4): A(f'v_xor_b32 v7, {nt}, v8\nv_lshl_add_u32 v{AW+nt}, v7, 5, v9')
    A('v_lshlrev_b32 v33, 4, v2')
    A(f's_mul_i32 s6, s33, {32*144}\ns_add_u32 s6, s6, {STAGE}')
    A('v_mul_u32_u24 v30, 144, v3\nv_lshl_add_u32 v30, v4, 3, v30\nv_add_u32 v30, s6, v30')
    A('v_mul_u32_u24 v31, 144, v5\nv_lshl_add_u32 v31, v6, 4, v31\nv_add_u32 v31, s6, v31')
    A('v_lshlrev_b32 v32, 12, v5\nv_lshl_add_u32 v32, v6, 4, v32')
    A('s_lshl_b32 s6, s32, 12\ns_lshl_b32 s7, s30, 11\ns_add_u32 s6, s6, s7\ns_xor_b32 s7, s29, ' + str(cfg.cgx) + '\ns_lshl_b32 s7, s7, 7\ns_add_u32 s34, s6, s7')
    A('s_lshl_b32 s6, s33, 16\ns_add_u32 s60, s34, s6\ns_add_u32 s61, s60, 0x8000\ns_lshr_b32 s7, s33, 1\ns_add_u32 s7, s7, 4\ns_lshl_b32 s6, s7, 16\ns_add_u32 s62, s34, s6\ns_add_u32 s63, s62, 0x8000')
    A(f's_mul_i32 s34, s59, {6*16384}\ns_lshl_b32 s6, s33, 14\ns_add_u32 s35, s34, s6\ns_lshl_b32 s6, s7, 14\ns_add_u32 s34, s34, s6')
    A(f's_lshr_b32 s6, s33, 1\ns_lshl_b32 s7, s6, 12\ns_add_u32 s7, s7, {STAGE + 4*32*144}\nv_add_u32 v28, s7, v33\ns_lshl_b32 s6, s6, 2\nv_add_u32 v29, s6, v17')
    A('s_cmp_lg_u32 s31, 0\ns_cselect_b32 s6, 1, 0\ns_cmp_eq_u32 s33, 0\ns_cselect_b32 s6, s6, 0\ns_cmp_lg_u32 s6, 0\ns_cselect_b32 s60, 0x40000000, s60')
    A(f'v_mov_b32 v8, v21\ns_mov_b32 s7, s100\ns_add_u32 s6, s7, {GFLAG}')
    A('s_waitcnt vmcnt(0)\ns_mov_b64 exec, 1\nds_add_u32 v17, v18 offset:8\ns_mov_b64 exec, -1')
    A('K_A_LW:\nds_read_b32 v9, v17 offset:8\ns_waitcnt lgkmcnt(0)\nv_cmp_ne_u32 vcc, 4, v9\ns_cmp_lg_u64 vcc, 0\ns_cbranch_scc1 K_A_LW')
    stamp(A, cfg, 3)
    order = [0, 1, 2, 3, 4, 5, 8, 9, 10, 11, 12, 13, 14, 15, 6, 7]
    def reads(st):
        if st > 15: return []
        f = WF + 16 * (st % NB); ks = order[st]
        return [f'ds_read_b64_tr_b16 {vr(f+4*nt+2*u,2)}, v{AW+nt} offset:{ks*4096+u*512}' for nt in range(4) for u in range(2)]
    for r in reads(0) + reads(1) + reads(2): A(r)
    A('s_mov_b32 s28, 0\ns_mov_b32 s99, 0\ns_mov_b32 s94, 0xf7f7f7f7\ns_mov_b32 s95, 0xf7f7f7f7')
    def wait_flags(tag, masked):
        A(f's_mov_b64 exec, 0xff\nK_A_P1{tag}:')
        A('buffer_load_dword v9, v8, s[8:11], s100 offen sc1\ns_add_u32 s28, s28, 1\ns_waitcnt vmcnt(0)')
        A('v_cmp_ne_u32 vcc, s96, v9')
        if masked: A(f's_mov_b64 s[92:93], vcc\ns_and_b64 vcc, vcc, s[94:95]\ns_cbranch_scc0 K_A_GO{tag}')
        else: A(f's_cmp_eq_u64 vcc, 0\ns_cbranch_scc1 K_A_GO{tag}')
        A(f's_cmp_lt_u32 s28, {cfg.n1}\ns_cbranch_scc1 K_A_P1{tag}')
        A('ds_write_b32 v17, v18\ns_mov_b32 s99, 1\ns_mov_b64 s[92:93], 0\ns_waitcnt lgkmcnt(0)\ns_barrier')
        A(f'K_A_P2{tag}:')
        A('buffer_load_dword v9, v8, s[8:11], s100 offen sc1\nbuffer_load_dword v10, v8, s[8:11], s6 offen sc1\ns_add_u32 s28, s28, 1\ns_waitcnt vmcnt(0)')
        A(f'v_cmp_ne_u32 vcc, s96, v9\ns_cmp_eq_u64 vcc, 0\ns_cbranch_scc1 K_A_GO{tag}')
        A(f'v_cmp_ne_u32 vcc, 1, v10\ns_cmp_eq_u64 vcc, 0\ns_cbranch_scc1 K_A_GO{tag}')
        A(f's_cmp_lt_u32 s28, {SPIN}\ns_cbranch_scc1 K_A_P2{tag}')
        A(f'K_A_GO{tag}:\ns_mov_b64 exec, -1')
    wait_flags('A', True)
    stamp(A, cfg, 4)
    A('s_bitcmp1_b32 s33, 0\ns_cbranch_scc1 K_A_ODD')
    PART = 232
    def gemm2(odd):
        tag = 'O' if odd else 'E'
        has = lambda st: (st < 8) == bool(odd)
        L = [(st, a) for st in range(16) for a in range(2) if a == 0 or has(st)]
        reg = {x: OF + 4 * i for i, x in enumerate(L)}
        first_q3 = min(i for i, x in enumerate(L) if x[0] >= 14)
        def oload(i):
            st, a = L[i]; ks = order[st]
            return f's_add_u32 s7, s{34 if a else 35}, {(ks & ~3)*1024}\nbuffer_load_dwordx4 {vr(reg[L[i]],4)}, v33, s[20:23], s7 offen offset:{(ks&3)*1024} sc1'
        issued = cfg.opre; extra = 0
        for i in range(issued): A(oload(i))
        CHK = cfg.chk2 if odd else cfg.chk
        for st in range(16):
            f = WF + 16 * (st % NB)
            if st == CHK:
                A(f's_waitcnt vmcnt(0)\nv_cmp_ne_u32 vcc, s96, v9\ns_and_b64 vcc, vcc, s[92:93]\ns_cbranch_scc0 K_A_GOB{tag}')
                wait_flags('B' + tag, False)
                for i in range(first_q3, len(L)): A(oload(i))
                issued = len(L); extra = 0
            need = sum(1 for x in L if x[0] <= st)
            lg = 0 if (st == 0 or (odd and st == 11) or (not odd and st in (13, 15))) else min(14, len(reads(st + 1)) + len(reads(st + 2)))
            A(f's_waitcnt vmcnt({min(issued - need + extra, len(L) - first_q3 if st >= CHK else 63)}) lgkmcnt({lg})')
            if st == 0: stamp(A, cfg, 5)
            if odd and st == 11: A('ds_write_b32 v29, v18 offset:16')
            if not odd and st == 13:
                A('s_mov_b32 s28, 0\nK_A_PW:\nv_cmp_ne_u32 vcc, 1, v10\ns_cmp_eq_u64 vcc, 0\ns_cbranch_scc1 K_A_PWX\nds_read_b32 v10, v29 offset:16\ns_add_u32 s28, s28, 1')
                A('s_cmp_lg_u32 s28, 64\ns_cbranch_scc1 K_A_PWN\ns_cmp_lg_u32 s99, 0\ns_cbranch_scc1 K_A_PWN\ns_mov_b32 s99, 1\ns_barrier\nK_A_PWN:\ns_waitcnt lgkmcnt(0)\ns_branch K_A_PW\nK_A_PWX:')
            M = [lambda d=ACC+16*a+4*nt, x=f+4*nt, b=reg[(st, a)], z=(st & 7 if a else st): mfma32(A, d, x, b, d if z else None) for a in range(2) if (st, a) in reg for nt in range(4)]
            O = reads(st + 3)
            O = [O[2*i] + '\n' + O[2*i+1] for i in range(len(O)//2)]
            for _ in range(2 if has(st) else 1):
                if issued < first_q3: O.append(oload(issued)); issued += 1
            if st == CHK - (4 if odd else 3):
                while issued < first_q3: O.append(oload(issued)); issued += 1
                O.append('s_mov_b64 exec, 0xff\nbuffer_load_dword v9, v8, s[8:11], s100 offen sc1\ns_mov_b64 exec, -1'); extra = 1
            if odd and st in (9, 10): O += [f'ds_write_b128 v28, {vr(ACC+16+4*nt,4)} offset:{nt*1024}' for nt in (2*(st-9), 2*(st-9)+1)]
            if not odd and st == 12: O.append('ds_read_b32 v10, v29 offset:16')
            if not odd and st == 13: O += [f'ds_read_b128 {vr(PART+4*nt,4)}, v28 offset:{nt*1024}' for nt in range(4)]
            interleave(A, M, O)
        stamp(A, cfg, 6)
        T = 100
        A('s_nop 7' if odd else 's_nop 3')
        for a in range(1 if odd else 2):
            if a:
                for i in range(16): A(f'v_add_f32 v{ACC+16+i}, v{ACC+16+i}, v{PART+i}')
            for nt in range(4):
                d = ACC + 16 * a + 4 * nt; p = T + 8 * a + 2 * nt
                cvt(A, p, d, d+1); cvt(A, p+1, d+2, d+3)
                A(f'ds_write_b64 v30, {vr(p,2)} offset:{a*16*144 + nt*32}')
            for n in (2*a, 2*a+1): A(f'ds_read_b128 {vr(T+16+4*n,4)}, v31 offset:{n*8*144}')
        N = 2 if odd else 4
        for n in range(N):
            A(f's_waitcnt lgkmcnt({(N-1-n) if (odd or n >= 2) else 7-n})')
            A(f'buffer_store_dwordx4 {vr(T+16+4*n,4)}, v32, s[12:15], s{60+n} offen{cfg.outflag}')
        A(f's_cmp_lg_u32 s99, 0\ns_cbranch_scc1 K_A_NOB{tag}\ns_barrier\nK_A_NOB{tag}:')
    gemm2(0)
    A('s_branch K_A_LDONE\nK_A_ODD:')
    gemm2(1)
    A('K_A_LDONE:')
    stamp_store(A, cfg, 8)
    A('s_endpgm')

def a_consumer(A, cfg):
    AX, AW = 20, 28
    ST, MD, MP, BD, ONES = 32, 36, 40, 44, 46
    VX, V1, VS0 = 33, 34, 35
    FR, ACC = 48, 120
    A(f'v_mov_b32 v{VX}, s96\nv_mov_b32 v{V1}, 1\nv_mov_b32 v{VS0}, {OOB:#x}\nv_cmp_ne_u32 vcc, {256 if cfg.swap else 0}, v0\ns_nop 1\nv_cndmask_b32 v{VS0}, 0, v{VS0}, vcc')
    A('s_lshl_b32 s58, s59, 3\ns_add_u32 s58, s58, s29\ns_lshl_b32 s58, s58, 7')
    A('s_lshl_b32 s6, s29, 2\ns_add_u32 s6, s6, s3\ns_mul_i32 s6, s6, 3\ns_add_u32 s6, s6, s32\ns_lshl_b32 s6, s6, 1\ns_add_u32 s6, s6, s30\ns_lshl_b32 s60, s6, 10\nv_lshlrev_b32 v7, 4, v2')
    if cfg.xprio: A('s_setprio 2')
    A('s_waitcnt lgkmcnt(0)')
    if cfg.xpf:
        srd(A, 12, P_AX, 0x200000)
        for n in range(3): A(f's_add_u32 s7, s60, {n*2048}\nbuffer_load_dwordx4 v[244:247], v7, s[12:15], s7 offen')
    if cfg.c3:
        srd(A, 12, P_WQKV, 0x180000)
        A('s_lshl_b32 s7, s5, 2\ns_add_u32 s7, s7, s3\ns_lshl_b32 s7, s7, 14\nv_lshlrev_b32 v8, 10, v5\nv_lshl_add_u32 v8, v6, 4, v8')
        A('buffer_load_dwordx4 v[244:247], v8, s[12:15], s7 offen offset:384\ns_add_u32 s7, s7, 8192\nbuffer_load_dwordx4 v[244:247], v8, s[12:15], s7 offen offset:384')
    srd_off(A, 16, P_WS, WS_FLAG, FLAG_SIZE); srd_off(A, 8, P_WS, WS_O, O_SIZE)
    srd(A, 20, P_DBG, 256)
    A('s_cmp_lg_u32 s5, 0\ns_cbranch_scc1 K_A_NOCLR')
    A('v_mov_b32 v8, 0\nv_mov_b32 v9, 0\nv_mov_b32 v10, 0\nv_mov_b32 v11, 0\nv_lshlrev_b32 v7, 4, v2\ns_lshl_b32 s6, s4, 2\ns_add_u32 s6, s6, s3\ns_lshl_b32 s6, s6, 11')
    A('buffer_store_dwordx4 v[8:11], v7, s[16:19], s6 offen sc1\nbuffer_store_dwordx4 v[8:11], v7, s[16:19], s6 offen offset:1024 sc1\ns_nop 1')
    A('K_A_NOCLR:')
    A('s_lshl_b32 s35, s4, 2')
    A('v_lshrrev_b32 v7, 1, v3\nv_xor_b32 v7, v7, v4\nv_lshlrev_b32 v7, 4, v7\nv_lshl_add_u32 v7, v3, 7, v7')
    A('v_xor_b32 v8, 64, v7')
    for s in range(4):
        A(f'v_add_u32 v{AX+2*s}, {s*A1_SLOT}, v7\nv_add_u32 v{AX+2*s+1}, {s*A1_SLOT}, v8')
    A('v_bfe_u32 v7, v2, 2, 2')
    A('v_lshrrev_b32 v8, 1, v7\nv_and_b32 v9, 1, v4\nv_lshl_or_b32 v8, v9, 1, v8')
    A('v_xor_b32 v8, s3, v8\nv_lshlrev_b32 v8, 5, v8\nv_lshl_add_u32 v8, v7, 7, v8')
    A('v_and_b32 v9, 3, v2\nv_lshl_add_u32 v8, v9, 3, v8')
    A('v_mul_u32_u24 v9, 3072, v4\nv_add_u32 v8, v8, v9')
    for s in range(4): A(f'v_add_u32 v{AW+s}, {s*A1_SLOT+12288}, v8')
    A('v_lshlrev_b32 v7, 2, v4\nv_sub_u32 v7, v3, v7')
    A('v_mov_b32 v9, 0xf149f2ca')
    A('v_mov_b32 v10, 0xffff\nv_mov_b32 v11, 0xffff0000')
    for i in range(4):
        A(f'v_subrev_u32 v8, {i}, v7')
        A(f'v_cmp_le_u32 vcc, 8, v8\ns_nop 1\nv_cndmask_b32 v{MD+i}, 0, v9, vcc')
        A(f'v_cmp_lt_i32 vcc, -9, v8\ns_nop 1\nv_cndmask_b32 v{MP+i}, 0, v9, vcc')
        A(f'v_cmp_le_i32 vcc, 0, v8\ns_nop 1\nv_cndmask_b32 v{12+i}, 0, v{10+(i&1)}, vcc')
    A(f'v_or_b32 v{BD}, v12, v13\nv_or_b32 v{BD+1}, v14, v15')
    A(f'v_mov_b32 v{ONES}, 0x3f803f80\nv_mov_b32 v{ONES+1}, 0x3f803f80')
    A('s_lshl_b32 s6, s29, 2\ns_add_u32 s6, s6, s3\ns_lshl_b32 s6, s6, 9')
    A(f's_mul_i32 s7, s59, {6*16384}\ns_add_u32 s60, s6, s7\ns_add_u32 s61, s60, 0x8000\ns_add_u32 s62, s60, 0x10000')
    A('v_and_b32 v7, 1, v4\nv_lshlrev_b32 v7, 14, v7\nv_lshrrev_b32 v8, 1, v4\nv_lshl_add_u32 v7, v8, 8, v7')
    A(f'v_lshl_add_u32 v{ST}, v3, 4, v7')
    PKS = 24
    A('s_mov_b32 s34, 0x3eb8aa3b\ns_mov_b32 s24, s34\ns_mov_b32 s25, s34')
    def reads(ks):
        c, h = divmod(ks, 2); s = c % 4; f = FR + 36 * (ks & 1); R = []
        def w(seg): return [f'ds_read_b64_tr_b16 {vr(f+24+4*seg+2*u,2)}, v{AW+s} offset:{h*12288+seg*1024+u*512}' for u in range(2)]
        R += w(0)
        R += [f'ds_read_b128 {vr(f+4*t,4)}, v{AX+2*s+h} offset:{t*2048}' for t in range(6)]
        R += w(1) + w(2)
        return R
    def mfmas(ks):
        f = FR + 36 * (ks & 1); M = []
        for seg in range(3):
            for t in range(6):
                d = ACC + 24 * seg + 4 * t; c = d if ks else None
                if seg < 2: M.append(lambda d=d, a=f+24+4*seg, b=f+4*t, c=c: mfma32(A, d, a, b, c))
                else:       M.append(lambda d=d, a=f+4*t, b=f+24+4*seg, c=c: mfma32(A, d, a, b, c))
        return M
    A('s_setprio 2\ns_barrier')
    stamp(A, cfg, 1)
    for r in reads(0): A(r)
    for ks in range(16):
        A('s_waitcnt lgkmcnt(0)')
        M = mfmas(ks)
        if ks == 15: interleave(A, M[:12], []); defer += M[12:]
        elif ks & 1:
            pre = cfg.pre
            for m in M[:pre]: m()
            A('s_barrier')
            interleave(A, M[pre:], reads(ks + 1), per_gap=2 if pre > 2 else 1)
        else:
            R = reads(ks + 1)
            if ks == 14: defer = M[12:]; M = M[:12]
            if ks == cfg.goks: R.append('s_waitcnt vmcnt(0)')
            if ks == cfg.goks + 2: R.append(f's_cmp_lg_u32 s5, 0\ns_cbranch_scc1 K_A_NOGO\nbuffer_store_dword v{V1}, v{VS0}, s[20:23], s35 offen sc1\nK_A_NOGO:')
            interleave(A, M, R, per_gap=2 if ks == 14 else 1)
    stamp(A, cfg, 2)
    QP, KP, VP, SD, SP, MX, PK, PO, OO, SM, OP = 192, 204, 240, 48, 72, 96, 108, 120, 144, 168, 192
    C = [f'v_cvt_pk_bf16_f32 v{QP+i}, v{ACC+2*i}, v{ACC+2*i+1}' for i in range(24)]
    for m in defer[:2]: m()
    interleave(A, defer[2:], C, per_gap=2)
    A(f'v_mov_b32 v{VP}, 0\nv_mov_b32 v{VP+1}, 0')
    M = []
    for t in range(6):
        M.append(lambda t=t: mfma16(A, SD+4*t, KP+2*t, QP+2*t, MD))
        if t: M.append(lambda t=t: mfma16(A, SP+4*t, KP+2*t-2, QP+2*t, MP))
    V = []
    for t in range(6):
        V.append(f'v_cvt_pk_bf16_f32 v{VP+2+2*t}, v{ACC+48+4*t}, v{ACC+48+4*t+1}')
        V.append(f'v_cvt_pk_bf16_f32 v{VP+3+2*t}, v{ACC+48+4*t+2}, v{ACC+48+4*t+3}')
    interleave(A, M, V)
    for t in range(6):
        if t:
            for i in range(4): A(f'v_max_f32 v{SD+4*t+i}, v{SD+4*t+i}, v{SP+4*t+i}')
        A(f'v_max3_f32 v{MX+t}, v{SD+4*t}, v{SD+4*t+1}, v{SD+4*t+2}')
        A(f'v_max_f32 v{MX+t}, v{MX+t}, v{SD+4*t+3}')
    A('s_nop 1')
    for u in range(3): A(f'v_permlane32_swap_b32 v{MX+2*u}, v{MX+2*u+1}')
    for u in range(3): A(f'v_max_f32 v{MX+2*u}, v{MX+2*u}, v{MX+2*u+1}')
    for u in range(3): A(f'v_mov_b32 v{MX+2*u+1}, v{MX+2*u}')
    A('s_nop 0')
    for u in range(3): A(f'v_permlane16_swap_b32 v{MX+2*u}, v{MX+2*u+1}')
    for u in range(3): A(f'v_max_f32 v{MX+2*u}, v{MX+2*u}, v{MX+2*u+1}')
    for u in range(3): A(f'v_mul_f32 v{MX+2*u}, s34, v{MX+2*u}')
    for u in range(3): A(f'v_mov_b32 v{MX+2*u+1}, v{MX+2*u}')
    A('s_nop 0')
    for u in range(3): A(f'v_permlane32_swap_b32 v{MX+2*u}, v{MX+2*u+1}')
    for t in range(6):
        if cfg.pk:
            for i in (0, 2): A(f'v_pk_fma_f32 {vr(SD+4*t+i,2)}, {vr(SD+4*t+i,2)}, s[{PKS}:{PKS+1}], {vr(MX+(t&~1),2)} op_sel:[0,0,{t&1}] op_sel_hi:[1,1,{t&1}] neg_lo:[0,0,1] neg_hi:[0,0,1]')
        else:
            for i in range(4): A(f'v_fma_f32 v{SD+4*t+i}, v{SD+4*t+i}, s34, -v{MX+t}')
    for t in range(6):
        for i in range(4): A(f'v_exp_f32 v{SD+4*t+i}, v{SD+4*t+i}')
    for t in range(6):
        cvt(A, PK+2*t, SD+4*t, SD+4*t+1); cvt(A, PK+2*t+1, SD+4*t+2, SD+4*t+3)
    for t in range(6):
        A(f'v_and_b32 v{PO+4*t+2}, v{PK+2*t}, v{BD}\nv_and_b32 v{PO+4*t+3}, v{PK+2*t+1}, v{BD+1}')
        A(f'v_xor_b32 v{PO+4*t}, v{PK+2*t}, v{PO+4*t+2}\nv_xor_b32 v{PO+4*t+1}, v{PK+2*t+1}, v{PO+4*t+3}')
        mfma16(A, SM+4*t, ONES, PK+2*t, None)
    A('s_nop 0')
    for t in range(6): mfma32(A, OO+4*t, VP+2*t, PO+4*t, None)
    A('s_nop 1')
    for t in range(6): A(f'v_rcp_f32 v{MX+t}, v{SM+4*t}')
    A('s_nop 1')
    for u in range(3):
        for t in (2*u, 2*u+1):
            if cfg.pk:
                for i in (0, 2): A(f'v_pk_mul_f32 {vr(OO+4*t+i,2)}, {vr(OO+4*t+i,2)}, {vr(MX+(t&~1),2)} op_sel:[0,{t&1}] op_sel_hi:[1,{t&1}]')
            else:
                for i in range(4): A(f'v_mul_f32 v{OO+4*t+i}, v{OO+4*t+i}, v{MX+t}')
        for t in (2*u, 2*u+1):
            cvt(A, OP+2*t, OO+4*t, OO+4*t+1); cvt(A, OP+2*t+1, OO+4*t+2, OO+4*t+3)
        A('s_nop 1')
        A(f'v_permlane16_swap_b32 v{OP+4*u}, v{OP+4*u+2}\nv_permlane16_swap_b32 v{OP+4*u+1}, v{OP+4*u+3}')
        A(f'buffer_store_dwordx4 {vr(OP+4*u,4)}, v{ST}, s[8:11], s{60+u} offen')
    stamp(A, cfg, 3)
    A('s_waitcnt vmcnt(0)')
    stamp(A, cfg, 4)
    A(f'v_mov_b32 v7, {LDS_WORD}\ns_mov_b64 exec, 1\nds_add_rtn_u32 v8, v7, v{V1} offset:12\nds_read_b32 v9, v7 offset:24\nv_mov_b32 v10, 0\ns_waitcnt lgkmcnt(0)')
    A('v_cmp_ne_u32 vcc, 3, v8\ns_cmp_lg_u64 vcc, 0\ns_cbranch_scc1 K_A_NOSIG')
    A('K_A_CW:\nv_cmp_eq_u32 vcc, 1, v9\ns_cmp_lg_u64 vcc, 0\ns_cbranch_scc1 K_A_SIG\nds_read_b32 v9, v7 offset:24\ns_waitcnt lgkmcnt(0)\ns_branch K_A_CW')
    A(f'K_A_SIG:\nbuffer_store_dword v{VX}, v10, s[16:19], s58 offen')
    A('K_A_NOSIG:\ns_mov_b64 exec, -1\ns_setprio 0')
    stamp(A, cfg, 5)
    A(f'v_mov_b32 v7, {LDS_WORD}\ns_barrier\nds_read_b32 v8, v7\ns_waitcnt lgkmcnt(0)\nv_readfirstlane_b32 s6, v8\ns_cmp_eq_u32 s6, 0\ns_cbranch_scc1 ' + ('K_A_CLEAN' if cfg.clean else 'K_A_CDONE'))
    for u in range(3): A(f'buffer_store_dwordx4 {vr(OP+4*u,4)}, v{ST}, s[8:11], s{60+u} offen sc1')
    A(f'v_cmp_eq_u32 vcc, 0, v2\ns_and_saveexec_b64 s[6:7], vcc\ns_waitcnt vmcnt(0)\nds_add_rtn_u32 v8, v7, v{V1} offset:4\ns_waitcnt lgkmcnt(0)')
    A(f'v_readfirstlane_b32 s28, v8\ns_cmp_lg_u32 s28, 3\ns_cbranch_scc1 K_A_CDONE')
    A(f's_add_u32 s58, s58, {GFLAG}\nv_mov_b32 v7, 0\nbuffer_store_dword v{V1}, v7, s[16:19], s58 offen sc1')
    if cfg.clean:
        A('s_branch K_A_CDONE\nK_A_CLEAN:')
        for u in range(3): A(f'buffer_store_dwordx4 {vr(OP+4*u,4)}, v{ST}, s[8:11], s{60+u} offen sc1')
    A('K_A_CDONE:')
    A('s_mov_b64 exec, -1')
    stamp_store(A, cfg, 7)
    A('s_endpgm')

def bstamp(A, cfg, slot, mode):
    if cfg.bst == mode: stamp(A, cfg, slot)

def b_all(A, cfg):
    G, F, M = 32, 38, 44
    X1, MAT, PITCH = 65536, 98304, 272
    A('s_and_b32 s5, s5, 7')
    A('s_lshl_b32 s29, s4, 2\ns_lshr_b32 s6, s5, 1\ns_add_u32 s29, s29, s6')
    A('v_lshlrev_b32 v36, 4, v2\ns_lshr_b32 s32, s3, 1\ns_and_b32 s33, s3, 1\ns_lshl_b32 s35, s3, 13')
    A('v_mov_b32 v14, 0\nv_mov_b32 v15, 1\nv_lshlrev_b32 v16, 7, v2')
    def early(tag=''):
        A('s_and_b32 s30, s5, 1\ns_lshl_b32 s30, s30, 2\ns_add_u32 s58, s30, s32')
        A('s_sub_u32 s6, 16, s4\ns_cmp_eq_u32 s4, 0\ns_cselect_b32 s6, 8, s6\ns_bitcmp1_b32 s5, 2\ns_cselect_b32 s31, s6, s4')
        A('v_lshrrev_b32 v7, 2, v2\nv_and_b32 v8, 3, v2\nv_lshlrev_b32 v7, 6, v7\nv_lshl_add_u32 v7, v8, 4, v7\nv_add_u32 v17, s35, v7')
        A('v_bfe_u32 v7, v2, 3, 1\nv_lshl_add_u32 v7, v7, 2, v4\nv_xor_b32 v7, v7, v6\nv_lshlrev_b32 v7, 4, v7\nv_lshl_add_u32 v18, v6, 12, v7')
        A(f's_lshl_b32 s6, s3, 9\ns_add_u32 s6, s6, {X1}\nv_add_u32 v18, s6, v18')
        A(f'v_lshlrev_b32 v7, 6, v3\nv_lshl_add_u32 v7, v4, 4, v7\ns_lshl_b32 s6, s32, 5\nv_xor_b32 v7, s6, v7\ns_lshl_b32 s6, s32, 13\ns_add_u32 s6, s6, {X1}\nv_add_u32 v19, s6, v7\nv_xor_b32 v20, 16, v19')
        A(f's_mov_b32 s6, {4*ZCLS}\nv_mul_lo_u32 v7, v4, s6\nv_lshl_add_u32 v22, v3, 4, v7')
        A(f's_mul_i32 s101, s29, {ZSIG}\ns_lshl_b32 s6, s33, 8\ns_add_u32 s101, s101, s6\ns_lshl_b32 s6, s58, 9\ns_add_u32 s101, s101, s6')
        A('s_lshl_b32 s6, s30, 1\nv_add_u32 v9, s6, v6')
        A('v_cmp_eq_u32 vcc, 1, v9\nv_mov_b32 v23, 16\nv_cvt_f32_u32 v25, v3\nv_cndmask_b32 v9, v9, v23, vcc')
        A('v_lshrrev_b32 v7, 1, v9\nv_and_b32 v8, 1, v9\nv_cvt_f32_u32 v7, v7\nv_cvt_f32_u32 v8, v8\nv_cvt_f32_u32 v9, v4')
        A('v_mul_f32 v7, 0x3d800000, v7\nv_mul_f32 v25, 0x3d800000, v25\nv_mul_f32 v9, 4.0, v9\nv_mul_f32 v24, 0x3e800000, v8\nv_fmac_f32 v24, v7, v9\nv_mul_f32 v23, v25, v9')
        for i in range(4):
            A(f'v_cos_f32 v{96+i}, v24\nv_cos_f32 v{100+i}, v23\nv_sin_f32 v{104+i}, v23')
            if i < 3: A('v_add_f32 v24, v24, v7\nv_add_f32 v23, v23, v25')
        A('v_cmp_lt_u32 vcc, 7, v3')
        cvt(A, 24, 96, 97); cvt(A, 25, 98, 99)
        A(f'v_cndmask_b32 v{G}, v24, v14, vcc\nv_cndmask_b32 v{G+1}, v25, v14, vcc\nv_cndmask_b32 v{G+2}, v14, v24, vcc\nv_cndmask_b32 v{G+3}, v14, v25, vcc')
        for q in range(4): cvt(A, F+q, 100+2*q, 101+2*q)
        A(f'v_xor_b32 v{F+4}, 0x80008000, v{F}\nv_xor_b32 v{F+5}, 0x80008000, v{F+1}')
        def gen_m(dst, extra):
            A(f's_lshl_b32 s6, s33, 8\ns_add_u32 s6, s6, s58\ns_add_u32 s6, s6, {extra}\nv_lshl_add_u32 v7, v3, 4, s6\nv_cvt_f32_u32 v7, v7\nv_mul_f32 v7, 0xbb000000, v7')
            A('v_lshlrev_b32 v8, 3, v4\nv_cvt_f32_u32 v8, v8\nv_mul_f32 v8, v7, v8')
            for i in range(8):
                A(f'v_cos_f32 v{96+i}, v8\nv_sin_f32 v{104+i}, v8')
                if i < 7: A('v_add_f32 v8, v8, v7')
            A('s_nop 0')
            for q in range(8): cvt(A, dst+q, 96+2*q, 97+2*q)
        gen_m(M, 0)
        for i in range(4): A(f'v_xor_b32 v{M+8+i}, 0x80008000, v{M+4+i}')
        A('s_cmp_lg_u32 s58, 0\ns_cbranch_scc1 K_B_NOM8' + tag)
        gen_m(M + 8, 8)
        A('K_B_NOM8' + tag + ':')
    def gen_init():
        A('s_lshl_b32 s6, s3, 8\ns_add_u32 s6, s6, s31\nv_lshl_add_u32 v7, v3, 4, s6\nv_cvt_f32_u32 v7, v7\nv_mul_f32 v241, 0xba000000, v7\nv_add_f32 v240, 0.5, v241')
        A('s_and_b32 s6, s5, 4\ns_lshl_b32 s6, s6, 4\nv_lshl_add_u32 v8, v4, 2, s6\nv_cvt_f32_u32 v242, v8')
        A(f's_lshl_b32 s6, s3, 13\ns_add_u32 s6, s6, {MAT - 32768}\nv_add_u32 v243, s6, v36')
    def gen_mat(label, n):
        if n == 0: return
        A(f's_mov_b32 s7, 0\ns_mov_b32 s6, 0x43000000\n{label}:')
        for half in range(2):
            b = 96 + 8 * half
            A(f'v_mul_f32 v9, v{240+half}, v242')
            for i in range(4):
                A(f'v_cos_f32 v{b+i}, v9\nv_sin_f32 v{b+4+i}, v9' + (f'\nv_add_f32 v9, v9, v{240+half}' if i < 3 else ''))
        A('v_add_f32 v242, 0x41800000, v242')
        for half in range(2):
            for q in range(4): cvt(A, 112+4*half+q, 96+8*half+2*q, 97+8*half+2*q)
            A(f'ds_write_b128 v243, {vr(112+4*half,4)} offset:{half*32768}')
        A(f'v_cmp_le_f32 vcc, s6, v242\nv_add_u32 v243, 1024, v243\nv_subrev_f32 v9, s6, v242\ns_add_u32 s7, s7, 1\nv_cndmask_b32 v242, v242, v9, vcc\ns_cmp_lt_u32 s7, {n}\ns_cbranch_scc1 {label}')
    A('s_cmp_ge_u32 s3, 4\ns_cbranch_scc1 K_B_GEN')
    A('s_and_b32 s97, s5, 1\ns_lshl_b32 s97, s97, 2\ns_add_u32 s97, s97, s3')
    A('s_lshl_b32 s6, s29, 2\ns_lshr_b32 s7, s97, 1\ns_add_u32 s6, s6, s7\ns_lshl_b32 s7, s33, 10\ns_add_u32 s6, s6, s7\ns_lshl_b32 s34, s6, 10\ns_lshl_b32 s97, s97, 13')
    if cfg.cpf == 1:
        A(f's_getpc_b64 s[8:9]\nK_B_PC:\ns_sub_u32 s8, s8, K_B_PC-{NAME}_kernel\ns_subb_u32 s9, s9, 0\ns_mov_b32 s10, K_END-{NAME}_kernel\ns_mov_b32 s11, 0x20000')
        A('s_lshl_b32 s6, s3, 3\ns_add_u32 s6, s6, s5\ns_lshl_b32 s6, s6, 10\nbuffer_load_dwordx4 v[244:247], v36, s[8:11], s6 offen')
    if cfg.help:
        A('s_lshl_b32 s6, s5, 2\ns_add_u32 s6, s6, s3\ns_mul_i32 s28, s6, 9')
        A('s_lshl_b32 s100, s4, 5\ns_add_u32 s100, s100, s6\ns_mul_i32 s100, s100, 768')
    A('s_mov_b32 s7, 0\ns_waitcnt lgkmcnt(0)')
    srd(A, 20, P_BX, 0x200000)
    stamp(A, cfg, 1)
    if cfg.help:
        srd(A, 8, P_AX, 0x200000); srd(A, 12, P_WQKV, 0x180000)
        A('v_cmp_gt_u32 vcc, 48, v2\nv_mov_b32 v10, 0x80000000\ns_mul_i32 s59, s4, 3\nv_cndmask_b32 v10, v10, v36, vcc')
        for n in range(9):
            A(f's_add_u32 s6, s28, {n}\ns_mul_i32 s58, s6, 683\ns_lshr_b32 s58, s58, 16\ns_mul_i32 s30, s58, 96\ns_sub_u32 s6, s6, s30\ns_add_u32 s58, s58, s59')
            A('s_lshr_b32 s30, s58, 1\ns_mul_i32 s30, s30, 88\ns_add_u32 s6, s6, s30\ns_lshl_b32 s6, s6, 1\ns_and_b32 s58, s58, 1\ns_add_u32 s6, s6, s58\ns_lshl_b32 s6, s6, 10')
            A('buffer_load_dwordx4 v[244:247], v36, s[8:11], s6 offen')
            if cfg.help > 1 and 1 <= n <= 7: A(f's_add_u32 s6, s100, {n*196608}\nbuffer_load_dwordx4 v[244:247], v10, s[12:15], s6 offen')
    def c3b():
        srd(A, 12, P_WQKV, 0x180000)
        A(f's_lshl_b32 s6, s5, 2\ns_add_u32 s6, s6, s3\ns_lshl_b32 s6, s6, 13\ns_mul_i32 s28, s4, {cfg.rotx}\ns_and_b32 s28, s28, 7\ns_mul_i32 s28, s28, 196608\ns_add_u32 s6, s6, s28')
        A('v_lshlrev_b32 v10, 10, v5\nv_lshl_add_u32 v10, v6, 4, v10')
        for m in range(cfg.c3n):
            A('s_sub_u32 s28, s6, 0x180000\ns_cselect_b32 s6, s6, s28')
            A('buffer_load_dwordx4 v[244:247], v10, s[12:15], s6 offen offset:384\ns_add_u32 s6, s6, 0x40000')
    if cfg.c3b == 1: c3b()
    A('K_B_XL:')
    for n in range(8):
        A(f's_add_u32 m0, s97, {n*1024}\ns_add_u32 s6, s34, {n*131072}')
        A('buffer_load_dwordx4 v36, s[20:23], s6 offen lds')
    A('s_xor_b32 s34, s34, 2048\ns_xor_b32 s97, s97, 0x8000\ns_xor_b32 s7, s7, 1\ns_cbranch_scc1 K_B_XL')
    late = 0
    if cfg.c3b == 2: c3b(); late += cfg.c3n
    if cfg.womall:
        srd(A, 12, P_WO, 0x80000)
        A('s_lshl_b32 s28, s4, 3\ns_add_u32 s28, s28, s5\ns_lshl_b32 s28, s28, 2\ns_add_u32 s28, s28, s3\ns_lshl_b32 s28, s28, 11')
        A('buffer_load_dwordx4 v[244:247], v36, s[12:15], s28 offen\nbuffer_load_dwordx4 v[244:247], v36, s[12:15], s28 offen offset:1024'); late += 2
    A('K_B_GEN:')
    early()
    A(f's_waitcnt vmcnt({late})\ns_cmp_lt_u32 s3, 4\ns_cbranch_scc1 K_B_XOK')
    gen_init(); gen_mat('K_B_GL1', cfg.gsplit)
    stamp(A, cfg, 1)
    A('K_B_XOK:')
    A('s_waitcnt lgkmcnt(0)')
    srd_off(A, 8, P_WS, WS_Z, Z_SIZE); srd(A, 12, P_OUT, 0x400000); srd_off(A, 60, P_WS, WS_FLAG, FLAG_SIZE); srd(A, 16, P_DBG, 256); srd(A, 20, P_WO, 0x80000)
    A('s_lshl_b32 s28, s5, 3\ns_add_u32 s28, s28, s3\ns_lshl_b32 s28, s28, 13\ns_add_u32 s97, s28, 4096')
    def wopf(r):
        if cfg.wopf:
            for n in range(4): A(f'buffer_load_dwordx4 v[244:247], v36, s[20:23], s{r} offen offset:{n*1024}')
    A('s_barrier')
    stamp(A, cfg, 2)
    DA, DD = 64, 96
    for p in range(4):
        for h in range(2):
            for rb in range(2): A(f'ds_read_b64_tr_b16 {vr(DA+8*p+4*h+2*rb,2)}, v17 offset:{(2*p+rb)*1024+h*8}')
    wopf(28)
    if cfg.pwb:
        srd_off(A, 24, P_WS, WS_O, O_SIZE)
        A(f's_lshl_b32 s6, s4, 3\ns_add_u32 s6, s6, s5\ns_lshl_b32 s6, s6, 3\ns_add_u32 s6, s6, s3\ns_mul_i32 s6, s6, {36*128}\ns_mov_b32 exec_hi, 15')
        A('buffer_load_dword v244, v16, s[24:27], s6 offen sc1\ns_mov_b64 exec, -1')
    for i in range(8):
        A(f's_waitcnt lgkmcnt({14 - 2*i})')
        mfma32(A, DD+4*i, DA+4*i, G, None)
    bstamp(A, cfg, 3, 1)
    for p in range(4):
        for q in range(4): cvt(A, DA+4*p+q, DD+8*p+2*q, DD+8*p+2*q+1)
        A(f'ds_write_b128 v18, {vr(DA+4*p,4)} offset:{p*128}')
    A('s_waitcnt lgkmcnt(0)')
    bstamp(A, cfg, 4, 1)
    A('s_barrier')
    bstamp(A, cfg, 5, 1)
    XF, U, BO, Z, PK = 64, 96, 160, 192, 224
    for h in range(2):
        for sp in range(4): A(f'ds_read_b128 {vr(XF+16*h+4*sp,4)}, v{19+h} offset:{h*4096+sp*1024}')
    wopf(97)
    def stage_c(u, bo, off):
        for sp in range(4):
            for q in range(4): cvt(A, bo+4*sp+q, u+8*sp+2*q, u+8*sp+2*q+1)
        A('s_nop 1')
        for part in range(2):
            for sp in range(4): mfma32(A, Z+16*part+4*sp, F+2*part, bo+4*sp, None)
        A('s_nop 3')
        for part in range(2):
            for i in range(4):
                for q in range(2): cvt(A, PK+4*i+2*part+q, Z+16*part+8*q+i, Z+16*part+8*q+4+i)
                if part: A(f's_add_u32 s7, s101, {i*ZCLS + off}\nbuffer_store_dwordx4 {vr(PK+4*i,4)}, v22, s[8:11], s7 offen sc1')
    A('s_cmp_eq_u32 s58, 0\ns_cbranch_scc1 K_B_W0')
    A('s_waitcnt lgkmcnt(4)')
    for sp in range(4):
        mfma32(A, U+8*sp, XF+4*sp, M, None); mfma32(A, U+8*sp+4, XF+4*sp, M+4, None)
    A('s_waitcnt lgkmcnt(0)')
    for sp in range(4):
        mfma32(A, U+8*sp, XF+16+4*sp, M+8, U+8*sp); mfma32(A, U+8*sp+4, XF+16+4*sp, M, U+8*sp+4)
    A('s_nop 1')
    stage_c(U, BO, 0)
    A('s_branch K_B_SIG')
    A('K_B_W0:')
    A('s_waitcnt lgkmcnt(0)')
    for h in range(2):
        for sp in range(4):
            mfma32(A, U+32*h+8*sp, XF+16*h+4*sp, M+8*h, None); mfma32(A, U+32*h+8*sp+4, XF+16*h+4*sp, M+8*h+4, None)
    stage_c(U, BO, 0)
    stage_c(U+32, BO+16, 8*512)
    A('K_B_SIG:')
    bstamp(A, cfg, 6, 1)
    bstamp(A, cfg, 3, 0)
    AM, SW, ZF, MF, ACC, T = 24, 40, 48, 112, 160, 224
    A('s_and_b32 s30, s5, 3')
    A(f'v_mul_u32_u24 v7, {PITCH}, v4\nv_lshl_add_u32 v12, v3, 4, v7\nv_lshlrev_b32 v7, 15, v4\nv_lshl_add_u32 v13, v3, 4, v7')
    A('s_lshl_b32 s6, s31, 11\ns_lshl_b32 s7, s30, 8\ns_add_u32 s6, s6, s7\ns_add_u32 s34, s6, 1024')
    A('s_cmp_ge_u32 s3, 4\ns_cbranch_scc1 K_B_AUX')
    A(f'v_lshrrev_b32 v8, 1, v4\nv_and_b32 v9, 1, v4\nv_add_u32 v{AM}, {MAT}, v36')
    A('s_sub_u32 s6, 16, s31\ns_and_b32 s6, s6, 15\ns_lshl_b32 s7, s3, 2\ns_sub_u32 s28, 13, s7\ns_sub_u32 s35, 3, s30')
    A('s_cmp_ge_u32 s3, 2\ns_cselect_b32 s6, s6, s31\ns_cselect_b32 s7, s28, s7\ns_cselect_b32 s35, s35, s30\ns_cselect_b32 s58, 0x80008000, 0\ns_cselect_b32 s28, 3, 0\ns_cselect_b32 s29, 7, 0')
    A(f's_mul_i32 s6, s6, {ZCLS}\ns_lshl_b32 s7, s7, 9\ns_add_u32 s6, s6, s7\ns_lshl_b32 s35, s35, 7\ns_add_u32 s35, s35, s6')
    A(f'v_mul_u32_u24 v7, {ZSIG}, v4\nv_lshl_add_u32 v7, v6, 4, v7\nv_bfe_u32 v10, v2, 3, 1\nv_lshlrev_b32 v10, 1, v10\nv_xor_b32 v10, s28, v10\nv_xor_b32 v11, 1, v10')
    A('v_lshl_add_u32 v10, v10, 9, v7\nv_lshl_add_u32 v11, v11, 9, v7')
    A(f'v_mul_u32_u24 v7, {PITCH}, v3\nv_lshl_add_u32 v7, v8, 2, v7\ns_lshl_b32 s6, s3, 3\nv_add_u32 v7, s6, v7\nv_lshlrev_b32 v9, 2, v9\nv_xor_b32 v9, s29, v9')
    for i in range(4): A(f'v_xor_b32 v8, {i}, v9\nv_lshl_add_u32 v{SW+i}, v8, 5, v7')
    def reads(st):
        hf, k = divmod(st, 8); f = MF + 16 * (st % 3)
        return [f'ds_read_b128 {vr(f+4*tt,4)}, v{AM} offset:{(4*hf+tt)*8192 + k*1024}' for tt in range(4)] if st < 16 else []
    A('v_mov_b32 v20, v10\nv_mov_b32 v21, v11\ns_mov_b32 s100, s35')
    A(f's_and_b32 s6, s5, 4\ns_mul_i32 s6, s6, {4*ZSIG}\ns_add_u32 s35, s100, s6\ns_sub_u32 s100, s100, s6')
    A('s_cmp_lg_u32 s3, 2\ns_cbranch_scc1 K_B_RDY_X\nv_lshlrev_b32 v7, 2, v6')
    poll(A, 'K_B_RDY', 9, 7, 16, 0, 1)
    A('s_waitcnt vmcnt(0)')
    bstamp(A, cfg, 4, 0)
    A('s_barrier')
    A('s_cmp_lg_u32 s3, 3\ns_cbranch_scc1 K_B_POLL_X')
    if cfg.batom:
        R = cfg.batom
        A(f's_mov_b32 s6, {BFLAG}\ns_mov_b64 exec, {(1 << R) - 1}\nbuffer_atomic_add v15, v16, s[60:63], s6 offen\ns_mov_b64 exec, -1')
        A(f's_and_b32 s7, s4, {R-1}\ns_lshl_b32 s7, s7, 7\ns_add_u32 s7, s7, s6')
        poll(A, 'K_B_POLL', 9, 14, 60, 's7', 64)
    else:
        A(f's_lshl_b32 s6, s4, 3\ns_add_u32 s6, s6, s5\ns_lshl_b32 s6, s6, 7\ns_add_u32 s6, s6, {BFLAG}\ns_mov_b32 s7, {BFLAG}')
        A('v_cmp_eq_u32 vcc, 0, v2\ns_and_saveexec_b64 s[98:99], vcc\nbuffer_store_dword v15, v14, s[60:63], s6 offen sc1\ns_mov_b64 exec, s[98:99]')
        poll(A, 'K_B_POLL', 9, 16, 60, 's7', 1)
    A('s_barrier')
    bstamp(A, cfg, 5, 0)
    for k in range(8):
        A(f's_add_u32 s7, s{35 if k < 4 else 100}, {k*4*ZSIG}')
        for a in range(2): A(f'buffer_load_dwordx4 {vr(ZF+8*k+4*a,4)}, v{20+a}, s[8:11], s7 offen sc1')
        if k == 1:
            for r in reads(0) + reads(1): A(r)
    def stage_out(hf):
        return [f'v_cvt_pk_bf16_f32 v{T+4*tt+i}, v{ACC+32*hf+8*tt+i}, v{ACC+32*hf+8*tt+4+i}\nds_write_b32 v{SW+i}, v{T+4*tt+i} offset:{(4*hf+tt)*16*PITCH}' for tt in range(4) for i in range(4)]
    so = stage_out(0)
    nw = lambda st: 4 if 9 <= st <= 12 else 0
    for st in range(16):
        hf, k = divmod(st, 8); f = MF + 16 * (st % 3)
        if hf == 0:
            A(f's_waitcnt vmcnt({14-2*k})')
            for a in range(2): A(f'v_xor_b32 v{ZF+8*k+4*a+2}, s58, v{ZF+8*k+4*a+2}\nv_xor_b32 v{ZF+8*k+4*a+3}, s58, v{ZF+8*k+4*a+3}')
        if st == 14: A('s_waitcnt lgkmcnt(4)\ns_barrier')
        else: A(f's_waitcnt lgkmcnt({nw(st-2) + len(reads(st+1)) + nw(st-1)})')
        Mx = [lambda d=ACC+32*hf+8*tt+4*a, x=ZF+8*k+4*a, b=f+4*tt, z=k: mfma32(A, d, x, b, d if z else None) for a in range(2) for tt in range(4)]
        R = reads(st + 2)
        if nw(st): R += so[4*(st-9):4*(st-8)]
        interleave(A, Mx, R)
    bstamp(A, cfg, 6, 0)
    A('s_nop 4')
    for x in stage_out(1): A(x)
    A('s_waitcnt lgkmcnt(0)\ns_branch K_B_FIN')
    A('K_B_AUX:')
    A('s_waitcnt vmcnt(0)')
    bstamp(A, cfg, 4, 0)
    A('s_barrier')
    gen_mat('K_B_GL2', 8 - cfg.gsplit)
    A('s_waitcnt lgkmcnt(0)\ns_barrier')
    bstamp(A, cfg, 5, 0)
    A(f's_sub_u32 s6, s3, 4\ns_mul_i32 s7, s6, {16*PITCH}\nv_add_u32 v7, s7, v12\ns_lshl_b32 s6, s6, 19\ns_add_u32 s6, s6, s34')
    A('s_barrier')
    for n in range(4): A(f'ds_read_b128 {vr(64+4*n,4)}, v7 offset:{n*4*PITCH}')
    for n in range(4):
        A(f's_add_u32 s7, s6, {(4*n) << 15}\ns_waitcnt lgkmcnt({3-n})')
        A(f'buffer_store_dwordx4 {vr(64+4*n,4)}, v13, s[12:15], s7 offen{cfg.outflagb}')
    bstamp(A, cfg, 6, 0)
    A('K_B_FIN:')
    A(f's_mul_i32 s7, s3, {8*PITCH}\nv_add_u32 v7, s7, v12\ns_lshl_b32 s6, s3, 18\ns_add_u32 s6, s6, s34')
    A('s_barrier')
    for n in range(2): A(f'ds_read_b128 {vr(80+4*n,4)}, v7 offset:{(64+4*n)*PITCH}')
    for n in range(2):
        A(f's_add_u32 s7, s6, {(64+4*n) << 15}\ns_waitcnt lgkmcnt({1-n})')
        A(f'buffer_store_dwordx4 {vr(80+4*n,4)}, v13, s[12:15], s7 offen{cfg.outflagb}')
    stamp_store(A, cfg, 8)
    A('s_endpgm')

def main():
    ap = argparse.ArgumentParser()
    ap.add_argument('-o', default=f'cdna_kernels/{NAME}.s')
    ap.add_argument('--diag', action='store_true')
    ap.add_argument('--xa', default='3,8,9,10,10,10,10,6')
    ap.add_argument('--pre', type=int, default=4); ap.add_argument('--opre', type=int, default=9)
    ap.add_argument('--outflag', default='sc1'); ap.add_argument('--outflagb', default='sc1')
    ap.add_argument('--rot', type=int, default=1); ap.add_argument('--rotx', type=int, default=1); ap.add_argument('--q3', type=int, default=1)
    ap.add_argument('--help_', dest='help', type=int, default=0); ap.add_argument('--help0', type=int, default=1)
    ap.add_argument('--hbar', type=int, default=1)
    ap.add_argument('--cpf', type=int, default=2)
    ap.add_argument('--swap', type=int, default=1); ap.add_argument('--hsplit', type=int, default=4)
    ap.add_argument('--gsplit', type=int, default=3); ap.add_argument('--goks', type=int, default=2)
    ap.add_argument('--xpf', type=int, default=1); ap.add_argument('--xprio', type=int, default=0)
    ap.add_argument('--c3', type=int, default=0)
    ap.add_argument('--chk', type=int, default=12)
    ap.add_argument('--cgx', type=int, default=1); ap.add_argument('--wopf', type=int, default=0)
    ap.add_argument('--batom', type=int, default=0)
    ap.add_argument('--clean', type=int, default=0); ap.add_argument('--b9', type=int, default=14)
    ap.add_argument('--chk2', type=int, default=10)
    ap.add_argument('--pk', type=int, default=1)
    ap.add_argument('--c3b', type=int, default=2); ap.add_argument('--c3n', type=int, default=6)
    ap.add_argument('--womall', type=int, default=1); ap.add_argument('--pwb', type=int, default=0)
    ap.add_argument('--gon', type=int, default=8)
    ap.add_argument('--bst', type=int, default=0)
    ap.add_argument('--warmat', type=int, default=7); ap.add_argument('--n1', type=int, default=60)
    cfg = ap.parse_args()
    cfg.xa = [int(x) for x in cfg.xa.split(',')]
    if cfg.outflag: cfg.outflag = ' ' + cfg.outflag.replace('+', ' ')
    if cfg.outflagb: cfg.outflagb = ' ' + cfg.outflagb.replace('+', ' ')
    A = Asm()
    A(f'; @launch grid=(256,1,1) block=(512,1,1) lds={LDS_TOTAL}')
    A('.amdgcn_target "amdgcn-amd-amdhsa--gfx950"\n.text')
    kernel(A, cfg)
    A(f""".section .rodata,"a"
.p2align 6
.amdhsa_kernel {NAME}_kernel
.amdhsa_next_free_vgpr 256
.amdhsa_next_free_sgpr 102
.amdhsa_accum_offset 256
.amdhsa_group_segment_fixed_size 0
.amdhsa_kernarg_size 88
.amdhsa_user_sgpr_count 2
.amdhsa_user_sgpr_kernarg_segment_ptr 1
.amdhsa_system_sgpr_workgroup_id_x 1
.end_amdhsa_kernel""")
    open(cfg.o, 'w').write(A.text())
main()
```

```python
import sys, argparse
NAME = 'concat_heads__sliding_local_dilated__spectral_fnet__prompt'

class Asm:
    def __init__(self): self.L = []
    def __call__(self, s):
        for line in s.split('\n'):
            line = line.strip()
            if line: self.L.append(line if line.endswith(':') or line.startswith('.') or line.startswith(';') else '    ' + line)
    def text(self): return '\n'.join(self.L) + '\n'

def vr(b, n): return f'v[{b}:{b+n-1}]' if n > 1 else f'v{b}'
def srd(A, d, lo, size):
    A(f's_mov_b32 s{d}, s{lo}\ns_mov_b32 s{d+1}, s{lo+1}\ns_mov_b32 s{d+2}, {size:#x}\ns_mov_b32 s{d+3}, 0x20000')
def srd_off(A, d, lo, off, size):
    A(f's_add_u32 s{d}, s{lo}, {off:#x}\ns_addc_u32 s{d+1}, s{lo+1}, 0\ns_mov_b32 s{d+2}, {size:#x}\ns_mov_b32 s{d+3}, 0x20000')
def mfma32(A, d, a, b, c): A(f'v_mfma_f32_16x16x32_bf16 {vr(d,4)}, {vr(a,4)}, {vr(b,4)}, {vr(c,4) if c is not None else 0}')
def mfma16(A, d, a, b, c): A(f'v_mfma_f32_16x16x16_bf16 {vr(d,4)}, {vr(a,2)}, {vr(b,2)}, {vr(c,4) if c is not None else 0}')
def cvt(A, d, a, b): A(f'v_cvt_pk_bf16_f32 v{d}, v{a}, v{b}')

P_AX, P_WQKV, P_WO, P_BX, P_CR, P_CI, P_DR, P_DI, P_OUT, P_DBG, P_WS = 36, 38, 40, 42, 44, 46, 48, 50, 52, 54, 56
WS_O, O_SIZE, WS_Z, Z_SIZE, WS_FLAG, FLAG_SIZE, WS_DIAG = 0, 0x240000, 0x280000, 0x240000, 0x500000, 0x10000, 0x800000
ZSIG, ZCLS = 4608, 147456
GFLAG, BFLAG = 192 * 128, 384 * 128
LDS_TOTAL, LDS_WORD = 163840, 147456
OOB = 0x80000000
SPIN = 400000
SLEEP = 0

def interleave(A, mf, other, per_gap=1, start=0):
    oi = 0
    for i, m in enumerate(mf):
        m()
        if i >= start:
            for _ in range(per_gap):
                if oi < len(other): A(other[oi]); oi += 1
    while oi < len(other): A(other[oi]); oi += 1

def stamp(A, cfg, slot):
    if cfg.diag: A(f's_memrealtime s[{64+4*slot}:{65+4*slot}]\ns_memtime s[{66+4*slot}:{67+4*slot}]')
def stamp_store(A, cfg, nslots):
    if not cfg.diag: return
    A('s_waitcnt lgkmcnt(0) vmcnt(0)')
    stamp(A, cfg, nslots - 1)
    A('s_waitcnt lgkmcnt(0)')
    srd_off(A, 24, P_WS, WS_DIAG, 0x100000)
    A(f's_lshl_b32 s4, s2, 3\ns_add_u32 s4, s4, s3\ns_lshl_b32 s4, s4, 6')
    for i in range(8): A(f'v_mov_b32 v{8+i}, s{64+4*min(i, nslots-1)}\nv_mov_b32 v{16+i}, s{66+4*min(i, nslots-1)}')
    A('v_mov_b32 v1, 0\nv_and_b32 v2, 63, v0\nv_cmp_eq_u32 vcc, 0, v2\ns_and_saveexec_b64 s[6:7], vcc')
    for i in range(4): A(f'buffer_store_dwordx4 v[{8+4*i}:{11+4*i}], v1, s[24:27], s4 offen offset:{16*i}')


def loader_loop(A, items, ends, X, after=None):
    done = 0
    for c in range(len(ends)):
        upto = min(len(items), ends[c] + X[min(c, len(X) - 1)])
        while done < upto and items[done][1] <= c:
            items[done][0](); done += 1
        assert done >= ends[c]
        A(f's_waitcnt vmcnt({done - ends[c]})')
        A('s_barrier')
    if after: after()
    while done < len(items):
        items[done][0](); done += 1

def poll(A, label, vdst, vaddr, srdn, soff, want, first=True):
    A(f's_mov_b32 s28, 0')
    A(f'{label}:')
    A(f'buffer_load_dword v{vdst}, v{vaddr}, s[{srdn}:{srdn+3}], {soff} offen sc1')
    A(f's_add_u32 s28, s28, 1\ns_cmp_ge_u32 s28, {SPIN}\ns_cbranch_scc1 {label}_X')
    A('s_waitcnt vmcnt(0)')
    A(f'v_cmp_ne_u32 vcc, {want}, v{vdst}')
    A(f's_cmp_lg_u64 vcc, 0\ns_cbranch_scc1 {label}')
    A(f'{label}_X:')

A1_SLOT = 36864

def kernel(A, cfg):
    A(f'.globl {NAME}_kernel\n.p2align 8\n.type {NAME}_kernel,@function\n{NAME}_kernel:')
    A('s_load_dwordx16 s[36:51], s[0:1], 0\ns_load_dwordx4 s[52:55], s[0:1], 64\ns_load_dwordx2 s[56:57], s[0:1], 80')
    A('s_cmp_ge_u32 s2, 256\ns_cbranch_scc1 K_END')
    stamp(A, cfg, 0)
    if cfg.cpf == 2:
        A(f's_getpc_b64 s[8:9]\nK_PC:\ns_sub_u32 s8, s8, K_PC-{NAME}_kernel\ns_subb_u32 s9, s9, 0\ns_mov_b32 s10, K_END-{NAME}_kernel\ns_mov_b32 s11, 0x20000')
        A('s_lshr_b32 s5, s2, 3\ns_lshl_b32 s5, s5, 10\nv_lshlrev_b32 v1, 4, v0\nv_cmp_gt_u32 vcc, 64, v0\ns_and_saveexec_b64 s[6:7], vcc\ns_cbranch_execz K_NOPF')
        A('buffer_load_dwordx4 v[248:251], v1, s[8:11], s5 offen\nK_NOPF:\ns_mov_b64 exec, s[6:7]')
    A('v_lshrrev_b32 v1, 6, v0\nv_and_b32 v2, 63, v0')
    A('v_readfirstlane_b32 s3, v1')
    A('s_and_b32 s4, s2, 7\ns_lshr_b32 s5, s2, 3')
    A('v_and_b32 v3, 15, v2\nv_lshrrev_b32 v4, 4, v2')
    A('v_lshrrev_b32 v5, 3, v2\nv_and_b32 v6, 7, v2')
    A('s_cmp_ge_u32 s5, 24\ns_cbranch_scc1 K_B')
    A('s_mul_i32 s7, s4, 3\ns_lshr_b32 s28, s5, 3\ns_add_u32 s59, s7, s28\ns_and_b32 s29, s5, 7')
    A('s_and_b32 s30, s59, 1\ns_lshr_b32 s31, s59, 1\ns_mul_i32 s32, s31, 88')
    if cfg.swap: A('s_xor_b32 s3, s3, 4')
    A('s_getreg_b32 s96, hwreg(HW_REG_XCC_ID, 0, 4)\ns_add_u32 s96, s96, 0x100')
    A('s_cmp_ge_u32 s3, 4\ns_cbranch_scc0 K_A_CONS')
    a_loader(A, cfg)
    A('K_A_CONS:')
    a_consumer(A, cfg)
    A('K_B:')
    b_all(A, cfg)
    A('K_END:\ns_endpgm')

def a_loader(A, cfg):
    AW, WF, OF, ACC, NB = 24, 36, 100, 200, 4
    STAGE = 2 * A1_SLOT
    A('s_mul_i32 s97, s28, 3')
    if cfg.rot == 1: A('s_mov_b32 s63, 0')
    elif cfg.rot == 2: A('s_xor_b32 s63, s28, s5\ns_and_b32 s63, s63, 1\ns_lshl_b32 s63, s63, 2')
    elif cfg.rot == 3: A('s_mov_b32 s63, s97')
    if cfg.rot == 5:
        def tri(b, g): return [b + (g + i) % 3 for i in range(3)]
        def pair(b, g): return [b + (g & 1), b + 1 - (g & 1)]
        def word(p, g):
            o = [tri(0, g) + tri(3, g) + pair(6, g), [0] + tri(1, g) + tri(4, g) + [7], pair(0, g) + tri(2, g) + tri(5, g)][p]
            return sum(c << (4 * i) for i, c in enumerate(o))
        A('s_mov_b32 s63, 0\ns_mul_i32 s6, s29, 11\ns_lshr_b32 s6, s6, 5\ns_mul_i32 s6, s6, 3\ns_sub_u32 s6, s29, s6\ns_add_u32 s6, s6, s97')
        A(f's_mov_b32 s101, {word(0, 0):#x}')
        for g in range(3):
            for p in range(3):
                if p or g: A(f's_cmp_eq_u32 s6, {p + 3*g}\ns_cselect_b32 s101, {word(p, g):#x}, s101')
        A('s_cmp_eq_u32 s29, 3\ns_cselect_b32 s101, 0x76543210, s101')
    if cfg.q3: A('s_cmp_eq_u32 s29, 3\ns_cselect_b32 s63, s97, s63')
    if cfg.rotx: A(f's_mul_i32 s62, s4, {cfg.rotx}\ns_add_u32 s63, s63, s62')
    if cfg.rot0: A(f's_add_u32 s63, s63, {cfg.rot0}')
    A('s_sub_u32 s33, s3, 4')
    A('s_mul_i32 s6, s33, 24')
    for j in range(3):
        A(f'v_add_u32 v7, s6, v5\nv_add_u32 v7, {8*j}, v7')
        A('v_lshrrev_b32 v8, 1, v7\nv_and_b32 v8, 7, v8\nv_xor_b32 v8, v8, v6\nv_lshlrev_b32 v8, 4, v8')
        A('v_add_u32 v7, s32, v7\nv_lshlrev_b32 v7, 1, v7\nv_add_u32 v7, s30, v7')
        A(f'v_lshl_add_u32 v{10+j}, v7, 10, v8')
    A('s_lshl_b32 s6, s33, 4\ns_lshl_b32 s7, s29, 7\ns_movk_i32 s28, 3072')
    for par in range(2):
        A(f'v_add_u32 v7, s6, v5\nv_add_u32 v7, {8*par}, v7')
        A('v_mul_lo_u32 v7, v7, s28\nv_add_u32 v7, s7, v7')
        A(f'v_and_b32 v8, 1, v4\nv_or_b32 v8, {2*par}, v8\nv_lshlrev_b32 v8, 1, v8\nv_xor_b32 v8, v8, v6')
        A(f'v_lshl_add_u32 v{13+par}, v8, 4, v7')
    A('s_mul_i32 s34, s33, 3072')
    A('s_mul_i32 s35, s33, 6144\ns_add_u32 s35, s35, 12288')
    A('s_waitcnt lgkmcnt(0)')
    srd(A, 8, P_AX, 0x200000); srd(A, 12, P_WQKV, 0x180000)
    stamp(A, cfg, 1)
    def issue(c, j):
        base = (c % 4) * A1_SLOT
        if j < 3:
            if j == 0 and cfg.rot == 5: A(f's_bfe_u32 s62, s101, {0x40000 + 4*c:#x}\ns_add_u32 s62, s62, s63\ns_and_b32 s62, s62, 7\ns_lshl_b32 s6, s62, 7')
            elif j == 0: A(f's_add_u32 s62, s63, {c}\ns_and_b32 s62, s62, 7\ns_lshl_b32 s6, s62, 7')
            A(f's_add_u32 m0, s34, {base + j*1024}\ns_nop 0')
            A(f'buffer_load_dwordx4 v{10+j}, s[8:11], s6 offen lds')
        else:
            par, seg = divmod(j - 3, 3)
            if j == 3: A(f's_mul_i32 s7, s62, 196608')
            if seg == 0: A(f's_add_u32 m0, s35, {base + par*3072}\ns_nop 0')
            A(f'buffer_load_dwordx4 v{13+par}, s[12:15], s7 offen offset:{seg*1024} lds')
    def late_setup():
        srd(A, 16, P_WO, 0x80000); srd_off(A, 20, P_WS, WS_O, O_SIZE)
        A('s_lshl_b32 s60, s33, 3\nv_add_u32 v7, s60, v5\ns_and_b32 s60, s33, 1\ns_lshl_b32 s60, s60, 1\ns_xor_b32 s61, s29, ' + str(cfg.cgx) + '\ns_lshl_b32 s61, s61, 7')
        A('v_and_b32 v8, 1, v4\nv_or_b32 v8, s60, v8\nv_lshlrev_b32 v8, 1, v8\nv_xor_b32 v8, v8, v6\nv_lshlrev_b32 v8, 4, v8')
        A('v_lshl_add_u32 v15, v7, 10, v8\nv_add_u32 v15, s61, v15')
        A('s_lshl_b32 s58, s33, 10')
        A(f's_mul_i32 s60, s33, 24\nv_add_u32 v7, s60, v2\nv_lshrrev_b32 v8, 4, v7\nv_lshlrev_b32 v8, 14, v8\nv_and_b32 v7, 15, v7\nv_lshl_add_u32 v7, v7, 7, v8')
        A(f'v_mov_b32 v8, {OOB:#x}\nv_cmp_le_u32 vcc, 24, v2\ns_mul_i32 s60, s59, {6*16384}\ns_lshl_b32 s61, s29, 11\ns_add_u32 s98, s60, s61\nv_cndmask_b32 v16, v7, v8, vcc')
        A(f'v_mov_b32 v17, {LDS_WORD}\nv_mov_b32 v18, 0\nv_mov_b32 v19, 0\nds_write_b64 v17, v[18:19]\nds_write_b64 v17, v[18:19] offset:8\nds_write_b64 v17, v[18:19] offset:16\nds_write_b64 v17, v[18:19] offset:24\ns_waitcnt lgkmcnt(0)\nv_mov_b32 v18, 1')
        srd(A, 44, P_OUT, 0x400000)
        A('v_bfe_u32 v7, v2, 2, 2\nv_lshrrev_b32 v8, 1, v7\nv_and_b32 v9, 1, v4\nv_lshl_or_b32 v8, v9, 1, v8')
        A('v_lshlrev_b32 v9, 10, v4\nv_lshl_add_u32 v9, v7, 7, v9\nv_and_b32 v7, 3, v2\nv_lshl_add_u32 v9, v7, 3, v9')
        for nt in range(4): A(f'v_xor_b32 v7, {nt}, v8\nv_lshl_add_u32 v{AW+nt}, v7, 5, v9')
        A('v_lshlrev_b32 v33, 4, v2')
        A(f's_mul_i32 s60, s33, {32*144}\ns_add_u32 s60, s60, {STAGE}')
        A('v_mul_u32_u24 v30, 144, v3\nv_lshl_add_u32 v30, v4, 3, v30\nv_add_u32 v30, s60, v30')
        A('v_mul_u32_u24 v31, 144, v5\nv_lshl_add_u32 v31, v6, 4, v31\nv_add_u32 v31, s60, v31')
        A('v_lshlrev_b32 v32, 12, v5\nv_lshl_add_u32 v32, v6, 4, v32')
        A('s_lshl_b32 s60, s32, 12\ns_lshl_b32 s61, s30, 11\ns_add_u32 s60, s60, s61\ns_xor_b32 s61, s29, ' + str(cfg.cgx) + '\ns_lshl_b32 s61, s61, 7\ns_add_u32 s42, s60, s61')
        A('s_lshl_b32 s60, s33, 16\ns_add_u32 s48, s42, s60\ns_add_u32 s49, s48, 0x8000\ns_lshr_b32 s61, s33, 1\ns_add_u32 s61, s61, 4\ns_lshl_b32 s60, s61, 16\ns_add_u32 s50, s42, s60\ns_add_u32 s51, s50, 0x8000')
        A(f's_mul_i32 s42, s59, {6*16384}\ns_lshl_b32 s60, s33, 14\ns_add_u32 s43, s42, s60\ns_lshl_b32 s60, s61, 14\ns_add_u32 s42, s42, s60')
        A(f's_lshr_b32 s60, s33, 1\ns_lshl_b32 s61, s60, 12\ns_add_u32 s61, s61, {STAGE + 4*32*144}\nv_add_u32 v28, s61, v33\ns_lshl_b32 s60, s60, 2\nv_add_u32 v29, s60, v17')
        A('s_cmp_lg_u32 s31, 0\ns_cselect_b32 s60, 1, 0\ns_cmp_eq_u32 s33, 0\ns_cselect_b32 s60, s60, 0\ns_cmp_lg_u32 s60, 0\ns_cselect_b32 s48, 0x40000000, s48')
    def wo(n):
        A(f's_add_u32 s62, s97, {n}\ns_and_b32 s62, s62, 15')
        A('s_lshl_b32 s6, s62, 12\ns_add_u32 m0, s58, s6\ns_lshl_b32 s6, s62, 15')
        A('buffer_load_dwordx4 v15, s[16:19], s6 offen lds')
    def side():
        srd_off(A, 88, P_WS, WS_FLAG, FLAG_SIZE); srd(A, 24, P_DBG, 256)
        A(f'v_lshlrev_b32 v20, 2, v6\nv_lshlrev_b32 v21, 7, v6\ns_lshl_b32 s100, s59, 10\ns_lshr_b32 s97, s5, 3\ns_mul_i32 s97, s97, 5\ns_mov_b64 exec, 0xff')
        A('buffer_load_dword v22, v20, s[24:27], 0 offen sc1\ns_mov_b64 exec, -1')
    def gocheck():
        A('s_mov_b64 exec, 0xff\nv_cmp_ne_u32 vcc, 1, v22\ns_cmp_eq_u64 vcc, 0\ns_cbranch_scc1 K_A_RDY_X')
        poll(A, 'K_A_RDY', 9, 20, 24, 0, 1)
        A('ds_write_b32 v17, v18 offset:24\ns_mov_b64 exec, -1')
    items = [(lambda c=c, j=j: issue(c, j), max(0, c - 2)) for c in range(8) for j in range(9)]
    ends = [9 * (c + 1) for c in range(8)]
    if cfg.xpf == 2:
        def xp(n):
            if n == 0:
                A('s_lshl_b32 s60, s29, 2\ns_add_u32 s60, s60, s33\ns_mul_i32 s60, s60, 3\ns_add_u32 s60, s60, s32\ns_lshl_b32 s60, s60, 1\ns_add_u32 s60, s60, s30\ns_lshl_b32 s60, s60, 10\nv_lshlrev_b32 v7, 4, v2')
                A('s_and_b32 s62, s63, 7' if cfg.rot != 5 else 's_and_b32 s62, s101, 7\ns_add_u32 s62, s62, s63\ns_and_b32 s62, s62, 7')
            if n == 2: A('s_add_u32 s60, s60, 4096')
            A(f'buffer_load_dwordx4 v[244:247], v7, s[8:11], s60 offen offset:{(n&1)*2048}')
        items = [(lambda n=n: xp(n), 0) for n in range(3)] + items[3:9] + items[0:3] + items[9:]
        ends = [e + 3 for e in ends]
    k0 = ends[0] + cfg.xa[0] - 1
    items[k0] = (lambda f=items[k0][0]: (f(), late_setup()), items[k0][1])
    items += [(side, 0), (lambda: A('s_mov_b64 exec, 0xff\nbuffer_load_dword v251, v21, s[88:91], s100 offen sc1\ns_mov_b64 exec, -1'), 0)]
    def wo2(n):
        if n == cfg.gon: A(f's_waitcnt vmcnt({n + 1 + (0 if cfg.pwb else cfg.pwpos <= n)})'); gocheck()
        wo(n)
    tail = [(lambda n=n: wo2(n), 7) for n in range(16)]
    if not cfg.pwb: tail.insert(cfg.pwpos, (lambda: A('buffer_load_dword v250, v16, s[20:23], s98 offen sc1'), 0))
    items += tail
    loader_loop(A, items, ends, cfg.xa)
    srd_off(A, 8, P_WS, WS_FLAG, FLAG_SIZE)
    stamp(A, cfg, 2)
    A(f'v_mov_b32 v8, v21\ns_mov_b32 s7, s100\ns_add_u32 s6, s7, {GFLAG}')
    A(f's_waitcnt vmcnt({1 if cfg.pwpos == 16 and not cfg.pwb else 0})\ns_mov_b64 exec, 1\nds_add_u32 v17, v18 offset:8\ns_mov_b64 exec, -1')
    A('K_A_LW:\nds_read_b32 v9, v17 offset:8\ns_waitcnt lgkmcnt(0)\nv_cmp_ne_u32 vcc, 4, v9\ns_cmp_lg_u64 vcc, 0\ns_cbranch_scc1 K_A_LW')
    stamp(A, cfg, 3)
    order = [0, 1, 2, 3, 4, 5, 8, 9, 10, 11, 12, 13, 14, 15, 6, 7]
    def reads(st):
        if st > 15: return []
        f = WF + 16 * (st % NB); ks = order[st]
        return [f'ds_read_b64_tr_b16 {vr(f+4*nt+2*u,2)}, v{AW+nt} offset:{ks*4096+u*512}' for nt in range(4) for u in range(2)]
    for r in reads(0) + reads(1) + reads(2): A(r)
    A('s_mov_b32 s28, 0\ns_mov_b32 s99, 0\ns_mov_b32 s94, 0xf7f7f7f7\ns_mov_b32 s95, 0xf7f7f7f7')
    def wait_flags(tag, masked):
        A(f's_mov_b64 exec, 0xff\nK_A_P1{tag}:')
        A('buffer_load_dword v9, v8, s[8:11], s100 offen sc1\ns_add_u32 s28, s28, 1\ns_waitcnt vmcnt(0)')
        A('v_cmp_ne_u32 vcc, s96, v9')
        if masked: A(f's_mov_b64 s[92:93], vcc\ns_and_b64 vcc, vcc, s[94:95]\ns_cbranch_scc0 K_A_GO{tag}')
        else: A(f's_cmp_eq_u64 vcc, 0\ns_cbranch_scc1 K_A_GO{tag}')
        A(f's_cmp_lt_u32 s28, {cfg.n1}\ns_cbranch_scc1 K_A_P1{tag}')
        A('ds_write_b32 v17, v18\ns_mov_b32 s99, 1\ns_mov_b64 s[92:93], 0\ns_waitcnt lgkmcnt(0)\ns_barrier')
        A(f'K_A_P2{tag}:')
        A('buffer_load_dword v9, v8, s[8:11], s100 offen sc1\nbuffer_load_dword v10, v8, s[8:11], s6 offen sc1\ns_add_u32 s28, s28, 1\ns_waitcnt vmcnt(0)')
        A(f'v_cmp_ne_u32 vcc, s96, v9\ns_cmp_eq_u64 vcc, 0\ns_cbranch_scc1 K_A_GO{tag}')
        A(f'v_cmp_ne_u32 vcc, 1, v10\ns_cmp_eq_u64 vcc, 0\ns_cbranch_scc1 K_A_GO{tag}')
        A(f's_cmp_lt_u32 s28, {SPIN}\ns_cbranch_scc1 K_A_P2{tag}')
        A(f'K_A_GO{tag}:\ns_mov_b64 exec, -1')
    wait_flags('A', True)
    stamp(A, cfg, 4)
    A('s_bitcmp1_b32 s33, 0\ns_cbranch_scc1 K_A_ODD')
    PART = 232
    def gemm2(odd):
        tag = 'O' if odd else 'E'
        has = lambda st: (st < 8) == bool(odd)
        L = [(st, a) for st in range(16) for a in range(2) if a == 0 or has(st)]
        reg = {x: OF + 4 * i for i, x in enumerate(L)}
        first_q3 = min(i for i, x in enumerate(L) if x[0] >= 14)
        def oload(i):
            st, a = L[i]; ks = order[st]
            return f's_add_u32 s7, s{42 if a else 43}, {(ks & ~3)*1024}\nbuffer_load_dwordx4 {vr(reg[L[i]],4)}, v33, s[20:23], s7 offen offset:{(ks&3)*1024} sc1'
        issued = cfg.opre; extra = 0
        for i in range(issued): A(oload(i))
        CHK = cfg.chk2 if odd else cfg.chk
        for st in range(16):
            f = WF + 16 * (st % NB)
            if st == CHK:
                A(f's_waitcnt vmcnt(0)\nv_cmp_ne_u32 vcc, s96, v9\ns_and_b64 vcc, vcc, s[92:93]\ns_cbranch_scc0 K_A_GOB{tag}')
                wait_flags('B' + tag, False)
                for i in range(first_q3, len(L)): A(oload(i))
                issued = len(L); extra = 0
            need = sum(1 for x in L if x[0] <= st)
            lg = 0 if (st == 0 or (odd and st == 11) or (not odd and st in (13, 15))) else min(14, len(reads(st + 1)) + len(reads(st + 2)))
            A(f's_waitcnt vmcnt({min(issued - need + extra, len(L) - first_q3 if st >= CHK else 63)}) lgkmcnt({lg})')
            if st == 0: stamp(A, cfg, 5)
            if odd and st == 11: A('ds_write_b32 v29, v18 offset:16')
            if not odd and st == 13:
                A('s_mov_b32 s28, 0\nK_A_PW:\nv_cmp_ne_u32 vcc, 1, v10\ns_cmp_eq_u64 vcc, 0\ns_cbranch_scc1 K_A_PWX\nds_read_b32 v10, v29 offset:16\ns_add_u32 s28, s28, 1')
                A('s_cmp_lg_u32 s28, 64\ns_cbranch_scc1 K_A_PWN\ns_cmp_lg_u32 s99, 0\ns_cbranch_scc1 K_A_PWN\ns_mov_b32 s99, 1\ns_barrier\nK_A_PWN:\ns_waitcnt lgkmcnt(0)\ns_branch K_A_PW\nK_A_PWX:')
            M = [lambda d=ACC+16*a+4*nt, x=f+4*nt, b=reg[(st, a)], z=(st & 7 if a else st): mfma32(A, d, x, b, d if z else None) for a in range(2) if (st, a) in reg for nt in range(4)]
            O = reads(st + 3)
            O = [O[2*i] + '\n' + O[2*i+1] for i in range(len(O)//2)]
            for _ in range(2 if has(st) else 1):
                if issued < first_q3: O.append(oload(issued)); issued += 1
            if st == CHK - (4 if odd else 3):
                while issued < first_q3: O.append(oload(issued)); issued += 1
                O.append('s_mov_b64 exec, 0xff\nbuffer_load_dword v9, v8, s[8:11], s100 offen sc1\ns_mov_b64 exec, -1'); extra = 1
            if odd and st in (9, 10): O += [f'ds_write_b128 v28, {vr(ACC+16+4*nt,4)} offset:{nt*1024}' for nt in (2*(st-9), 2*(st-9)+1)]
            if not odd and st == 12: O.append('ds_read_b32 v10, v29 offset:16')
            if not odd and st == 13: O += [f'ds_read_b128 {vr(PART+4*nt,4)}, v28 offset:{nt*1024}' for nt in range(4)]
            interleave(A, M, O)
        stamp(A, cfg, 6)
        T = 100
        A('s_nop 7' if odd else 's_nop 3')
        for a in range(1 if odd else 2):
            if a:
                for i in range(16): A(f'v_add_f32 v{ACC+16+i}, v{ACC+16+i}, v{PART+i}')
            for nt in range(4):
                d = ACC + 16 * a + 4 * nt; p = T + 8 * a + 2 * nt
                cvt(A, p, d, d+1); cvt(A, p+1, d+2, d+3)
                A(f'ds_write_b64 v30, {vr(p,2)} offset:{a*16*144 + nt*32}')
            for n in (2*a, 2*a+1): A(f'ds_read_b128 {vr(T+16+4*n,4)}, v31 offset:{n*8*144}')
        N = 2 if odd else 4
        for n in range(N):
            A(f's_waitcnt lgkmcnt({(N-1-n) if (odd or n >= 2) else 7-n})')
            A(f'buffer_store_dwordx4 {vr(T+16+4*n,4)}, v32, s[44:47], s{48+n} offen{cfg.outflag}')
        A(f's_cmp_lg_u32 s99, 0\ns_cbranch_scc1 K_A_NOB{tag}\ns_barrier\nK_A_NOB{tag}:')
    gemm2(0)
    A('s_branch K_A_LDONE\nK_A_ODD:')
    gemm2(1)
    A('K_A_LDONE:')
    stamp_store(A, cfg, 8)
    A('s_endpgm')

def a_consumer(A, cfg):
    AX, AW = 20, 28
    ST, MD, MP, BD, ONES = 32, 36, 40, 44, 46
    VX, V1, VS0 = 33, 34, 35
    FR, ACC = 48, 120
    A(f'v_mov_b32 v{VX}, s96\nv_mov_b32 v{V1}, 1\nv_mov_b32 v{VS0}, {OOB:#x}\nv_cmp_ne_u32 vcc, {256 if cfg.swap else 0}, v0\ns_nop 1\nv_cndmask_b32 v{VS0}, 0, v{VS0}, vcc')
    A('s_lshl_b32 s58, s59, 3\ns_add_u32 s58, s58, s29\ns_lshl_b32 s58, s58, 7')
    A('s_lshl_b32 s6, s29, 2\ns_add_u32 s6, s6, s3\ns_mul_i32 s6, s6, 3\ns_add_u32 s6, s6, s32\ns_lshl_b32 s6, s6, 1\ns_add_u32 s6, s6, s30\ns_lshl_b32 s60, s6, 10\nv_lshlrev_b32 v7, 4, v2')
    if cfg.xprio: A('s_setprio 2')
    A('s_waitcnt lgkmcnt(0)')
    if cfg.xpf == 1:
        srd(A, 12, P_AX, 0x200000)
        for n in range(3): A(f's_add_u32 s7, s60, {n*2048}\nbuffer_load_dwordx4 v[244:247], v7, s[12:15], s7 offen')
    if cfg.c3:
        srd(A, 12, P_WQKV, 0x180000)
        A('s_lshl_b32 s7, s5, 2\ns_add_u32 s7, s7, s3\ns_lshl_b32 s7, s7, 14\nv_lshlrev_b32 v8, 10, v5\nv_lshl_add_u32 v8, v6, 4, v8')
        A('buffer_load_dwordx4 v[244:247], v8, s[12:15], s7 offen offset:384\ns_add_u32 s7, s7, 8192\nbuffer_load_dwordx4 v[244:247], v8, s[12:15], s7 offen offset:384')
    srd_off(A, 16, P_WS, WS_FLAG, FLAG_SIZE); srd_off(A, 8, P_WS, WS_O, O_SIZE)
    srd(A, 20, P_DBG, 256)
    A('s_cmp_lg_u32 s5, 0\ns_cbranch_scc1 K_A_NOCLR')
    A('v_mov_b32 v8, 0\nv_mov_b32 v9, 0\nv_mov_b32 v10, 0\nv_mov_b32 v11, 0\nv_lshlrev_b32 v7, 4, v2\ns_lshl_b32 s6, s4, 2\ns_add_u32 s6, s6, s3\ns_lshl_b32 s6, s6, 11')
    A('buffer_store_dwordx4 v[8:11], v7, s[16:19], s6 offen sc1\nbuffer_store_dwordx4 v[8:11], v7, s[16:19], s6 offen offset:1024 sc1\ns_nop 1')
    A('K_A_NOCLR:')
    A('s_lshl_b32 s35, s4, 2')
    A('v_lshrrev_b32 v7, 1, v3\nv_xor_b32 v7, v7, v4\nv_lshlrev_b32 v7, 4, v7\nv_lshl_add_u32 v7, v3, 7, v7')
    A('v_xor_b32 v8, 64, v7')
    for s in range(4):
        A(f'v_add_u32 v{AX+2*s}, {s*A1_SLOT}, v7\nv_add_u32 v{AX+2*s+1}, {s*A1_SLOT}, v8')
    A('v_bfe_u32 v7, v2, 2, 2')
    A('v_lshrrev_b32 v8, 1, v7\nv_and_b32 v9, 1, v4\nv_lshl_or_b32 v8, v9, 1, v8')
    A('v_xor_b32 v8, s3, v8\nv_lshlrev_b32 v8, 5, v8\nv_lshl_add_u32 v8, v7, 7, v8')
    A('v_and_b32 v9, 3, v2\nv_lshl_add_u32 v8, v9, 3, v8')
    A('v_mul_u32_u24 v9, 3072, v4\nv_add_u32 v8, v8, v9')
    for s in range(4): A(f'v_add_u32 v{AW+s}, {s*A1_SLOT+12288}, v8')
    A('v_lshlrev_b32 v7, 2, v4\nv_sub_u32 v7, v3, v7')
    A('v_mov_b32 v9, 0xf149f2ca')
    A('v_mov_b32 v10, 0xffff\nv_mov_b32 v11, 0xffff0000')
    for i in range(4):
        A(f'v_subrev_u32 v8, {i}, v7')
        A(f'v_cmp_le_u32 vcc, 8, v8\ns_nop 1\nv_cndmask_b32 v{MD+i}, 0, v9, vcc')
        A(f'v_cmp_lt_i32 vcc, -9, v8\ns_nop 1\nv_cndmask_b32 v{MP+i}, 0, v9, vcc')
        A(f'v_cmp_le_i32 vcc, 0, v8\ns_nop 1\nv_cndmask_b32 v{12+i}, 0, v{10+(i&1)}, vcc')
    A(f'v_or_b32 v{BD}, v12, v13\nv_or_b32 v{BD+1}, v14, v15')
    A(f'v_mov_b32 v{ONES}, 0x3f803f80\nv_mov_b32 v{ONES+1}, 0x3f803f80')
    A('s_lshl_b32 s6, s29, 2\ns_add_u32 s6, s6, s3\ns_lshl_b32 s6, s6, 9')
    A(f's_mul_i32 s7, s59, {6*16384}\ns_add_u32 s60, s6, s7\ns_add_u32 s61, s60, 0x8000\ns_add_u32 s62, s60, 0x10000')
    A('v_and_b32 v7, 1, v4\nv_lshlrev_b32 v7, 14, v7\nv_lshrrev_b32 v8, 1, v4\nv_lshl_add_u32 v7, v8, 8, v7')
    A(f'v_lshl_add_u32 v{ST}, v3, 4, v7')
    PKS = 24
    A('s_mov_b32 s34, 0x3eb8aa3b\ns_mov_b32 s24, s34\ns_mov_b32 s25, s34')
    def reads(ks):
        c, h = divmod(ks, 2); s = c % 4; f = FR + 36 * (ks & 1); R = []
        def w(seg): return [f'ds_read_b64_tr_b16 {vr(f+24+4*seg+2*u,2)}, v{AW+s} offset:{h*12288+seg*1024+u*512}' for u in range(2)]
        R += w(0)
        R += [f'ds_read_b128 {vr(f+4*t,4)}, v{AX+2*s+h} offset:{t*2048}' for t in range(6)]
        R += w(1) + w(2)
        return R
    def mfmas(ks):
        f = FR + 36 * (ks & 1); M = []
        for seg in range(3):
            for t in range(6):
                d = ACC + 24 * seg + 4 * t; c = d if ks else None
                if seg < 2: M.append(lambda d=d, a=f+24+4*seg, b=f+4*t, c=c: mfma32(A, d, a, b, c))
                else:       M.append(lambda d=d, a=f+4*t, b=f+24+4*seg, c=c: mfma32(A, d, a, b, c))
        return M
    A(f's_setprio {cfg.cprio}\ns_barrier')
    stamp(A, cfg, 1)
    for r in reads(0): A(r)
    for ks in range(16):
        A('s_waitcnt lgkmcnt(0)')
        if cfg.kst and ks in (4, 8, 12): stamp(A, cfg, 1 + ks // 4)
        M = mfmas(ks)
        if ks == 15: interleave(A, M[:12], []); defer += M[12:]
        elif ks & 1:
            pre = cfg.pre
            for m in M[:pre]: m()
            A('s_barrier')
            interleave(A, M[pre:], reads(ks + 1), per_gap=2 if pre > 2 else 1)
        else:
            R = reads(ks + 1)
            if ks == 14: defer = M[12:]; M = M[:12]
            if ks == cfg.goks: R.append('s_waitcnt vmcnt(0)')
            if ks == cfg.goks + 2: R.append(f's_cmp_lg_u32 s5, 0\ns_cbranch_scc1 K_A_NOGO\nbuffer_store_dword v{V1}, v{VS0}, s[20:23], s35 offen sc1\nK_A_NOGO:')
            interleave(A, M, R, per_gap=2 if ks == 14 else 1)
    stamp(A, cfg, 5 if cfg.kst else 2)
    QP, KP, VP, SD, SP, MX, PK, PO, OO, SM, OP = 192, 204, 240, 48, 72, 96, 108, 120, 144, 168, 192
    C = [f'v_cvt_pk_bf16_f32 v{QP+i}, v{ACC+2*i}, v{ACC+2*i+1}' for i in range(24)]
    for m in defer[:2]: m()
    interleave(A, defer[2:], C, per_gap=2)
    A(f'v_mov_b32 v{VP}, 0\nv_mov_b32 v{VP+1}, 0')
    M = []
    for t in range(6):
        M.append(lambda t=t: mfma16(A, SD+4*t, KP+2*t, QP+2*t, MD))
        if t: M.append(lambda t=t: mfma16(A, SP+4*t, KP+2*t-2, QP+2*t, MP))
    V = []
    for t in range(6):
        V.append(f'v_cvt_pk_bf16_f32 v{VP+2+2*t}, v{ACC+48+4*t}, v{ACC+48+4*t+1}')
        V.append(f'v_cvt_pk_bf16_f32 v{VP+3+2*t}, v{ACC+48+4*t+2}, v{ACC+48+4*t+3}')
    interleave(A, M, V)
    for t in range(6):
        if t:
            for i in range(4): A(f'v_max_f32 v{SD+4*t+i}, v{SD+4*t+i}, v{SP+4*t+i}')
        A(f'v_max3_f32 v{MX+t}, v{SD+4*t}, v{SD+4*t+1}, v{SD+4*t+2}')
        A(f'v_max_f32 v{MX+t}, v{MX+t}, v{SD+4*t+3}')
    A('s_nop 1')
    for u in range(3): A(f'v_permlane32_swap_b32 v{MX+2*u}, v{MX+2*u+1}')
    for u in range(3): A(f'v_max_f32 v{MX+2*u}, v{MX+2*u}, v{MX+2*u+1}')
    for u in range(3): A(f'v_mov_b32 v{MX+2*u+1}, v{MX+2*u}')
    A('s_nop 0')
    for u in range(3): A(f'v_permlane16_swap_b32 v{MX+2*u}, v{MX+2*u+1}')
    for u in range(3): A(f'v_max_f32 v{MX+2*u}, v{MX+2*u}, v{MX+2*u+1}')
    for u in range(3): A(f'v_mul_f32 v{MX+2*u}, s34, v{MX+2*u}')
    for u in range(3): A(f'v_mov_b32 v{MX+2*u+1}, v{MX+2*u}')
    A('s_nop 0')
    for u in range(3): A(f'v_permlane32_swap_b32 v{MX+2*u}, v{MX+2*u+1}')
    for t in range(6):
        if cfg.pk:
            for i in (0, 2): A(f'v_pk_fma_f32 {vr(SD+4*t+i,2)}, {vr(SD+4*t+i,2)}, s[{PKS}:{PKS+1}], {vr(MX+(t&~1),2)} op_sel:[0,0,{t&1}] op_sel_hi:[1,1,{t&1}] neg_lo:[0,0,1] neg_hi:[0,0,1]')
        else:
            for i in range(4): A(f'v_fma_f32 v{SD+4*t+i}, v{SD+4*t+i}, s34, -v{MX+t}')
    for t in range(6):
        for i in range(4): A(f'v_exp_f32 v{SD+4*t+i}, v{SD+4*t+i}')
    for t in range(6):
        cvt(A, PK+2*t, SD+4*t, SD+4*t+1); cvt(A, PK+2*t+1, SD+4*t+2, SD+4*t+3)
    for t in range(6):
        A(f'v_and_b32 v{PO+4*t+2}, v{PK+2*t}, v{BD}\nv_and_b32 v{PO+4*t+3}, v{PK+2*t+1}, v{BD+1}')
        A(f'v_xor_b32 v{PO+4*t}, v{PK+2*t}, v{PO+4*t+2}\nv_xor_b32 v{PO+4*t+1}, v{PK+2*t+1}, v{PO+4*t+3}')
        mfma16(A, SM+4*t, ONES, PK+2*t, None)
    A('s_nop 0')
    for t in range(6): mfma32(A, OO+4*t, VP+2*t, PO+4*t, None)
    A('s_nop 1')
    for t in range(6): A(f'v_rcp_f32 v{MX+t}, v{SM+4*t}')
    A('s_nop 1')
    for u in range(3):
        for t in (2*u, 2*u+1):
            if cfg.pk:
                for i in (0, 2): A(f'v_pk_mul_f32 {vr(OO+4*t+i,2)}, {vr(OO+4*t+i,2)}, {vr(MX+(t&~1),2)} op_sel:[0,{t&1}] op_sel_hi:[1,{t&1}]')
            else:
                for i in range(4): A(f'v_mul_f32 v{OO+4*t+i}, v{OO+4*t+i}, v{MX+t}')
        for t in (2*u, 2*u+1):
            cvt(A, OP+2*t, OO+4*t, OO+4*t+1); cvt(A, OP+2*t+1, OO+4*t+2, OO+4*t+3)
        A('s_nop 1')
        A(f'v_permlane16_swap_b32 v{OP+4*u}, v{OP+4*u+2}\nv_permlane16_swap_b32 v{OP+4*u+1}, v{OP+4*u+3}')
        A(f'buffer_store_dwordx4 {vr(OP+4*u,4)}, v{ST}, s[8:11], s{60+u} offen')
    if not cfg.kst: stamp(A, cfg, 3)
    A('s_waitcnt vmcnt(0)')
    if not cfg.kst: stamp(A, cfg, 4)
    A(f'v_mov_b32 v7, {LDS_WORD}\ns_mov_b64 exec, 1\nds_add_rtn_u32 v8, v7, v{V1} offset:12\nds_read_b32 v9, v7 offset:24\nv_mov_b32 v10, 0\ns_waitcnt lgkmcnt(0)')
    A('v_cmp_ne_u32 vcc, 3, v8\ns_cmp_lg_u64 vcc, 0\ns_cbranch_scc1 K_A_NOSIG')
    A('K_A_CW:\nv_cmp_eq_u32 vcc, 1, v9\ns_cmp_lg_u64 vcc, 0\ns_cbranch_scc1 K_A_SIG\nds_read_b32 v9, v7 offset:24\ns_waitcnt lgkmcnt(0)\ns_branch K_A_CW')
    A(f'K_A_SIG:\nbuffer_store_dword v{VX}, v10, s[16:19], s58 offen')
    A('K_A_NOSIG:\ns_mov_b64 exec, -1\ns_setprio 0')
    if not cfg.kst: stamp(A, cfg, 5)
    A(f'v_mov_b32 v7, {LDS_WORD}\ns_barrier\nds_read_b32 v8, v7\ns_waitcnt lgkmcnt(0)\nv_readfirstlane_b32 s6, v8\ns_cmp_eq_u32 s6, 0\ns_cbranch_scc1 ' + ('K_A_CLEAN' if cfg.clean else 'K_A_CDONE'))
    for u in range(3): A(f'buffer_store_dwordx4 {vr(OP+4*u,4)}, v{ST}, s[8:11], s{60+u} offen sc1')
    A(f'v_cmp_eq_u32 vcc, 0, v2\ns_and_saveexec_b64 s[6:7], vcc\ns_waitcnt vmcnt(0)\nds_add_rtn_u32 v8, v7, v{V1} offset:4\ns_waitcnt lgkmcnt(0)')
    A(f'v_readfirstlane_b32 s28, v8\ns_cmp_lg_u32 s28, 3\ns_cbranch_scc1 K_A_CDONE')
    A(f's_add_u32 s58, s58, {GFLAG}\nv_mov_b32 v7, 0\nbuffer_store_dword v{V1}, v7, s[16:19], s58 offen sc1')
    if cfg.clean:
        A('s_branch K_A_CDONE\nK_A_CLEAN:')
        for u in range(3): A(f'buffer_store_dwordx4 {vr(OP+4*u,4)}, v{ST}, s[8:11], s{60+u} offen sc1')
    A('K_A_CDONE:')
    A('s_mov_b64 exec, -1')
    stamp_store(A, cfg, 7)
    A('s_endpgm')

def bstamp(A, cfg, slot, mode):
    if cfg.bst == mode: stamp(A, cfg, slot)

def b_all(A, cfg):
    G, F, M = 32, 38, 44
    X1, MAT, PITCH = 65536, 98304, 272
    A('s_and_b32 s5, s5, 7')
    A('s_lshl_b32 s29, s4, 2\ns_lshr_b32 s6, s5, 1\ns_add_u32 s29, s29, s6')
    A('v_lshlrev_b32 v36, 4, v2\ns_lshr_b32 s32, s3, 1\ns_and_b32 s33, s3, 1\ns_lshl_b32 s35, s3, 13')
    A('v_mov_b32 v14, 0\nv_mov_b32 v15, 1\nv_lshlrev_b32 v16, 7, v2')
    def early(tag=''):
        A('s_and_b32 s30, s5, 1\ns_lshl_b32 s30, s30, 2\ns_add_u32 s58, s30, s32')
        A('s_sub_u32 s6, 16, s4\ns_cmp_eq_u32 s4, 0\ns_cselect_b32 s6, 8, s6\ns_bitcmp1_b32 s5, 2\ns_cselect_b32 s31, s6, s4')
        A('v_lshrrev_b32 v7, 2, v2\nv_and_b32 v8, 3, v2\nv_lshlrev_b32 v7, 6, v7\nv_lshl_add_u32 v7, v8, 4, v7\nv_add_u32 v17, s35, v7')
        A('v_bfe_u32 v7, v2, 3, 1\nv_lshl_add_u32 v7, v7, 2, v4\nv_xor_b32 v7, v7, v6\nv_lshlrev_b32 v7, 4, v7\nv_lshl_add_u32 v18, v6, 12, v7')
        A(f's_lshl_b32 s6, s3, 9\ns_add_u32 s6, s6, {X1}\nv_add_u32 v18, s6, v18')
        A(f'v_lshlrev_b32 v7, 6, v3\nv_lshl_add_u32 v7, v4, 4, v7\ns_lshl_b32 s6, s32, 5\nv_xor_b32 v7, s6, v7\ns_lshl_b32 s6, s32, 13\ns_add_u32 s6, s6, {X1}\nv_add_u32 v19, s6, v7\nv_xor_b32 v20, 16, v19')
        A(f's_mov_b32 s6, {4*ZCLS}\nv_mul_lo_u32 v7, v4, s6\nv_lshl_add_u32 v22, v3, 4, v7')
        A(f's_mul_i32 s101, s29, {ZSIG}\ns_lshl_b32 s6, s33, 8\ns_add_u32 s101, s101, s6\ns_lshl_b32 s6, s58, 9\ns_add_u32 s101, s101, s6')
        A('s_lshl_b32 s6, s30, 1\nv_add_u32 v9, s6, v6')
        A('v_cmp_eq_u32 vcc, 1, v9\nv_mov_b32 v23, 16\nv_cvt_f32_u32 v25, v3\nv_cndmask_b32 v9, v9, v23, vcc')
        A('v_lshrrev_b32 v7, 1, v9\nv_and_b32 v8, 1, v9\nv_cvt_f32_u32 v7, v7\nv_cvt_f32_u32 v8, v8\nv_cvt_f32_u32 v9, v4')
        A('v_mul_f32 v7, 0x3d800000, v7\nv_mul_f32 v25, 0x3d800000, v25\nv_mul_f32 v9, 4.0, v9\nv_mul_f32 v24, 0x3e800000, v8\nv_fmac_f32 v24, v7, v9\nv_mul_f32 v23, v25, v9')
        for i in range(4):
            A(f'v_cos_f32 v{96+i}, v24\nv_cos_f32 v{100+i}, v23\nv_sin_f32 v{104+i}, v23')
            if i < 3: A('v_add_f32 v24, v24, v7\nv_add_f32 v23, v23, v25')
        A('v_cmp_lt_u32 vcc, 7, v3')
        cvt(A, 24, 96, 97); cvt(A, 25, 98, 99)
        A(f'v_cndmask_b32 v{G}, v24, v14, vcc\nv_cndmask_b32 v{G+1}, v25, v14, vcc\nv_cndmask_b32 v{G+2}, v14, v24, vcc\nv_cndmask_b32 v{G+3}, v14, v25, vcc')
        for q in range(4): cvt(A, F+q, 100+2*q, 101+2*q)
        A(f'v_xor_b32 v{F+4}, 0x80008000, v{F}\nv_xor_b32 v{F+5}, 0x80008000, v{F+1}')
        def gen_m(dst, extra):
            A(f's_lshl_b32 s6, s33, 8\ns_add_u32 s6, s6, s58\ns_add_u32 s6, s6, {extra}\nv_lshl_add_u32 v7, v3, 4, s6\nv_cvt_f32_u32 v7, v7\nv_mul_f32 v7, 0xbb000000, v7')
            A('v_lshlrev_b32 v8, 3, v4\nv_cvt_f32_u32 v8, v8\nv_mul_f32 v8, v7, v8')
            for i in range(8):
                A(f'v_cos_f32 v{96+i}, v8\nv_sin_f32 v{104+i}, v8')
                if i < 7: A('v_add_f32 v8, v8, v7')
            A('s_nop 0')
            for q in range(8): cvt(A, dst+q, 96+2*q, 97+2*q)
        gen_m(M, 0)
        for i in range(4): A(f'v_xor_b32 v{M+8+i}, 0x80008000, v{M+4+i}')
        A('s_cmp_lg_u32 s58, 0\ns_cbranch_scc1 K_B_NOM8' + tag)
        gen_m(M + 8, 8)
        A('K_B_NOM8' + tag + ':')
    def gen_init():
        A('s_lshl_b32 s6, s3, 8\ns_add_u32 s6, s6, s31\nv_lshl_add_u32 v7, v3, 4, s6\nv_cvt_f32_u32 v7, v7\nv_mul_f32 v241, 0xba000000, v7\nv_add_f32 v240, 0.5, v241')
        if cfg.smap: A('s_and_b32 s6, s5, 4\ns_lshl_b32 s6, s6, 2\nv_add_u32 v8, s6, v4\nv_cvt_f32_u32 v242, v8\nv_mul_f32 v252, 0x42000000, v240\nv_mul_f32 v253, 0x42000000, v241')
        else: A('s_and_b32 s6, s5, 4\ns_lshl_b32 s6, s6, 4\nv_lshl_add_u32 v8, v4, 2, s6\nv_cvt_f32_u32 v242, v8')
        A(f's_lshl_b32 s6, s3, 13\ns_add_u32 s6, s6, {MAT - 32768}\nv_add_u32 v243, s6, v36')
    def gen_mat(label, n):
        if n == 0: return
        A(f's_mov_b32 s7, 0\ns_mov_b32 s6, {0x42000000 if cfg.smap else 0x43000000:#x}\n{label}:')
        for half in range(2):
            b = 96 + 8 * half
            A(f'v_mul_f32 v9, v{240+half}, v242')
            for i in range(4):
                A(f'v_cos_f32 v{b+i}, v9\nv_sin_f32 v{b+4+i}, v9' + (f'\nv_add_f32 v9, v9, v{(252 if cfg.smap else 240)+half}' if i < 3 else ''))
        A('v_add_f32 v242, 4.0, v242' if cfg.smap else 'v_add_f32 v242, 0x41800000, v242')
        for half in range(2):
            for q in range(4): cvt(A, 112+4*half+q, 96+8*half+2*q, 97+8*half+2*q)
            A(f'ds_write_b128 v243, {vr(112+4*half,4)} offset:{half*32768}')
        A(f'v_cmp_le_f32 vcc, s6, v242\nv_add_u32 v243, 1024, v243\nv_subrev_f32 v9, s6, v242\ns_add_u32 s7, s7, 1\nv_cndmask_b32 v242, v242, v9, vcc\ns_cmp_lt_u32 s7, {n}\ns_cbranch_scc1 {label}')
    if cfg.bfirst: early()
    A('s_cmp_ge_u32 s3, 4\ns_cbranch_scc1 K_B_GEN')
    A('s_and_b32 s97, s5, 1\ns_lshl_b32 s97, s97, 2\ns_add_u32 s97, s97, s3')
    if cfg.smap: A('s_lshr_b32 s7, s97, 1\ns_lshl_b32 s7, s7, 5\ns_add_u32 s6, s29, s7\ns_lshl_b32 s7, s33, 10\ns_add_u32 s6, s6, s7\ns_lshl_b32 s34, s6, 10\ns_lshl_b32 s97, s97, 13')
    else: A('s_lshl_b32 s6, s29, 2\ns_lshr_b32 s7, s97, 1\ns_add_u32 s6, s6, s7\ns_lshl_b32 s7, s33, 10\ns_add_u32 s6, s6, s7\ns_lshl_b32 s34, s6, 10\ns_lshl_b32 s97, s97, 13')
    if cfg.cpf == 1:
        A(f's_getpc_b64 s[8:9]\nK_B_PC:\ns_sub_u32 s8, s8, K_B_PC-{NAME}_kernel\ns_subb_u32 s9, s9, 0\ns_mov_b32 s10, K_END-{NAME}_kernel\ns_mov_b32 s11, 0x20000')
        A('s_lshl_b32 s6, s3, 3\ns_add_u32 s6, s6, s5\ns_lshl_b32 s6, s6, 10\nbuffer_load_dwordx4 v[244:247], v36, s[8:11], s6 offen')
    if cfg.help:
        A('s_lshl_b32 s6, s5, 2\ns_add_u32 s6, s6, s3\ns_mul_i32 s28, s6, 9')
        A('s_lshl_b32 s100, s4, 5\ns_add_u32 s100, s100, s6\ns_mul_i32 s100, s100, 768')
    A('s_mov_b32 s7, 0\ns_waitcnt lgkmcnt(0)')
    srd(A, 20, P_BX, 0x200000)
    stamp(A, cfg, 1)
    if cfg.help:
        srd(A, 8, P_AX, 0x200000); srd(A, 12, P_WQKV, 0x180000)
        A('v_cmp_gt_u32 vcc, 48, v2\nv_mov_b32 v10, 0x80000000\ns_mul_i32 s59, s4, 3\nv_cndmask_b32 v10, v10, v36, vcc')
        for n in range(9):
            A(f's_add_u32 s6, s28, {n}\ns_mul_i32 s58, s6, 683\ns_lshr_b32 s58, s58, 16\ns_mul_i32 s30, s58, 96\ns_sub_u32 s6, s6, s30\ns_add_u32 s58, s58, s59')
            A('s_lshr_b32 s30, s58, 1\ns_mul_i32 s30, s30, 88\ns_add_u32 s6, s6, s30\ns_lshl_b32 s6, s6, 1\ns_and_b32 s58, s58, 1\ns_add_u32 s6, s6, s58\ns_lshl_b32 s6, s6, 10')
            A('buffer_load_dwordx4 v[244:247], v36, s[8:11], s6 offen')
            if cfg.help > 1 and 1 <= n <= 7: A(f's_add_u32 s6, s100, {n*196608}\nbuffer_load_dwordx4 v[244:247], v10, s[12:15], s6 offen')
    def c3b(m0, m1):
        if m0 == 0 and m1 > 0:
            srd(A, 12, P_WQKV, 0x180000)
            A(f's_lshl_b32 s59, s5, 2\ns_add_u32 s59, s59, s3\ns_lshl_b32 s59, s59, 13\ns_mul_i32 s28, s4, {cfg.rotx}\ns_add_u32 s28, s28, {cfg.rot0}\ns_and_b32 s28, s28, 7\ns_mul_i32 s28, s28, 196608\ns_add_u32 s59, s59, s28')
            A('v_lshlrev_b32 v10, 10, v5\nv_lshl_add_u32 v10, v6, 4, v10')
        for m in range(m0, m1):
            A('s_sub_u32 s28, s59, 0x180000\ns_cselect_b32 s59, s59, s28')
            A('buffer_load_dwordx4 v[244:247], v10, s[12:15], s59 offen offset:384\ns_add_u32 s59, s59, 0x40000')
    c3b(0, cfg.c3a)
    def xblock(n0, n1):
        for n in range(n0, n1):
            if n == 8: A(f's_xor_b32 s34, s34, {65536 if cfg.smap else 2048}\ns_xor_b32 s97, s97, 0x8000')
            A(f's_add_u32 m0, s97, {(n&7)*1024}\ns_add_u32 s6, s34, {(n&7)*131072}')
            A('buffer_load_dwordx4 v36, s[20:23], s6 offen lds')
    xblock(0, cfg.xs)
    if cfg.xs < 16:
        A('K_B_GEN:')
        early()
        A('s_cmp_ge_u32 s3, 4\ns_cbranch_scc1 K_B_GEN2')
        xblock(cfg.xs, 16)
    late = 0
    c3b(cfg.c3a, cfg.c3n); late += cfg.c3n - cfg.c3a
    if cfg.womall:
        srd(A, 12, P_WO, 0x80000)
        A('s_lshl_b32 s28, s4, 3\ns_add_u32 s28, s28, s5\ns_lshl_b32 s28, s28, 2\ns_add_u32 s28, s28, s3\ns_lshl_b32 s28, s28, 11')
        A('buffer_load_dwordx4 v[244:247], v36, s[12:15], s28 offen\nbuffer_load_dwordx4 v[244:247], v36, s[12:15], s28 offen offset:1024'); late += 2
    if cfg.xs < 16: A('K_B_GEN2:')
    else:
        A('K_B_GEN:')
        if not cfg.bfirst: early()
    A(f's_waitcnt vmcnt({late})\ns_cmp_lt_u32 s3, 4\ns_cbranch_scc1 K_B_XOK')
    gen_init(); gen_mat('K_B_GL1', cfg.gsplit)
    stamp(A, cfg, 1)
    A('K_B_XOK:')
    A('s_waitcnt lgkmcnt(0)')
    srd_off(A, 8, P_WS, WS_Z, Z_SIZE); srd(A, 12, P_OUT, 0x400000); srd_off(A, 60, P_WS, WS_FLAG, FLAG_SIZE); srd(A, 16, P_DBG, 256); srd(A, 20, P_WO, 0x80000)
    A('s_lshl_b32 s28, s5, 3\ns_add_u32 s28, s28, s3\ns_lshl_b32 s28, s28, 13\ns_add_u32 s97, s28, 4096')
    def wopf(r):
        if cfg.wopf:
            for n in range(4): A(f'buffer_load_dwordx4 v[244:247], v36, s[20:23], s{r} offen offset:{n*1024}')
    A('s_barrier')
    stamp(A, cfg, 2)
    DA, DD = 64, 96
    for p in range(4):
        for h in range(2):
            for rb in range(2): A(f'ds_read_b64_tr_b16 {vr(DA+8*p+4*h+2*rb,2)}, v17 offset:{(2*p+rb)*1024+h*8}')
    wopf(28)
    if cfg.pwb:
        srd_off(A, 24, P_WS, WS_O, O_SIZE)
        A(f's_lshl_b32 s6, s4, 3\ns_add_u32 s6, s6, s5\ns_lshl_b32 s6, s6, 3\ns_add_u32 s6, s6, s3\ns_mul_i32 s6, s6, {36*128}\ns_mov_b32 exec_hi, 15')
        A('buffer_load_dword v244, v16, s[24:27], s6 offen sc1\ns_mov_b64 exec, -1')
    for i in range(8):
        A(f's_waitcnt lgkmcnt({14 - 2*i})')
        mfma32(A, DD+4*i, DA+4*i, G, None)
    bstamp(A, cfg, 3, 1)
    for p in range(4):
        for q in range(4): cvt(A, DA+4*p+q, DD+8*p+2*q, DD+8*p+2*q+1)
        A(f'ds_write_b128 v18, {vr(DA+4*p,4)} offset:{p*128}')
    A('s_waitcnt lgkmcnt(0)')
    bstamp(A, cfg, 4, 1)
    A('s_barrier')
    bstamp(A, cfg, 5, 1)
    XF, U, BO, Z, PK = 64, 96, 160, 192, 224
    for h in range(2):
        for sp in range(4): A(f'ds_read_b128 {vr(XF+16*h+4*sp,4)}, v{19+h} offset:{h*4096+sp*1024}')
    wopf(97)
    def stage_c(u, bo, off):
        for sp in range(4):
            for q in range(4): cvt(A, bo+4*sp+q, u+8*sp+2*q, u+8*sp+2*q+1)
        A('s_nop 1')
        for part in range(2):
            for sp in range(4): mfma32(A, Z+16*part+4*sp, F+2*part, bo+4*sp, None)
        A('s_nop 3')
        for part in range(2):
            for i in range(4):
                for q in range(2): cvt(A, PK+4*i+2*part+q, Z+16*part+8*q+i, Z+16*part+8*q+4+i)
                if part: A(f's_add_u32 s7, s101, {i*ZCLS + off}\nbuffer_store_dwordx4 {vr(PK+4*i,4)}, v22, s[8:11], s7 offen sc1')
    A('s_cmp_eq_u32 s58, 0\ns_cbranch_scc1 K_B_W0')
    A('s_waitcnt lgkmcnt(4)')
    for sp in range(4):
        mfma32(A, U+8*sp, XF+4*sp, M, None); mfma32(A, U+8*sp+4, XF+4*sp, M+4, None)
    A('s_waitcnt lgkmcnt(0)')
    for sp in range(4):
        mfma32(A, U+8*sp, XF+16+4*sp, M+8, U+8*sp); mfma32(A, U+8*sp+4, XF+16+4*sp, M, U+8*sp+4)
    A('s_nop 1')
    stage_c(U, BO, 0)
    A('s_branch K_B_SIG')
    A('K_B_W0:')
    A('s_waitcnt lgkmcnt(0)')
    for h in range(2):
        for sp in range(4):
            mfma32(A, U+32*h+8*sp, XF+16*h+4*sp, M+8*h, None); mfma32(A, U+32*h+8*sp+4, XF+16*h+4*sp, M+8*h+4, None)
    stage_c(U, BO, 0)
    stage_c(U+32, BO+16, 8*512)
    A('K_B_SIG:')
    bstamp(A, cfg, 6, 1)
    bstamp(A, cfg, 3, 0)
    AM, SW, ZF, MF, ACC, T = 24, 40, 48, 112, 160, 224
    A('s_and_b32 s30, s5, 3')
    A(f'v_mul_u32_u24 v7, {PITCH}, v4\nv_lshl_add_u32 v12, v3, 4, v7\nv_lshlrev_b32 v7, 15, v4\nv_lshl_add_u32 v13, v3, 4, v7')
    A('s_lshl_b32 s6, s31, 11\ns_lshl_b32 s7, s30, 8\ns_add_u32 s6, s6, s7\ns_add_u32 s34, s6, 1024')
    A('s_cmp_ge_u32 s3, 4\ns_cbranch_scc1 K_B_AUX')
    A(f'v_lshrrev_b32 v8, 1, v4\nv_and_b32 v9, 1, v4\nv_add_u32 v{AM}, {MAT}, v36')
    A('s_sub_u32 s6, 16, s31\ns_and_b32 s6, s6, 15\ns_lshl_b32 s7, s3, 2\ns_sub_u32 s28, 13, s7\ns_sub_u32 s35, 3, s30')
    A('s_cmp_ge_u32 s3, 2\ns_cselect_b32 s6, s6, s31\ns_cselect_b32 s7, s28, s7\ns_cselect_b32 s35, s35, s30\ns_cselect_b32 s58, 0x80008000, 0\ns_cselect_b32 s28, 3, 0\ns_cselect_b32 s29, 7, 0')
    A(f's_mul_i32 s6, s6, {ZCLS}\ns_lshl_b32 s7, s7, 9\ns_add_u32 s6, s6, s7\ns_lshl_b32 s35, s35, 7\ns_add_u32 s35, s35, s6')
    A(f'v_mul_u32_u24 v7, {ZSIG}, v4\nv_lshl_add_u32 v7, v6, 4, v7\nv_bfe_u32 v10, v2, 3, 1\nv_lshlrev_b32 v10, 1, v10\nv_xor_b32 v10, s28, v10\nv_xor_b32 v11, 1, v10')
    A('v_lshl_add_u32 v10, v10, 9, v7\nv_lshl_add_u32 v11, v11, 9, v7')
    A(f'v_mul_u32_u24 v7, {PITCH}, v3\nv_lshl_add_u32 v7, v8, 2, v7\ns_lshl_b32 s6, s3, 3\nv_add_u32 v7, s6, v7\nv_lshlrev_b32 v9, 2, v9\nv_xor_b32 v9, s29, v9')
    for i in range(4): A(f'v_xor_b32 v8, {i}, v9\nv_lshl_add_u32 v{SW+i}, v8, 5, v7')
    def reads(st):
        hf, k = divmod(st, 8); f = MF + 16 * (st % 3)
        return [f'ds_read_b128 {vr(f+4*tt,4)}, v{AM} offset:{(4*hf+tt)*8192 + k*1024}' for tt in range(4)] if st < 16 else []
    A('v_mov_b32 v20, v10\nv_mov_b32 v21, v11\ns_mov_b32 s100, s35')
    A(f's_and_b32 s6, s5, 4\ns_mul_i32 s6, s6, {4*ZSIG}\ns_add_u32 s35, s100, s6\ns_sub_u32 s100, s100, s6')
    A('s_cmp_lg_u32 s3, 2\ns_cbranch_scc1 K_B_RDY_X\nv_lshlrev_b32 v7, 2, v6')
    poll(A, 'K_B_RDY', 9, 7, 16, 0, 1)
    A('s_waitcnt vmcnt(0)')
    bstamp(A, cfg, 4, 0)
    A('s_barrier')
    A('s_cmp_lg_u32 s3, 3\ns_cbranch_scc1 K_B_POLL_X')
    if cfg.batom:
        R = cfg.batom
        A(f's_mov_b32 s6, {BFLAG}\ns_mov_b64 exec, {(1 << R) - 1}\nbuffer_atomic_add v15, v16, s[60:63], s6 offen\ns_mov_b64 exec, -1')
        A(f's_and_b32 s7, s4, {R-1}\ns_lshl_b32 s7, s7, 7\ns_add_u32 s7, s7, s6')
        poll(A, 'K_B_POLL', 9, 14, 60, 's7', 64)
    else:
        A(f's_lshl_b32 s6, s4, 3\ns_add_u32 s6, s6, s5\ns_lshl_b32 s6, s6, 7\ns_add_u32 s6, s6, {BFLAG}\ns_mov_b32 s7, {BFLAG}')
        A('v_cmp_eq_u32 vcc, 0, v2\ns_and_saveexec_b64 s[98:99], vcc\nbuffer_store_dword v15, v14, s[60:63], s6 offen sc1\ns_mov_b64 exec, s[98:99]')
        poll(A, 'K_B_POLL', 9, 16, 60, 's7', 1)
    A('s_barrier')
    bstamp(A, cfg, 5, 0)
    for k in range(8):
        A(f's_add_u32 s7, s{35 if k < 4 else 100}, {k*4*ZSIG}')
        for a in range(2): A(f'buffer_load_dwordx4 {vr(ZF+8*k+4*a,4)}, v{20+a}, s[8:11], s7 offen sc1')
        if k == 1:
            for r in reads(0) + reads(1): A(r)
    def stage_out(hf):
        return [f'v_cvt_pk_bf16_f32 v{T+4*tt+i}, v{ACC+32*hf+8*tt+i}, v{ACC+32*hf+8*tt+4+i}\nds_write_b32 v{SW+i}, v{T+4*tt+i} offset:{(4*hf+tt)*16*PITCH}' for tt in range(4) for i in range(4)]
    so = stage_out(0)
    nw = lambda st: 4 if 9 <= st <= 12 else 0
    for st in range(16):
        hf, k = divmod(st, 8); f = MF + 16 * (st % 3)
        if hf == 0:
            A(f's_waitcnt vmcnt({14-2*k})')
            for a in range(2): A(f'v_xor_b32 v{ZF+8*k+4*a+2}, s58, v{ZF+8*k+4*a+2}\nv_xor_b32 v{ZF+8*k+4*a+3}, s58, v{ZF+8*k+4*a+3}')
        if st == 14: A('s_waitcnt lgkmcnt(4)\ns_barrier')
        else: A(f's_waitcnt lgkmcnt({nw(st-2) + len(reads(st+1)) + nw(st-1)})')
        Mx = [lambda d=ACC+32*hf+8*tt+4*a, x=ZF+8*k+4*a, b=f+4*tt, z=k: mfma32(A, d, x, b, d if z else None) for a in range(2) for tt in range(4)]
        R = reads(st + 2)
        if nw(st): R += so[4*(st-9):4*(st-8)]
        interleave(A, Mx, R)
    bstamp(A, cfg, 6, 0)
    A('s_nop 4')
    for x in stage_out(1): A(x)
    A('s_waitcnt lgkmcnt(0)\ns_branch K_B_FIN')
    A('K_B_AUX:')
    A('s_waitcnt vmcnt(0)')
    bstamp(A, cfg, 4, 0)
    A('s_barrier')
    gen_mat('K_B_GL2', 8 - cfg.gsplit)
    A('s_waitcnt lgkmcnt(0)\ns_barrier')
    bstamp(A, cfg, 5, 0)
    A(f's_sub_u32 s6, s3, 4\ns_mul_i32 s7, s6, {16*PITCH}\nv_add_u32 v7, s7, v12\ns_lshl_b32 s6, s6, 19\ns_add_u32 s6, s6, s34')
    A('s_barrier')
    for n in range(4): A(f'ds_read_b128 {vr(64+4*n,4)}, v7 offset:{n*4*PITCH}')
    for n in range(4):
        A(f's_add_u32 s7, s6, {(4*n) << 15}\ns_waitcnt lgkmcnt({3-n})')
        A(f'buffer_store_dwordx4 {vr(64+4*n,4)}, v13, s[12:15], s7 offen{cfg.outflagb}')
    bstamp(A, cfg, 6, 0)
    A('K_B_FIN:')
    A(f's_mul_i32 s7, s3, {8*PITCH}\nv_add_u32 v7, s7, v12\ns_lshl_b32 s6, s3, 18\ns_add_u32 s6, s6, s34')
    A('s_barrier')
    for n in range(2): A(f'ds_read_b128 {vr(80+4*n,4)}, v7 offset:{(64+4*n)*PITCH}')
    for n in range(2):
        A(f's_add_u32 s7, s6, {(64+4*n) << 15}\ns_waitcnt lgkmcnt({1-n})')
        A(f'buffer_store_dwordx4 {vr(80+4*n,4)}, v13, s[12:15], s7 offen{cfg.outflagb}')
    stamp_store(A, cfg, 8)
    A('s_endpgm')

def main():
    ap = argparse.ArgumentParser()
    ap.add_argument('-o', default=f'cdna_kernels/{NAME}.s')
    ap.add_argument('--diag', action='store_true')
    ap.add_argument('--xa', default='3,10,10,10,10,10,10,6')
    ap.add_argument('--pre', type=int, default=4); ap.add_argument('--opre', type=int, default=9)
    ap.add_argument('--outflag', default='sc1'); ap.add_argument('--outflagb', default='sc1')
    ap.add_argument('--rot', type=int, default=5); ap.add_argument('--rotx', type=int, default=1); ap.add_argument('--q3', type=int, default=0)
    ap.add_argument('--help_', dest='help', type=int, default=0); ap.add_argument('--help0', type=int, default=1)
    ap.add_argument('--hbar', type=int, default=1)
    ap.add_argument('--cpf', type=int, default=2)
    ap.add_argument('--swap', type=int, default=1); ap.add_argument('--hsplit', type=int, default=4)
    ap.add_argument('--gsplit', type=int, default=3); ap.add_argument('--goks', type=int, default=2)
    ap.add_argument('--xpf', type=int, default=1); ap.add_argument('--xprio', type=int, default=0)
    ap.add_argument('--c3', type=int, default=0)
    ap.add_argument('--chk', type=int, default=12)
    ap.add_argument('--cgx', type=int, default=1); ap.add_argument('--wopf', type=int, default=0)
    ap.add_argument('--batom', type=int, default=0)
    ap.add_argument('--clean', type=int, default=0); ap.add_argument('--b9', type=int, default=14)
    ap.add_argument('--chk2', type=int, default=10)
    ap.add_argument('--pk', type=int, default=1)
    ap.add_argument('--c3b', type=int, default=2); ap.add_argument('--c3n', type=int, default=6)
    ap.add_argument('--womall', type=int, default=1); ap.add_argument('--pwb', type=int, default=1)
    ap.add_argument('--gon', type=int, default=8)
    ap.add_argument('--rot0', type=int, default=0)
    ap.add_argument('--bfirst', type=int, default=0)
    ap.add_argument('--xs', type=int, default=8)
    ap.add_argument('--smap', type=int, default=0)
    ap.add_argument('--kst', type=int, default=0); ap.add_argument('--cprio', type=int, default=2)
    ap.add_argument('--c3a', type=int, default=1)
    ap.add_argument('--pwpos', type=int, default=0)
    ap.add_argument('--bst', type=int, default=0)
    ap.add_argument('--warmat', type=int, default=7); ap.add_argument('--n1', type=int, default=60)
    cfg = ap.parse_args()
    cfg.xa = [int(x) for x in cfg.xa.split(',')]
    if cfg.outflag: cfg.outflag = ' ' + cfg.outflag.replace('+', ' ')
    if cfg.outflagb: cfg.outflagb = ' ' + cfg.outflagb.replace('+', ' ')
    A = Asm()
    A(f'; @launch grid=(256,1,1) block=(512,1,1) lds={LDS_TOTAL}')
    A('.amdgcn_target "amdgcn-amd-amdhsa--gfx950"\n.text')
    kernel(A, cfg)
    A(f""".section .rodata,"a"
.p2align 6
.amdhsa_kernel {NAME}_kernel
.amdhsa_next_free_vgpr 256
.amdhsa_next_free_sgpr 102
.amdhsa_accum_offset 256
.amdhsa_group_segment_fixed_size 0
.amdhsa_kernarg_size 88
.amdhsa_user_sgpr_count 2
.amdhsa_user_sgpr_kernarg_segment_ptr 1
.amdhsa_system_sgpr_workgroup_id_x 1
.end_amdhsa_kernel""")
    open(cfg.o, 'w').write(A.text())
main()
```

```python
import sys, argparse
NAME = 'concat_heads__sliding_local_dilated__spectral_fnet__prompt'

class Asm:
    def __init__(self): self.L = []
    def __call__(self, s):
        for line in s.split('\n'):
            line = line.strip()
            if line: self.L.append(line if line.endswith(':') or line.startswith('.') or line.startswith(';') else '    ' + line)
    def text(self): return '\n'.join(self.L) + '\n'

def vr(b, n): return f'v[{b}:{b+n-1}]' if n > 1 else f'v{b}'
def srd(A, d, lo, size):
    A(f's_mov_b32 s{d}, s{lo}\ns_mov_b32 s{d+1}, s{lo+1}\ns_mov_b32 s{d+2}, {size:#x}\ns_mov_b32 s{d+3}, 0x20000')
def srd_off(A, d, lo, off, size):
    A(f's_add_u32 s{d}, s{lo}, {off:#x}\ns_addc_u32 s{d+1}, s{lo+1}, 0\ns_mov_b32 s{d+2}, {size:#x}\ns_mov_b32 s{d+3}, 0x20000')
def mfma32(A, d, a, b, c): A(f'v_mfma_f32_16x16x32_bf16 {vr(d,4)}, {vr(a,4)}, {vr(b,4)}, {vr(c,4) if c is not None else 0}')
def mfma16(A, d, a, b, c): A(f'v_mfma_f32_16x16x16_bf16 {vr(d,4)}, {vr(a,2)}, {vr(b,2)}, {vr(c,4) if c is not None else 0}')
def cvt(A, d, a, b): A(f'v_cvt_pk_bf16_f32 v{d}, v{a}, v{b}')

P_AX, P_WQKV, P_WO, P_BX, P_CR, P_CI, P_DR, P_DI, P_OUT, P_DBG, P_WS = 36, 38, 40, 42, 44, 46, 48, 50, 52, 54, 56
WS_O, O_SIZE, WS_Z, Z_SIZE, WS_FLAG, FLAG_SIZE, WS_DIAG = 0, 0x240000, 0x280000, 0x240000, 0x500000, 0x10000, 0x800000
ZSIG, ZCLS = 4608, 147456
GFLAG, BFLAG = 192 * 128, 384 * 128
LDS_TOTAL, LDS_WORD = 163840, 147456
OOB = 0x80000000
SPIN = 400000
SLEEP = 0

def interleave(A, mf, other, per_gap=1, start=0):
    oi = 0
    for i, m in enumerate(mf):
        m()
        if i >= start:
            for _ in range(per_gap):
                if oi < len(other): A(other[oi]); oi += 1
    while oi < len(other): A(other[oi]); oi += 1

def stamp(A, cfg, slot):
    if cfg.diag: A(f's_memrealtime s[{64+4*slot}:{65+4*slot}]\ns_memtime s[{66+4*slot}:{67+4*slot}]')
def stamp_store(A, cfg, nslots):
    if not cfg.diag: return
    A('s_waitcnt lgkmcnt(0) vmcnt(0)')
    stamp(A, cfg, nslots - 1)
    A('s_waitcnt lgkmcnt(0)')
    srd_off(A, 24, P_WS, WS_DIAG, 0x100000)
    A(f's_lshl_b32 s4, s2, 3\ns_add_u32 s4, s4, s3\ns_lshl_b32 s4, s4, 6')
    for i in range(8): A(f'v_mov_b32 v{8+i}, s{64+4*min(i, nslots-1)}\nv_mov_b32 v{16+i}, s{66+4*min(i, nslots-1)}')
    A('v_mov_b32 v1, 0\nv_and_b32 v2, 63, v0\nv_cmp_eq_u32 vcc, 0, v2\ns_and_saveexec_b64 s[6:7], vcc')
    for i in range(4): A(f'buffer_store_dwordx4 v[{8+4*i}:{11+4*i}], v1, s[24:27], s4 offen offset:{16*i}')


def loader_loop(A, items, ends, X, after=None):
    done = 0
    for c in range(len(ends)):
        upto = min(len(items), ends[c] + X[min(c, len(X) - 1)])
        while done < upto and items[done][1] <= c:
            items[done][0](); done += 1
        assert done >= ends[c]
        A(f's_waitcnt vmcnt({done - ends[c]})')
        A('s_barrier')
    if after: after()
    while done < len(items):
        items[done][0](); done += 1

def poll(A, label, vdst, vaddr, srdn, soff, want, first=True):
    A(f's_mov_b32 s28, 0')
    A(f'{label}:')
    A(f'buffer_load_dword v{vdst}, v{vaddr}, s[{srdn}:{srdn+3}], {soff} offen sc1')
    A(f's_add_u32 s28, s28, 1\ns_cmp_ge_u32 s28, {SPIN}\ns_cbranch_scc1 {label}_X')
    A('s_waitcnt vmcnt(0)')
    A(f'v_cmp_ne_u32 vcc, {want}, v{vdst}')
    A(f's_cmp_lg_u64 vcc, 0\ns_cbranch_scc1 {label}')
    A(f'{label}_X:')

A1_SLOT = 36864

def kernel(A, cfg):
    A(f'.globl {NAME}_kernel\n.p2align 8\n.type {NAME}_kernel,@function\n{NAME}_kernel:')
    A('s_load_dwordx16 s[36:51], s[0:1], 0\ns_load_dwordx4 s[52:55], s[0:1], 64\ns_load_dwordx2 s[56:57], s[0:1], 80')
    A('s_cmp_ge_u32 s2, 256\ns_cbranch_scc1 K_END')
    stamp(A, cfg, 0)
    if cfg.cpf == 2:
        A(f's_getpc_b64 s[8:9]\nK_PC:\ns_sub_u32 s8, s8, K_PC-{NAME}_kernel\ns_subb_u32 s9, s9, 0\ns_mov_b32 s10, K_END-{NAME}_kernel\ns_mov_b32 s11, 0x20000')
        A('s_lshr_b32 s5, s2, 3\ns_lshl_b32 s5, s5, 10\nv_lshlrev_b32 v1, 4, v0\nv_cmp_gt_u32 vcc, 64, v0\ns_and_saveexec_b64 s[6:7], vcc\ns_cbranch_execz K_NOPF')
        A('buffer_load_dwordx4 v[248:251], v1, s[8:11], s5 offen\nK_NOPF:\ns_mov_b64 exec, s[6:7]')
    A('v_lshrrev_b32 v1, 6, v0\nv_and_b32 v2, 63, v0')
    A('v_readfirstlane_b32 s3, v1')
    A('s_and_b32 s4, s2, 7\ns_lshr_b32 s5, s2, 3')
    A('v_and_b32 v3, 15, v2\nv_lshrrev_b32 v4, 4, v2')
    A('v_lshrrev_b32 v5, 3, v2\nv_and_b32 v6, 7, v2')
    A('s_cmp_ge_u32 s5, 24\ns_cbranch_scc1 K_B')
    A('s_mul_i32 s7, s4, 3\ns_lshr_b32 s28, s5, 3\ns_add_u32 s59, s7, s28\ns_and_b32 s29, s5, 7')
    A('s_and_b32 s30, s59, 1\ns_lshr_b32 s31, s59, 1\ns_mul_i32 s32, s31, 88')
    if cfg.swap: A('s_xor_b32 s3, s3, 4')
    A('s_getreg_b32 s96, hwreg(HW_REG_XCC_ID, 0, 4)\ns_add_u32 s96, s96, 0x100')
    A('s_cmp_ge_u32 s3, 4\ns_cbranch_scc0 K_A_CONS')
    a_loader(A, cfg)
    A('K_A_CONS:')
    a_consumer(A, cfg)
    A('K_B:')
    b_all(A, cfg)
    A('K_END:\ns_endpgm')

def a_loader(A, cfg):
    AW, WF, OF, ACC, NB, NO = 24, 36, 180, 220, 9, 10
    STAGE = 2 * A1_SLOT
    A('s_mul_i32 s97, s28, 3')
    if cfg.rot == 1: A('s_mov_b32 s63, 0')
    elif cfg.rot == 2: A('s_xor_b32 s63, s28, s5\ns_and_b32 s63, s63, 1\ns_lshl_b32 s63, s63, 2')
    elif cfg.rot == 3: A('s_mov_b32 s63, s97')
    if cfg.rot == 5:
        def tri(b, g): return [b + (g + i) % 3 for i in range(3)]
        def pair(b, g): return [b + (g & 1), b + 1 - (g & 1)]
        def word(p, g):
            o = [tri(0, g) + tri(3, g) + pair(6, g), [0] + tri(1, g) + tri(4, g) + [7], pair(0, g) + tri(2, g) + tri(5, g)][p]
            return sum(c << (4 * i) for i, c in enumerate(o))
        A('s_mov_b32 s63, 0\ns_mul_i32 s6, s29, 11\ns_lshr_b32 s6, s6, 5\ns_mul_i32 s6, s6, 3\ns_sub_u32 s6, s29, s6\ns_add_u32 s6, s6, s97')
        A(f's_mov_b32 s101, {word(0, 0):#x}')
        for g in range(3):
            for p in range(3):
                if p or g: A(f's_cmp_eq_u32 s6, {p + 3*g}\ns_cselect_b32 s101, {word(p, g):#x}, s101')
        A('s_cmp_eq_u32 s29, 3\ns_cselect_b32 s101, 0x76543210, s101')
    if cfg.q3: A('s_cmp_eq_u32 s29, 3\ns_cselect_b32 s63, s97, s63')
    if cfg.rotx: A(f's_mul_i32 s62, s4, {cfg.rotx}\ns_add_u32 s63, s63, s62')
    if cfg.rot0: A(f's_add_u32 s63, s63, {cfg.rot0}')
    A('s_sub_u32 s33, s3, 4')
    A('s_mul_i32 s6, s33, 24')
    for j in range(3):
        A(f'v_add_u32 v7, s6, v5\nv_add_u32 v7, {8*j}, v7')
        A('v_lshrrev_b32 v8, 1, v7\nv_and_b32 v8, 7, v8\nv_xor_b32 v8, v8, v6\nv_lshlrev_b32 v8, 4, v8')
        A('v_add_u32 v7, s32, v7\nv_lshlrev_b32 v7, 1, v7\nv_add_u32 v7, s30, v7')
        A(f'v_lshl_add_u32 v{10+j}, v7, 10, v8')
    A('s_lshl_b32 s6, s33, 4\ns_lshl_b32 s7, s29, 7\ns_movk_i32 s28, 3072')
    for par in range(2):
        A(f'v_add_u32 v7, s6, v5\nv_add_u32 v7, {8*par}, v7')
        A('v_mul_lo_u32 v7, v7, s28\nv_add_u32 v7, s7, v7')
        A(f'v_and_b32 v8, 1, v4\nv_or_b32 v8, {2*par}, v8\nv_lshlrev_b32 v8, 1, v8\nv_xor_b32 v8, v8, v6')
        A(f'v_lshl_add_u32 v{13+par}, v8, 4, v7')
    A('s_mul_i32 s34, s33, 3072')
    A('s_mul_i32 s35, s33, 6144\ns_add_u32 s35, s35, 12288')
    A('s_waitcnt lgkmcnt(0)')
    srd(A, 8, P_AX, 0x200000); srd(A, 12, P_WQKV, 0x180000)
    stamp(A, cfg, 1)
    def issue(c, j):
        base = (c % 4) * A1_SLOT
        if j < 3:
            if j == 0 and cfg.rot == 5: A(f's_bfe_u32 s62, s101, {0x40000 + 4*c:#x}\ns_add_u32 s62, s62, s63\ns_and_b32 s62, s62, 7\ns_lshl_b32 s6, s62, 7')
            elif j == 0: A(f's_add_u32 s62, s63, {c}\ns_and_b32 s62, s62, 7\ns_lshl_b32 s6, s62, 7')
            A(f's_add_u32 m0, s34, {base + j*1024}\ns_nop 0')
            A(f'buffer_load_dwordx4 v{10+j}, s[8:11], s6 offen lds')
        else:
            par, seg = divmod(j - 3, 3)
            if j == 3: A(f's_mul_i32 s7, s62, 196608')
            if seg == 0: A(f's_add_u32 m0, s35, {base + par*3072}\ns_nop 0')
            A(f'buffer_load_dwordx4 v{13+par}, s[12:15], s7 offen offset:{seg*1024} lds')
    def late_setup():
        srd(A, 16, P_WO, 0x80000); srd_off(A, 20, P_WS, WS_O, O_SIZE)
        A('s_lshl_b32 s60, s33, 3\nv_add_u32 v7, s60, v5\ns_and_b32 s60, s33, 1\ns_lshl_b32 s60, s60, 1\ns_xor_b32 s61, s29, ' + str(cfg.cgx) + '\ns_lshl_b32 s61, s61, 7')
        A('v_and_b32 v8, 1, v4\nv_or_b32 v8, s60, v8\nv_lshlrev_b32 v8, 1, v8\nv_xor_b32 v8, v8, v6\nv_lshlrev_b32 v8, 4, v8')
        A('v_lshl_add_u32 v15, v7, 10, v8\nv_add_u32 v15, s61, v15')
        A('s_lshl_b32 s58, s33, 10')
        A(f's_mul_i32 s60, s33, 24\nv_add_u32 v7, s60, v2\nv_lshrrev_b32 v8, 4, v7\nv_lshlrev_b32 v8, 14, v8\nv_and_b32 v7, 15, v7\nv_lshl_add_u32 v7, v7, 7, v8')
        A(f'v_mov_b32 v8, {OOB:#x}\nv_cmp_le_u32 vcc, 24, v2\ns_mul_i32 s60, s59, {6*16384}\ns_lshl_b32 s61, s29, 11\ns_add_u32 s98, s60, s61\nv_cndmask_b32 v16, v7, v8, vcc')
        A(f'v_mov_b32 v17, {LDS_WORD}\nv_mov_b32 v18, 0\nv_mov_b32 v19, 0\nds_write_b64 v17, v[18:19]\nds_write_b64 v17, v[18:19] offset:8\nds_write_b64 v17, v[18:19] offset:16\nds_write_b64 v17, v[18:19] offset:24\ns_waitcnt lgkmcnt(0)\nv_mov_b32 v18, 1')
        srd(A, 44, P_OUT, 0x400000)
        A('v_bfe_u32 v7, v2, 2, 2\nv_lshrrev_b32 v8, 1, v7\nv_and_b32 v9, 1, v4\nv_lshl_or_b32 v8, v9, 1, v8')
        A('v_lshlrev_b32 v9, 10, v4\nv_lshl_add_u32 v9, v7, 7, v9\nv_and_b32 v7, 3, v2\nv_lshl_add_u32 v9, v7, 3, v9')
        for nt in range(4): A(f'v_xor_b32 v7, {nt}, v8\nv_lshl_add_u32 v{AW+nt}, v7, 5, v9')
        A('v_lshlrev_b32 v33, 4, v2')
        A(f's_mul_i32 s60, s33, {32*144}\ns_add_u32 s60, s60, {STAGE}')
        A('v_mul_u32_u24 v30, 144, v3\nv_lshl_add_u32 v30, v4, 3, v30\nv_add_u32 v30, s60, v30')
        A('v_mul_u32_u24 v31, 144, v5\nv_lshl_add_u32 v31, v6, 4, v31\nv_add_u32 v31, s60, v31')
        A('v_lshlrev_b32 v32, 12, v5\nv_lshl_add_u32 v32, v6, 4, v32')
        A('s_lshl_b32 s60, s32, 12\ns_lshl_b32 s61, s30, 11\ns_add_u32 s60, s60, s61\ns_xor_b32 s61, s29, ' + str(cfg.cgx) + '\ns_lshl_b32 s61, s61, 7\ns_add_u32 s42, s60, s61')
        A('s_lshl_b32 s60, s33, 16\ns_add_u32 s48, s42, s60\ns_add_u32 s49, s48, 0x8000\ns_lshr_b32 s61, s33, 1\ns_add_u32 s61, s61, 4\ns_lshl_b32 s60, s61, 16\ns_add_u32 s50, s42, s60\ns_add_u32 s51, s50, 0x8000')
        A(f's_mul_i32 s42, s59, {6*16384}\ns_lshl_b32 s60, s33, 14\ns_add_u32 s43, s42, s60\ns_lshl_b32 s60, s61, 14\ns_add_u32 s42, s42, s60')
        A(f's_lshr_b32 s60, s33, 1\ns_lshl_b32 s61, s60, 12\ns_add_u32 s61, s61, {STAGE + 4*32*144}\nv_add_u32 v28, s61, v33\ns_lshl_b32 s60, s60, 2\nv_add_u32 v29, s60, v17')
        A('s_cmp_lg_u32 s31, 0\ns_cselect_b32 s60, 1, 0\ns_cmp_eq_u32 s33, 0\ns_cselect_b32 s60, s60, 0\ns_cmp_lg_u32 s60, 0\ns_cselect_b32 s48, 0x40000000, s48')
    def wo(n):
        A(f's_add_u32 s62, s97, {n}\ns_and_b32 s62, s62, 15')
        A('s_lshl_b32 s6, s62, 12\ns_add_u32 m0, s58, s6\ns_lshl_b32 s6, s62, 15')
        A('buffer_load_dwordx4 v15, s[16:19], s6 offen lds')
    def side():
        srd_off(A, 88, P_WS, WS_FLAG, FLAG_SIZE); srd(A, 24, P_DBG, 256)
        A(f'v_lshlrev_b32 v20, 2, v6\nv_lshlrev_b32 v21, 7, v6\ns_lshl_b32 s100, s59, 10\ns_lshr_b32 s97, s5, 3\ns_mul_i32 s97, s97, 5\ns_mov_b64 exec, 0xff')
        A('buffer_load_dword v22, v20, s[24:27], 0 offen sc1\ns_mov_b64 exec, -1')
    def gocheck():
        A('s_mov_b64 exec, 0xff\nv_cmp_ne_u32 vcc, 1, v22\ns_cmp_eq_u64 vcc, 0\ns_cbranch_scc1 K_A_RDY_X')
        poll(A, 'K_A_RDY', 9, 20, 24, 0, 1)
        A('ds_write_b32 v17, v18 offset:24\ns_mov_b64 exec, -1')
    items = [(lambda c=c, j=j: issue(c, j), max(0, c - 2)) for c in range(8) for j in range(9)]
    ends = [9 * (c + 1) for c in range(8)]
    if cfg.xpf == 2:
        def xp(n):
            if n == 0:
                A('s_lshl_b32 s60, s29, 2\ns_add_u32 s60, s60, s33\ns_mul_i32 s60, s60, 3\ns_add_u32 s60, s60, s32\ns_lshl_b32 s60, s60, 1\ns_add_u32 s60, s60, s30\ns_lshl_b32 s60, s60, 10\nv_lshlrev_b32 v7, 4, v2')
                A('s_and_b32 s62, s63, 7' if cfg.rot != 5 else 's_and_b32 s62, s101, 7\ns_add_u32 s62, s62, s63\ns_and_b32 s62, s62, 7')
            if n == 2: A('s_add_u32 s60, s60, 4096')
            A(f'buffer_load_dwordx4 v[244:247], v7, s[8:11], s60 offen offset:{(n&1)*2048}')
        items = [(lambda n=n: xp(n), 0) for n in range(3)] + items[3:9] + items[0:3] + items[9:]
        ends = [e + 3 for e in ends]
    k0 = ends[0] + cfg.xa[0] - 1
    items[k0] = (lambda f=items[k0][0]: (f(), late_setup()), items[k0][1])
    items += [(side, 0), (lambda: A('s_mov_b64 exec, 0xff\nbuffer_load_dword v251, v21, s[88:91], s100 offen sc1\ns_mov_b64 exec, -1'), 0)]
    def wo2(n):
        if n == cfg.gon: A(f's_waitcnt vmcnt({n + 1 + (0 if cfg.pwb else cfg.pwpos <= n)})'); gocheck()
        wo(n)
    tail = [(lambda n=n: wo2(n), 7) for n in range(16)]
    if not cfg.pwb: tail.insert(cfg.pwpos, (lambda: A('buffer_load_dword v250, v16, s[20:23], s98 offen sc1'), 0))
    items += tail
    loader_loop(A, items, ends, cfg.xa)
    srd_off(A, 8, P_WS, WS_FLAG, FLAG_SIZE)
    stamp(A, cfg, 2)
    A(f'v_mov_b32 v8, v21\ns_mov_b32 s7, s100\ns_add_u32 s6, s7, {GFLAG}')
    A(f's_waitcnt vmcnt({1 if cfg.pwpos == 16 and not cfg.pwb else 0})\ns_mov_b64 exec, 1\nds_add_u32 v17, v18 offset:8\ns_mov_b64 exec, -1')
    A('K_A_LW:\nds_read_b32 v9, v17 offset:8\ns_waitcnt lgkmcnt(0)\nv_cmp_ne_u32 vcc, 4, v9\ns_cmp_lg_u64 vcc, 0\ns_cbranch_scc1 K_A_LW')
    stamp(A, cfg, 3)
    order = [0, 1, 2, 3, 4, 5, 8, 9, 10, 11, 12, 13, 14, 15, 6, 7]
    def reads(st):
        if st > 15: return []
        f = WF + 16 * (st % NB); ks = order[st]
        return [f'ds_read_b64_tr_b16 {vr(f+4*nt+2*u,2)}, v{AW+nt} offset:{ks*4096+u*512}' for nt in range(4) for u in range(2)]
    for st in range(NB):
        for r in reads(st): A(r)
    A('s_mov_b32 s28, 0\ns_mov_b32 s99, 0\ns_mov_b32 s94, 0xf7f7f7f7\ns_mov_b32 s95, 0xf7f7f7f7')
    def wait_flags(tag, masked):
        A(f's_mov_b64 exec, 0xff\nK_A_P1{tag}:')
        A('buffer_load_dword v9, v8, s[8:11], s100 offen sc1\ns_add_u32 s28, s28, 1\ns_waitcnt vmcnt(0)')
        A('v_cmp_ne_u32 vcc, s96, v9')
        if masked: A(f's_mov_b64 s[92:93], vcc\ns_and_b64 vcc, vcc, s[94:95]\ns_cbranch_scc0 K_A_GO{tag}')
        else: A(f's_cmp_eq_u64 vcc, 0\ns_cbranch_scc1 K_A_GO{tag}')
        A(f's_cmp_lt_u32 s28, {cfg.n1}\ns_cbranch_scc1 K_A_P1{tag}')
        A('ds_write_b32 v17, v18\ns_mov_b32 s99, 1\ns_mov_b64 s[92:93], 0\ns_waitcnt lgkmcnt(0)\ns_barrier')
        A(f'K_A_P2{tag}:')
        A('buffer_load_dword v9, v8, s[8:11], s100 offen sc1\nbuffer_load_dword v10, v8, s[8:11], s6 offen sc1\ns_add_u32 s28, s28, 1\ns_waitcnt vmcnt(0)')
        A(f'v_cmp_ne_u32 vcc, s96, v9\ns_cmp_eq_u64 vcc, 0\ns_cbranch_scc1 K_A_GO{tag}')
        A(f'v_cmp_ne_u32 vcc, 1, v10\ns_cmp_eq_u64 vcc, 0\ns_cbranch_scc1 K_A_GO{tag}')
        A(f's_cmp_lt_u32 s28, {SPIN}\ns_cbranch_scc1 K_A_P2{tag}')
        A(f'K_A_GO{tag}:\ns_mov_b64 exec, -1')
    wait_flags('A', bool(cfg.two))
    stamp(A, cfg, 4)
    A('s_bitcmp1_b32 s33, 0\ns_cbranch_scc1 K_A_ODD')
    PART = WF + 16 * 7
    def gemm2(odd):
        tag = 'O' if odd else 'E'
        has = lambda st: (st < 8) == bool(odd)
        L = [(st, a) for st in range(16) for a in range(2) if a == 0 or has(st)]
        reg = {x: OF + 4 * (i % NO) for i, x in enumerate(L)}
        first_q3 = min(i for i, x in enumerate(L) if x[0] >= 14) if cfg.two else len(L)
        need = lambda st: sum(1 for x in L if x[0] <= st)
        vq = []
        lq = []
        def oload(i):
            st, a = L[i]; ks = order[st]; vq.append(i)
            return f's_add_u32 s7, s{42 if a else 43}, {(ks & ~3)*1024}\nbuffer_load_dwordx4 {vr(reg[L[i]],4)}, v33, s[20:23], s7 offen offset:{(ks&3)*1024} sc1'
        def after(q, keys):
            pos = [k for k, x in enumerate(q) if x in keys]
            return len(q) - 1 - max(pos) if pos else None
        issued = min(cfg.opre, NO)
        for i in range(issued): A(oload(i))
        CHK = (cfg.chk2 if odd else cfg.chk) if cfg.two else 99
        for st in range(16):
            f = WF + 16 * (st % NB)
            if st == CHK:
                assert issued == first_q3 and len(L) - need(st - 1) <= NO
                A(f's_waitcnt vmcnt({after(vq, ["flag"])})\nv_cmp_ne_u32 vcc, s96, v9\ns_and_b64 vcc, vcc, s[92:93]\ns_cbranch_scc0 K_A_GOB{tag}')
                wait_flags('B' + tag, False)
                for i in range(first_q3, len(L)): A(oload(i))
                issued = len(L)
            keys = [('w', st)] + (['pw'] if odd and st == 11 else []) + (['pf'] if not odd and st == 15 else [])
            lg = 0 if st == 0 else after(lq, keys)
            A(f's_waitcnt vmcnt({after(vq, [need(st) - 1])})' + (f' lgkmcnt({min(lg, 14)})' if lg is not None else ''))
            if st == 0: stamp(A, cfg, 5)
            if odd and st == 11: A('ds_write_b32 v29, v18 offset:16'); lq.append('x')
            if not odd and st == 15:
                A('s_mov_b32 s28, 0\nK_A_PW:\nv_cmp_ne_u32 vcc, 1, v10\ns_cmp_eq_u64 vcc, 0\ns_cbranch_scc1 K_A_PWX\nds_read_b32 v10, v29 offset:16\ns_add_u32 s28, s28, 1')
                A('s_cmp_lg_u32 s28, 64\ns_cbranch_scc1 K_A_PWN\ns_cmp_lg_u32 s99, 0\ns_cbranch_scc1 K_A_PWN\ns_mov_b32 s99, 1\ns_barrier\nK_A_PWN:\ns_waitcnt lgkmcnt(0)\ns_branch K_A_PW\nK_A_PWX:')
            M = [lambda d=ACC+16*a+4*nt, x=f+4*nt, b=reg[(st, a)], z=(st & 7 if a else st): mfma32(A, d, x, b, d if z else None) for a in range(2) if (st, a) in reg for nt in range(4)]
            O = []
            while issued < first_q3 and issued < need(st - 1) + NO: O.append(oload(issued)); issued += 1
            if st == CHK - (4 if odd else 3):
                O.append('s_mov_b64 exec, 0xff\nbuffer_load_dword v9, v8, s[8:11], s100 offen sc1\ns_mov_b64 exec, -1'); vq.append('flag')
            if not odd and st == 14: O.append('ds_read_b32 v10, v29 offset:16'); lq.append('pf')
            rs = st + NB - 1 if odd else st + 2
            if NB <= rs <= 15:
                R = reads(rs); O += [R[2*i] + '\n' + R[2*i+1] for i in range(4)]; lq += [('w', rs)] * 8
            if odd and st in (9, 10): O += [f'ds_write_b128 v28, {vr(ACC+16+4*nt,4)} offset:{nt*1024}' for nt in (2*(st-9), 2*(st-9)+1)]; lq += ['pw'] * 2
            if not odd and st == 15: O += [f'ds_read_b128 {vr(PART+4*nt,4)}, v28 offset:{nt*1024}' for nt in range(4)]; lq += ['pr'] * 4
            interleave(A, M, O)
        stamp(A, cfg, 6)
        T = WF
        A('s_nop 7' if odd else 's_nop 3')
        for a in range(1 if odd else 2):
            if a:
                A('s_waitcnt lgkmcnt(6)')
                for i in range(16): A(f'v_add_f32 v{ACC+16+i}, v{ACC+16+i}, v{PART+i}')
            for nt in range(4):
                d = ACC + 16 * a + 4 * nt; p = T + 8 * a + 2 * nt
                cvt(A, p, d, d+1); cvt(A, p+1, d+2, d+3)
                A(f'ds_write_b64 v30, {vr(p,2)} offset:{a*16*144 + nt*32}')
            for n in (2*a, 2*a+1): A(f'ds_read_b128 {vr(T+16+4*n,4)}, v31 offset:{n*8*144}')
        N = 2 if odd else 4
        for n in range(N):
            A(f's_waitcnt lgkmcnt({(N-1-n) if (odd or n >= 2) else 7-n})')
            A(f'buffer_store_dwordx4 {vr(T+16+4*n,4)}, v32, s[44:47], s{48+n} offen{cfg.outflag}')
        A(f's_cmp_lg_u32 s99, 0\ns_cbranch_scc1 K_A_NOB{tag}\ns_barrier\nK_A_NOB{tag}:')
    gemm2(0)
    A('s_branch K_A_LDONE\nK_A_ODD:')
    gemm2(1)
    A('K_A_LDONE:')
    stamp_store(A, cfg, 8)
    A('s_endpgm')

def a_consumer(A, cfg):
    AX, AW = 20, 28
    ST, MD, MP, BD, ONES = 32, 36, 40, 44, 46
    VX, V1, VS0 = 33, 34, 35
    FR, ACC = 48, 120
    A(f'v_mov_b32 v{VX}, s96\nv_mov_b32 v{V1}, 1\nv_mov_b32 v{VS0}, {OOB:#x}\nv_cmp_ne_u32 vcc, {256 if cfg.swap else 0}, v0\ns_nop 1\nv_cndmask_b32 v{VS0}, 0, v{VS0}, vcc')
    A('s_lshl_b32 s58, s59, 3\ns_add_u32 s58, s58, s29\ns_lshl_b32 s58, s58, 7')
    A('s_lshl_b32 s6, s29, 2\ns_add_u32 s6, s6, s3\ns_mul_i32 s6, s6, 3\ns_add_u32 s6, s6, s32\ns_lshl_b32 s6, s6, 1\ns_add_u32 s6, s6, s30\ns_lshl_b32 s60, s6, 10\nv_lshlrev_b32 v7, 4, v2')
    if cfg.xprio: A('s_setprio 2')
    A('s_waitcnt lgkmcnt(0)')
    if cfg.xpf == 1:
        srd(A, 12, P_AX, 0x200000)
        for n in range(3): A(f's_add_u32 s7, s60, {n*2048}\nbuffer_load_dwordx4 v[244:247], v7, s[12:15], s7 offen')
    if cfg.c3:
        srd(A, 12, P_WQKV, 0x180000)
        A('s_lshl_b32 s7, s5, 2\ns_add_u32 s7, s7, s3\ns_lshl_b32 s7, s7, 14\nv_lshlrev_b32 v8, 10, v5\nv_lshl_add_u32 v8, v6, 4, v8')
        A('buffer_load_dwordx4 v[244:247], v8, s[12:15], s7 offen offset:384\ns_add_u32 s7, s7, 8192\nbuffer_load_dwordx4 v[244:247], v8, s[12:15], s7 offen offset:384')
    srd_off(A, 16, P_WS, WS_FLAG, FLAG_SIZE); srd_off(A, 8, P_WS, WS_O, O_SIZE)
    srd(A, 20, P_DBG, 256)
    A('s_cmp_lg_u32 s5, 0\ns_cbranch_scc1 K_A_NOCLR')
    A('v_mov_b32 v8, 0\nv_mov_b32 v9, 0\nv_mov_b32 v10, 0\nv_mov_b32 v11, 0\nv_lshlrev_b32 v7, 4, v2\ns_lshl_b32 s6, s4, 2\ns_add_u32 s6, s6, s3\ns_lshl_b32 s6, s6, 11')
    A('buffer_store_dwordx4 v[8:11], v7, s[16:19], s6 offen sc1\nbuffer_store_dwordx4 v[8:11], v7, s[16:19], s6 offen offset:1024 sc1\ns_nop 1')
    A('K_A_NOCLR:')
    A('s_lshl_b32 s35, s4, 2')
    A('v_lshrrev_b32 v7, 1, v3\nv_xor_b32 v7, v7, v4\nv_lshlrev_b32 v7, 4, v7\nv_lshl_add_u32 v7, v3, 7, v7')
    A('v_xor_b32 v8, 64, v7')
    for s in range(4):
        A(f'v_add_u32 v{AX+2*s}, {s*A1_SLOT}, v7\nv_add_u32 v{AX+2*s+1}, {s*A1_SLOT}, v8')
    A('v_bfe_u32 v7, v2, 2, 2')
    A('v_lshrrev_b32 v8, 1, v7\nv_and_b32 v9, 1, v4\nv_lshl_or_b32 v8, v9, 1, v8')
    A('v_xor_b32 v8, s3, v8\nv_lshlrev_b32 v8, 5, v8\nv_lshl_add_u32 v8, v7, 7, v8')
    A('v_and_b32 v9, 3, v2\nv_lshl_add_u32 v8, v9, 3, v8')
    A('v_mul_u32_u24 v9, 3072, v4\nv_add_u32 v8, v8, v9')
    for s in range(4): A(f'v_add_u32 v{AW+s}, {s*A1_SLOT+12288}, v8')
    A('v_lshlrev_b32 v7, 2, v4\nv_sub_u32 v7, v3, v7')
    A('v_mov_b32 v9, 0xf149f2ca')
    A('v_mov_b32 v10, 0xffff\nv_mov_b32 v11, 0xffff0000')
    for i in range(4):
        A(f'v_subrev_u32 v8, {i}, v7')
        A(f'v_cmp_le_u32 vcc, 8, v8\ns_nop 1\nv_cndmask_b32 v{MD+i}, 0, v9, vcc')
        A(f'v_cmp_lt_i32 vcc, -9, v8\ns_nop 1\nv_cndmask_b32 v{MP+i}, 0, v9, vcc')
        A(f'v_cmp_le_i32 vcc, 0, v8\ns_nop 1\nv_cndmask_b32 v{12+i}, 0, v{10+(i&1)}, vcc')
    A(f'v_or_b32 v{BD}, v12, v13\nv_or_b32 v{BD+1}, v14, v15')
    A(f'v_mov_b32 v{ONES}, 0x3f803f80\nv_mov_b32 v{ONES+1}, 0x3f803f80')
    A('s_lshl_b32 s6, s29, 2\ns_add_u32 s6, s6, s3\ns_lshl_b32 s6, s6, 9')
    A(f's_mul_i32 s7, s59, {6*16384}\ns_add_u32 s60, s6, s7\ns_add_u32 s61, s60, 0x8000\ns_add_u32 s62, s60, 0x10000')
    A('v_and_b32 v7, 1, v4\nv_lshlrev_b32 v7, 14, v7\nv_lshrrev_b32 v8, 1, v4\nv_lshl_add_u32 v7, v8, 8, v7')
    A(f'v_lshl_add_u32 v{ST}, v3, 4, v7')
    PKS = 24
    A('s_mov_b32 s34, 0x3eb8aa3b\ns_mov_b32 s24, s34\ns_mov_b32 s25, s34')
    def reads(ks):
        c, h = divmod(ks, 2); s = c % 4; f = FR + 36 * (ks & 1); R = []
        def w(seg): return [f'ds_read_b64_tr_b16 {vr(f+24+4*seg+2*u,2)}, v{AW+s} offset:{h*12288+seg*1024+u*512}' for u in range(2)]
        R += w(0)
        R += [f'ds_read_b128 {vr(f+4*t,4)}, v{AX+2*s+h} offset:{t*2048}' for t in range(6)]
        R += w(1) + w(2)
        return R
    def mfmas(ks):
        f = FR + 36 * (ks & 1); M = []
        for seg in range(3):
            for t in range(6):
                d = ACC + 24 * seg + 4 * t; c = d if ks else None
                if seg < 2: M.append(lambda d=d, a=f+24+4*seg, b=f+4*t, c=c: mfma32(A, d, a, b, c))
                else:       M.append(lambda d=d, a=f+4*t, b=f+24+4*seg, c=c: mfma32(A, d, a, b, c))
        return M
    A(f's_setprio {cfg.cprio}\ns_barrier')
    stamp(A, cfg, 1)
    for r in reads(0): A(r)
    for ks in range(16):
        A('s_waitcnt lgkmcnt(0)')
        if cfg.kst and ks in (4, 8, 12): stamp(A, cfg, 1 + ks // 4)
        M = mfmas(ks)
        if ks == 15: interleave(A, M[:12], []); defer += M[12:]
        elif ks & 1:
            pre = cfg.pre
            for m in M[:pre]: m()
            A('s_barrier')
            interleave(A, M[pre:], reads(ks + 1), per_gap=2 if pre > 2 else 1)
        else:
            R = reads(ks + 1)
            if ks == 14: defer = M[12:]; M = M[:12]
            if ks == cfg.goks: R.append('s_waitcnt vmcnt(0)')
            if ks == cfg.goks + 2: R.append(f's_cmp_lg_u32 s5, 0\ns_cbranch_scc1 K_A_NOGO\nbuffer_store_dword v{V1}, v{VS0}, s[20:23], s35 offen sc1\nK_A_NOGO:')
            interleave(A, M, R, per_gap=2 if ks == 14 else 1)
    stamp(A, cfg, 5 if cfg.kst else 2)
    QP, KP, VP, SD, SP, MX, PK, PO, OO, SM, OP = 192, 204, 240, 48, 72, 96, 108, 120, 144, 168, 192
    C = [f'v_cvt_pk_bf16_f32 v{QP+i}, v{ACC+2*i}, v{ACC+2*i+1}' for i in range(24)]
    for m in defer[:2]: m()
    interleave(A, defer[2:], C, per_gap=2)
    A(f'v_mov_b32 v{VP}, 0\nv_mov_b32 v{VP+1}, 0')
    M = []
    for t in range(6):
        M.append(lambda t=t: mfma16(A, SD+4*t, KP+2*t, QP+2*t, MD))
        if t: M.append(lambda t=t: mfma16(A, SP+4*t, KP+2*t-2, QP+2*t, MP))
    V = []
    for t in range(6):
        V.append(f'v_cvt_pk_bf16_f32 v{VP+2+2*t}, v{ACC+48+4*t}, v{ACC+48+4*t+1}')
        V.append(f'v_cvt_pk_bf16_f32 v{VP+3+2*t}, v{ACC+48+4*t+2}, v{ACC+48+4*t+3}')
    interleave(A, M, V)
    for t in range(6):
        if t:
            for i in range(4): A(f'v_max_f32 v{SD+4*t+i}, v{SD+4*t+i}, v{SP+4*t+i}')
        A(f'v_max3_f32 v{MX+t}, v{SD+4*t}, v{SD+4*t+1}, v{SD+4*t+2}')
        A(f'v_max_f32 v{MX+t}, v{MX+t}, v{SD+4*t+3}')
    A('s_nop 1')
    for u in range(3): A(f'v_permlane32_swap_b32 v{MX+2*u}, v{MX+2*u+1}')
    for u in range(3): A(f'v_max_f32 v{MX+2*u}, v{MX+2*u}, v{MX+2*u+1}')
    for u in range(3): A(f'v_mov_b32 v{MX+2*u+1}, v{MX+2*u}')
    A('s_nop 0')
    for u in range(3): A(f'v_permlane16_swap_b32 v{MX+2*u}, v{MX+2*u+1}')
    for u in range(3): A(f'v_max_f32 v{MX+2*u}, v{MX+2*u}, v{MX+2*u+1}')
    for u in range(3): A(f'v_mul_f32 v{MX+2*u}, s34, v{MX+2*u}')
    for u in range(3): A(f'v_mov_b32 v{MX+2*u+1}, v{MX+2*u}')
    A('s_nop 0')
    for u in range(3): A(f'v_permlane32_swap_b32 v{MX+2*u}, v{MX+2*u+1}')
    for t in range(6):
        if cfg.pk:
            for i in (0, 2): A(f'v_pk_fma_f32 {vr(SD+4*t+i,2)}, {vr(SD+4*t+i,2)}, s[{PKS}:{PKS+1}], {vr(MX+(t&~1),2)} op_sel:[0,0,{t&1}] op_sel_hi:[1,1,{t&1}] neg_lo:[0,0,1] neg_hi:[0,0,1]')
        else:
            for i in range(4): A(f'v_fma_f32 v{SD+4*t+i}, v{SD+4*t+i}, s34, -v{MX+t}')
    for t in range(6):
        for i in range(4): A(f'v_exp_f32 v{SD+4*t+i}, v{SD+4*t+i}')
    for t in range(6):
        cvt(A, PK+2*t, SD+4*t, SD+4*t+1); cvt(A, PK+2*t+1, SD+4*t+2, SD+4*t+3)
    for t in range(6):
        A(f'v_and_b32 v{PO+4*t+2}, v{PK+2*t}, v{BD}\nv_and_b32 v{PO+4*t+3}, v{PK+2*t+1}, v{BD+1}')
        A(f'v_xor_b32 v{PO+4*t}, v{PK+2*t}, v{PO+4*t+2}\nv_xor_b32 v{PO+4*t+1}, v{PK+2*t+1}, v{PO+4*t+3}')
        mfma16(A, SM+4*t, ONES, PK+2*t, None)
    A('s_nop 0')
    for t in range(6): mfma32(A, OO+4*t, VP+2*t, PO+4*t, None)
    A('s_nop 1')
    for t in range(6): A(f'v_rcp_f32 v{MX+t}, v{SM+4*t}')
    A('s_nop 1')
    for u in range(3):
        for t in (2*u, 2*u+1):
            if cfg.pk:
                for i in (0, 2): A(f'v_pk_mul_f32 {vr(OO+4*t+i,2)}, {vr(OO+4*t+i,2)}, {vr(MX+(t&~1),2)} op_sel:[0,{t&1}] op_sel_hi:[1,{t&1}]')
            else:
                for i in range(4): A(f'v_mul_f32 v{OO+4*t+i}, v{OO+4*t+i}, v{MX+t}')
        for t in (2*u, 2*u+1):
            cvt(A, OP+2*t, OO+4*t, OO+4*t+1); cvt(A, OP+2*t+1, OO+4*t+2, OO+4*t+3)
        A('s_nop 1')
        A(f'v_permlane16_swap_b32 v{OP+4*u}, v{OP+4*u+2}\nv_permlane16_swap_b32 v{OP+4*u+1}, v{OP+4*u+3}')
        A(f'buffer_store_dwordx4 {vr(OP+4*u,4)}, v{ST}, s[8:11], s{60+u} offen')
    if not cfg.kst: stamp(A, cfg, 3)
    A('s_waitcnt vmcnt(0)')
    if not cfg.kst: stamp(A, cfg, 4)
    A(f'v_mov_b32 v7, {LDS_WORD}\ns_mov_b64 exec, 1\nds_add_rtn_u32 v8, v7, v{V1} offset:12\nds_read_b32 v9, v7 offset:24\nv_mov_b32 v10, 0\ns_waitcnt lgkmcnt(0)')
    A('v_cmp_ne_u32 vcc, 3, v8\ns_cmp_lg_u64 vcc, 0\ns_cbranch_scc1 K_A_NOSIG')
    A('K_A_CW:\nv_cmp_eq_u32 vcc, 1, v9\ns_cmp_lg_u64 vcc, 0\ns_cbranch_scc1 K_A_SIG\nds_read_b32 v9, v7 offset:24\ns_waitcnt lgkmcnt(0)\ns_branch K_A_CW')
    A(f'K_A_SIG:\nbuffer_store_dword v{VX}, v10, s[16:19], s58 offen')
    A('K_A_NOSIG:\ns_mov_b64 exec, -1\ns_setprio 0')
    if not cfg.kst: stamp(A, cfg, 5)
    A(f'v_mov_b32 v7, {LDS_WORD}\ns_barrier\nds_read_b32 v8, v7\ns_waitcnt lgkmcnt(0)\nv_readfirstlane_b32 s6, v8\ns_cmp_eq_u32 s6, 0\ns_cbranch_scc1 ' + ('K_A_CLEAN' if cfg.clean else 'K_A_CDONE'))
    for u in range(3): A(f'buffer_store_dwordx4 {vr(OP+4*u,4)}, v{ST}, s[8:11], s{60+u} offen sc1')
    A(f'v_cmp_eq_u32 vcc, 0, v2\ns_and_saveexec_b64 s[6:7], vcc\ns_waitcnt vmcnt(0)\nds_add_rtn_u32 v8, v7, v{V1} offset:4\ns_waitcnt lgkmcnt(0)')
    A(f'v_readfirstlane_b32 s28, v8\ns_cmp_lg_u32 s28, 3\ns_cbranch_scc1 K_A_CDONE')
    A(f's_add_u32 s58, s58, {GFLAG}\nv_mov_b32 v7, 0\nbuffer_store_dword v{V1}, v7, s[16:19], s58 offen sc1')
    if cfg.clean:
        A('s_branch K_A_CDONE\nK_A_CLEAN:')
        for u in range(3): A(f'buffer_store_dwordx4 {vr(OP+4*u,4)}, v{ST}, s[8:11], s{60+u} offen sc1')
    A('K_A_CDONE:')
    A('s_mov_b64 exec, -1')
    stamp_store(A, cfg, 7)
    A('s_endpgm')

def bstamp(A, cfg, slot, mode):
    if cfg.bst == mode: stamp(A, cfg, slot)

def b_all(A, cfg):
    G, F, M = 32, 38, 44
    X1, MAT, PITCH = 65536, 98304, 272
    A('s_and_b32 s5, s5, 7')
    A('s_lshl_b32 s29, s4, 2\ns_lshr_b32 s6, s5, 1\ns_add_u32 s29, s29, s6')
    A('v_lshlrev_b32 v36, 4, v2\ns_lshr_b32 s32, s3, 1\ns_and_b32 s33, s3, 1\ns_lshl_b32 s35, s3, 13')
    A('v_mov_b32 v14, 0\nv_mov_b32 v15, 1\nv_lshlrev_b32 v16, 7, v2')
    def early(tag=''):
        A('s_and_b32 s30, s5, 1\ns_lshl_b32 s30, s30, 2\ns_add_u32 s58, s30, s32')
        A('s_and_b32 s6, s5, 4\ns_lshl_b32 s31, s6, 1\ns_lshl_b32 s96, s6, 8\ns_cmp_eq_u32 s4, 0\ns_cselect_b32 s31, s31, s4\ns_cselect_b32 s96, 0, s96\ns_add_u32 s96, s96, s31')
        A('v_lshrrev_b32 v7, 2, v2\nv_and_b32 v8, 3, v2\nv_lshlrev_b32 v7, 6, v7\nv_lshl_add_u32 v7, v8, 4, v7\nv_add_u32 v17, s35, v7')
        A('v_bfe_u32 v7, v2, 3, 1\nv_lshl_add_u32 v7, v7, 2, v4\nv_xor_b32 v7, v7, v6\nv_lshlrev_b32 v7, 4, v7\nv_lshl_add_u32 v18, v6, 12, v7')
        A(f's_lshl_b32 s6, s3, 9\ns_add_u32 s6, s6, {X1}\nv_add_u32 v18, s6, v18')
        A(f'v_lshlrev_b32 v7, 6, v3\nv_lshl_add_u32 v7, v4, 4, v7\ns_lshl_b32 s6, s32, 5\nv_xor_b32 v7, s6, v7\ns_lshl_b32 s6, s32, 13\ns_add_u32 s6, s6, {X1}\nv_add_u32 v19, s6, v7\nv_xor_b32 v20, 16, v19')
        A(f's_mov_b32 s6, {4*ZCLS}\nv_mul_lo_u32 v7, v4, s6\nv_lshl_add_u32 v22, v3, 4, v7')
        A(f's_mul_i32 s101, s29, {ZSIG}\ns_lshl_b32 s6, s33, 8\ns_add_u32 s101, s101, s6\ns_lshl_b32 s6, s58, 9\ns_add_u32 s101, s101, s6')
        A('s_lshl_b32 s6, s30, 1\nv_add_u32 v9, s6, v6')
        A('v_cmp_eq_u32 vcc, 1, v9\nv_mov_b32 v23, 16\nv_cvt_f32_u32 v25, v3\nv_cndmask_b32 v9, v9, v23, vcc')
        A('v_lshrrev_b32 v7, 1, v9\nv_and_b32 v8, 1, v9\nv_cvt_f32_u32 v7, v7\nv_cvt_f32_u32 v8, v8\nv_cvt_f32_u32 v9, v4')
        A('v_mul_f32 v7, 0x3d800000, v7\nv_mul_f32 v25, 0x3d800000, v25\nv_mul_f32 v9, 4.0, v9\nv_mul_f32 v24, 0x3e800000, v8\nv_fmac_f32 v24, v7, v9\nv_mul_f32 v23, v25, v9')
        for i in range(4):
            A(f'v_cos_f32 v{96+i}, v24\nv_cos_f32 v{100+i}, v23\nv_sin_f32 v{104+i}, v23')
            if i < 3: A('v_add_f32 v24, v24, v7\nv_add_f32 v23, v23, v25')
        A('v_cmp_lt_u32 vcc, 7, v3')
        cvt(A, 24, 96, 97); cvt(A, 25, 98, 99)
        A(f'v_cndmask_b32 v{G}, v24, v14, vcc\nv_cndmask_b32 v{G+1}, v25, v14, vcc\nv_cndmask_b32 v{G+2}, v14, v24, vcc\nv_cndmask_b32 v{G+3}, v14, v25, vcc')
        for q in range(4): cvt(A, F+q, 100+2*q, 101+2*q)
        A(f'v_xor_b32 v{F+4}, 0x80008000, v{F}\nv_xor_b32 v{F+5}, 0x80008000, v{F+1}')
        def gen_m(dst, extra):
            A(f's_lshl_b32 s6, s33, 8\ns_add_u32 s6, s6, s58\ns_add_u32 s6, s6, {extra}\nv_lshl_add_u32 v7, v3, 4, s6\nv_cvt_f32_u32 v7, v7\nv_mul_f32 v7, 0xbb000000, v7')
            A('v_lshlrev_b32 v8, 3, v4\nv_cvt_f32_u32 v8, v8\nv_mul_f32 v8, v7, v8')
            for i in range(8):
                A(f'v_cos_f32 v{96+i}, v8\nv_sin_f32 v{104+i}, v8')
                if i < 7: A('v_add_f32 v8, v8, v7')
            A('s_nop 0')
            for q in range(8): cvt(A, dst+q, 96+2*q, 97+2*q)
        gen_m(M, 0)
        for i in range(4): A(f'v_xor_b32 v{M+8+i}, 0x80008000, v{M+4+i}')
        A('s_cmp_lg_u32 s58, 0\ns_cbranch_scc1 K_B_NOM8' + tag)
        gen_m(M + 8, 8)
        A('K_B_NOM8' + tag + ':')
    def gen_init():
        A('s_sub_u32 s6, s3, 4\ns_lshl_b32 s6, s6, 8\ns_add_u32 s6, s6, s96\nv_lshl_add_u32 v7, v3, 4, s6\nv_cvt_f32_u32 v7, v7\nv_mul_f32 v240, 0xba000000, v7\nv_mul_f32 v241, 0x41500000, v240')
        A('s_and_b32 s6, s5, 4\ns_lshl_b32 s6, s6, 4\nv_lshl_add_u32 v8, v4, 2, s6\nv_cvt_f32_u32 v242, v8')
        A(f's_lshl_b32 s6, s3, 13\ns_add_u32 s6, s6, {MAT - 32768}\nv_add_u32 v243, s6, v36')
    def gen_mat(label, n):
        if n == 0: return
        A(f's_mov_b32 s7, 0\ns_mov_b32 s6, 0x43000000\n{label}:')
        A('v_mul_f32 v9, v240, v242')
        for half in range(2):
            b = 96 + 8 * half
            for i in range(4):
                A(f'v_cos_f32 v{b+i}, v9\nv_sin_f32 v{b+4+i}, v9' + (f'\nv_add_f32 v9, v9, v{240 if i < 3 else 241}' if (i < 3 or half == 0) else ''))
        A('v_add_f32 v242, 0x42000000, v242')
        for half in range(2):
            for q in range(4): cvt(A, 112+4*half+q, 96+8*half+2*q, 97+8*half+2*q)
            A(f'ds_write_b128 v243, {vr(112+4*half,4)} offset:{half*1024}')
        A(f'v_cmp_le_f32 vcc, s6, v242\nv_add_u32 v243, 2048, v243\nv_subrev_f32 v9, s6, v242\ns_add_u32 s7, s7, 1\nv_cndmask_b32 v242, v242, v9, vcc\ns_cmp_lt_u32 s7, {n}\ns_cbranch_scc1 {label}')
    if cfg.bfirst: early()
    A('s_cmp_ge_u32 s3, 4\ns_cbranch_scc1 K_B_GEN')
    A('s_and_b32 s97, s5, 1\ns_lshl_b32 s97, s97, 2\ns_add_u32 s97, s97, s3')
    if cfg.smap: A('s_lshr_b32 s7, s97, 1\ns_lshl_b32 s7, s7, 5\ns_add_u32 s6, s29, s7\ns_lshl_b32 s7, s33, 10\ns_add_u32 s6, s6, s7\ns_lshl_b32 s34, s6, 10\ns_lshl_b32 s97, s97, 13')
    else: A('s_lshl_b32 s6, s29, 2\ns_lshr_b32 s7, s97, 1\ns_add_u32 s6, s6, s7\ns_lshl_b32 s7, s33, 10\ns_add_u32 s6, s6, s7\ns_lshl_b32 s34, s6, 10\ns_lshl_b32 s97, s97, 13')
    if cfg.cpf == 1:
        A(f's_getpc_b64 s[8:9]\nK_B_PC:\ns_sub_u32 s8, s8, K_B_PC-{NAME}_kernel\ns_subb_u32 s9, s9, 0\ns_mov_b32 s10, K_END-{NAME}_kernel\ns_mov_b32 s11, 0x20000')
        A('s_lshl_b32 s6, s3, 3\ns_add_u32 s6, s6, s5\ns_lshl_b32 s6, s6, 10\nbuffer_load_dwordx4 v[244:247], v36, s[8:11], s6 offen')
    if cfg.help:
        A('s_lshl_b32 s6, s5, 2\ns_add_u32 s6, s6, s3\ns_mul_i32 s28, s6, 9')
        A('s_lshl_b32 s100, s4, 5\ns_add_u32 s100, s100, s6\ns_mul_i32 s100, s100, 768')
    A('s_mov_b32 s7, 0\ns_waitcnt lgkmcnt(0)')
    srd(A, 20, P_BX, 0x200000)
    stamp(A, cfg, 1)
    if cfg.help:
        srd(A, 8, P_AX, 0x200000); srd(A, 12, P_WQKV, 0x180000)
        A('v_cmp_gt_u32 vcc, 48, v2\nv_mov_b32 v10, 0x80000000\ns_mul_i32 s59, s4, 3\nv_cndmask_b32 v10, v10, v36, vcc')
        for n in range(9):
            A(f's_add_u32 s6, s28, {n}\ns_mul_i32 s58, s6, 683\ns_lshr_b32 s58, s58, 16\ns_mul_i32 s30, s58, 96\ns_sub_u32 s6, s6, s30\ns_add_u32 s58, s58, s59')
            A('s_lshr_b32 s30, s58, 1\ns_mul_i32 s30, s30, 88\ns_add_u32 s6, s6, s30\ns_lshl_b32 s6, s6, 1\ns_and_b32 s58, s58, 1\ns_add_u32 s6, s6, s58\ns_lshl_b32 s6, s6, 10')
            A('buffer_load_dwordx4 v[244:247], v36, s[8:11], s6 offen')
            if cfg.help > 1 and 1 <= n <= 7: A(f's_add_u32 s6, s100, {n*196608}\nbuffer_load_dwordx4 v[244:247], v10, s[12:15], s6 offen')
    def c3b(m0, m1):
        if m0 == 0 and m1 > 0:
            srd(A, 12, P_WQKV, 0x180000)
            A(f's_lshl_b32 s59, s5, 2\ns_add_u32 s59, s59, s3\ns_lshl_b32 s59, s59, 13\ns_mul_i32 s28, s4, {cfg.rotx}\ns_add_u32 s28, s28, {cfg.rot0}\ns_and_b32 s28, s28, 7\ns_mul_i32 s28, s28, 196608\ns_add_u32 s59, s59, s28')
            A('v_lshlrev_b32 v10, 10, v5\nv_lshl_add_u32 v10, v6, 4, v10')
        for m in range(m0, m1):
            A('s_sub_u32 s28, s59, 0x180000\ns_cselect_b32 s59, s59, s28')
            A('buffer_load_dwordx4 v[244:247], v10, s[12:15], s59 offen offset:384\ns_add_u32 s59, s59, 0x40000')
    c3b(0, cfg.c3a)
    def xblock(n0, n1):
        for n in range(n0, n1):
            if n == 8: A(f's_xor_b32 s34, s34, {65536 if cfg.smap else 2048}\ns_xor_b32 s97, s97, 0x8000')
            A(f's_add_u32 m0, s97, {(n&7)*1024}\ns_add_u32 s6, s34, {(n&7)*131072}')
            A('buffer_load_dwordx4 v36, s[20:23], s6 offen lds')
    xblock(0, cfg.xs)
    if cfg.xs < 16:
        A('K_B_GEN:')
        early()
        A('s_cmp_ge_u32 s3, 4\ns_cbranch_scc1 K_B_GEN2')
        xblock(cfg.xs, 16)
    late = 0
    c3b(cfg.c3a, cfg.c3n); late += cfg.c3n - cfg.c3a
    if cfg.womall:
        srd(A, 12, P_WO, 0x80000)
        A('s_lshl_b32 s28, s4, 3\ns_add_u32 s28, s28, s5\ns_lshl_b32 s28, s28, 2\ns_add_u32 s28, s28, s3\ns_lshl_b32 s28, s28, 11')
        A('buffer_load_dwordx4 v[244:247], v36, s[12:15], s28 offen\nbuffer_load_dwordx4 v[244:247], v36, s[12:15], s28 offen offset:1024'); late += 2
    if cfg.xs < 16: A('K_B_GEN2:')
    else:
        A('K_B_GEN:')
        if not cfg.bfirst: early()
    A(f's_waitcnt vmcnt({late})\ns_cmp_lt_u32 s3, 4\ns_cbranch_scc1 K_B_XOK')
    gen_init(); gen_mat('K_B_GL1', cfg.gsplit)
    stamp(A, cfg, 1)
    A('K_B_XOK:')
    A('s_waitcnt lgkmcnt(0)')
    srd_off(A, 8, P_WS, WS_Z, Z_SIZE); srd(A, 12, P_OUT, 0x400000); srd_off(A, 60, P_WS, WS_FLAG, FLAG_SIZE); srd(A, 16, P_DBG, 256); srd(A, 20, P_WO, 0x80000)
    A('s_lshl_b32 s28, s5, 3\ns_add_u32 s28, s28, s3\ns_lshl_b32 s28, s28, 13\ns_add_u32 s97, s28, 4096')
    def wopf(r):
        if cfg.wopf:
            for n in range(4): A(f'buffer_load_dwordx4 v[244:247], v36, s[20:23], s{r} offen offset:{n*1024}')
    A('s_barrier')
    stamp(A, cfg, 2)
    DA, DD = 64, 96
    for p in range(4):
        for h in range(2):
            for rb in range(2): A(f'ds_read_b64_tr_b16 {vr(DA+8*p+4*h+2*rb,2)}, v17 offset:{(2*p+rb)*1024+h*8}')
    wopf(28)
    if cfg.pwb:
        srd_off(A, 24, P_WS, WS_O, O_SIZE)
        A(f's_lshl_b32 s6, s4, 3\ns_add_u32 s6, s6, s5\ns_lshl_b32 s6, s6, 3\ns_add_u32 s6, s6, s3\ns_mul_i32 s6, s6, {36*128}\ns_mov_b32 exec_hi, 15')
        A('buffer_load_dword v244, v16, s[24:27], s6 offen sc1\ns_mov_b64 exec, -1')
    for i in range(8):
        A(f's_waitcnt lgkmcnt({14 - 2*i})')
        mfma32(A, DD+4*i, DA+4*i, G, None)
    bstamp(A, cfg, 3, 1)
    for p in range(4):
        for q in range(4): cvt(A, DA+4*p+q, DD+8*p+2*q, DD+8*p+2*q+1)
        A(f'ds_write_b128 v18, {vr(DA+4*p,4)} offset:{p*128}')
    A('s_waitcnt lgkmcnt(0)')
    bstamp(A, cfg, 4, 1)
    A('s_barrier')
    bstamp(A, cfg, 5, 1)
    XF, U, BO, Z, PK = 64, 96, 160, 192, 224
    for h in range(2):
        for sp in range(4): A(f'ds_read_b128 {vr(XF+16*h+4*sp,4)}, v{19+h} offset:{h*4096+sp*1024}')
    wopf(97)
    def stage_c(u, bo, off):
        for sp in range(4):
            for q in range(4): cvt(A, bo+4*sp+q, u+8*sp+2*q, u+8*sp+2*q+1)
        A('s_nop 1')
        for part in range(2):
            for sp in range(4): mfma32(A, Z+16*part+4*sp, F+2*part, bo+4*sp, None)
        A('s_nop 3')
        for part in range(2):
            for i in range(4):
                for q in range(2): cvt(A, PK+4*i+2*part+q, Z+16*part+8*q+i, Z+16*part+8*q+4+i)
                if part: A(f's_add_u32 s7, s101, {i*ZCLS + off}\nbuffer_store_dwordx4 {vr(PK+4*i,4)}, v22, s[8:11], s7 offen sc1')
    A('s_cmp_eq_u32 s58, 0\ns_cbranch_scc1 K_B_W0')
    A('s_waitcnt lgkmcnt(4)')
    for sp in range(4):
        mfma32(A, U+8*sp, XF+4*sp, M, None); mfma32(A, U+8*sp+4, XF+4*sp, M+4, None)
    A('s_waitcnt lgkmcnt(0)')
    for sp in range(4):
        mfma32(A, U+8*sp, XF+16+4*sp, M+8, U+8*sp); mfma32(A, U+8*sp+4, XF+16+4*sp, M, U+8*sp+4)
    A('s_nop 1')
    stage_c(U, BO, 0)
    A('s_branch K_B_SIG')
    A('K_B_W0:')
    A('s_waitcnt lgkmcnt(0)')
    for h in range(2):
        for sp in range(4):
            mfma32(A, U+32*h+8*sp, XF+16*h+4*sp, M+8*h, None); mfma32(A, U+32*h+8*sp+4, XF+16*h+4*sp, M+8*h+4, None)
    stage_c(U, BO, 0)
    stage_c(U+32, BO+16, 8*512)
    A('K_B_SIG:')
    bstamp(A, cfg, 6, 1)
    bstamp(A, cfg, 3, 0)
    AM, SW, ZF, MF, ACC, T = 23, 24, 160, 32, 224, 32
    A('s_and_b32 s30, s5, 3')
    A(f'v_mul_u32_u24 v7, {PITCH}, v4\nv_lshl_add_u32 v12, v3, 4, v7\ns_mul_i32 s7, s3, {8*PITCH}\nv_add_u32 v12, s7, v12\nv_lshlrev_b32 v7, 15, v4\nv_lshl_add_u32 v13, v3, 4, v7\nv_xor_b32 v17, {3*32768}, v13\nv_lshlrev_b32 v7, 5, v3\nv_sub_u32 v19, v12, v7\nv_add_u32 v19, 240, v19')
    A('s_lshl_b32 s6, s96, 11\ns_lshl_b32 s7, s30, 8\ns_add_u32 s6, s6, s7\ns_lshl_b32 s7, s3, 18\ns_add_u32 s6, s6, s7\ns_add_u32 s34, s6, 1024')
    A(f's_sub_u32 s97, {2048*2048 - 3*32768 + 1024 + 768}, s6\nv_add_u32 v{AM}, {MAT}, v36\nv_mov_b32 v18, 0xffff')
    A(f's_and_b32 s33, s5, 4\ns_mul_i32 s33, s33, {4*ZSIG}')
    A('s_cmp_ge_u32 s3, 4\ns_cbranch_scc1 K_B_AUX')
    A(f'v_lshrrev_b32 v8, 1, v4\nv_and_b32 v9, 1, v4')
    A('s_sub_u32 s6, 16, s31\ns_and_b32 s6, s6, 15\ns_lshl_b32 s7, s3, 2\ns_sub_u32 s28, 13, s7\ns_sub_u32 s35, 3, s30')
    A('s_cmp_ge_u32 s3, 2\ns_cselect_b32 s6, s6, s31\ns_cselect_b32 s7, s28, s7\ns_cselect_b32 s35, s35, s30\ns_cselect_b32 s58, 0x80008000, 0\ns_cselect_b32 s28, 3, 0\ns_cselect_b32 s29, 7, 0')
    A(f's_mul_i32 s6, s6, {ZCLS}\ns_lshl_b32 s7, s7, 9\ns_add_u32 s6, s6, s7\ns_lshl_b32 s35, s35, 7\ns_add_u32 s35, s35, s6')
    A(f'v_mul_u32_u24 v7, {ZSIG}, v4\nv_lshl_add_u32 v7, v6, 4, v7\nv_bfe_u32 v10, v2, 3, 1\nv_lshlrev_b32 v10, 1, v10\nv_xor_b32 v10, s28, v10\nv_xor_b32 v11, 1, v10')
    A('v_lshl_add_u32 v10, v10, 9, v7\nv_lshl_add_u32 v11, v11, 9, v7')
    A(f'v_mul_u32_u24 v7, {PITCH}, v3\nv_lshl_add_u32 v7, v8, 2, v7\ns_lshl_b32 s6, s3, 3\nv_add_u32 v7, s6, v7\nv_lshlrev_b32 v9, 2, v9\nv_xor_b32 v9, s29, v9')
    for i in range(4): A(f'v_xor_b32 v8, {i}, v9\nv_lshl_add_u32 v{SW+i}, v8, 5, v7')
    A('v_mov_b32 v20, v10\nv_mov_b32 v21, v11\ns_sub_u32 s100, s35, s33\ns_add_u32 s35, s35, s33')
    A('s_cmp_lg_u32 s3, 2\ns_cbranch_scc1 K_B_RDY_X\nv_lshlrev_b32 v7, 2, v6')
    poll(A, 'K_B_RDY', 9, 7, 16, 0, 1)
    A('s_waitcnt vmcnt(0)')
    bstamp(A, cfg, 4, 0)
    A('s_barrier')
    A('s_cmp_lg_u32 s3, 3\ns_cbranch_scc1 K_B_NOSIG')
    A(f's_lshl_b32 s6, s4, 3\ns_add_u32 s6, s6, s5\ns_lshl_b32 s6, s6, 7\ns_add_u32 s6, s6, {BFLAG}')
    A('s_mov_b64 exec, 1\nbuffer_store_dword v15, v14, s[60:63], s6 offen sc1\ns_mov_b64 exec, -1')
    A('K_B_NOSIG:')
    for k in range(8):
        for tt in range(4): A(f'ds_read_b128 {vr(MF+16*k+4*tt,4)}, v{AM} offset:{tt*8192 + k*1024}')
    A(f's_cmp_lg_u32 s3, 3\ns_cbranch_scc1 K_B_POLL_X\ns_mov_b32 s7, {BFLAG}')
    poll(A, 'K_B_POLL', 9, 16, 60, 's7', 1)
    A('s_barrier')
    bstamp(A, cfg, 5, 0)
    for k in range(8):
        A(f's_add_u32 s7, s{35 if k < 4 else 100}, {k*4*ZSIG}')
        for a in range(2): A(f'buffer_load_dwordx4 {vr(ZF+8*k+4*a,4)}, v{20+a}, s[8:11], s7 offen sc1')
    for k in range(8):
        A(f's_waitcnt vmcnt({14-2*k}) lgkmcnt(0)')
        for a in range(2): A(f'v_xor_b32 v{ZF+8*k+4*a+2}, s58, v{ZF+8*k+4*a+2}\nv_xor_b32 v{ZF+8*k+4*a+3}, s58, v{ZF+8*k+4*a+3}')
        for a in range(2):
            for tt in range(4): mfma32(A, ACC+8*tt+4*a, ZF+8*k+4*a, MF+16*k+4*tt, ACC+8*tt+4*a if k else None)
    bstamp(A, cfg, 6, 0)
    A('s_cmp_lg_u32 s96, 0\ns_cbranch_scc1 K_B_NOX')
    A('v_mov_b32 v64, 0xbf803f80\nv_mov_b32 v65, 0xbf803f80\nv_mov_b32 v66, 0\nv_mov_b32 v67, 0\ns_nop 1')
    for k in range(8):
        for a in range(2): mfma32(A, 68+4*a, ZF+8*k+4*a, 64, 68+4*a if k else None)
    A('s_nop 7')
    for i in range(4):
        cvt(A, 76+i, 68+i, 72+i); A(f'ds_write_b32 v{SW+i}, v{76+i} offset:{64*PITCH}')
    A('K_B_NOX:\ns_nop 2')
    for tt in range(4):
        for i in range(4):
            cvt(A, T+4*tt+i, ACC+8*tt+i, ACC+8*tt+4+i); A(f'ds_write_b32 v{SW+i}, v{T+4*tt+i} offset:{tt*16*PITCH}')
    A('s_branch K_B_FIN')
    A('K_B_AUX:')
    gen_mat('K_B_GL2', 4 - cfg.gsplit)
    A(f's_sub_u32 s6, s3, 4\ns_lshl_b32 s7, s6, 13\nv_add_u32 v7, s7, v{AM}\ns_mul_i32 s6, s6, {16*PITCH}\nv_mul_u32_u24 v8, {PITCH}, v3\nv_add_u32 v8, s6, v8\nv_mul_u32_u24 v20, {ZSIG}, v4')
    for k in range(8): A(f'ds_read_b128 {vr(MF+4*k,4)}, v7 offset:{k*1024}')
    A(f's_add_u32 s6, s30, 1\ns_and_b32 s6, s6, 3\ns_lshl_b32 s6, s6, 7\ns_mul_i32 s7, s31, {ZCLS}\ns_add_u32 s6, s6, s7\ns_sub_u32 s100, s6, s33\ns_add_u32 s35, s6, s33\ns_setprio 3')
    A('s_waitcnt vmcnt(0) lgkmcnt(0)')
    bstamp(A, cfg, 4, 0)
    A('s_barrier\ns_barrier')
    bstamp(A, cfg, 5, 0)
    for k in range(8):
        A(f's_add_u32 s7, s{35 if k < 4 else 100}, {k*4*ZSIG}\nbuffer_load_dwordx4 {vr(ZF+4*k,4)}, v20, s[8:11], s7 offen sc1')
    for k in range(8):
        A(f's_waitcnt vmcnt({7-k}) lgkmcnt(0)')
        mfma32(A, ACC, ZF+4*k, MF+4*k, ACC if k else None)
    A(f's_nop 7\nv_cvt_pk_bf16_f32 v{T}, v{ACC}, v{ACC}\nds_write_b16 v8, v{T} offset:256')
    bstamp(A, cfg, 6, 0)
    A('K_B_FIN:')
    A('s_waitcnt lgkmcnt(0)\ns_barrier')
    for n in range(2): A(f'ds_read_b128 {vr(108+4*n,4)}, v12 offset:{4*n*PITCH}')
    for n in range(2): A(f'ds_read_b128 {vr(80+8*n,4)}, v19 offset:{4*n*PITCH}\nds_read_b32 v{84+8*n}, v19 offset:{4*n*PITCH + 16}')
    for n in range(2):
        A(f's_add_u32 s6, s34, {(4*n) << 15}\ns_waitcnt lgkmcnt({5-n})')
        A(f'buffer_store_dwordx4 {vr(108+4*n,4)}, v13, s[12:15], s6 offen{cfg.outflagb}')
    for n in range(2):
        b = 80 + 8 * n
        A(f's_sub_u32 s7, s97, {(4*n) << 15}\ns_waitcnt lgkmcnt({2-2*n})')
        for q in range(4): A(f'v_bfi_b32 v{96+4*n+q}, v18, v{b+4-q}, v{b+3-q}')
        A(f'buffer_store_dwordx4 {vr(96+4*n,4)}, v17, s[12:15], s7 offen{cfg.outflagb}')
    A('s_or_b32 s6, s96, s3\ns_cmp_lg_u32 s6, 0\ns_cbranch_scc1 K_B_NOX2')
    A(f'ds_read_b128 v[104:107], v12 offset:{64*PITCH}\ns_add_u32 s6, s34, {64 << 15}\ns_mov_b64 exec, 0xffff\ns_waitcnt lgkmcnt(0)')
    A(f'buffer_store_dwordx4 v[104:107], v13, s[12:15], s6 offen{cfg.outflagb}\ns_mov_b64 exec, -1')
    A('K_B_NOX2:')
    stamp_store(A, cfg, 8)
    A('s_endpgm')

def main():
    ap = argparse.ArgumentParser()
    ap.add_argument('-o', default=f'cdna_kernels/{NAME}.s')
    ap.add_argument('--diag', action='store_true')
    ap.add_argument('--xa', default='3,10,10,10,10,10,10,6')
    ap.add_argument('--pre', type=int, default=4); ap.add_argument('--opre', type=int, default=10)
    ap.add_argument('--outflag', default='sc1'); ap.add_argument('--outflagb', default='sc1')
    ap.add_argument('--rot', type=int, default=5); ap.add_argument('--rotx', type=int, default=1); ap.add_argument('--q3', type=int, default=0)
    ap.add_argument('--help_', dest='help', type=int, default=0); ap.add_argument('--help0', type=int, default=1)
    ap.add_argument('--hbar', type=int, default=1)
    ap.add_argument('--cpf', type=int, default=2)
    ap.add_argument('--swap', type=int, default=1); ap.add_argument('--hsplit', type=int, default=4)
    ap.add_argument('--gsplit', type=int, default=3); ap.add_argument('--goks', type=int, default=2)
    ap.add_argument('--xpf', type=int, default=1); ap.add_argument('--xprio', type=int, default=0)
    ap.add_argument('--c3', type=int, default=0)
    ap.add_argument('--chk', type=int, default=12)
    ap.add_argument('--cgx', type=int, default=1); ap.add_argument('--wopf', type=int, default=0)
    ap.add_argument('--batom', type=int, default=0)
    ap.add_argument('--clean', type=int, default=0); ap.add_argument('--b9', type=int, default=14)
    ap.add_argument('--chk2', type=int, default=10)
    ap.add_argument('--pk', type=int, default=1)
    ap.add_argument('--c3b', type=int, default=2); ap.add_argument('--c3n', type=int, default=6)
    ap.add_argument('--womall', type=int, default=1); ap.add_argument('--pwb', type=int, default=1)
    ap.add_argument('--gon', type=int, default=8)
    ap.add_argument('--rot0', type=int, default=0)
    ap.add_argument('--bfirst', type=int, default=0)
    ap.add_argument('--xs', type=int, default=8)
    ap.add_argument('--smap', type=int, default=0)
    ap.add_argument('--kst', type=int, default=0); ap.add_argument('--cprio', type=int, default=2)
    ap.add_argument('--c3a', type=int, default=1)
    ap.add_argument('--pwpos', type=int, default=0)
    ap.add_argument('--two', type=int, default=0); ap.add_argument('--lper', type=int, default=0)
    ap.add_argument('--bst', type=int, default=0)
    ap.add_argument('--warmat', type=int, default=7); ap.add_argument('--n1', type=int, default=60)
    cfg = ap.parse_args()
    cfg.xa = [int(x) for x in cfg.xa.split(',')]
    cfg.outflag = '' if cfg.outflag == 'plain' else ' ' + cfg.outflag.replace('+', ' ')
    cfg.outflagb = '' if cfg.outflagb == 'plain' else ' ' + cfg.outflagb.replace('+', ' ')
    A = Asm()
    A(f'; @launch grid=(256,1,1) block=(512,1,1) lds={LDS_TOTAL}')
    A('.amdgcn_target "amdgcn-amd-amdhsa--gfx950"\n.text')
    kernel(A, cfg)
    A(f""".section .rodata,"a"
.p2align 6
.amdhsa_kernel {NAME}_kernel
.amdhsa_next_free_vgpr 256
.amdhsa_next_free_sgpr 102
.amdhsa_accum_offset 256
.amdhsa_group_segment_fixed_size 0
.amdhsa_kernarg_size 88
.amdhsa_user_sgpr_count 2
.amdhsa_user_sgpr_kernarg_segment_ptr 1
.amdhsa_system_sgpr_workgroup_id_x 1
.end_amdhsa_kernel""")
    open(cfg.o, 'w').write(A.text())
main()
```

```python
import sys, argparse
NAME = 'concat_heads__sliding_local_dilated__spectral_fnet__prompt'

class Asm:
    def __init__(self): self.L = []
    def __call__(self, s):
        for line in s.split('\n'):
            line = line.strip()
            if line: self.L.append(line if line.endswith(':') or line.startswith('.') or line.startswith(';') else '    ' + line)
    def text(self): return '\n'.join(self.L) + '\n'

def vr(b, n): return f'v[{b}:{b+n-1}]' if n > 1 else f'v{b}'
def srd(A, d, lo, size):
    A(f's_mov_b32 s{d}, s{lo}\ns_mov_b32 s{d+1}, s{lo+1}\ns_mov_b32 s{d+2}, {size:#x}\ns_mov_b32 s{d+3}, 0x20000')
def srd_off(A, d, lo, off, size):
    A(f's_add_u32 s{d}, s{lo}, {off:#x}\ns_addc_u32 s{d+1}, s{lo+1}, 0\ns_mov_b32 s{d+2}, {size:#x}\ns_mov_b32 s{d+3}, 0x20000')
def mfma32(A, d, a, b, c): A(f'v_mfma_f32_16x16x32_bf16 {vr(d,4)}, {vr(a,4)}, {vr(b,4)}, {vr(c,4) if c is not None else 0}')
def mfma16(A, d, a, b, c): A(f'v_mfma_f32_16x16x16_bf16 {vr(d,4)}, {vr(a,2)}, {vr(b,2)}, {vr(c,4) if c is not None else 0}')
def cvt(A, d, a, b): A(f'v_cvt_pk_bf16_f32 v{d}, v{a}, v{b}')

P_AX, P_WQKV, P_WO, P_BX, P_CR, P_CI, P_DR, P_DI, P_OUT, P_DBG, P_WS = 36, 38, 40, 42, 44, 46, 48, 50, 52, 54, 56
WS_O, O_SIZE, WS_Z, Z_SIZE, WS_FLAG, FLAG_SIZE, WS_DIAG = 0, 0x240000, 0x280000, 0x240000, 0x500000, 0x10000, 0x800000
ZSIG, ZCLS = 4608, 147456
GFLAG, BFLAG = 192 * 128, 384 * 128
LDS_TOTAL, LDS_WORD = 163840, 147456
OOB = 0x80000000
SPIN = 400000
SLEEP = 0

def interleave(A, mf, other, per_gap=1, start=0):
    oi = 0
    for i, m in enumerate(mf):
        m()
        if i >= start:
            for _ in range(per_gap):
                if oi < len(other): A(other[oi]); oi += 1
    while oi < len(other): A(other[oi]); oi += 1

def stamp(A, cfg, slot):
    if cfg.diag: A(f's_memrealtime s[{64+4*slot}:{65+4*slot}]\ns_memtime s[{66+4*slot}:{67+4*slot}]')
def stamp_store(A, cfg, nslots):
    if not cfg.diag: return
    A('s_waitcnt lgkmcnt(0) vmcnt(0)')
    stamp(A, cfg, nslots - 1)
    A('s_waitcnt lgkmcnt(0)')
    srd_off(A, 24, P_WS, WS_DIAG, 0x100000)
    A(f's_lshl_b32 s4, s2, 3\ns_add_u32 s4, s4, s3\ns_lshl_b32 s4, s4, 6')
    for i in range(8): A(f'v_mov_b32 v{8+i}, s{64+4*min(i, nslots-1)}\nv_mov_b32 v{16+i}, s{66+4*min(i, nslots-1)}')
    A('v_mov_b32 v1, 0\nv_and_b32 v2, 63, v0\nv_cmp_eq_u32 vcc, 0, v2\ns_and_saveexec_b64 s[6:7], vcc')
    for i in range(4): A(f'buffer_store_dwordx4 v[{8+4*i}:{11+4*i}], v1, s[24:27], s4 offen offset:{16*i}')


def loader_loop(A, items, ends, X, after=None):
    done = 0
    for c in range(len(ends)):
        upto = min(len(items), ends[c] + X[min(c, len(X) - 1)])
        while done < upto and items[done][1] <= c:
            items[done][0](); done += 1
        assert done >= ends[c]
        A(f's_waitcnt vmcnt({done - ends[c]})')
        A('s_barrier')
    if after: after()
    while done < len(items):
        items[done][0](); done += 1

def poll(A, label, vdst, vaddr, srdn, soff, want, first=True):
    A(f's_mov_b32 s28, 0')
    A(f'{label}:')
    A(f'buffer_load_dword v{vdst}, v{vaddr}, s[{srdn}:{srdn+3}], {soff} offen sc1')
    A(f's_add_u32 s28, s28, 1\ns_cmp_ge_u32 s28, {SPIN}\ns_cbranch_scc1 {label}_X')
    A('s_waitcnt vmcnt(0)')
    A(f'v_cmp_ne_u32 vcc, {want}, v{vdst}')
    A(f's_cmp_lg_u64 vcc, 0\ns_cbranch_scc1 {label}')
    A(f'{label}_X:')

A1_SLOT = 36864

def kernel(A, cfg):
    A(f'.globl {NAME}_kernel\n.p2align 12\n.p2align 8\n.type {NAME}_kernel,@function\n{NAME}_kernel:')
    A('s_load_dwordx16 s[36:51], s[0:1], 0\ns_load_dwordx4 s[52:55], s[0:1], 64\ns_load_dwordx2 s[56:57], s[0:1], 80')
    A('s_cmp_ge_u32 s2, 256\ns_cbranch_scc1 K_END')
    stamp(A, cfg, 0)
    if cfg.cpf == 2:
        A(f's_getpc_b64 s[8:9]\nK_PC:\ns_sub_u32 s8, s8, K_PC-{NAME}_kernel\ns_subb_u32 s9, s9, 0\ns_mov_b32 s10, K_END-{NAME}_kernel\ns_mov_b32 s11, 0x20000')
        A('s_lshr_b32 s5, s2, 3\ns_lshl_b32 s5, s5, 10\nv_lshlrev_b32 v1, 4, v0\nv_cmp_gt_u32 vcc, 64, v0\ns_and_saveexec_b64 s[6:7], vcc\ns_cbranch_execz K_NOPF')
        A('buffer_load_dwordx4 v[248:251], v1, s[8:11], s5 offen\nK_NOPF:\ns_mov_b64 exec, s[6:7]')
    A('v_lshrrev_b32 v1, 6, v0\nv_and_b32 v2, 63, v0')
    A('v_readfirstlane_b32 s3, v1')
    A('s_and_b32 s4, s2, 7\ns_lshr_b32 s5, s2, 3')
    A('v_and_b32 v3, 15, v2\nv_lshrrev_b32 v4, 4, v2')
    A('v_lshrrev_b32 v5, 3, v2\nv_and_b32 v6, 7, v2')
    A('s_cmp_ge_u32 s5, 24\ns_cbranch_scc1 K_B')
    A('s_mul_i32 s7, s4, 3\ns_lshr_b32 s28, s5, 3\ns_add_u32 s59, s7, s28\ns_and_b32 s29, s5, 7')
    A('s_and_b32 s30, s59, 1\ns_lshr_b32 s31, s59, 1\ns_mul_i32 s32, s31, 88')
    if cfg.swap: A('s_xor_b32 s3, s3, 4')
    A('s_getreg_b32 s96, hwreg(HW_REG_XCC_ID, 0, 4)\ns_add_u32 s96, s96, 0x100')
    A('s_cmp_ge_u32 s3, 4\ns_cbranch_scc0 K_A_CONS')
    a_loader(A, cfg)
    A('K_A_CONS:')
    a_consumer(A, cfg)
    A(';@PAD b\nK_B:')
    b_all(A, cfg)
    A('K_END:\ns_endpgm')
    if cfg.bmove:
        i, j = A.L.index('K_B:'), A.L.index('K_B_GEN:')
        front = A.L[i:j] + ['    s_branch K_B_GEN']; del A.L[i:j]
        k = A.L.index(';@PAD e'); A.L[k:k] = front

def a_loader(A, cfg):
    AW, WF, OF, ACC, NB, NO = 24, 36, 180, 220, 9, 10
    STAGE = 2 * A1_SLOT
    A('s_mul_i32 s97, s28, 3')
    if cfg.rot == 1: A('s_mov_b32 s63, 0')
    elif cfg.rot == 2: A('s_xor_b32 s63, s28, s5\ns_and_b32 s63, s63, 1\ns_lshl_b32 s63, s63, 2')
    elif cfg.rot == 3: A('s_mov_b32 s63, s97')
    if cfg.rot == 5:
        def tri(b, g): return [b + (g + i) % 3 for i in range(3)]
        def pair(b, g): return [b + (g & 1), b + 1 - (g & 1)]
        def word(p, g):
            o = [tri(0, g) + tri(3, g) + pair(6, g), [0] + tri(1, g) + tri(4, g) + [7], pair(0, g) + tri(2, g) + tri(5, g)][p]
            return sum(c << (4 * i) for i, c in enumerate(o))
        A('s_mov_b32 s63, 0\ns_mul_i32 s6, s29, 11\ns_lshr_b32 s6, s6, 5\ns_mul_i32 s6, s6, 3\ns_sub_u32 s6, s29, s6\ns_add_u32 s6, s6, s97')
        A(f's_mov_b32 s101, {word(0, 0):#x}')
        for g in range(3):
            for p in range(3):
                if p or g: A(f's_cmp_eq_u32 s6, {p + 3*g}\ns_cselect_b32 s101, {word(p, g):#x}, s101')
        A('s_cmp_eq_u32 s29, 3\ns_cselect_b32 s101, 0x76543210, s101')
    if cfg.q3: A('s_cmp_eq_u32 s29, 3\ns_cselect_b32 s63, s97, s63')
    if cfg.rotx: A(f's_mul_i32 s62, s4, {cfg.rotx}\ns_add_u32 s63, s63, s62')
    if cfg.rot0: A(f's_add_u32 s63, s63, {cfg.rot0}')
    A('s_sub_u32 s33, s3, 4')
    A('s_mul_i32 s6, s33, 24')
    for j in range(3):
        A(f'v_add_u32 v7, s6, v5\nv_add_u32 v7, {8*j}, v7')
        A('v_lshrrev_b32 v8, 1, v7\nv_and_b32 v8, 7, v8\nv_xor_b32 v8, v8, v6\nv_lshlrev_b32 v8, 4, v8')
        A('v_add_u32 v7, s32, v7\nv_lshlrev_b32 v7, 1, v7\nv_add_u32 v7, s30, v7')
        A(f'v_lshl_add_u32 v{10+j}, v7, 10, v8')
    A('s_lshl_b32 s6, s33, 4\ns_lshl_b32 s7, s29, 7\ns_movk_i32 s28, 3072')
    for par in range(2):
        A(f'v_add_u32 v7, s6, v5\nv_add_u32 v7, {8*par}, v7')
        A('v_mul_lo_u32 v7, v7, s28\nv_add_u32 v7, s7, v7')
        A(f'v_and_b32 v8, 1, v4\nv_or_b32 v8, {2*par}, v8\nv_lshlrev_b32 v8, 1, v8\nv_xor_b32 v8, v8, v6')
        A(f'v_lshl_add_u32 v{13+par}, v8, 4, v7')
    A('s_mul_i32 s34, s33, 3072')
    A('s_mul_i32 s35, s33, 6144\ns_add_u32 s35, s35, 12288')
    A('s_waitcnt lgkmcnt(0)')
    srd(A, 8, P_AX, 0x200000); srd(A, 12, P_WQKV, 0x180000)
    stamp(A, cfg, 1)
    def issue(c, j):
        base = (c % 4) * A1_SLOT
        if j < 3:
            if j == 0 and cfg.rot == 5: A(f's_bfe_u32 s62, s101, {0x40000 + 4*c:#x}\ns_add_u32 s62, s62, s63\ns_and_b32 s62, s62, 7\ns_lshl_b32 s6, s62, 7')
            elif j == 0: A(f's_add_u32 s62, s63, {c}\ns_and_b32 s62, s62, 7\ns_lshl_b32 s6, s62, 7')
            A(f's_add_u32 m0, s34, {base + j*1024}\ns_nop 0')
            A(f'buffer_load_dwordx4 v{10+j}, s[8:11], s6 offen lds')
        else:
            par, seg = divmod(j - 3, 3)
            if j == 3: A(f's_mul_i32 s7, s62, 196608')
            if seg == 0: A(f's_add_u32 m0, s35, {base + par*3072}\ns_nop 0')
            A(f'buffer_load_dwordx4 v{13+par}, s[12:15], s7 offen offset:{seg*1024} lds')
    def late_setup():
        srd(A, 16, P_WO, 0x80000); srd_off(A, 20, P_WS, WS_O, O_SIZE)
        A('s_lshl_b32 s60, s33, 3\nv_add_u32 v7, s60, v5\ns_and_b32 s60, s33, 1\ns_lshl_b32 s60, s60, 1\ns_xor_b32 s61, s29, ' + str(cfg.cgx) + '\ns_lshl_b32 s61, s61, 7')
        A('v_and_b32 v8, 1, v4\nv_or_b32 v8, s60, v8\nv_lshlrev_b32 v8, 1, v8\nv_xor_b32 v8, v8, v6\nv_lshlrev_b32 v8, 4, v8')
        A('v_lshl_add_u32 v15, v7, 10, v8\nv_add_u32 v15, s61, v15')
        A('s_lshl_b32 s58, s33, 10')
        A(f's_mul_i32 s60, s33, 24\nv_add_u32 v7, s60, v2\nv_lshrrev_b32 v8, 4, v7\nv_lshlrev_b32 v8, 14, v8\nv_and_b32 v7, 15, v7\nv_lshl_add_u32 v7, v7, 7, v8')
        A(f'v_mov_b32 v8, {OOB:#x}\nv_cmp_le_u32 vcc, 24, v2\ns_mul_i32 s60, s59, {6*16384}\ns_lshl_b32 s61, s29, 11\ns_add_u32 s98, s60, s61\nv_cndmask_b32 v16, v7, v8, vcc')
        A(f'v_mov_b32 v17, {LDS_WORD}\nv_mov_b32 v18, 0\nv_mov_b32 v19, 0\nds_write_b64 v17, v[18:19]\nds_write_b64 v17, v[18:19] offset:8\nds_write_b64 v17, v[18:19] offset:16\nds_write_b64 v17, v[18:19] offset:24\ns_waitcnt lgkmcnt(0)\nv_mov_b32 v18, 1')
        srd(A, 44, P_OUT, 0x400000)
        A('v_bfe_u32 v7, v2, 2, 2\nv_lshrrev_b32 v8, 1, v7\nv_and_b32 v9, 1, v4\nv_lshl_or_b32 v8, v9, 1, v8')
        A('v_lshlrev_b32 v9, 10, v4\nv_lshl_add_u32 v9, v7, 7, v9\nv_and_b32 v7, 3, v2\nv_lshl_add_u32 v9, v7, 3, v9')
        for nt in range(4): A(f'v_xor_b32 v7, {nt}, v8\nv_lshl_add_u32 v{AW+nt}, v7, 5, v9')
        A('v_lshlrev_b32 v33, 4, v2')
        A(f's_mul_i32 s60, s33, {32*144}\ns_add_u32 s60, s60, {STAGE}')
        A('v_mul_u32_u24 v30, 144, v3\nv_lshl_add_u32 v30, v4, 3, v30\nv_add_u32 v30, s60, v30')
        A('v_mul_u32_u24 v31, 144, v5\nv_lshl_add_u32 v31, v6, 4, v31\nv_add_u32 v31, s60, v31')
        A('v_lshlrev_b32 v32, 12, v5\nv_lshl_add_u32 v32, v6, 4, v32')
        A('s_lshl_b32 s60, s32, 12\ns_lshl_b32 s61, s30, 11\ns_add_u32 s60, s60, s61\ns_xor_b32 s61, s29, ' + str(cfg.cgx) + '\ns_lshl_b32 s61, s61, 7\ns_add_u32 s42, s60, s61')
        A('s_lshl_b32 s60, s33, 16\ns_add_u32 s48, s42, s60\ns_add_u32 s49, s48, 0x8000\ns_lshr_b32 s61, s33, 1\ns_add_u32 s61, s61, 4\ns_lshl_b32 s60, s61, 16\ns_add_u32 s50, s42, s60\ns_add_u32 s51, s50, 0x8000')
        A(f's_mul_i32 s42, s59, {6*16384}\ns_lshl_b32 s60, s33, 14\ns_add_u32 s43, s42, s60\ns_lshl_b32 s60, s61, 14\ns_add_u32 s42, s42, s60')
        A(f's_lshr_b32 s60, s33, 1\ns_lshl_b32 s61, s60, 12\ns_add_u32 s61, s61, {STAGE + 4*32*144}\nv_add_u32 v28, s61, v33\ns_lshl_b32 s60, s60, 2\nv_add_u32 v29, s60, v17')
        A('s_cmp_lg_u32 s31, 0\ns_cselect_b32 s60, 1, 0\ns_cmp_eq_u32 s33, 0\ns_cselect_b32 s60, s60, 0\ns_cmp_lg_u32 s60, 0\ns_cselect_b32 s48, 0x40000000, s48')
    def wo(n):
        A(f's_add_u32 s62, s97, {n}\ns_and_b32 s62, s62, 15')
        A('s_lshl_b32 s6, s62, 12\ns_add_u32 m0, s58, s6\ns_lshl_b32 s6, s62, 15')
        A('buffer_load_dwordx4 v15, s[16:19], s6 offen lds')
    def side():
        srd_off(A, 88, P_WS, WS_FLAG, FLAG_SIZE); srd(A, 24, P_DBG, 256)
        A(f'v_lshlrev_b32 v20, 2, v6\nv_lshlrev_b32 v21, 7, v6\ns_lshl_b32 s100, s59, 10\ns_lshr_b32 s97, s5, 3\ns_mul_i32 s97, s97, 5\ns_mov_b64 exec, 0xff')
        A('buffer_load_dword v22, v20, s[24:27], 0 offen sc1\ns_mov_b64 exec, -1')
    def gocheck():
        A('s_mov_b64 exec, 0xff\nv_cmp_ne_u32 vcc, 1, v22\ns_cmp_eq_u64 vcc, 0\ns_cbranch_scc1 K_A_RDY_X')
        poll(A, 'K_A_RDY', 9, 20, 24, 0, 1)
        A('ds_write_b32 v17, v18 offset:24\ns_mov_b64 exec, -1')
    items = [(lambda c=c, j=j: issue(c, j), max(0, c - 2)) for c in range(8) for j in range(9)]
    ends = [9 * (c + 1) for c in range(8)]
    if cfg.xpf == 2:
        def xp(n):
            if n == 0:
                A('s_lshl_b32 s60, s29, 2\ns_add_u32 s60, s60, s33\ns_mul_i32 s60, s60, 3\ns_add_u32 s60, s60, s32\ns_lshl_b32 s60, s60, 1\ns_add_u32 s60, s60, s30\ns_lshl_b32 s60, s60, 10\nv_lshlrev_b32 v7, 4, v2')
                A('s_and_b32 s62, s63, 7' if cfg.rot != 5 else 's_and_b32 s62, s101, 7\ns_add_u32 s62, s62, s63\ns_and_b32 s62, s62, 7')
            if n == 2: A('s_add_u32 s60, s60, 4096')
            A(f'buffer_load_dwordx4 v[244:247], v7, s[8:11], s60 offen offset:{(n&1)*2048}')
        items = [(lambda n=n: xp(n), 0) for n in range(3)] + items[3:9] + items[0:3] + items[9:]
        ends = [e + 3 for e in ends]
    k0 = ends[0] + cfg.xa[0] - 1
    items[k0] = (lambda f=items[k0][0]: (f(), late_setup()), items[k0][1])
    items += [(side, 0), (lambda: A('s_mov_b64 exec, 0xff\nbuffer_load_dword v251, v21, s[88:91], s100 offen sc1\ns_mov_b64 exec, -1'), 0)]
    def wo2(n):
        if n == cfg.gon: A(f's_waitcnt vmcnt({n + 1 + (0 if cfg.pwb else cfg.pwpos <= n)})'); gocheck()
        wo(n)
    tail = [(lambda n=n: wo2(n), 7) for n in range(16)]
    if not cfg.pwb: tail.insert(cfg.pwpos, (lambda: A('buffer_load_dword v250, v16, s[20:23], s98 offen sc1'), 0))
    items += tail
    loader_loop(A, items, ends, cfg.xa)
    srd_off(A, 8, P_WS, WS_FLAG, FLAG_SIZE)
    stamp(A, cfg, 2)
    A(f'v_mov_b32 v8, v21\ns_mov_b32 s7, s100\ns_add_u32 s6, s7, {GFLAG}')
    A(f's_waitcnt vmcnt({1 if cfg.pwpos == 16 and not cfg.pwb else 0})\ns_mov_b64 exec, 1\nds_add_u32 v17, v18 offset:8\ns_mov_b64 exec, -1')
    order = [0, 1, 2, 3, 4, 5, 8, 9, 10, 11, 12, 13, 14, 15, 6, 7]
    def reads(st):
        if st > 15: return []
        f = WF + 16 * (st % NB); ks = order[st]
        return [f'ds_read_b64_tr_b16 {vr(f+4*nt+2*u,2)}, v{AW+nt} offset:{ks*4096+u*512}' for nt in range(4) for u in range(2)]
    def wait_flags(tag, masked):
        A(f's_mov_b64 exec, 0xff\nK_A_P1{tag}:')
        A('buffer_load_dword v9, v8, s[8:11], s100 offen sc1\ns_add_u32 s28, s28, 1\ns_waitcnt vmcnt(0)')
        A('v_cmp_ne_u32 vcc, s96, v9')
        if masked: A(f's_mov_b64 s[92:93], vcc\ns_and_b64 vcc, vcc, s[94:95]\ns_cbranch_scc0 K_A_GO{tag}')
        else: A(f's_cmp_eq_u64 vcc, 0\ns_cbranch_scc1 K_A_GO{tag}')
        A(f's_cmp_lt_u32 s28, {cfg.n1}\ns_cbranch_scc1 K_A_P1{tag}')
        A('ds_write_b32 v17, v18\ns_mov_b32 s99, 1\ns_mov_b64 s[92:93], 0\ns_waitcnt lgkmcnt(0)\ns_barrier')
        A(f'K_A_P2{tag}:')
        A('buffer_load_dword v9, v8, s[8:11], s100 offen sc1\nbuffer_load_dword v10, v8, s[8:11], s6 offen sc1\ns_add_u32 s28, s28, 1\ns_waitcnt vmcnt(0)')
        A(f'v_cmp_ne_u32 vcc, s96, v9\ns_cmp_eq_u64 vcc, 0\ns_cbranch_scc1 K_A_GO{tag}')
        A(f'v_cmp_ne_u32 vcc, 1, v10\ns_cmp_eq_u64 vcc, 0\ns_cbranch_scc1 K_A_GO{tag}')
        A(f's_cmp_lt_u32 s28, {SPIN}\ns_cbranch_scc1 K_A_P2{tag}')
        A(f'K_A_GO{tag}:\ns_mov_b64 exec, -1')
    A('s_bitcmp1_b32 s33, 0\ns_cbranch_scc1 K_A_ODD\ns_branch K_A_EVEN')
    PART = WF + 16 * 7
    def gemm2(odd):
        tag = 'O' if odd else 'E'
        has = lambda st: (st < 8) == bool(odd)
        L = [(st, a) for st in range(16) for a in range(2) if a == 0 or has(st)]
        reg = {x: OF + 4 * (i % NO) for i, x in enumerate(L)}
        first_q3 = min(i for i, x in enumerate(L) if x[0] >= 14) if cfg.two else len(L)
        need = lambda st: sum(1 for x in L if x[0] <= st)
        vq = []
        lq = []
        def oload(i):
            st, a = L[i]; ks = order[st]; vq.append(i)
            return f's_add_u32 s7, s{42 if a else 43}, {(ks & ~3)*1024}\nbuffer_load_dwordx4 {vr(reg[L[i]],4)}, v33, s[20:23], s7 offen offset:{(ks&3)*1024} sc1'
        def after(q, keys):
            pos = [k for k, x in enumerate(q) if x in keys]
            return len(q) - 1 - max(pos) if pos else None
        A(f'K_A_LW{tag}:\n' + (f's_sleep {cfg.lws}\n' if cfg.lws else '') + 'ds_read_b32 v9, v17 offset:8\ns_waitcnt lgkmcnt(0)\nv_cmp_ne_u32 vcc, ' + ('8' if cfg.lw8 else '4') + ', v9\ns_cmp_lg_u64 vcc, 0\ns_cbranch_scc1 K_A_LW' + tag)
        stamp(A, cfg, 3)
        for st in range(NB):
            for r in reads(st): A(r)
        A('s_mov_b32 s28, 0\ns_mov_b32 s99, 0\ns_mov_b32 s94, 0xf7f7f7f7\ns_mov_b32 s95, 0xf7f7f7f7')
        wait_flags('A' + tag, bool(cfg.two))
        stamp(A, cfg, 4)
        issued = min(cfg.opre, NO)
        for i in range(issued): A(oload(i))
        CHK = (cfg.chk2 if odd else cfg.chk) if cfg.two else 99
        for st in range(16):
            f = WF + 16 * (st % NB)
            if st == CHK:
                assert issued == first_q3 and len(L) - need(st - 1) <= NO
                A(f's_waitcnt vmcnt({after(vq, ["flag"])})\nv_cmp_ne_u32 vcc, s96, v9\ns_and_b64 vcc, vcc, s[92:93]\ns_cbranch_scc0 K_A_GOB{tag}')
                wait_flags('B' + tag, False)
                for i in range(first_q3, len(L)): A(oload(i))
                issued = len(L)
            keys = [('w', st)] + (['pw'] if odd and st == 11 else []) + (['pf'] if not odd and st == 15 else [])
            lg = 0 if st == 0 else after(lq, keys)
            A(f's_waitcnt vmcnt({after(vq, [need(st) - 1])})' + (f' lgkmcnt({min(lg, 14)})' if lg is not None else ''))
            if st == 0: stamp(A, cfg, 5)
            if odd and st == 11: A('ds_write_b32 v29, v18 offset:16'); lq.append('x')
            if not odd and st == 15:
                A('s_mov_b32 s28, 0\nK_A_PW:\nv_cmp_ne_u32 vcc, 1, v10\ns_cmp_eq_u64 vcc, 0\ns_cbranch_scc1 K_A_PWX\nds_read_b32 v10, v29 offset:16\ns_add_u32 s28, s28, 1')
                A('s_cmp_lg_u32 s28, 64\ns_cbranch_scc1 K_A_PWN\ns_cmp_lg_u32 s99, 0\ns_cbranch_scc1 K_A_PWN\ns_mov_b32 s99, 1\ns_barrier\nK_A_PWN:\ns_waitcnt lgkmcnt(0)\ns_branch K_A_PW\nK_A_PWX:')
            M = [lambda d=ACC+16*a+4*nt, x=f+4*nt, b=reg[(st, a)], z=(st & 7 if a else st): mfma32(A, d, x, b, d if z else None) for a in range(2) if (st, a) in reg for nt in range(4)]
            O = []
            while issued < first_q3 and issued < need(st - 1) + NO: O.append(oload(issued)); issued += 1
            if st == CHK - (4 if odd else 3):
                O.append('s_mov_b64 exec, 0xff\nbuffer_load_dword v9, v8, s[8:11], s100 offen sc1\ns_mov_b64 exec, -1'); vq.append('flag')
            if not odd and st == 14: O.append('ds_read_b32 v10, v29 offset:16'); lq.append('pf')
            rs = st + NB - 1 if odd else st + 2
            if NB <= rs <= 15:
                R = reads(rs); O += [R[2*i] + '\n' + R[2*i+1] for i in range(4)]; lq += [('w', rs)] * 8
            if odd and st in (9, 10): O += [f'ds_write_b128 v28, {vr(ACC+16+4*nt,4)} offset:{nt*1024}' for nt in (2*(st-9), 2*(st-9)+1)]; lq += ['pw'] * 2
            if not odd and st == 15: O += [f'ds_read_b128 {vr(PART+4*nt,4)}, v28 offset:{nt*1024}' for nt in range(4)]; lq += ['pr'] * 4
            interleave(A, M, O)
        stamp(A, cfg, 6)
        T = WF
        A('s_nop 7' if odd else 's_nop 3')
        for a in range(1 if odd else 2):
            if a:
                A('s_waitcnt lgkmcnt(6)')
                for i in range(16): A(f'v_add_f32 v{ACC+16+i}, v{ACC+16+i}, v{PART+i}')
            for nt in range(4):
                d = ACC + 16 * a + 4 * nt; p = T + 8 * a + 2 * nt
                cvt(A, p, d, d+1); cvt(A, p+1, d+2, d+3)
                A(f'ds_write_b64 v30, {vr(p,2)} offset:{a*16*144 + nt*32}')
            for n in (2*a, 2*a+1): A(f'ds_read_b128 {vr(T+16+4*n,4)}, v31 offset:{n*8*144}')
        N = 2 if odd else 4
        for n in range(N):
            A(f's_waitcnt lgkmcnt({(N-1-n) if (odd or n >= 2) else 7-n})')
            A(f'buffer_store_dwordx4 {vr(T+16+4*n,4)}, v32, s[44:47], s{48+n} offen{cfg.outflag}')
        A(f's_cmp_lg_u32 s99, 0\ns_cbranch_scc1 K_A_NOB{tag}\ns_barrier\nK_A_NOB{tag}:')
    A(';@PAD e\n;@PAGE e\nK_A_EVEN:')
    gemm2(0)
    stamp_store(A, cfg, 8)
    A('s_endpgm\n;@PAD o\n;@PAGE o\nK_A_ODD:')
    gemm2(1)
    stamp_store(A, cfg, 8)
    A('s_endpgm\n;@PAD c')

def a_consumer(A, cfg):
    AX, AW = 20, 28
    ST, MD, MP, BD, ONES = 32, 36, 40, 44, 46
    VX, V1, VS0 = 33, 34, 35
    FR, ACC = 48, 120
    A(f'v_mov_b32 v{VX}, s96\nv_mov_b32 v{V1}, 1\nv_mov_b32 v{VS0}, {OOB:#x}\nv_cmp_ne_u32 vcc, {256 if cfg.swap else 0}, v0\ns_nop 1\nv_cndmask_b32 v{VS0}, 0, v{VS0}, vcc')
    A('s_lshl_b32 s58, s59, 3\ns_add_u32 s58, s58, s29\ns_lshl_b32 s58, s58, 7')
    A('s_lshl_b32 s6, s29, 2\ns_add_u32 s6, s6, s3\ns_mul_i32 s6, s6, 3\ns_add_u32 s6, s6, s32\ns_lshl_b32 s6, s6, 1\ns_add_u32 s6, s6, s30\ns_lshl_b32 s60, s6, 10\nv_lshlrev_b32 v7, 4, v2')
    if cfg.xprio: A('s_setprio 2')
    A('s_waitcnt lgkmcnt(0)')
    if cfg.xpf == 1:
        srd(A, 12, P_AX, 0x200000)
        for n in range(3): A(f's_add_u32 s7, s60, {n*2048}\nbuffer_load_dwordx4 v[244:247], v7, s[12:15], s7 offen')
    if cfg.c3:
        srd(A, 12, P_WQKV, 0x180000)
        A('s_lshl_b32 s7, s5, 2\ns_add_u32 s7, s7, s3\ns_lshl_b32 s7, s7, 14\nv_lshlrev_b32 v8, 10, v5\nv_lshl_add_u32 v8, v6, 4, v8')
        A('buffer_load_dwordx4 v[244:247], v8, s[12:15], s7 offen offset:384\ns_add_u32 s7, s7, 8192\nbuffer_load_dwordx4 v[244:247], v8, s[12:15], s7 offen offset:384')
    srd_off(A, 16, P_WS, WS_FLAG, FLAG_SIZE); srd_off(A, 8, P_WS, WS_O, O_SIZE)
    srd(A, 20, P_DBG, 256)
    A('s_cmp_lg_u32 s5, 0\ns_cbranch_scc1 K_A_NOCLR')
    A('v_mov_b32 v8, 0\nv_mov_b32 v9, 0\nv_mov_b32 v10, 0\nv_mov_b32 v11, 0\nv_lshlrev_b32 v7, 4, v2\ns_lshl_b32 s6, s4, 2\ns_add_u32 s6, s6, s3\ns_lshl_b32 s6, s6, 11')
    A('buffer_store_dwordx4 v[8:11], v7, s[16:19], s6 offen sc1\nbuffer_store_dwordx4 v[8:11], v7, s[16:19], s6 offen offset:1024 sc1\ns_nop 1')
    A('K_A_NOCLR:')
    A('s_lshl_b32 s35, s4, 2')
    A('v_lshrrev_b32 v7, 1, v3\nv_xor_b32 v7, v7, v4\nv_lshlrev_b32 v7, 4, v7\nv_lshl_add_u32 v7, v3, 7, v7')
    A('v_xor_b32 v8, 64, v7')
    for s in range(4):
        A(f'v_add_u32 v{AX+2*s}, {s*A1_SLOT}, v7\nv_add_u32 v{AX+2*s+1}, {s*A1_SLOT}, v8')
    A('v_bfe_u32 v7, v2, 2, 2')
    A('v_lshrrev_b32 v8, 1, v7\nv_and_b32 v9, 1, v4\nv_lshl_or_b32 v8, v9, 1, v8')
    A('v_xor_b32 v8, s3, v8\nv_lshlrev_b32 v8, 5, v8\nv_lshl_add_u32 v8, v7, 7, v8')
    A('v_and_b32 v9, 3, v2\nv_lshl_add_u32 v8, v9, 3, v8')
    A('v_mul_u32_u24 v9, 3072, v4\nv_add_u32 v8, v8, v9')
    for s in range(4): A(f'v_add_u32 v{AW+s}, {s*A1_SLOT+12288}, v8')
    A('v_lshlrev_b32 v7, 2, v4\nv_sub_u32 v7, v3, v7')
    A('v_mov_b32 v9, 0xf149f2ca')
    A('v_mov_b32 v10, 0xffff\nv_mov_b32 v11, 0xffff0000')
    for i in range(4):
        A(f'v_subrev_u32 v8, {i}, v7')
        A(f'v_cmp_le_u32 vcc, 8, v8\ns_nop 1\nv_cndmask_b32 v{MD+i}, 0, v9, vcc')
        A(f'v_cmp_lt_i32 vcc, -9, v8\ns_nop 1\nv_cndmask_b32 v{MP+i}, 0, v9, vcc')
        A(f'v_cmp_le_i32 vcc, 0, v8\ns_nop 1\nv_cndmask_b32 v{12+i}, 0, v{10+(i&1)}, vcc')
    A(f'v_or_b32 v{BD}, v12, v13\nv_or_b32 v{BD+1}, v14, v15')
    A(f'v_mov_b32 v{ONES}, 0x3f803f80\nv_mov_b32 v{ONES+1}, 0x3f803f80')
    A('s_lshl_b32 s6, s29, 2\ns_add_u32 s6, s6, s3\ns_lshl_b32 s6, s6, 9')
    A(f's_mul_i32 s7, s59, {6*16384}\ns_add_u32 s60, s6, s7\ns_add_u32 s61, s60, 0x8000\ns_add_u32 s62, s60, 0x10000')
    A('v_and_b32 v7, 1, v4\nv_lshlrev_b32 v7, 14, v7\nv_lshrrev_b32 v8, 1, v4\nv_lshl_add_u32 v7, v8, 8, v7')
    A(f'v_lshl_add_u32 v{ST}, v3, 4, v7')
    PKS = 24
    A(f'v_mov_b32 v17, {LDS_WORD}')
    A('s_mov_b32 s34, 0x3eb8aa3b\ns_mov_b32 s24, s34\ns_mov_b32 s25, s34')
    def reads(ks):
        c, h = divmod(ks, 2); s = c % 4; f = FR + 36 * (ks & 1); R = []
        def w(seg): return [f'ds_read_b64_tr_b16 {vr(f+24+4*seg+2*u,2)}, v{AW+s} offset:{h*12288+seg*1024+u*512}' for u in range(2)]
        R += w(0)
        R += [f'ds_read_b128 {vr(f+4*t,4)}, v{AX+2*s+h} offset:{t*2048}' for t in range(6)]
        R += w(1) + w(2)
        return R
    def mfmas(ks):
        f = FR + 36 * (ks & 1); M = []
        for seg in range(3):
            for t in range(6):
                d = ACC + 24 * seg + 4 * t; c = d
                if seg < 2: M.append(lambda d=d, a=f+24+4*seg, b=f+4*t, c=c: mfma32(A, d, a, b, c))
                else:       M.append(lambda d=d, a=f+4*t, b=f+24+4*seg, c=c: mfma32(A, d, a, b, c))
        return M
    for i in range(72): A(f'v_mov_b32 v{ACC+i}, 0')
    A(f's_mov_b32 s28, 0\ns_setprio {cfg.cprio}\ns_barrier')
    stamp(A, cfg, 1)
    for r in reads(0): A(r)
    A('K_A_ML:')
    for ks in list(range(8)) + [14, 15]:
        if ks == 6: A('s_cmp_lg_u32 s28, 0\ns_cbranch_scc1 K_A_MT')
        if ks == 14: A('s_mov_b32 s28, 1\ns_branch K_A_ML\nK_A_MT:')
        A('s_waitcnt lgkmcnt(0)')
        M = mfmas(ks)
        if ks == 15: interleave(A, M[:12], []); defer += M[12:]
        elif ks & 1:
            pre = cfg.pre
            for m in M[:pre]: m()
            if ks == cfg.cpage: A(';@PAGE c')
            A('s_barrier')
            interleave(A, M[pre:], reads(ks + 1), per_gap=2 if pre > 2 else 1)
        else:
            R = reads(ks + 1)
            if ks == 14: defer = M[12:]; M = M[:12]
            if ks == cfg.goks: R.append('s_waitcnt vmcnt(0)')
            if ks == cfg.goks + 2: R.append(f's_or_b32 s6, s5, s28\ns_cmp_lg_u32 s6, 0\ns_cbranch_scc1 K_A_NOGO\nbuffer_store_dword v{V1}, v{VS0}, s[20:23], s35 offen sc1\nK_A_NOGO:')
            interleave(A, M, R, per_gap=2 if ks == 14 else 1)
    stamp(A, cfg, 5 if cfg.kst else 2)
    QP, KP, VP, SD, SP, MX, PK, PO, OO, SM, OP = 192, 204, 240, 48, 72, 96, 108, 120, 144, 168, 192
    C = [f'v_cvt_pk_bf16_f32 v{QP+i}, v{ACC+2*i}, v{ACC+2*i+1}' for i in range(24)]
    for m in defer[:2]: m()
    interleave(A, defer[2:], C, per_gap=2)
    A(f'v_mov_b32 v{VP}, 0\nv_mov_b32 v{VP+1}, 0')
    M = []
    for t in range(6):
        M.append(lambda t=t: mfma16(A, SD+4*t, KP+2*t, QP+2*t, MD))
        if t: M.append(lambda t=t: mfma16(A, SP+4*t, KP+2*t-2, QP+2*t, MP))
    V = []
    for t in range(6):
        V.append(f'v_cvt_pk_bf16_f32 v{VP+2+2*t}, v{ACC+48+4*t}, v{ACC+48+4*t+1}')
        V.append(f'v_cvt_pk_bf16_f32 v{VP+3+2*t}, v{ACC+48+4*t+2}, v{ACC+48+4*t+3}')
    interleave(A, M, V)
    for t in range(6):
        if t:
            for i in range(4): A(f'v_max_f32 v{SD+4*t+i}, v{SD+4*t+i}, v{SP+4*t+i}')
        A(f'v_max3_f32 v{MX+t}, v{SD+4*t}, v{SD+4*t+1}, v{SD+4*t+2}')
        A(f'v_max_f32 v{MX+t}, v{MX+t}, v{SD+4*t+3}')
    A('s_nop 1')
    for u in range(3): A(f'v_permlane32_swap_b32 v{MX+2*u}, v{MX+2*u+1}')
    for u in range(3): A(f'v_max_f32 v{MX+2*u}, v{MX+2*u}, v{MX+2*u+1}')
    for u in range(3): A(f'v_mov_b32 v{MX+2*u+1}, v{MX+2*u}')
    A('s_nop 0')
    for u in range(3): A(f'v_permlane16_swap_b32 v{MX+2*u}, v{MX+2*u+1}')
    for u in range(3): A(f'v_max_f32 v{MX+2*u}, v{MX+2*u}, v{MX+2*u+1}')
    for u in range(3): A(f'v_mul_f32 v{MX+2*u}, s34, v{MX+2*u}')
    for u in range(3): A(f'v_mov_b32 v{MX+2*u+1}, v{MX+2*u}')
    A('s_nop 0')
    for u in range(3): A(f'v_permlane32_swap_b32 v{MX+2*u}, v{MX+2*u+1}')
    for t in range(6):
        if cfg.pk:
            for i in (0, 2): A(f'v_pk_fma_f32 {vr(SD+4*t+i,2)}, {vr(SD+4*t+i,2)}, s[{PKS}:{PKS+1}], {vr(MX+(t&~1),2)} op_sel:[0,0,{t&1}] op_sel_hi:[1,1,{t&1}] neg_lo:[0,0,1] neg_hi:[0,0,1]')
        else:
            for i in range(4): A(f'v_fma_f32 v{SD+4*t+i}, v{SD+4*t+i}, s34, -v{MX+t}')
    for t in range(6):
        for i in range(4): A(f'v_exp_f32 v{SD+4*t+i}, v{SD+4*t+i}')
    for t in range(6):
        cvt(A, PK+2*t, SD+4*t, SD+4*t+1); cvt(A, PK+2*t+1, SD+4*t+2, SD+4*t+3)
    for t in range(6):
        A(f'v_and_b32 v{PO+4*t+2}, v{PK+2*t}, v{BD}\nv_and_b32 v{PO+4*t+3}, v{PK+2*t+1}, v{BD+1}')
        A(f'v_xor_b32 v{PO+4*t}, v{PK+2*t}, v{PO+4*t+2}\nv_xor_b32 v{PO+4*t+1}, v{PK+2*t+1}, v{PO+4*t+3}')
        mfma16(A, SM+4*t, ONES, PK+2*t, None)
    A('s_nop 0')
    for t in range(6): mfma32(A, OO+4*t, VP+2*t, PO+4*t, None)
    A('s_nop 1')
    for t in range(6): A(f'v_rcp_f32 v{MX+t}, v{SM+4*t}')
    if cfg.lw8 == 2: A(f's_mov_b64 exec, 1\nds_add_u32 v17, v{V1} offset:8\ns_mov_b64 exec, -1')
    A('s_nop 1')
    for u in range(3):
        for t in (2*u, 2*u+1):
            if cfg.pk:
                for i in (0, 2): A(f'v_pk_mul_f32 {vr(OO+4*t+i,2)}, {vr(OO+4*t+i,2)}, {vr(MX+(t&~1),2)} op_sel:[0,{t&1}] op_sel_hi:[1,{t&1}]')
            else:
                for i in range(4): A(f'v_mul_f32 v{OO+4*t+i}, v{OO+4*t+i}, v{MX+t}')
        for t in (2*u, 2*u+1):
            cvt(A, OP+2*t, OO+4*t, OO+4*t+1); cvt(A, OP+2*t+1, OO+4*t+2, OO+4*t+3)
        A('s_nop 1')
        A(f'v_permlane16_swap_b32 v{OP+4*u}, v{OP+4*u+2}\nv_permlane16_swap_b32 v{OP+4*u+1}, v{OP+4*u+3}')
        A(f'buffer_store_dwordx4 {vr(OP+4*u,4)}, v{ST}, s[8:11], s{60+u} offen')
    if cfg.lw8 == 1: A(f's_mov_b64 exec, 1\nds_add_u32 v17, v{V1} offset:8\ns_mov_b64 exec, -1')
    if not cfg.kst: stamp(A, cfg, 3)
    A('s_waitcnt vmcnt(0)')
    if not cfg.kst: stamp(A, cfg, 4)
    A(f'v_mov_b32 v7, {LDS_WORD}\ns_mov_b64 exec, 1\nds_add_rtn_u32 v8, v7, v{V1} offset:12\nds_read_b32 v9, v7 offset:24\nv_mov_b32 v10, 0\ns_waitcnt lgkmcnt(0)')
    A('v_cmp_ne_u32 vcc, 3, v8\ns_cmp_lg_u64 vcc, 0\ns_cbranch_scc1 K_A_NOSIG')
    A('K_A_CW:\nv_cmp_eq_u32 vcc, 1, v9\ns_cmp_lg_u64 vcc, 0\ns_cbranch_scc1 K_A_SIG\nds_read_b32 v9, v7 offset:24\ns_waitcnt lgkmcnt(0)\ns_branch K_A_CW')
    A(f'K_A_SIG:\nbuffer_store_dword v{VX}, v10, s[16:19], s58 offen')
    if cfg.wb == 1: A('s_waitcnt vmcnt(0)\nbuffer_wbl2 sc1')
    A('K_A_NOSIG:\ns_mov_b64 exec, -1\ns_setprio 0')
    if not cfg.kst: stamp(A, cfg, 5)
    A(f'v_mov_b32 v7, {LDS_WORD}\ns_barrier\nds_read_b32 v8, v7\ns_waitcnt lgkmcnt(0)\nv_readfirstlane_b32 s6, v8\ns_cmp_eq_u32 s6, 0\ns_cbranch_scc1 ' + ('K_A_CLEAN' if cfg.clean else 'K_A_CDONE'))
    for u in range(3): A(f'buffer_store_dwordx4 {vr(OP+4*u,4)}, v{ST}, s[8:11], s{60+u} offen sc1')
    A(f'v_cmp_eq_u32 vcc, 0, v2\ns_and_saveexec_b64 s[6:7], vcc\ns_waitcnt vmcnt(0)\nds_add_rtn_u32 v8, v7, v{V1} offset:4\ns_waitcnt lgkmcnt(0)')
    A(f'v_readfirstlane_b32 s28, v8\ns_cmp_lg_u32 s28, 3\ns_cbranch_scc1 K_A_CDONE')
    A(f's_add_u32 s58, s58, {GFLAG}\nv_mov_b32 v7, 0\nbuffer_store_dword v{V1}, v7, s[16:19], s58 offen sc1')
    if cfg.clean:
        A('s_branch K_A_CDONE\nK_A_CLEAN:')
        for u in range(3): A(f'buffer_store_dwordx4 {vr(OP+4*u,4)}, v{ST}, s[8:11], s{60+u} offen sc1')
    A('K_A_CDONE:')
    A('s_mov_b64 exec, -1')
    stamp_store(A, cfg, 7)
    A('s_endpgm')

def bstamp(A, cfg, slot, mode):
    if cfg.bst == mode: stamp(A, cfg, slot)

def b_all(A, cfg):
    G, F, M = 32, 38, 44
    X1, MAT, PITCH = 65536, 98304, 272
    A('s_and_b32 s5, s5, 7')
    A('s_lshl_b32 s29, s4, 2\ns_lshr_b32 s6, s5, 1\ns_add_u32 s29, s29, s6')
    A('v_lshlrev_b32 v36, 4, v2\ns_lshr_b32 s32, s3, 1\ns_and_b32 s33, s3, 1\ns_lshl_b32 s35, s3, 13')
    A('v_mov_b32 v14, 0\nv_mov_b32 v15, 1\nv_lshlrev_b32 v16, 7, v2')
    def early(tag=''):
        A('s_and_b32 s30, s5, 1\ns_lshl_b32 s30, s30, 2\ns_add_u32 s58, s30, s32')
        A('s_and_b32 s6, s5, 4\ns_lshl_b32 s31, s6, 1\ns_lshl_b32 s96, s6, 8\ns_cmp_eq_u32 s4, 0\ns_cselect_b32 s31, s31, s4\ns_cselect_b32 s96, 0, s96\ns_add_u32 s96, s96, s31')
        A('v_lshrrev_b32 v7, 2, v2\nv_and_b32 v8, 3, v2\nv_lshlrev_b32 v7, 6, v7\nv_lshl_add_u32 v7, v8, 3, v7\nv_and_b32 v8, 1, v4\nv_lshl_add_u32 v7, v8, 5, v7\nv_add_u32 v17, s35, v7\nv_xor_b32 v26, 32, v17')
        A('v_bfe_u32 v7, v2, 3, 1\nv_lshl_add_u32 v7, v7, 2, v4\nv_xor_b32 v7, v7, v6\nv_lshlrev_b32 v7, 4, v7\nv_lshl_add_u32 v18, v6, 12, v7')
        A(f's_lshl_b32 s6, s3, 9\ns_add_u32 s6, s6, {X1}\nv_add_u32 v18, s6, v18\ns_mul_i32 s6, s33, 48\nv_xor_b32 v18, s6, v18\nv_xor_b32 v27, 32, v18')
        A('v_bfe_u32 v8, v2, 3, 1\nv_mul_u32_u24 v8, 3, v8\nv_and_b32 v9, 4, v2\nv_lshrrev_b32 v9, 1, v9\nv_xor_b32 v8, v8, v9\nv_xor_b32 v8, v8, v4')
        A(f'v_lshlrev_b32 v7, 6, v3\nv_lshl_add_u32 v7, v8, 4, v7\ns_lshl_b32 s6, s32, 5\nv_xor_b32 v7, s6, v7\ns_lshl_b32 s6, s32, 13\ns_add_u32 s6, s6, {X1}\nv_add_u32 v19, s6, v7\nv_xor_b32 v20, 16, v19')
        A(f's_mov_b32 s6, {4*ZCLS}\nv_mul_lo_u32 v7, v4, s6\nv_lshl_add_u32 v22, v3, 4, v7')
        A(f's_mul_i32 s101, s29, {ZSIG}\ns_lshl_b32 s6, s33, 8\ns_add_u32 s101, s101, s6\ns_lshl_b32 s6, s58, 9\ns_add_u32 s101, s101, s6')
        A('s_lshl_b32 s6, s30, 1\nv_add_u32 v9, s6, v6')
        A('v_cmp_eq_u32 vcc, 1, v9\nv_mov_b32 v23, 16\nv_cvt_f32_u32 v25, v3\nv_cndmask_b32 v9, v9, v23, vcc')
        A('v_lshrrev_b32 v7, 1, v9\nv_and_b32 v8, 1, v9\nv_cvt_f32_u32 v7, v7\nv_cvt_f32_u32 v8, v8\nv_cvt_f32_u32 v9, v4')
        A('v_mul_f32 v7, 0x3d800000, v7\nv_mul_f32 v25, 0x3d800000, v25\nv_mul_f32 v9, 4.0, v9\nv_mul_f32 v24, 0x3e800000, v8\nv_fmac_f32 v24, v7, v9\nv_mul_f32 v23, v25, v9')
        for i in range(4):
            A(f'v_cos_f32 v{96+i}, v24\nv_cos_f32 v{100+i}, v23\nv_sin_f32 v{104+i}, v23')
            if i < 3: A('v_add_f32 v24, v24, v7\nv_add_f32 v23, v23, v25')
        A('v_cmp_lt_u32 vcc, 7, v3')
        cvt(A, 24, 96, 97); cvt(A, 25, 98, 99)
        A(f'v_cndmask_b32 v{G}, v24, v14, vcc\nv_cndmask_b32 v{G+1}, v25, v14, vcc\nv_cndmask_b32 v{G+2}, v14, v24, vcc\nv_cndmask_b32 v{G+3}, v14, v25, vcc')
        for q in range(4): cvt(A, F+q, 100+2*q, 101+2*q)
        A(f'v_xor_b32 v{F+4}, 0x80008000, v{F}\nv_xor_b32 v{F+5}, 0x80008000, v{F+1}')
        def gen_m(dst, extra):
            A(f's_lshl_b32 s6, s33, 8\ns_add_u32 s6, s6, s58\ns_add_u32 s6, s6, {extra}\nv_lshl_add_u32 v7, v3, 4, s6\nv_cvt_f32_u32 v7, v7\nv_mul_f32 v7, 0xbb000000, v7')
            A('v_lshlrev_b32 v8, 2, v4\nv_cvt_f32_u32 v8, v8\nv_mul_f32 v8, v7, v8\nv_mul_f32 v9, 0x41500000, v7')
            for i in range(8):
                A(f'v_cos_f32 v{96+i}, v8\nv_sin_f32 v{104+i}, v8')
                if i < 7: A(f'v_add_f32 v8, v8, v{9 if i == 3 else 7}')
            A('s_nop 0')
            for q in range(8): cvt(A, dst+q, 96+2*q, 97+2*q)
        gen_m(M, 0)
        for i in range(4): A(f'v_xor_b32 v{M+8+i}, 0x80008000, v{M+4+i}')
        A('s_cmp_lg_u32 s58, 0\ns_cbranch_scc1 K_B_NOM8' + tag)
        gen_m(M + 8, 8)
        A('K_B_NOM8' + tag + ':')
    def gen_init():
        A('s_sub_u32 s6, s3, 4\ns_lshl_b32 s6, s6, 8\ns_add_u32 s6, s6, s96\nv_lshl_add_u32 v7, v3, 4, s6\nv_cvt_f32_u32 v7, v7\nv_mul_f32 v240, 0xba000000, v7\nv_mul_f32 v241, 0x41500000, v240')
        A('s_and_b32 s6, s5, 4\ns_lshl_b32 s6, s6, 4\nv_lshl_add_u32 v8, v4, 2, s6\nv_cvt_f32_u32 v242, v8')
        A(f's_lshl_b32 s6, s3, 13\ns_add_u32 s6, s6, {MAT - 32768}\nv_add_u32 v243, s6, v36')
    def gen_mat(label, n):
        if n == 0: return
        A(f's_mov_b32 s7, 0\ns_mov_b32 s6, 0x43000000\n{label}:')
        A('v_mul_f32 v9, v240, v242')
        for half in range(2):
            b = 96 + 8 * half
            for i in range(4):
                A(f'v_cos_f32 v{b+i}, v9\nv_sin_f32 v{b+4+i}, v9' + (f'\nv_add_f32 v9, v9, v{240 if i < 3 else 241}' if (i < 3 or half == 0) else ''))
        A('v_add_f32 v242, 0x42000000, v242')
        for half in range(2):
            for q in range(4): cvt(A, 112+4*half+q, 96+8*half+2*q, 97+8*half+2*q)
            A(f'ds_write_b128 v243, {vr(112+4*half,4)} offset:{half*1024}')
        A(f'v_cmp_le_f32 vcc, s6, v242\nv_add_u32 v243, 2048, v243\nv_subrev_f32 v9, s6, v242\ns_add_u32 s7, s7, 1\nv_cndmask_b32 v242, v242, v9, vcc\ns_cmp_lt_u32 s7, {n}\ns_cbranch_scc1 {label}')
    if cfg.bfirst: early()
    A('s_cmp_ge_u32 s3, 4\ns_cbranch_scc1 K_B_GEN')
    A('s_and_b32 s97, s5, 1\ns_lshl_b32 s97, s97, 2\ns_add_u32 s97, s97, s3\nv_and_b32 v37, 1, v4\nv_lshlrev_b32 v37, 5, v37\nv_xor_b32 v37, v37, v36')
    if cfg.smap: A('s_lshr_b32 s7, s97, 1\ns_lshl_b32 s7, s7, 5\ns_add_u32 s6, s29, s7\ns_lshl_b32 s7, s33, 10\ns_add_u32 s6, s6, s7\ns_lshl_b32 s34, s6, 10\ns_lshl_b32 s97, s97, 13')
    else: A('s_lshl_b32 s6, s29, 2\ns_lshr_b32 s7, s97, 1\ns_add_u32 s6, s6, s7\ns_lshl_b32 s7, s33, 10\ns_add_u32 s6, s6, s7\ns_lshl_b32 s34, s6, 10\ns_lshl_b32 s97, s97, 13')
    if cfg.cpf == 1:
        A(f's_getpc_b64 s[8:9]\nK_B_PC:\ns_sub_u32 s8, s8, K_B_PC-{NAME}_kernel\ns_subb_u32 s9, s9, 0\ns_mov_b32 s10, K_END-{NAME}_kernel\ns_mov_b32 s11, 0x20000')
        A('s_lshl_b32 s6, s3, 3\ns_add_u32 s6, s6, s5\ns_lshl_b32 s6, s6, 10\nbuffer_load_dwordx4 v[244:247], v36, s[8:11], s6 offen')
    if cfg.help:
        A('s_lshl_b32 s6, s5, 2\ns_add_u32 s6, s6, s3\ns_mul_i32 s28, s6, 9')
        A('s_lshl_b32 s100, s4, 5\ns_add_u32 s100, s100, s6\ns_mul_i32 s100, s100, 768')
    A('s_mov_b32 s7, 0\ns_waitcnt lgkmcnt(0)')
    srd(A, 20, P_BX, 0x200000)
    stamp(A, cfg, 1)
    if cfg.help:
        srd(A, 8, P_AX, 0x200000); srd(A, 12, P_WQKV, 0x180000)
        A('v_cmp_gt_u32 vcc, 48, v2\nv_mov_b32 v10, 0x80000000\ns_mul_i32 s59, s4, 3\nv_cndmask_b32 v10, v10, v36, vcc')
        for n in range(9):
            A(f's_add_u32 s6, s28, {n}\ns_mul_i32 s58, s6, 683\ns_lshr_b32 s58, s58, 16\ns_mul_i32 s30, s58, 96\ns_sub_u32 s6, s6, s30\ns_add_u32 s58, s58, s59')
            A('s_lshr_b32 s30, s58, 1\ns_mul_i32 s30, s30, 88\ns_add_u32 s6, s6, s30\ns_lshl_b32 s6, s6, 1\ns_and_b32 s58, s58, 1\ns_add_u32 s6, s6, s58\ns_lshl_b32 s6, s6, 10')
            A('buffer_load_dwordx4 v[244:247], v36, s[8:11], s6 offen')
            if cfg.help > 1 and 1 <= n <= 7: A(f's_add_u32 s6, s100, {n*196608}\nbuffer_load_dwordx4 v[244:247], v10, s[12:15], s6 offen')
    def c3b(m0, m1):
        if m0 == 0 and m1 > 0:
            srd(A, 12, P_WQKV, 0x180000)
            A(f's_lshl_b32 s59, s5, 2\ns_add_u32 s59, s59, s3\ns_lshl_b32 s59, s59, 13\ns_mul_i32 s28, s4, {cfg.rotx}\ns_add_u32 s28, s28, {cfg.rot0}\ns_and_b32 s28, s28, 7\ns_mul_i32 s28, s28, 196608\ns_add_u32 s59, s59, s28')
            A('v_lshlrev_b32 v10, 10, v5\nv_lshl_add_u32 v10, v6, 4, v10')
        for m in range(m0, m1):
            A('s_sub_u32 s28, s59, 0x180000\ns_cselect_b32 s59, s59, s28')
            A('buffer_load_dwordx4 v[244:247], v10, s[12:15], s59 offen offset:384\ns_add_u32 s59, s59, 0x40000')
    c3b(0, cfg.c3a)
    def xblock(n0, n1):
        for n in range(n0, n1):
            if n == 8: A(f's_xor_b32 s34, s34, {65536 if cfg.smap else 2048}\ns_xor_b32 s97, s97, 0x8000')
            A(f's_add_u32 m0, s97, {(n&7)*1024}\ns_add_u32 s6, s34, {(n&7)*131072}')
            A('buffer_load_dwordx4 v37, s[20:23], s6 offen lds')
    xblock(0, cfg.xs)
    if cfg.xs < 16:
        A('K_B_GEN:')
        early()
        A('s_cmp_ge_u32 s3, 4\ns_cbranch_scc1 K_B_GEN2')
        xblock(cfg.xs, 16)
    late = 0
    c3b(cfg.c3a, cfg.c3n); late += cfg.c3n - cfg.c3a
    if cfg.womall:
        srd(A, 12, P_WO, 0x80000)
        A('s_lshl_b32 s28, s4, 3\ns_add_u32 s28, s28, s5\ns_lshl_b32 s28, s28, 2\ns_add_u32 s28, s28, s3\ns_lshl_b32 s28, s28, 11')
        A('buffer_load_dwordx4 v[244:247], v36, s[12:15], s28 offen\nbuffer_load_dwordx4 v[244:247], v36, s[12:15], s28 offen offset:1024'); late += 2
    if cfg.xs < 16: A('K_B_GEN2:')
    else:
        A('K_B_GEN:')
        if not cfg.bfirst: early()
    A(f's_waitcnt vmcnt({late})\ns_cmp_lt_u32 s3, 4\ns_cbranch_scc1 K_B_XOK')
    gen_init(); gen_mat('K_B_GL1', cfg.gsplit)
    stamp(A, cfg, 1)
    A('K_B_XOK:')
    A('s_waitcnt lgkmcnt(0)')
    srd_off(A, 8, P_WS, WS_Z, Z_SIZE); srd(A, 12, P_OUT, 0x400000); srd_off(A, 60, P_WS, WS_FLAG, FLAG_SIZE); srd(A, 16, P_DBG, 256); srd(A, 20, P_WO, 0x80000)
    A('s_lshl_b32 s28, s5, 3\ns_add_u32 s28, s28, s3\ns_lshl_b32 s28, s28, 13\ns_add_u32 s97, s28, 4096')
    def wopf(r):
        if cfg.wopf:
            for n in range(4): A(f'buffer_load_dwordx4 v[244:247], v36, s[20:23], s{r} offen offset:{n*1024}')
    A('s_barrier')
    stamp(A, cfg, 2)
    DA, DD = 64, 96
    for p in range(4):
        for h in range(2):
            for rb in range(2): A(f'ds_read_b64_tr_b16 {vr(DA+8*p+4*h+2*rb,2)}, v{26 if h else 17} offset:{(2*p+rb)*1024}')
    wopf(28)
    def pwb():
        srd_off(A, 24, P_WS, WS_O, O_SIZE)
        A(f's_lshl_b32 s6, s4, 3\ns_add_u32 s6, s6, s5\ns_lshl_b32 s6, s6, 3\ns_add_u32 s6, s6, s3\ns_mul_i32 s6, s6, {36*128}\ns_mov_b32 exec_hi, 15')
        A('buffer_load_dword v31, v16, s[24:27], s6 offen sc1\ns_mov_b64 exec, -1')
    if cfg.pwb == 1: pwb()
    PA = 128
    def pk_a(p): return [f'v_cvt_pk_bf16_f32 v{PA+4*p+q}, v{DD+8*p+2*q}, v{DD+8*p+2*q+1}' for q in range(4)] + [f'ds_write_b128 v{27 if p >= 2 else 18}, {vr(PA+4*p,4)} offset:{p*128}']
    for i in range(8):
        A(f's_waitcnt lgkmcnt({14 - 2*i})')
        mfma32(A, DD+4*i, DA+4*i, G, None)
        if i >= 6:
            for x in pk_a(0)[2*(i-6):2*(i-6)+2]: A(x)
    bstamp(A, cfg, 3, 1)
    for x in pk_a(0)[4:] + pk_a(1) + pk_a(2) + pk_a(3): A(x)
    A('s_waitcnt lgkmcnt(0)')
    bstamp(A, cfg, 4, 1)
    A('s_barrier')
    bstamp(A, cfg, 5, 1)
    XF, U, BO, Z, PK = 64, 96, 160, 192, 224
    for sp in range(4):
        for h in range(2): A(f'ds_read_b128 {vr(XF+16*h+4*sp,4)}, v{19+h} offset:{h*4096+sp*1024}')
    wopf(97)
    def cv_u(u, bo, sp): return [f'v_cvt_pk_bf16_f32 v{bo+4*sp+q}, v{u+8*sp+2*q}, v{u+8*sp+2*q+1}' for q in range(4)]
    def mf_c(z, bo, sp): return [lambda part=part: mfma32(A, z+16*part+4*sp, F+2*part, bo+4*sp, None) for part in range(2)]
    def cv_z(z, pk, q): return [f'v_cvt_pk_bf16_f32 v{pk+4*i+2*part+q}, v{z+16*part+8*q+i}, v{z+16*part+8*q+4+i}' for i in range(4) for part in range(2)]
    def fin(z, pk, off):
        c = cv_z(z, pk, 1)
        for i in range(4):
            A(c[2*i]); A(c[2*i+1]); A(f's_add_u32 s7, s101, {i*ZCLS + off}\nbuffer_store_dwordx4 {vr(pk+4*i,4)}, v22, s[8:11], s7 offen sc1')
    A('s_cmp_eq_u32 s58, 0\ns_cbranch_scc1 K_B_W0')
    def mf_b(sp): return [lambda: mfma32(A, U+8*sp, XF+4*sp, M, None), lambda: mfma32(A, U+8*sp+4, XF+4*sp, M+4, None),
                          lambda: mfma32(A, U+8*sp, XF+16+4*sp, M+8, U+8*sp), lambda: mfma32(A, U+8*sp+4, XF+16+4*sp, M, U+8*sp+4)]
    for sp in range(4):
        A(f's_waitcnt lgkmcnt({6 - 2*sp})')
        interleave(A, mf_b(sp), cv_u(U, BO, sp - 3) + cv_u(U, BO, 1) if sp == 3 else [], per_gap=2)
    interleave(A, mf_c(Z, BO, 0) + mf_c(Z, BO, 1), cv_u(U, BO, 2) + ['s_nop 0'] + cv_u(U, BO, 3), per_gap=2)
    A('s_nop 0')
    interleave(A, mf_c(Z, BO, 2) + mf_c(Z, BO, 3), [])
    A('s_nop 1')
    for x in cv_z(Z, PK, 0): A(x)
    fin(Z, PK, 0)
    A('s_branch K_B_SIG')
    A('K_B_W0:')
    Z2, PK2 = 64, 96
    def mf_r(h, sp): return [lambda: mfma32(A, U+32*h+8*sp, XF+16*h+4*sp, M+8*h, None), lambda: mfma32(A, U+32*h+8*sp+4, XF+16*h+4*sp, M+8*h+4, None)]
    for sp in range(4):
        A(f's_waitcnt lgkmcnt({7 - 2*sp})')
        for m in mf_r(0, sp): m()
    A('s_waitcnt lgkmcnt(0)')
    interleave(A, sum((mf_r(1, sp) for sp in range(4)), []), sum((cv_u(U, BO, sp) for sp in range(4)), []), per_gap=2)
    interleave(A, sum((mf_c(Z, BO, sp) for sp in range(4)), []), sum((cv_u(U+32, BO+16, sp) for sp in range(4)), []), per_gap=2)
    interleave(A, sum((mf_c(Z2, BO+16, sp) for sp in range(4)), []), cv_z(Z, PK, 0), per_gap=1)
    fin(Z, PK, 0)
    for x in cv_z(Z2, PK2, 0): A(x)
    fin(Z2, PK2, 8*512)
    A('K_B_SIG:\n;@PAGE b')
    bstamp(A, cfg, 6, 1)
    bstamp(A, cfg, 3, 0)
    if cfg.pwb == 2: pwb()
    AM, SW, ZF, MF, ACC, T = 23, 24, 160, 32, 224, 32
    A('s_and_b32 s30, s5, 3')
    A(f'v_mul_u32_u24 v7, {PITCH}, v4\nv_lshl_add_u32 v12, v3, 4, v7\ns_mul_i32 s7, s3, {8*PITCH}\nv_add_u32 v12, s7, v12\nv_lshlrev_b32 v7, 15, v4\nv_lshl_add_u32 v13, v3, 4, v7\nv_xor_b32 v17, {3*32768}, v13\nv_lshlrev_b32 v7, 5, v3\nv_sub_u32 v19, v12, v7\nv_add_u32 v19, 240, v19')
    A('s_lshl_b32 s6, s96, 11\ns_lshl_b32 s7, s30, 8\ns_add_u32 s6, s6, s7\ns_lshl_b32 s7, s3, 18\ns_add_u32 s6, s6, s7\ns_add_u32 s34, s6, 1024')
    A(f's_sub_u32 s97, {2048*2048 - 3*32768 + 1024 + 768}, s6\nv_add_u32 v{AM}, {MAT}, v36\nv_mov_b32 v18, 0xffff')
    A(f's_and_b32 s33, s5, 4\ns_mul_i32 s33, s33, {4*ZSIG}')
    A('s_cmp_ge_u32 s3, 4\ns_cbranch_scc1 K_B_AUX')
    A(f'v_lshrrev_b32 v8, 1, v4\nv_and_b32 v9, 1, v4')
    A('s_sub_u32 s6, 16, s31\ns_and_b32 s6, s6, 15\ns_lshl_b32 s7, s3, 2\ns_sub_u32 s28, 13, s7\ns_sub_u32 s35, 3, s30')
    A('s_cmp_ge_u32 s3, 2\ns_cselect_b32 s6, s6, s31\ns_cselect_b32 s7, s28, s7\ns_cselect_b32 s35, s35, s30\ns_cselect_b32 s58, 0x80008000, 0\ns_cselect_b32 s28, 3, 0\ns_cselect_b32 s29, 7, 0')
    A(f's_mul_i32 s6, s6, {ZCLS}\ns_lshl_b32 s7, s7, 9\ns_add_u32 s6, s6, s7\ns_lshl_b32 s35, s35, 7\ns_add_u32 s35, s35, s6')
    A(f'v_mul_u32_u24 v7, {ZSIG}, v4\nv_lshl_add_u32 v7, v6, 4, v7\nv_bfe_u32 v10, v2, 3, 1\nv_lshlrev_b32 v10, 1, v10\nv_xor_b32 v10, s28, v10\nv_xor_b32 v11, 1, v10')
    A('v_lshl_add_u32 v10, v10, 9, v7\nv_lshl_add_u32 v11, v11, 9, v7')
    A(f'v_mul_u32_u24 v7, {PITCH}, v3\nv_lshl_add_u32 v7, v8, 2, v7\ns_lshl_b32 s6, s3, 3\nv_add_u32 v7, s6, v7\nv_lshlrev_b32 v9, 2, v9\nv_xor_b32 v9, s29, v9')
    for i in range(4): A(f'v_xor_b32 v8, {i}, v9\nv_lshl_add_u32 v{SW+i}, v8, 5, v7')
    A('v_mov_b32 v20, v10\nv_mov_b32 v21, v11\ns_sub_u32 s100, s35, s33\ns_add_u32 s35, s35, s33')
    A('s_cmp_lg_u32 s3, 2\ns_cbranch_scc1 K_B_RDY_X\nv_lshlrev_b32 v7, 2, v6')
    poll(A, 'K_B_RDY', 9, 7, 16, 0, 1)
    A('s_waitcnt vmcnt(0)')
    bstamp(A, cfg, 4, 0)
    A('s_barrier')
    A('s_cmp_lg_u32 s3, 3\ns_cbranch_scc1 K_B_NOSIG')
    A(f's_lshl_b32 s6, s4, 3\ns_add_u32 s6, s6, s5\ns_lshl_b32 s6, s6, 7\ns_add_u32 s6, s6, {BFLAG}')
    A('s_mov_b64 exec, 1\nbuffer_store_dword v15, v14, s[60:63], s6 offen sc1\ns_mov_b64 exec, -1')
    A('K_B_NOSIG:')
    if cfg.pwb == 3: pwb()
    for k in range(8):
        for tt in range(4): A(f'ds_read_b128 {vr(MF+16*k+4*tt,4)}, v{AM} offset:{tt*8192 + k*1024}')
    A(f's_cmp_lg_u32 s3, 3\ns_cbranch_scc1 K_B_POLL_X\ns_mov_b32 s7, {BFLAG}')
    poll(A, 'K_B_POLL', 9, 16, 60, 's7', 1)
    A('s_barrier')
    bstamp(A, cfg, 5, 0)
    for k in range(8):
        A(f's_add_u32 s7, s{35 if k < 4 else 100}, {k*4*ZSIG}')
        for a in range(2): A(f'buffer_load_dwordx4 {vr(ZF+8*k+4*a,4)}, v{20+a}, s[8:11], s7 offen sc1')
    for k in range(8):
        A(f's_waitcnt vmcnt({14-2*k}) lgkmcnt(0)')
        for a in range(2): A(f'v_xor_b32 v{ZF+8*k+4*a+2}, s58, v{ZF+8*k+4*a+2}\nv_xor_b32 v{ZF+8*k+4*a+3}, s58, v{ZF+8*k+4*a+3}')
        for a in range(2):
            for tt in range(4): mfma32(A, ACC+8*tt+4*a, ZF+8*k+4*a, MF+16*k+4*tt, ACC+8*tt+4*a if k else None)
    bstamp(A, cfg, 6, 0)
    A('s_cmp_lg_u32 s96, 0\ns_cbranch_scc1 K_B_NOX')
    A('v_mov_b32 v64, 0xbf803f80\nv_mov_b32 v65, 0xbf803f80\nv_mov_b32 v66, 0\nv_mov_b32 v67, 0\ns_nop 1')
    for k in range(8):
        for a in range(2): mfma32(A, 68+4*a, ZF+8*k+4*a, 64, 68+4*a if k else None)
    A('s_nop 7')
    for i in range(4):
        cvt(A, 76+i, 68+i, 72+i); A(f'ds_write_b32 v{SW+i}, v{76+i} offset:{64*PITCH}')
    A('K_B_NOX:\ns_nop 2')
    for tt in range(4):
        for i in range(4):
            cvt(A, T+4*tt+i, ACC+8*tt+i, ACC+8*tt+4+i); A(f'ds_write_b32 v{SW+i}, v{T+4*tt+i} offset:{tt*16*PITCH}')
    A('s_branch K_B_FIN')
    A('K_B_AUX:')
    gen_mat('K_B_GL2', 4 - cfg.gsplit)
    A(f's_sub_u32 s6, s3, 4\ns_lshl_b32 s7, s6, 13\nv_add_u32 v7, s7, v{AM}\ns_mul_i32 s6, s6, {16*PITCH}\nv_mul_u32_u24 v8, {PITCH}, v3\nv_add_u32 v8, s6, v8\nv_mul_u32_u24 v20, {ZSIG}, v4')
    for k in range(8): A(f'ds_read_b128 {vr(MF+4*k,4)}, v7 offset:{k*1024}')
    A(f's_add_u32 s6, s30, 1\ns_and_b32 s6, s6, 3\ns_lshl_b32 s6, s6, 7\ns_mul_i32 s7, s31, {ZCLS}\ns_add_u32 s6, s6, s7\ns_sub_u32 s100, s6, s33\ns_add_u32 s35, s6, s33\ns_setprio 3')
    A('s_waitcnt vmcnt(0) lgkmcnt(0)')
    bstamp(A, cfg, 4, 0)
    A('s_barrier')
    if cfg.pwb == 3: pwb()
    A('s_barrier')
    bstamp(A, cfg, 5, 0)
    for k in range(8):
        A(f's_add_u32 s7, s{35 if k < 4 else 100}, {k*4*ZSIG}\nbuffer_load_dwordx4 {vr(ZF+4*k,4)}, v20, s[8:11], s7 offen sc1')
    for k in range(8):
        A(f's_waitcnt vmcnt({7-k}) lgkmcnt(0)')
        mfma32(A, ACC, ZF+4*k, MF+4*k, ACC if k else None)
    A(f's_nop 7\nv_cvt_pk_bf16_f32 v{T}, v{ACC}, v{ACC}\nds_write_b16 v8, v{T} offset:256')
    if cfg.wb == 2: A('s_xor_b32 s6, s3, 7\ns_or_b32 s6, s6, s5\ns_cmp_lg_u32 s6, 0\ns_cbranch_scc1 K_B_NOWB\nbuffer_wbl2 sc1\nK_B_NOWB:')
    bstamp(A, cfg, 6, 0)
    A('K_B_FIN:')
    A('s_waitcnt lgkmcnt(0)\ns_barrier')
    for n in range(2): A(f'ds_read_b128 {vr(108+4*n,4)}, v12 offset:{4*n*PITCH}')
    for n in range(2): A(f'ds_read_b128 {vr(80+8*n,4)}, v19 offset:{4*n*PITCH}\nds_read_b32 v{84+8*n}, v19 offset:{4*n*PITCH + 16}')
    for n in range(2):
        A(f's_add_u32 s6, s34, {(4*n) << 15}\ns_waitcnt lgkmcnt({5-n})')
        A(f'buffer_store_dwordx4 {vr(108+4*n,4)}, v13, s[12:15], s6 offen{cfg.outflagb}')
    for n in range(2):
        b = 80 + 8 * n
        A(f's_sub_u32 s7, s97, {(4*n) << 15}\ns_waitcnt lgkmcnt({2-2*n})')
        for q in range(4): A(f'v_bfi_b32 v{96+4*n+q}, v18, v{b+4-q}, v{b+3-q}')
        A(f'buffer_store_dwordx4 {vr(96+4*n,4)}, v17, s[12:15], s7 offen{cfg.outflagb}')
    A('s_or_b32 s6, s96, s3\ns_cmp_lg_u32 s6, 0\ns_cbranch_scc1 K_B_NOX2')
    A(f'ds_read_b128 v[104:107], v12 offset:{64*PITCH}\ns_add_u32 s6, s34, {64 << 15}\ns_mov_b64 exec, 0xffff\ns_waitcnt lgkmcnt(0)')
    A(f'buffer_store_dwordx4 v[104:107], v13, s[12:15], s6 offen{cfg.outflagb}\ns_mov_b64 exec, -1')
    A('K_B_NOX2:')
    stamp_store(A, cfg, 8)
    A('s_endpgm')

def main():
    ap = argparse.ArgumentParser()
    ap.add_argument('-o', default=f'cdna_kernels/{NAME}.s')
    ap.add_argument('--diag', action='store_true')
    ap.add_argument('--xa', default='3,10,10,10,10,10,10,6')
    ap.add_argument('--pre', type=int, default=4); ap.add_argument('--opre', type=int, default=10)
    ap.add_argument('--outflag', default='sc1'); ap.add_argument('--outflagb', default='sc1')
    ap.add_argument('--rot', type=int, default=5); ap.add_argument('--rotx', type=int, default=1); ap.add_argument('--q3', type=int, default=0)
    ap.add_argument('--help_', dest='help', type=int, default=0); ap.add_argument('--help0', type=int, default=1)
    ap.add_argument('--hbar', type=int, default=1)
    ap.add_argument('--cpf', type=int, default=2)
    ap.add_argument('--swap', type=int, default=1); ap.add_argument('--hsplit', type=int, default=4)
    ap.add_argument('--gsplit', type=int, default=3); ap.add_argument('--goks', type=int, default=2)
    ap.add_argument('--xpf', type=int, default=1); ap.add_argument('--xprio', type=int, default=0)
    ap.add_argument('--c3', type=int, default=0)
    ap.add_argument('--chk', type=int, default=12)
    ap.add_argument('--cgx', type=int, default=1); ap.add_argument('--wopf', type=int, default=0)
    ap.add_argument('--batom', type=int, default=0)
    ap.add_argument('--clean', type=int, default=0); ap.add_argument('--b9', type=int, default=14)
    ap.add_argument('--chk2', type=int, default=10)
    ap.add_argument('--pk', type=int, default=1)
    ap.add_argument('--c3b', type=int, default=2); ap.add_argument('--c3n', type=int, default=6)
    ap.add_argument('--womall', type=int, default=1); ap.add_argument('--pwb', type=int, default=3)
    ap.add_argument('--gon', type=int, default=8)
    ap.add_argument('--rot0', type=int, default=0)
    ap.add_argument('--bfirst', type=int, default=0)
    ap.add_argument('--xs', type=int, default=8)
    ap.add_argument('--smap', type=int, default=0)
    ap.add_argument('--kst', type=int, default=0); ap.add_argument('--cprio', type=int, default=2)
    ap.add_argument('--c3a', type=int, default=1)
    ap.add_argument('--pwpos', type=int, default=0)
    ap.add_argument('--two', type=int, default=0); ap.add_argument('--lper', type=int, default=0)
    ap.add_argument('--wb', type=int, default=0)
    ap.add_argument('--lws', type=int, default=1)
    ap.add_argument('--align', type=int, default=1); ap.add_argument('--kw', type=int, default=3); ap.add_argument('--kn', type=int, default=1000)
    ap.add_argument('--lw8', type=int, default=1)
    ap.add_argument('--pages', type=int, default=1); ap.add_argument('--cpage', type=int, default=1)
    ap.add_argument('--bmove', type=int, default=1)
    ap.add_argument('--bst', type=int, default=0)
    ap.add_argument('--warmat', type=int, default=7); ap.add_argument('--n1', type=int, default=60)
    cfg = ap.parse_args()
    cfg.xa = [int(x) for x in cfg.xa.split(',')]
    cfg.outflag = '' if cfg.outflag == 'plain' else ' ' + cfg.outflag.replace('+', ' ')
    cfg.outflagb = '' if cfg.outflagb == 'plain' else ' ' + cfg.outflagb.replace('+', ' ')
    A = Asm()
    A(f'; @launch grid=(256,1,1) block=(512,1,1) lds={LDS_TOTAL}')
    A('.amdgcn_target "amdgcn-amd-amdhsa--gfx950"\n.text')
    kernel(A, cfg)
    A(f""".section .rodata,"a"
.p2align 6
.amdhsa_kernel {NAME}_kernel
.amdhsa_next_free_vgpr 256
.amdhsa_next_free_sgpr 102
.amdhsa_accum_offset 256
.amdhsa_group_segment_fixed_size 0
.amdhsa_kernarg_size 88
.amdhsa_user_sgpr_count 2
.amdhsa_user_sgpr_kernarg_segment_ptr 1
.amdhsa_system_sgpr_workgroup_id_x 1
.end_amdhsa_kernel""")
    if cfg.align:
        sys.path.insert(0, 'dev'); import align
        A.L, nw, nn = align.align(A.L, cfg.kw, cfg.kn)
        print('aligned: widened', nw, 'nops', nn)
    if cfg.pages: A.L = align.pages(A.L)
    open(cfg.o, 'w').write(A.text())
main()
```

```python
import sys, argparse
NAME = 'concat_heads__sliding_local_dilated__spectral_fnet__prompt'

HEADER = """; Kernarg layout (88 bytes, pointers only, base s[0:1]):
;
;    Hand-off: plain stores + local flag holding the XCC id (accepted only if all 8 ids equal the reader's own, i.e. same L2);
"""

class Asm:
    def __init__(self): self.L = []
    def __call__(self, s):
        for line in s.split('\n'):
            line = line.strip()
            if line: self.L.append(line if line.endswith(':') or line.startswith('.') or line.startswith(';') else '    ' + line)
    def text(self): return '\n'.join(self.L) + '\n'

def vr(b, n): return f'v[{b}:{b+n-1}]' if n > 1 else f'v{b}'
def srd(A, d, lo, size):
    A(f's_mov_b32 s{d}, s{lo}\ns_mov_b32 s{d+1}, s{lo+1}\ns_mov_b32 s{d+2}, {size:#x}\ns_mov_b32 s{d+3}, 0x20000')
def srd_off(A, d, lo, off, size):
    A(f's_add_u32 s{d}, s{lo}, {off:#x}\ns_addc_u32 s{d+1}, s{lo+1}, 0\ns_mov_b32 s{d+2}, {size:#x}\ns_mov_b32 s{d+3}, 0x20000')
def mfma32(A, d, a, b, c): A(f'v_mfma_f32_16x16x32_bf16 {vr(d,4)}, {vr(a,4)}, {vr(b,4)}, {vr(c,4) if c is not None else 0}')
def mfma16(A, d, a, b, c): A(f'v_mfma_f32_16x16x16_bf16 {vr(d,4)}, {vr(a,2)}, {vr(b,2)}, {vr(c,4) if c is not None else 0}')
def cvt(A, d, a, b): A(f'v_cvt_pk_bf16_f32 v{d}, v{a}, v{b}')

P_AX, P_WQKV, P_WO, P_BX, P_CR, P_CI, P_DR, P_DI, P_OUT, P_DBG, P_WS = 36, 38, 40, 42, 44, 46, 48, 50, 52, 54, 56
WS_O, O_SIZE, WS_Z, Z_SIZE, WS_FLAG, FLAG_SIZE, WS_DIAG = 0, 0x240000, 0x280000, 0x240000, 0x500000, 0x10000, 0x800000
ZSIG, ZCLS = 4608, 147456
GFLAG, BFLAG = 192 * 128, 384 * 128
LDS_TOTAL, LDS_WORD = 163840, 147456
OOB = 0x80000000
SPIN = 400000
SLEEP = 0

def interleave(A, mf, other, per_gap=1, start=0):
    oi = 0
    for i, m in enumerate(mf):
        m()
        if i >= start:
            for _ in range(per_gap):
                if oi < len(other): A(other[oi]); oi += 1
    while oi < len(other): A(other[oi]); oi += 1

def stamp(A, cfg, slot):
    if cfg.diag: A(f's_memrealtime s[{64+4*slot}:{65+4*slot}]\ns_memtime s[{66+4*slot}:{67+4*slot}]')
def stamp_store(A, cfg, nslots):
    if not cfg.diag: return
    A('s_waitcnt lgkmcnt(0) vmcnt(0)')
    stamp(A, cfg, nslots - 1)
    A('s_waitcnt lgkmcnt(0)')
    srd_off(A, 24, P_WS, WS_DIAG, 0x100000)
    A(f's_lshl_b32 s4, s2, 3\ns_add_u32 s4, s4, s3\ns_lshl_b32 s4, s4, 6')
    for i in range(8): A(f'v_mov_b32 v{8+i}, s{64+4*min(i, nslots-1)}\nv_mov_b32 v{16+i}, s{66+4*min(i, nslots-1)}')
    A('v_mov_b32 v1, 0\nv_and_b32 v2, 63, v0\nv_cmp_eq_u32 vcc, 0, v2\ns_and_saveexec_b64 s[6:7], vcc')
    for i in range(4): A(f'buffer_store_dwordx4 v[{8+4*i}:{11+4*i}], v1, s[24:27], s4 offen offset:{16*i}')


def loader_loop(A, items, ends, X, after=None):
    done = 0
    for c in range(len(ends)):
        upto = min(len(items), ends[c] + X[min(c, len(X) - 1)])
        while done < upto and items[done][1] <= c:
            items[done][0](); done += 1
        assert done >= ends[c]
        A(f's_waitcnt vmcnt({done - ends[c]})')
        A('s_barrier')
    if after: after()
    while done < len(items):
        items[done][0](); done += 1

def poll(A, label, vdst, vaddr, srdn, soff, want, first=True):
    A(f's_mov_b32 s28, 0')
    A(f'{label}:')
    A(f'buffer_load_dword v{vdst}, v{vaddr}, s[{srdn}:{srdn+3}], {soff} offen sc1')
    A(f's_add_u32 s28, s28, 1\ns_cmp_ge_u32 s28, {SPIN}\ns_cbranch_scc1 {label}_X')
    A('s_waitcnt vmcnt(0)')
    A(f'v_cmp_ne_u32 vcc, {want}, v{vdst}')
    A(f's_cmp_lg_u64 vcc, 0\ns_cbranch_scc1 {label}')
    A(f'{label}_X:')

A1_SLOT = 36864

def kernel(A, cfg):
    A(f'.globl {NAME}_kernel\n.p2align 12\n.p2align 8\n.type {NAME}_kernel,@function\n{NAME}_kernel:')
    A(('s_load_dwordx8 s[36:43], s[0:1], 0' if cfg.k8 else 's_load_dwordx16 s[36:51], s[0:1], 0') + '\ns_load_dwordx4 s[52:55], s[0:1], 64\ns_load_dwordx2 s[56:57], s[0:1], 80')
    A('s_cmp_ge_u32 s2, 256\ns_cbranch_scc1 K_END')
    stamp(A, cfg, 0)
    if cfg.st0: A('s_memrealtime s[64:65]')
    if cfg.cpf == 2:
        A(f's_getpc_b64 s[8:9]\nK_PC:\ns_sub_u32 s8, s8, K_PC-{NAME}_kernel\ns_subb_u32 s9, s9, 0\ns_mov_b32 s10, K_END-{NAME}_kernel\ns_mov_b32 s11, 0x20000')
        A('s_lshr_b32 s5, s2, 3\ns_lshl_b32 s5, s5, 10\nv_lshlrev_b32 v1, 4, v0\nv_cmp_gt_u32 vcc, 64, v0\ns_and_saveexec_b64 s[6:7], vcc\ns_cbranch_execz K_NOPF')
        A('buffer_load_dwordx4 v[248:251], v1, s[8:11], s5 offen\nK_NOPF:\ns_mov_b64 exec, s[6:7]')
    A('v_lshrrev_b32 v1, 6, v0\nv_and_b32 v2, 63, v0')
    A('v_readfirstlane_b32 s3, v1')
    A('s_and_b32 s4, s2, 7\ns_lshr_b32 s5, s2, 3')
    A('v_and_b32 v3, 15, v2\nv_lshrrev_b32 v4, 4, v2')
    A('v_lshrrev_b32 v5, 3, v2\nv_and_b32 v6, 7, v2')
    A('s_cmp_ge_u32 s5, 24\ns_cbranch_scc1 K_B')
    A('s_mul_i32 s7, s4, 3\ns_lshr_b32 s28, s5, 3\ns_add_u32 s59, s7, s28\ns_and_b32 s29, s5, 7')
    A('s_and_b32 s30, s59, 1\ns_lshr_b32 s31, s59, 1\ns_mul_i32 s32, s31, 88')
    if cfg.swap: A('s_xor_b32 s3, s3, 4')
    A('s_getreg_b32 s96, hwreg(HW_REG_XCC_ID, 0, 4)\ns_add_u32 s96, s96, 0x100')
    A('s_cmp_ge_u32 s3, 4\ns_cbranch_scc0 K_A_CONS')
    a_loader(A, cfg)
    A('K_A_CONS:')
    a_consumer(A, cfg)
    A(';@PAD b\nK_B:')
    b_all(A, cfg)
    A('K_END:\ns_endpgm')
    if cfg.bmove:
        i, j = A.L.index('K_B:'), A.L.index('K_B_GEN:')
        front = A.L[i:j] + ['    s_branch K_B_GEN']; del A.L[i:j]
        k = A.L.index(';@PAD e'); A.L[k:k] = front

def a_loader(A, cfg):
    AW, WF, OF, ACC, NB, NO = 24, 36, 180, 220, 9, 10
    STAGE = 2 * A1_SLOT
    A('s_mul_i32 s97, s28, 3')
    if cfg.rot == 1: A('s_mov_b32 s63, 0')
    elif cfg.rot == 2: A('s_xor_b32 s63, s28, s5\ns_and_b32 s63, s63, 1\ns_lshl_b32 s63, s63, 2')
    elif cfg.rot == 3: A('s_mov_b32 s63, s97')
    if cfg.rot == 5:
        def tri(b, g): return [b + (g + i) % 3 for i in range(3)]
        def pair(b, g): return [b + (g & 1), b + 1 - (g & 1)]
        def word(p, g):
            o = [tri(0, g) + tri(3, g) + pair(6, g), [0] + tri(1, g) + tri(4, g) + [7], pair(0, g) + tri(2, g) + tri(5, g)][p]
            return sum(c << (4 * i) for i, c in enumerate(o))
        A('s_mov_b32 s63, 0\ns_mul_i32 s6, s29, 11\ns_lshr_b32 s6, s6, 5\ns_mul_i32 s6, s6, 3\ns_sub_u32 s6, s29, s6\ns_add_u32 s6, s6, s97')
        A(f's_mov_b32 s101, {word(0, 0):#x}')
        for g in range(3):
            for p in range(3):
                if p or g: A(f's_cmp_eq_u32 s6, {p + 3*g}\ns_cselect_b32 s101, {word(p, g):#x}, s101')
        A('s_cmp_eq_u32 s29, 3\ns_cselect_b32 s101, 0x76543210, s101')
    if cfg.q3: A('s_cmp_eq_u32 s29, 3\ns_cselect_b32 s63, s97, s63')
    if cfg.rotx: A(f's_mul_i32 s62, s4, {cfg.rotx}\ns_add_u32 s63, s63, s62')
    if cfg.rot0: A(f's_add_u32 s63, s63, {cfg.rot0}')
    A('s_sub_u32 s33, s3, 4')
    A('s_mul_i32 s6, s33, 24')
    for j in range(3):
        A(f'v_add_u32 v7, s6, v5\nv_add_u32 v7, {8*j}, v7')
        A('v_lshrrev_b32 v8, 1, v7\nv_and_b32 v8, 7, v8\nv_xor_b32 v8, v8, v6\nv_lshlrev_b32 v8, 4, v8')
        A('v_add_u32 v7, s32, v7\nv_lshlrev_b32 v7, 1, v7\nv_add_u32 v7, s30, v7')
        A(f'v_lshl_add_u32 v{10+j}, v7, 10, v8')
    A('s_lshl_b32 s6, s33, 4\ns_lshl_b32 s7, s29, 7\ns_movk_i32 s28, 3072')
    for par in range(2):
        A(f'v_add_u32 v7, s6, v5\nv_add_u32 v7, {8*par}, v7')
        A('v_mul_lo_u32 v7, v7, s28\nv_add_u32 v7, s7, v7')
        A(f'v_and_b32 v8, 1, v4\nv_or_b32 v8, {2*par}, v8\nv_lshlrev_b32 v8, 1, v8\nv_xor_b32 v8, v8, v6')
        A(f'v_lshl_add_u32 v{13+par}, v8, 4, v7')
    A('s_mul_i32 s34, s33, 3072')
    A('s_mul_i32 s35, s33, 6144\ns_add_u32 s35, s35, 12288')
    A('s_waitcnt lgkmcnt(0)')
    srd(A, 8, P_AX, 0x200000); srd(A, 12, P_WQKV, 0x180000)
    stamp(A, cfg, 1)
    def issue(c, j):
        base = (c % 4) * A1_SLOT
        if j < 3:
            if j == 0 and cfg.rot == 5: A(f's_bfe_u32 s62, s101, {0x40000 + 4*c:#x}\ns_add_u32 s62, s62, s63\ns_and_b32 s62, s62, 7\ns_lshl_b32 s6, s62, 7')
            elif j == 0: A(f's_add_u32 s62, s63, {c}\ns_and_b32 s62, s62, 7\ns_lshl_b32 s6, s62, 7')
            A(f's_add_u32 m0, s34, {base + j*1024}\ns_nop 0')
            A(f'buffer_load_dwordx4 v{10+j}, s[8:11], s6 offen lds')
        else:
            par, seg = divmod(j - 3, 3)
            if j == 3: A(f's_mul_i32 s7, s62, 196608')
            if seg == 0: A(f's_add_u32 m0, s35, {base + par*3072}\ns_nop 0')
            A(f'buffer_load_dwordx4 v{13+par}, s[12:15], s7 offen offset:{seg*1024} lds')
    def late_setup():
        srd(A, 16, P_WO, 0x80000); srd_off(A, 20, P_WS, WS_O, O_SIZE)
        A('s_lshl_b32 s60, s33, 3\nv_add_u32 v7, s60, v5\ns_and_b32 s60, s33, 1\ns_lshl_b32 s60, s60, 1\ns_xor_b32 s61, s29, ' + str(cfg.cgx) + '\ns_lshl_b32 s61, s61, 7')
        A('v_and_b32 v8, 1, v4\nv_or_b32 v8, s60, v8\nv_lshlrev_b32 v8, 1, v8\nv_xor_b32 v8, v8, v6\nv_lshlrev_b32 v8, 4, v8')
        A('v_lshl_add_u32 v15, v7, 10, v8\nv_add_u32 v15, s61, v15')
        A('s_lshl_b32 s58, s33, 10')
        A(f's_mul_i32 s60, s33, 24\nv_add_u32 v7, s60, v2\nv_lshrrev_b32 v8, 4, v7\nv_lshlrev_b32 v8, 14, v8\nv_and_b32 v7, 15, v7\nv_lshl_add_u32 v7, v7, 7, v8')
        A(f'v_mov_b32 v8, {OOB:#x}\nv_cmp_le_u32 vcc, 24, v2\ns_mul_i32 s60, s59, {6*16384}\ns_lshl_b32 s61, s29, 11\ns_add_u32 s98, s60, s61\nv_cndmask_b32 v16, v7, v8, vcc')
        A(f'v_mov_b32 v17, {LDS_WORD}\nv_mov_b32 v18, 0\nv_mov_b32 v19, 0\nds_write_b64 v17, v[18:19]\nds_write_b64 v17, v[18:19] offset:8\nds_write_b64 v17, v[18:19] offset:16\nds_write_b64 v17, v[18:19] offset:24\ns_waitcnt lgkmcnt(0)\nv_mov_b32 v18, 1')
        srd(A, 44, P_OUT, 0x400000)
        A('v_bfe_u32 v7, v2, 2, 2\nv_lshrrev_b32 v8, 1, v7\nv_and_b32 v9, 1, v4\nv_lshl_or_b32 v8, v9, 1, v8')
        A('v_lshlrev_b32 v9, 10, v4\nv_lshl_add_u32 v9, v7, 7, v9\nv_and_b32 v7, 3, v2\nv_lshl_add_u32 v9, v7, 3, v9')
        for nt in range(4): A(f'v_xor_b32 v7, {nt}, v8\nv_lshl_add_u32 v{AW+nt}, v7, 5, v9')
        A('v_lshlrev_b32 v33, 4, v2')
        A(f's_mul_i32 s60, s33, {32*144}\ns_add_u32 s60, s60, {STAGE}')
        A('v_mul_u32_u24 v30, 144, v3\nv_lshl_add_u32 v30, v4, 3, v30\nv_add_u32 v30, s60, v30')
        A('v_mul_u32_u24 v31, 144, v5\nv_lshl_add_u32 v31, v6, 4, v31\nv_add_u32 v31, s60, v31')
        A('v_lshlrev_b32 v32, 12, v5\nv_lshl_add_u32 v32, v6, 4, v32')
        A('s_lshl_b32 s60, s32, 12\ns_lshl_b32 s61, s30, 11\ns_add_u32 s60, s60, s61\ns_xor_b32 s61, s29, ' + str(cfg.cgx) + '\ns_lshl_b32 s61, s61, 7\ns_add_u32 s42, s60, s61')
        A('s_lshl_b32 s60, s33, 16\ns_add_u32 s48, s42, s60\ns_add_u32 s49, s48, 0x8000\ns_lshr_b32 s61, s33, 1\ns_add_u32 s61, s61, 4\ns_lshl_b32 s60, s61, 16\ns_add_u32 s50, s42, s60\ns_add_u32 s51, s50, 0x8000')
        A(f's_mul_i32 s42, s59, {6*16384}\ns_lshl_b32 s60, s33, 14\ns_add_u32 s43, s42, s60\ns_lshl_b32 s60, s61, 14\ns_add_u32 s42, s42, s60')
        A(f's_lshr_b32 s60, s33, 1\ns_lshl_b32 s61, s60, 12\ns_add_u32 s61, s61, {STAGE + 4*32*144}\nv_add_u32 v28, s61, v33\ns_lshl_b32 s60, s60, 2\nv_add_u32 v29, s60, v17')
        A('s_cmp_lg_u32 s31, 0\ns_cselect_b32 s60, 1, 0\ns_cmp_eq_u32 s33, 0\ns_cselect_b32 s60, s60, 0\ns_cmp_lg_u32 s60, 0\ns_cselect_b32 s48, 0x40000000, s48')
    def wo(n):
        A(f's_add_u32 s62, s97, {n}\ns_and_b32 s62, s62, 15')
        A('s_lshl_b32 s6, s62, 12\ns_add_u32 m0, s58, s6\ns_lshl_b32 s6, s62, 15')
        A('buffer_load_dwordx4 v15, s[16:19], s6 offen lds')
    def side():
        srd_off(A, 88, P_WS, WS_FLAG, FLAG_SIZE); srd(A, 24, P_DBG, 256)
        A(f'v_lshlrev_b32 v20, 2, v6\nv_lshlrev_b32 v21, 7, v6\ns_lshl_b32 s100, s59, 10\ns_lshr_b32 s97, s5, 3\ns_mul_i32 s97, s97, 5\ns_mov_b64 exec, 0xff')
        A('buffer_load_dword v22, v20, s[24:27], 0 offen sc1\ns_mov_b64 exec, -1')
    def gocheck():
        A('s_mov_b64 exec, 0xff\nv_cmp_ne_u32 vcc, 1, v22\ns_cmp_eq_u64 vcc, 0\ns_cbranch_scc1 K_A_RDY_X')
        poll(A, 'K_A_RDY', 9, 20, 24, 0, 1)
        A('ds_write_b32 v17, v18 offset:24\ns_mov_b64 exec, -1')
    items = [(lambda c=c, j=j: issue(c, j), max(0, c - 2)) for c in range(8) for j in range(9)]
    ends = [9 * (c + 1) for c in range(8)]
    if cfg.xpf == 2:
        def xp(n):
            if n == 0:
                A('s_lshl_b32 s60, s29, 2\ns_add_u32 s60, s60, s33\ns_mul_i32 s60, s60, 3\ns_add_u32 s60, s60, s32\ns_lshl_b32 s60, s60, 1\ns_add_u32 s60, s60, s30\ns_lshl_b32 s60, s60, 10\nv_lshlrev_b32 v7, 4, v2')
                A('s_and_b32 s62, s63, 7' if cfg.rot != 5 else 's_and_b32 s62, s101, 7\ns_add_u32 s62, s62, s63\ns_and_b32 s62, s62, 7')
            if n == 2: A('s_add_u32 s60, s60, 4096')
            A(f'buffer_load_dwordx4 v[244:247], v7, s[8:11], s60 offen offset:{(n&1)*2048}')
        items = [(lambda n=n: xp(n), 0) for n in range(3)] + items[3:9] + items[0:3] + items[9:]
        ends = [e + 3 for e in ends]
    k0 = ends[0] + cfg.xa[0] - 1
    items[k0] = (lambda f=items[k0][0]: (f(), late_setup()), items[k0][1])
    items += [(side, 0), (lambda: A('s_mov_b64 exec, 0xff\nbuffer_load_dword v251, v21, s[88:91], s100 offen sc1\ns_mov_b64 exec, -1'), 0)]
    def wo2(n):
        if n == cfg.gon: A(f's_waitcnt vmcnt({n + 1 + (0 if cfg.pwb else cfg.pwpos <= n)})'); gocheck()
        wo(n)
    tail = [(lambda n=n: wo2(n), 7) for n in range(16)]
    if not cfg.pwb: tail.insert(cfg.pwpos, (lambda: A('buffer_load_dword v250, v16, s[20:23], s98 offen sc1'), 0))
    items += tail
    loader_loop(A, items, ends, cfg.xa)
    srd_off(A, 8, P_WS, WS_FLAG, FLAG_SIZE)
    stamp(A, cfg, 2)
    A(f'v_mov_b32 v8, v21\ns_mov_b32 s7, s100\ns_add_u32 s6, s7, {GFLAG}')
    A(f's_waitcnt vmcnt({1 if cfg.pwpos == 16 and not cfg.pwb else 0})\ns_mov_b64 exec, 1\nds_add_u32 v17, v18 offset:8\ns_mov_b64 exec, -1')
    order = [0, 1, 2, 3, 4, 5, 8, 9, 10, 11, 12, 13, 14, 15, 6, 7]
    def reads(st):
        if st > 15: return []
        f = WF + 16 * (st % NB); ks = order[st]
        return [f'ds_read_b64_tr_b16 {vr(f+4*nt+2*u,2)}, v{AW+nt} offset:{ks*4096+u*512}' for nt in range(4) for u in range(2)]
    def wait_flags(tag, masked):
        A(f's_mov_b64 exec, 0xff\nK_A_P1{tag}:')
        LD = 'buffer_load_dwordx4 v[12:15], v8, s[8:11], s100 offen sc1' if cfg.wf else 'buffer_load_dword v9, v8, s[8:11], s100 offen sc1'
        CB = '\nv_and_b32 v12, v12, v13\nv_and_b32 v14, v14, v15\nv_and_b32 v9, v12, v14' if cfg.wf else ''
        A(LD + '\ns_add_u32 s28, s28, 1\ns_waitcnt vmcnt(0)' + CB)
        A('v_cmp_ne_u32 vcc, s96, v9')
        if masked: A(f's_mov_b64 s[92:93], vcc\ns_and_b64 vcc, vcc, s[94:95]\ns_cbranch_scc0 K_A_GO{tag}')
        else: A(f's_cmp_eq_u64 vcc, 0\ns_cbranch_scc1 K_A_GO{tag}')
        A(f's_cmp_lt_u32 s28, {cfg.n1}\ns_cbranch_scc1 K_A_P1{tag}')
        A('ds_write_b32 v17, v18\ns_mov_b32 s99, 1\ns_mov_b64 s[92:93], 0\ns_waitcnt lgkmcnt(0)\ns_barrier')
        A(f'K_A_P2{tag}:')
        A(LD + '\nbuffer_load_dword v10, v8, s[8:11], s6 offen sc1\ns_add_u32 s28, s28, 1\ns_waitcnt vmcnt(0)' + CB)
        A(f'v_cmp_ne_u32 vcc, s96, v9\ns_cmp_eq_u64 vcc, 0\ns_cbranch_scc1 K_A_GO{tag}')
        A(f'v_cmp_ne_u32 vcc, 1, v10\ns_cmp_eq_u64 vcc, 0\ns_cbranch_scc1 K_A_GO{tag}')
        A(f's_cmp_lt_u32 s28, {SPIN}\ns_cbranch_scc1 K_A_P2{tag}')
        A(f'K_A_GO{tag}:\ns_mov_b64 exec, -1')
    A('s_bitcmp1_b32 s33, 0\ns_cbranch_scc1 K_A_ODD\ns_branch K_A_EVEN')
    PART = WF + 16 * 7
    def gemm2(odd):
        tag = 'O' if odd else 'E'
        has = lambda st: (st < 8) == bool(odd)
        L = [(st, a) for st in range(16) for a in range(2) if a == 0 or has(st)]
        reg = {x: OF + 4 * (i % NO) for i, x in enumerate(L)}
        first_q3 = min(i for i, x in enumerate(L) if x[0] >= 14) if cfg.two else len(L)
        need = lambda st: sum(1 for x in L if x[0] <= st)
        vq = []
        lq = []
        def oload(i):
            st, a = L[i]; ks = order[st]; vq.append(i)
            return f's_add_u32 s7, s{42 if a else 43}, {(ks & ~3)*1024}\nbuffer_load_dwordx4 {vr(reg[L[i]],4)}, v33, s[20:23], s7 offen offset:{(ks&3)*1024} sc1'
        def after(q, keys):
            pos = [k for k, x in enumerate(q) if x in keys]
            return len(q) - 1 - max(pos) if pos else None
        A(f'K_A_LW{tag}:\n' + (f's_sleep {cfg.lws}\n' if cfg.lws else '') + 'ds_read_b32 v9, v17 offset:8\ns_waitcnt lgkmcnt(0)\nv_cmp_ne_u32 vcc, ' + ('8' if cfg.lw8 else '4') + ', v9\ns_cmp_lg_u64 vcc, 0\ns_cbranch_scc1 K_A_LW' + tag)
        stamp(A, cfg, 3)
        for st in range(NB):
            for r in reads(st): A(r)
        A('s_mov_b32 s28, 0\ns_mov_b32 s99, 0\ns_mov_b32 s94, 0xf7f7f7f7\ns_mov_b32 s95, 0xf7f7f7f7')
        wait_flags('A' + tag, bool(cfg.two))
        stamp(A, cfg, 4)
        issued = min(cfg.opre, NO)
        for i in range(issued): A(oload(i))
        CHK = (cfg.chk2 if odd else cfg.chk) if cfg.two else 99
        for st in range(16):
            f = WF + 16 * (st % NB)
            if st == CHK:
                assert issued == first_q3 and len(L) - need(st - 1) <= NO
                A(f's_waitcnt vmcnt({after(vq, ["flag"])})\nv_cmp_ne_u32 vcc, s96, v9\ns_and_b64 vcc, vcc, s[92:93]\ns_cbranch_scc0 K_A_GOB{tag}')
                wait_flags('B' + tag, False)
                for i in range(first_q3, len(L)): A(oload(i))
                issued = len(L)
            keys = [('w', st)] + (['pw'] if odd and st == 11 else []) + (['pf'] if not odd and st == 15 else [])
            lg = 0 if st == 0 else after(lq, keys)
            A(f's_waitcnt vmcnt({after(vq, [need(st) - 1])})' + (f' lgkmcnt({min(lg, 14)})' if lg is not None else ''))
            if st == 0: stamp(A, cfg, 5)
            if odd and st == 11: A('ds_write_b32 v29, v18 offset:16'); lq.append('x')
            if not odd and st == 15:
                A('s_mov_b32 s28, 0\nK_A_PW:\nv_cmp_ne_u32 vcc, 1, v10\ns_cmp_eq_u64 vcc, 0\ns_cbranch_scc1 K_A_PWX\nds_read_b32 v10, v29 offset:16\ns_add_u32 s28, s28, 1')
                A('s_cmp_lg_u32 s28, 64\ns_cbranch_scc1 K_A_PWN\ns_cmp_lg_u32 s99, 0\ns_cbranch_scc1 K_A_PWN\ns_mov_b32 s99, 1\ns_barrier\nK_A_PWN:\ns_waitcnt lgkmcnt(0)\ns_branch K_A_PW\nK_A_PWX:')
            M = [lambda d=ACC+16*a+4*nt, x=f+4*nt, b=reg[(st, a)], z=(st & 7 if a else st): mfma32(A, d, x, b, d if z else None) for a in range(2) if (st, a) in reg for nt in range(4)]
            O = []
            while issued < first_q3 and issued < need(st - 1) + NO: O.append(oload(issued)); issued += 1
            if st == CHK - (4 if odd else 3):
                O.append('s_mov_b64 exec, 0xff\nbuffer_load_dword v9, v8, s[8:11], s100 offen sc1\ns_mov_b64 exec, -1'); vq.append('flag')
            if not odd and st == 14: O.append('ds_read_b32 v10, v29 offset:16'); lq.append('pf')
            rs = st + NB - 1 if odd else st + 2
            if NB <= rs <= 15:
                R = reads(rs); O += [R[2*i] + '\n' + R[2*i+1] for i in range(4)]; lq += [('w', rs)] * 8
            if odd and st in (9, 10): O += [f'ds_write_b128 v28, {vr(ACC+16+4*nt,4)} offset:{nt*1024}' for nt in (2*(st-9), 2*(st-9)+1)]; lq += ['pw'] * 2
            if not odd and st == 15: O += [f'ds_read_b128 {vr(PART+4*nt,4)}, v28 offset:{nt*1024}' for nt in range(4)]; lq += ['pr'] * 4
            interleave(A, M, O)
        stamp(A, cfg, 6)
        T = WF
        A('s_nop 7' if odd else 's_nop 3')
        for a in range(1 if odd else 2):
            if a:
                A('s_waitcnt lgkmcnt(6)')
                for i in range(16): A(f'v_add_f32 v{ACC+16+i}, v{ACC+16+i}, v{PART+i}')
            for nt in range(4):
                d = ACC + 16 * a + 4 * nt; p = T + 8 * a + 2 * nt
                cvt(A, p, d, d+1); cvt(A, p+1, d+2, d+3)
                A(f'ds_write_b64 v30, {vr(p,2)} offset:{a*16*144 + nt*32}')
            for n in (2*a, 2*a+1): A(f'ds_read_b128 {vr(T+16+4*n,4)}, v31 offset:{n*8*144}')
        N = 2 if odd else 4
        for n in range(N):
            A(f's_waitcnt lgkmcnt({(N-1-n) if (odd or n >= 2) else 7-n})')
            A(f'buffer_store_dwordx4 {vr(T+16+4*n,4)}, v32, s[44:47], s{48+n} offen{cfg.outflag}')
        A(f's_cmp_lg_u32 s99, 0\ns_cbranch_scc1 K_A_NOB{tag}\ns_barrier\nK_A_NOB{tag}:')
    A(';@PAD e\n;@PAGE e\nK_A_EVEN:')
    gemm2(0)
    stamp_store(A, cfg, 8)
    A('s_endpgm\n;@PAD o\n;@PAGE o\nK_A_ODD:')
    gemm2(1)
    stamp_store(A, cfg, 8)
    A('s_endpgm\n;@PAD c')

def a_consumer(A, cfg):
    AX, AW = 20, 28
    ST, MD, MP, BD, ONES = 32, 36, 40, 44, 46
    VX, V1, VS0 = 33, 34, 35
    FR, ACC = 48, 120
    A(f'v_mov_b32 v{VX}, s96\nv_mov_b32 v{V1}, 1\nv_mov_b32 v{VS0}, {OOB:#x}\nv_cmp_ne_u32 vcc, {256 if cfg.swap else 0}, v0\ns_nop 1\nv_cndmask_b32 v{VS0}, 0, v{VS0}, vcc')
    A('s_lshl_b32 s58, s59, 3\ns_add_u32 s58, s58, s29\ns_lshl_b32 s58, s58, 7')
    A('s_lshl_b32 s6, s29, 2\ns_add_u32 s6, s6, s3\ns_mul_i32 s6, s6, 3\ns_add_u32 s6, s6, s32\ns_lshl_b32 s6, s6, 1\ns_add_u32 s6, s6, s30\ns_lshl_b32 s60, s6, 10\nv_lshlrev_b32 v7, 4, v2')
    if cfg.xpf == 3: A(f's_mul_i32 s6, s4, {128*cfg.rotx}\nv_and_b32 v8, 0x1ff, v7\nv_add_u32 v8, s6, v8\nv_and_b32 v8, 0x3ff, v8\nv_lshrrev_b32 v9, 5, v2\nv_lshl_add_u32 v9, v9, 11, v8')
    if cfg.xprio: A('s_setprio 2')
    A('s_waitcnt lgkmcnt(0)')
    if cfg.xpf == 1:
        srd(A, 12, P_AX, 0x200000)
        for n in range(3): A(f's_add_u32 s7, s60, {n*2048}\nbuffer_load_dwordx4 v[244:247], v7, s[12:15], s7 offen')
    if cfg.xpf == 3:
        srd(A, 12, P_AX, 0x200000)
        A('buffer_load_dwordx4 v[244:247], v9, s[12:15], s60 offen\ns_add_u32 s7, s60, 4096\ns_mov_b32 exec_hi, 0\nbuffer_load_dwordx4 v[244:247], v9, s[12:15], s7 offen\ns_mov_b64 exec, -1')
    if cfg.c3:
        srd(A, 12, P_WQKV, 0x180000)
        A('s_lshl_b32 s7, s5, 2\ns_add_u32 s7, s7, s3\ns_lshl_b32 s7, s7, 14\nv_lshlrev_b32 v8, 10, v5\nv_lshl_add_u32 v8, v6, 4, v8')
        A('buffer_load_dwordx4 v[244:247], v8, s[12:15], s7 offen offset:384\ns_add_u32 s7, s7, 8192\nbuffer_load_dwordx4 v[244:247], v8, s[12:15], s7 offen offset:384')
    srd_off(A, 16, P_WS, WS_FLAG, FLAG_SIZE); srd_off(A, 8, P_WS, WS_O, O_SIZE)
    srd(A, 20, P_DBG, 256)
    A('s_cmp_lg_u32 s5, 0\ns_cbranch_scc1 K_A_NOCLR')
    A('v_mov_b32 v8, 0\nv_mov_b32 v9, 0\nv_mov_b32 v10, 0\nv_mov_b32 v11, 0\nv_lshlrev_b32 v7, 4, v2\ns_lshl_b32 s6, s4, 2\ns_add_u32 s6, s6, s3\ns_lshl_b32 s6, s6, 11')
    A('buffer_store_dwordx4 v[8:11], v7, s[16:19], s6 offen sc1\nbuffer_store_dwordx4 v[8:11], v7, s[16:19], s6 offen offset:1024 sc1\ns_nop 1')
    A('K_A_NOCLR:')
    A('s_lshl_b32 s35, s4, 2')
    A('v_lshrrev_b32 v7, 1, v3\nv_xor_b32 v7, v7, v4\nv_lshlrev_b32 v7, 4, v7\nv_lshl_add_u32 v7, v3, 7, v7')
    A('v_xor_b32 v8, 64, v7')
    for s in range(4):
        A(f'v_add_u32 v{AX+2*s}, {s*A1_SLOT}, v7\nv_add_u32 v{AX+2*s+1}, {s*A1_SLOT}, v8')
    A('v_bfe_u32 v7, v2, 2, 2')
    A('v_lshrrev_b32 v8, 1, v7\nv_and_b32 v9, 1, v4\nv_lshl_or_b32 v8, v9, 1, v8')
    A('v_xor_b32 v8, s3, v8\nv_lshlrev_b32 v8, 5, v8\nv_lshl_add_u32 v8, v7, 7, v8')
    A('v_and_b32 v9, 3, v2\nv_lshl_add_u32 v8, v9, 3, v8')
    A('v_mul_u32_u24 v9, 3072, v4\nv_add_u32 v8, v8, v9')
    for s in range(4): A(f'v_add_u32 v{AW+s}, {s*A1_SLOT+12288}, v8')
    A('v_lshlrev_b32 v7, 2, v4\nv_sub_u32 v7, v3, v7')
    A('v_mov_b32 v9, 0xf149f2ca')
    A('v_mov_b32 v10, 0xffff\nv_mov_b32 v11, 0xffff0000')
    for i in range(4):
        A(f'v_subrev_u32 v8, {i}, v7')
        A(f'v_cmp_le_u32 vcc, 8, v8\ns_nop 1\nv_cndmask_b32 v{MD+i}, 0, v9, vcc')
        A(f'v_cmp_lt_i32 vcc, -9, v8\ns_nop 1\nv_cndmask_b32 v{MP+i}, 0, v9, vcc')
        A(f'v_cmp_le_i32 vcc, 0, v8\ns_nop 1\nv_cndmask_b32 v{12+i}, 0, v{10+(i&1)}, vcc')
    A(f'v_or_b32 v{BD}, v12, v13\nv_or_b32 v{BD+1}, v14, v15')
    A(f'v_mov_b32 v{ONES}, 0x3f803f80\nv_mov_b32 v{ONES+1}, 0x3f803f80')
    A('s_lshl_b32 s6, s29, 2\ns_add_u32 s6, s6, s3\ns_lshl_b32 s6, s6, 9')
    A(f's_mul_i32 s7, s59, {6*16384}\ns_add_u32 s60, s6, s7\ns_add_u32 s61, s60, 0x8000\ns_add_u32 s62, s60, 0x10000')
    A('v_and_b32 v7, 1, v4\nv_lshlrev_b32 v7, 14, v7\nv_lshrrev_b32 v8, 1, v4\nv_lshl_add_u32 v7, v8, 8, v7')
    A(f'v_lshl_add_u32 v{ST}, v3, 4, v7')
    PKS = 24
    A(f'v_mov_b32 v17, {LDS_WORD}\ns_lshl_b32 s6, s3, 2\nv_mov_b32 v18, s6')
    A('s_mov_b32 s34, 0x3eb8aa3b\ns_mov_b32 s24, s34\ns_mov_b32 s25, s34')
    def reads(ks):
        c, h = divmod(ks, 2); s = c % 4; f = FR + 36 * (ks & 1); R = []
        def w(seg): return [f'ds_read_b64_tr_b16 {vr(f+24+4*seg+2*u,2)}, v{AW+s} offset:{h*12288+seg*1024+u*512}' for u in range(2)]
        R += w(0)
        R += [f'ds_read_b128 {vr(f+4*t,4)}, v{AX+2*s+h} offset:{t*2048}' for t in range(6)]
        R += w(1) + w(2)
        return R
    def mfmas(ks):
        f = FR + 36 * (ks & 1); M = []
        for seg in range(3):
            for t in range(6):
                d = ACC + 24 * seg + 4 * t; c = d
                if seg < 2: M.append(lambda d=d, a=f+24+4*seg, b=f+4*t, c=c: mfma32(A, d, a, b, c))
                else:       M.append(lambda d=d, a=f+4*t, b=f+24+4*seg, c=c: mfma32(A, d, a, b, c))
        return M
    for i in range(72): A(f'v_mov_b32 v{ACC+i}, 0')
    A(f's_mov_b32 s28, 0\ns_setprio {cfg.cprio}\ns_barrier')
    stamp(A, cfg, 1)
    for r in reads(0): A(r)
    A('K_A_ML:')
    for ks in list(range(8)) + [14, 15]:
        if ks == 6: A('s_cmp_lg_u32 s28, 0\ns_cbranch_scc1 K_A_MT')
        if ks == 14: A('s_mov_b32 s28, 1\ns_branch K_A_ML\nK_A_MT:')
        A('s_waitcnt lgkmcnt(0)')
        M = mfmas(ks)
        if ks == 15: interleave(A, M[:12], []); defer += M[12:]
        elif ks & 1:
            pre = cfg.pre
            for m in M[:pre]: m()
            if ks == cfg.cpage: A(';@PAGE c')
            A('s_barrier')
            interleave(A, M[pre:], reads(ks + 1), per_gap=2 if pre > 2 else 1)
        else:
            R = reads(ks + 1)
            if ks == 14: defer = M[12:]; M = M[:12]
            if ks == cfg.goks: R.append('s_waitcnt vmcnt(0)')
            if ks == cfg.goks + 2: R.append(f's_or_b32 s6, s5, s28\ns_cmp_lg_u32 s6, 0\ns_cbranch_scc1 K_A_NOGO\nbuffer_store_dword v{V1}, v{VS0}, s[20:23], s35 offen sc1\nK_A_NOGO:')
            interleave(A, M, R, per_gap=2 if ks == 14 else 1)
    stamp(A, cfg, 5 if cfg.kst else 2)
    QP, KP, VP, SD, SP, MX, PK, PO, OO, SM, OP = 192, 204, 240, 48, 72, 96, 108, 120, 144, 168, 192
    C = [f'v_cvt_pk_bf16_f32 v{QP+i}, v{ACC+2*i}, v{ACC+2*i+1}' for i in range(24)]
    for m in defer[:2]: m()
    interleave(A, defer[2:], C, per_gap=2)
    A(f'v_mov_b32 v{VP}, 0\nv_mov_b32 v{VP+1}, 0')
    M = []
    for t in range(6):
        M.append(lambda t=t: mfma16(A, SD+4*t, KP+2*t, QP+2*t, MD))
        if t: M.append(lambda t=t: mfma16(A, SP+4*t, KP+2*t-2, QP+2*t, MP))
    V = []
    for t in range(6):
        V.append(f'v_cvt_pk_bf16_f32 v{VP+2+2*t}, v{ACC+48+4*t}, v{ACC+48+4*t+1}')
        V.append(f'v_cvt_pk_bf16_f32 v{VP+3+2*t}, v{ACC+48+4*t+2}, v{ACC+48+4*t+3}')
    interleave(A, M, V)
    for t in range(6):
        if t:
            for i in range(4): A(f'v_max_f32 v{SD+4*t+i}, v{SD+4*t+i}, v{SP+4*t+i}')
        A(f'v_max3_f32 v{MX+t}, v{SD+4*t}, v{SD+4*t+1}, v{SD+4*t+2}')
        A(f'v_max_f32 v{MX+t}, v{MX+t}, v{SD+4*t+3}')
    A('s_nop 1')
    for u in range(3): A(f'v_permlane32_swap_b32 v{MX+2*u}, v{MX+2*u+1}')
    for u in range(3): A(f'v_max_f32 v{MX+2*u}, v{MX+2*u}, v{MX+2*u+1}')
    for u in range(3): A(f'v_mov_b32 v{MX+2*u+1}, v{MX+2*u}')
    A('s_nop 0')
    for u in range(3): A(f'v_permlane16_swap_b32 v{MX+2*u}, v{MX+2*u+1}')
    for u in range(3): A(f'v_max_f32 v{MX+2*u}, v{MX+2*u}, v{MX+2*u+1}')
    for u in range(3): A(f'v_mul_f32 v{MX+2*u}, s34, v{MX+2*u}')
    for u in range(3): A(f'v_mov_b32 v{MX+2*u+1}, v{MX+2*u}')
    A('s_nop 0')
    for u in range(3): A(f'v_permlane32_swap_b32 v{MX+2*u}, v{MX+2*u+1}')
    for t in range(6):
        if cfg.pk:
            for i in (0, 2): A(f'v_pk_fma_f32 {vr(SD+4*t+i,2)}, {vr(SD+4*t+i,2)}, s[{PKS}:{PKS+1}], {vr(MX+(t&~1),2)} op_sel:[0,0,{t&1}] op_sel_hi:[1,1,{t&1}] neg_lo:[0,0,1] neg_hi:[0,0,1]')
        else:
            for i in range(4): A(f'v_fma_f32 v{SD+4*t+i}, v{SD+4*t+i}, s34, -v{MX+t}')
    for t in range(6):
        for i in range(4): A(f'v_exp_f32 v{SD+4*t+i}, v{SD+4*t+i}')
    if cfg.wf: A('ds_read_b32 v19, v17 offset:24')
    for t in range(6):
        cvt(A, PK+2*t, SD+4*t, SD+4*t+1); cvt(A, PK+2*t+1, SD+4*t+2, SD+4*t+3)
    for t in range(6):
        A(f'v_and_b32 v{PO+4*t+2}, v{PK+2*t}, v{BD}\nv_and_b32 v{PO+4*t+3}, v{PK+2*t+1}, v{BD+1}')
        A(f'v_xor_b32 v{PO+4*t}, v{PK+2*t}, v{PO+4*t+2}\nv_xor_b32 v{PO+4*t+1}, v{PK+2*t+1}, v{PO+4*t+3}')
        mfma16(A, SM+4*t, ONES, PK+2*t, None)
    A('s_nop 0')
    for t in range(6): mfma32(A, OO+4*t, VP+2*t, PO+4*t, None)
    A('s_nop 1')
    for t in range(6): A(f'v_rcp_f32 v{MX+t}, v{SM+4*t}')
    if cfg.wf: A('K_A_CW:\ns_waitcnt lgkmcnt(0)\nv_cmp_eq_u32 vcc, 1, v19\ns_cmp_lg_u64 vcc, 0\ns_cbranch_scc1 K_A_CWX\nds_read_b32 v19, v17 offset:24\ns_branch K_A_CW\nK_A_CWX:')
    if cfg.lw8 == 2: A(f's_mov_b64 exec, 1\nds_add_u32 v17, v{V1} offset:8\ns_mov_b64 exec, -1')
    A('s_nop 1')
    for u in range(3):
        for t in (2*u, 2*u+1):
            if cfg.pk:
                for i in (0, 2): A(f'v_pk_mul_f32 {vr(OO+4*t+i,2)}, {vr(OO+4*t+i,2)}, {vr(MX+(t&~1),2)} op_sel:[0,{t&1}] op_sel_hi:[1,{t&1}]')
            else:
                for i in range(4): A(f'v_mul_f32 v{OO+4*t+i}, v{OO+4*t+i}, v{MX+t}')
        for t in (2*u, 2*u+1):
            cvt(A, OP+2*t, OO+4*t, OO+4*t+1); cvt(A, OP+2*t+1, OO+4*t+2, OO+4*t+3)
        A('s_nop 1')
        A(f'v_permlane16_swap_b32 v{OP+4*u}, v{OP+4*u+2}\nv_permlane16_swap_b32 v{OP+4*u+1}, v{OP+4*u+3}')
        A(f'buffer_store_dwordx4 {vr(OP+4*u,4)}, v{ST}, s[8:11], s{60+u} offen')
    if cfg.lw8 == 1: A(f's_mov_b64 exec, 1\nds_add_u32 v17, v{V1} offset:8\ns_mov_b64 exec, -1')
    if not cfg.kst: stamp(A, cfg, 3)
    A('s_waitcnt vmcnt(0)')
    if not cfg.kst: stamp(A, cfg, 4)
    if cfg.wf:
        A(f's_mov_b64 exec, 1\nbuffer_store_dword v{VX}, v18, s[16:19], s58 offen')
    else:
        A(f'v_mov_b32 v7, {LDS_WORD}\ns_mov_b64 exec, 1\nds_add_rtn_u32 v8, v7, v{V1} offset:12\nds_read_b32 v9, v7 offset:24\nv_mov_b32 v10, 0\ns_waitcnt lgkmcnt(0)')
        A('v_cmp_ne_u32 vcc, 3, v8\ns_cmp_lg_u64 vcc, 0\ns_cbranch_scc1 K_A_NOSIG')
        A('K_A_CW:\nv_cmp_eq_u32 vcc, 1, v9\ns_cmp_lg_u64 vcc, 0\ns_cbranch_scc1 K_A_SIG\nds_read_b32 v9, v7 offset:24\ns_waitcnt lgkmcnt(0)\ns_branch K_A_CW')
        A(f'K_A_SIG:\nbuffer_store_dword v{VX}, v10, s[16:19], s58 offen')
        if cfg.wb == 1: A('s_waitcnt vmcnt(0)\nbuffer_wbl2 sc1')
    A('K_A_NOSIG:\ns_mov_b64 exec, -1\ns_setprio 0')
    if cfg.st0:
        srd_off(A, 24, P_WS, WS_DIAG, 0x100000)
        A('s_lshl_b32 s6, s2, 2\ns_add_u32 s6, s6, s3\ns_lshl_b32 s6, s6, 2\nv_mov_b32 v8, s64\nv_mov_b32 v7, 0\ns_mov_b64 exec, 1\nbuffer_store_dword v8, v7, s[24:27], s6 offen sc1\ns_mov_b64 exec, -1')
    if not cfg.kst: stamp(A, cfg, 5)
    A(f'v_mov_b32 v7, {LDS_WORD}\ns_barrier\nds_read_b32 v8, v7\ns_waitcnt lgkmcnt(0)\nv_readfirstlane_b32 s6, v8\ns_cmp_eq_u32 s6, 0\ns_cbranch_scc1 ' + ('K_A_CLEAN' if cfg.clean else 'K_A_CDONE'))
    for u in range(3): A(f'buffer_store_dwordx4 {vr(OP+4*u,4)}, v{ST}, s[8:11], s{60+u} offen sc1')
    A(f'v_cmp_eq_u32 vcc, 0, v2\ns_and_saveexec_b64 s[6:7], vcc\ns_waitcnt vmcnt(0)\nds_add_rtn_u32 v8, v7, v{V1} offset:4\ns_waitcnt lgkmcnt(0)')
    A(f'v_readfirstlane_b32 s28, v8\ns_cmp_lg_u32 s28, 3\ns_cbranch_scc1 K_A_CDONE')
    A(f's_add_u32 s58, s58, {GFLAG}\nv_mov_b32 v7, 0\nbuffer_store_dword v{V1}, v7, s[16:19], s58 offen sc1')
    if cfg.clean:
        A('s_branch K_A_CDONE\nK_A_CLEAN:')
        for u in range(3): A(f'buffer_store_dwordx4 {vr(OP+4*u,4)}, v{ST}, s[8:11], s{60+u} offen sc1')
    A('K_A_CDONE:')
    A('s_mov_b64 exec, -1')
    stamp_store(A, cfg, 7)
    A('s_endpgm')

def bstamp(A, cfg, slot, mode):
    if cfg.bst == mode: stamp(A, cfg, slot)

def b_all(A, cfg):
    G, F, M = 32, 38, 44
    X1, MAT, PITCH = 65536, 98304, 272
    A('s_and_b32 s5, s5, 7')
    A('s_lshl_b32 s29, s4, 2\ns_lshr_b32 s6, s5, 1\ns_add_u32 s29, s29, s6')
    A('v_lshlrev_b32 v36, 4, v2\ns_lshr_b32 s32, s3, 1\ns_and_b32 s33, s3, 1\ns_lshl_b32 s35, s3, 13')
    A('v_mov_b32 v14, 0\nv_mov_b32 v15, 1\nv_lshlrev_b32 v16, 7, v2')
    def early(tag=''):
        A('s_and_b32 s30, s5, 1\ns_lshl_b32 s30, s30, 2\ns_add_u32 s58, s30, s32')
        A('s_and_b32 s6, s5, 4\ns_lshl_b32 s31, s6, 1\ns_lshl_b32 s96, s6, 8\ns_cmp_eq_u32 s4, 0\ns_cselect_b32 s31, s31, s4\ns_cselect_b32 s96, 0, s96\ns_add_u32 s96, s96, s31')
        A('v_lshrrev_b32 v7, 2, v2\nv_and_b32 v8, 3, v2\nv_lshlrev_b32 v7, 6, v7\nv_lshl_add_u32 v7, v8, 3, v7\nv_and_b32 v8, 1, v4\nv_lshl_add_u32 v7, v8, 5, v7\nv_add_u32 v17, s35, v7\nv_xor_b32 v26, 32, v17')
        A('v_bfe_u32 v7, v2, 3, 1\nv_lshl_add_u32 v7, v7, 2, v4\nv_xor_b32 v7, v7, v6\nv_lshlrev_b32 v7, 4, v7\nv_lshl_add_u32 v18, v6, 12, v7')
        A(f's_lshl_b32 s6, s3, 9\ns_add_u32 s6, s6, {X1}\nv_add_u32 v18, s6, v18\ns_mul_i32 s6, s33, 48\nv_xor_b32 v18, s6, v18\nv_xor_b32 v27, 32, v18')
        A('v_bfe_u32 v8, v2, 3, 1\nv_mul_u32_u24 v8, 3, v8\nv_and_b32 v9, 4, v2\nv_lshrrev_b32 v9, 1, v9\nv_xor_b32 v8, v8, v9\nv_xor_b32 v8, v8, v4')
        A(f'v_lshlrev_b32 v7, 6, v3\nv_lshl_add_u32 v7, v8, 4, v7\ns_lshl_b32 s6, s32, 5\nv_xor_b32 v7, s6, v7\ns_lshl_b32 s6, s32, 13\ns_add_u32 s6, s6, {X1}\nv_add_u32 v19, s6, v7\nv_xor_b32 v20, 16, v19')
        A(f's_mov_b32 s6, {4*ZCLS}\nv_mul_lo_u32 v7, v4, s6\nv_lshl_add_u32 v22, v3, 4, v7')
        A(f's_mul_i32 s101, s29, {ZSIG}\ns_lshl_b32 s6, s33, 8\ns_add_u32 s101, s101, s6\ns_lshl_b32 s6, s58, 9\ns_add_u32 s101, s101, s6')
        A('s_lshl_b32 s6, s30, 1\nv_add_u32 v9, s6, v6')
        A('v_cmp_eq_u32 vcc, 1, v9\nv_mov_b32 v23, 16\nv_cvt_f32_u32 v25, v3\nv_cndmask_b32 v9, v9, v23, vcc')
        A('v_lshrrev_b32 v7, 1, v9\nv_and_b32 v8, 1, v9\nv_cvt_f32_u32 v7, v7\nv_cvt_f32_u32 v8, v8\nv_cvt_f32_u32 v9, v4')
        A('v_mul_f32 v7, 0x3d800000, v7\nv_mul_f32 v25, 0x3d800000, v25\nv_mul_f32 v9, 4.0, v9\nv_mul_f32 v24, 0x3e800000, v8\nv_fmac_f32 v24, v7, v9\nv_mul_f32 v23, v25, v9')
        for i in range(4):
            A(f'v_cos_f32 v{96+i}, v24\nv_cos_f32 v{100+i}, v23\nv_sin_f32 v{104+i}, v23')
            if i < 3: A('v_add_f32 v24, v24, v7\nv_add_f32 v23, v23, v25')
        A('v_cmp_lt_u32 vcc, 7, v3')
        cvt(A, 24, 96, 97); cvt(A, 25, 98, 99)
        A(f'v_cndmask_b32 v{G}, v24, v14, vcc\nv_cndmask_b32 v{G+1}, v25, v14, vcc\nv_cndmask_b32 v{G+2}, v14, v24, vcc\nv_cndmask_b32 v{G+3}, v14, v25, vcc')
        for q in range(4): cvt(A, F+q, 100+2*q, 101+2*q)
        A(f'v_xor_b32 v{F+4}, 0x80008000, v{F}\nv_xor_b32 v{F+5}, 0x80008000, v{F+1}')
        def gen_m(dst, extra):
            A(f's_lshl_b32 s6, s33, 8\ns_add_u32 s6, s6, s58\ns_add_u32 s6, s6, {extra}\nv_lshl_add_u32 v7, v3, 4, s6\nv_cvt_f32_u32 v7, v7\nv_mul_f32 v7, 0xbb000000, v7')
            A('v_lshlrev_b32 v8, 2, v4\nv_cvt_f32_u32 v8, v8\nv_mul_f32 v8, v7, v8\nv_mul_f32 v9, 0x41500000, v7')
            for i in range(8):
                A(f'v_cos_f32 v{96+i}, v8\nv_sin_f32 v{104+i}, v8')
                if i < 7: A(f'v_add_f32 v8, v8, v{9 if i == 3 else 7}')
            A('s_nop 0')
            for q in range(8): cvt(A, dst+q, 96+2*q, 97+2*q)
        gen_m(M, 0)
        for i in range(4): A(f'v_xor_b32 v{M+8+i}, 0x80008000, v{M+4+i}')
        A('s_cmp_lg_u32 s58, 0\ns_cbranch_scc1 K_B_NOM8' + tag)
        gen_m(M + 8, 8)
        A('K_B_NOM8' + tag + ':')
    def gen_init():
        A('s_sub_u32 s6, s3, 4\ns_lshl_b32 s6, s6, 8\ns_add_u32 s6, s6, s96\nv_lshl_add_u32 v7, v3, 4, s6\nv_cvt_f32_u32 v7, v7\nv_mul_f32 v240, 0xba000000, v7\nv_mul_f32 v241, 0x41500000, v240')
        A('s_and_b32 s6, s5, 4\ns_lshl_b32 s6, s6, 4\nv_lshl_add_u32 v8, v4, 2, s6\nv_cvt_f32_u32 v242, v8')
        A(f's_lshl_b32 s6, s3, 13\ns_add_u32 s6, s6, {MAT - 32768}\nv_add_u32 v243, s6, v36')
    def gen_mat(label, n):
        if n == 0: return
        A(f's_mov_b32 s7, 0\ns_mov_b32 s6, 0x43000000\n{label}:')
        A('v_mul_f32 v9, v240, v242')
        for half in range(2):
            b = 96 + 8 * half
            for i in range(4):
                A(f'v_cos_f32 v{b+i}, v9\nv_sin_f32 v{b+4+i}, v9' + (f'\nv_add_f32 v9, v9, v{240 if i < 3 else 241}' if (i < 3 or half == 0) else ''))
        A('v_add_f32 v242, 0x42000000, v242')
        for half in range(2):
            for q in range(4): cvt(A, 112+4*half+q, 96+8*half+2*q, 97+8*half+2*q)
            A(f'ds_write_b128 v243, {vr(112+4*half,4)} offset:{half*1024}')
        A(f'v_cmp_le_f32 vcc, s6, v242\nv_add_u32 v243, 2048, v243\nv_subrev_f32 v9, s6, v242\ns_add_u32 s7, s7, 1\nv_cndmask_b32 v242, v242, v9, vcc\ns_cmp_lt_u32 s7, {n}\ns_cbranch_scc1 {label}')
    if cfg.bfirst: early()
    A('s_cmp_ge_u32 s3, 4\ns_cbranch_scc1 K_B_GEN')
    A('s_and_b32 s97, s5, 1\ns_lshl_b32 s97, s97, 2\ns_add_u32 s97, s97, s3\nv_and_b32 v37, 1, v4\nv_lshlrev_b32 v37, 5, v37\nv_xor_b32 v37, v37, v36')
    if cfg.smap: A('s_lshr_b32 s7, s97, 1\ns_lshl_b32 s7, s7, 5\ns_add_u32 s6, s29, s7\ns_lshl_b32 s7, s33, 10\ns_add_u32 s6, s6, s7\ns_lshl_b32 s34, s6, 10\ns_lshl_b32 s97, s97, 13')
    else: A('s_lshl_b32 s6, s29, 2\ns_lshr_b32 s7, s97, 1\ns_add_u32 s6, s6, s7\ns_lshl_b32 s7, s33, 10\ns_add_u32 s6, s6, s7\ns_lshl_b32 s34, s6, 10\ns_lshl_b32 s97, s97, 13')
    if cfg.cpf == 1:
        A(f's_getpc_b64 s[8:9]\nK_B_PC:\ns_sub_u32 s8, s8, K_B_PC-{NAME}_kernel\ns_subb_u32 s9, s9, 0\ns_mov_b32 s10, K_END-{NAME}_kernel\ns_mov_b32 s11, 0x20000')
        A('s_lshl_b32 s6, s3, 3\ns_add_u32 s6, s6, s5\ns_lshl_b32 s6, s6, 10\nbuffer_load_dwordx4 v[244:247], v36, s[8:11], s6 offen')
    if cfg.help:
        A('s_lshl_b32 s6, s5, 2\ns_add_u32 s6, s6, s3\ns_mul_i32 s28, s6, 9')
        A('s_lshl_b32 s100, s4, 5\ns_add_u32 s100, s100, s6\ns_mul_i32 s100, s100, 768')
    A('s_mov_b32 s7, 0\ns_waitcnt lgkmcnt(0)')
    srd(A, 20, P_BX, 0x200000)
    stamp(A, cfg, 1)
    if cfg.help:
        srd(A, 8, P_AX, 0x200000); srd(A, 12, P_WQKV, 0x180000)
        A('v_cmp_gt_u32 vcc, 48, v2\nv_mov_b32 v10, 0x80000000\ns_mul_i32 s59, s4, 3\nv_cndmask_b32 v10, v10, v36, vcc')
        for n in range(9):
            A(f's_add_u32 s6, s28, {n}\ns_mul_i32 s58, s6, 683\ns_lshr_b32 s58, s58, 16\ns_mul_i32 s30, s58, 96\ns_sub_u32 s6, s6, s30\ns_add_u32 s58, s58, s59')
            A('s_lshr_b32 s30, s58, 1\ns_mul_i32 s30, s30, 88\ns_add_u32 s6, s6, s30\ns_lshl_b32 s6, s6, 1\ns_and_b32 s58, s58, 1\ns_add_u32 s6, s6, s58\ns_lshl_b32 s6, s6, 10')
            A('buffer_load_dwordx4 v[244:247], v36, s[8:11], s6 offen')
            if cfg.help > 1 and 1 <= n <= 7: A(f's_add_u32 s6, s100, {n*196608}\nbuffer_load_dwordx4 v[244:247], v10, s[12:15], s6 offen')
    def c3b(m0, m1):
        if m0 == 0 and m1 > 0:
            srd(A, 12, P_WQKV, 0x180000)
            A(f's_lshl_b32 s59, s5, 2\ns_add_u32 s59, s59, s3\ns_lshl_b32 s59, s59, 13\ns_mul_i32 s28, s4, {cfg.rotx}\ns_add_u32 s28, s28, {cfg.rot0}\ns_and_b32 s28, s28, 7\ns_mul_i32 s28, s28, 196608\ns_add_u32 s59, s59, s28')
            A('v_lshlrev_b32 v10, 10, v5\nv_lshl_add_u32 v10, v6, 4, v10')
        for m in range(m0, m1):
            A('s_sub_u32 s28, s59, 0x180000\ns_cselect_b32 s59, s59, s28')
            A('buffer_load_dwordx4 v[244:247], v10, s[12:15], s59 offen offset:384\ns_add_u32 s59, s59, 0x40000')
    c3b(0, cfg.c3a)
    def xblock(n0, n1):
        for n in range(n0, n1):
            if n == 8: A(f's_xor_b32 s34, s34, {65536 if cfg.smap else 2048}\ns_xor_b32 s97, s97, 0x8000')
            A(f's_add_u32 m0, s97, {(n&7)*1024}\ns_add_u32 s6, s34, {(n&7)*131072}')
            A('buffer_load_dwordx4 v37, s[20:23], s6 offen lds')
    xblock(0, cfg.xs)
    if cfg.xs < 16:
        A('K_B_GEN:')
        early()
        A('s_cmp_ge_u32 s3, 4\ns_cbranch_scc1 K_B_GEN2')
        xblock(cfg.xs, 16)
    late = 0
    c3b(cfg.c3a, cfg.c3n); late += cfg.c3n - cfg.c3a
    if cfg.xpf == 3:
        srd(A, 12, P_AX, 0x200000)
        A(f's_mul_i32 s6, s4, {128*cfg.rotx}\ns_add_u32 s6, s6, 512\nv_and_b32 v11, 0x1ff, v36\nv_add_u32 v11, s6, v11\nv_and_b32 v11, 0x3ff, v11')
        A('s_lshl_b32 s6, s5, 2\ns_add_u32 s6, s6, s3\ns_mul_i32 s6, s6, 9\nv_lshrrev_b32 v12, 5, v2\nv_add_u32 v12, s6, v12\ns_mul_i32 s6, s4, 3')
        for n in range(5):
            A('v_mul_u32_u24 v8, 683, v12\nv_lshrrev_b32 v8, 16, v8\nv_mul_u32_u24 v9, 96, v8\nv_sub_u32 v7, v12, v9')
            A('v_add_u32 v8, s6, v8\nv_lshrrev_b32 v9, 1, v8\nv_mul_u32_u24 v9, 88, v9\nv_add_u32 v7, v7, v9\nv_and_b32 v8, 1, v8\nv_lshl_add_u32 v7, v7, 1, v8')
            A('v_lshl_add_u32 v7, v7, 10, v11\nv_add_u32 v12, 2, v12\nbuffer_load_dwordx4 v[244:247], v7, s[12:15], 0 offen')
        late += 5
    if cfg.womall:
        srd(A, 12, P_WO, 0x80000)
        A('s_lshl_b32 s28, s4, 3\ns_add_u32 s28, s28, s5\ns_lshl_b32 s28, s28, 2\ns_add_u32 s28, s28, s3\ns_lshl_b32 s28, s28, 11')
        A('buffer_load_dwordx4 v[244:247], v36, s[12:15], s28 offen\nbuffer_load_dwordx4 v[244:247], v36, s[12:15], s28 offen offset:1024'); late += 2
    if cfg.xs < 16: A('K_B_GEN2:')
    else:
        A('K_B_GEN:')
        if not cfg.bfirst: early()
    A(f's_waitcnt vmcnt({late})\ns_cmp_lt_u32 s3, 4\ns_cbranch_scc1 K_B_XOK')
    gen_init(); gen_mat('K_B_GL1', cfg.gsplit)
    stamp(A, cfg, 1)
    A('K_B_XOK:')
    A('s_waitcnt lgkmcnt(0)')
    srd_off(A, 8, P_WS, WS_Z, Z_SIZE); srd(A, 12, P_OUT, 0x400000); srd_off(A, 60, P_WS, WS_FLAG, FLAG_SIZE); srd(A, 16, P_DBG, 256); srd(A, 20, P_WO, 0x80000)
    A('s_lshl_b32 s28, s5, 3\ns_add_u32 s28, s28, s3\ns_lshl_b32 s28, s28, 13\ns_add_u32 s97, s28, 4096')
    def wopf(r):
        if cfg.wopf:
            for n in range(4): A(f'buffer_load_dwordx4 v[244:247], v36, s[20:23], s{r} offen offset:{n*1024}')
    A('s_barrier')
    stamp(A, cfg, 2)
    if cfg.bprio == 1: A('s_cmp_lt_u32 s3, 4\ns_cbranch_scc1 K_B_NP\ns_setprio 1\nK_B_NP:')
    DA, DD = 64, 96
    for p in range(4):
        for h in range(2):
            for rb in range(2): A(f'ds_read_b64_tr_b16 {vr(DA+8*p+4*h+2*rb,2)}, v{26 if h else 17} offset:{(2*p+rb)*1024}')
    wopf(28)
    def pwb():
        srd_off(A, 24, P_WS, WS_O, O_SIZE)
        A(f's_lshl_b32 s6, s4, 3\ns_add_u32 s6, s6, s5\ns_lshl_b32 s6, s6, 3\ns_add_u32 s6, s6, s3\ns_mul_i32 s6, s6, {36*128}\ns_mov_b32 exec_hi, 15')
        A('buffer_load_dword v31, v16, s[24:27], s6 offen sc1\ns_mov_b64 exec, -1')
    if cfg.pwb == 1: pwb()
    PA = 128
    def pk_a(p): return [f'v_cvt_pk_bf16_f32 v{PA+4*p+q}, v{DD+8*p+2*q}, v{DD+8*p+2*q+1}' for q in range(4)] + [f'ds_write_b128 v{27 if p >= 2 else 18}, {vr(PA+4*p,4)} offset:{p*128}']
    for i in range(8):
        A(f's_waitcnt lgkmcnt({14 - 2*i})')
        mfma32(A, DD+4*i, DA+4*i, G, None)
        if i >= 6:
            for x in pk_a(0)[2*(i-6):2*(i-6)+2]: A(x)
    bstamp(A, cfg, 3, 1)
    for x in pk_a(0)[4:] + pk_a(1) + pk_a(2) + pk_a(3): A(x)
    A('s_waitcnt lgkmcnt(0)')
    bstamp(A, cfg, 4, 1)
    A('s_barrier')
    bstamp(A, cfg, 5, 1)
    XF, U, BO, Z, PK = 64, 96, 160, 192, 224
    for sp in range(4):
        for h in range(2): A(f'ds_read_b128 {vr(XF+16*h+4*sp,4)}, v{19+h} offset:{h*4096+sp*1024}')
    wopf(97)
    def cv_u(u, bo, sp): return [f'v_cvt_pk_bf16_f32 v{bo+4*sp+q}, v{u+8*sp+2*q}, v{u+8*sp+2*q+1}' for q in range(4)]
    def mf_c(z, bo, sp): return [lambda part=part: mfma32(A, z+16*part+4*sp, F+2*part, bo+4*sp, None) for part in range(2)]
    def cv_z(z, pk, q): return [f'v_cvt_pk_bf16_f32 v{pk+4*i+2*part+q}, v{z+16*part+8*q+i}, v{z+16*part+8*q+4+i}' for i in range(4) for part in range(2)]
    def fin(z, pk, off):
        c = cv_z(z, pk, 1)
        for i in range(4):
            A(c[2*i]); A(c[2*i+1]); A(f's_add_u32 s7, s101, {i*ZCLS + off}\nbuffer_store_dwordx4 {vr(pk+4*i,4)}, v22, s[8:11], s7 offen sc1')
    A('s_cmp_eq_u32 s58, 0\ns_cbranch_scc1 K_B_W0')
    def mf_b(sp): return [lambda: mfma32(A, U+8*sp, XF+4*sp, M, None), lambda: mfma32(A, U+8*sp+4, XF+4*sp, M+4, None),
                          lambda: mfma32(A, U+8*sp, XF+16+4*sp, M+8, U+8*sp), lambda: mfma32(A, U+8*sp+4, XF+16+4*sp, M, U+8*sp+4)]
    for sp in range(4):
        A(f's_waitcnt lgkmcnt({6 - 2*sp})')
        interleave(A, mf_b(sp), cv_u(U, BO, sp - 3) + cv_u(U, BO, 1) if sp == 3 else [], per_gap=2)
    interleave(A, mf_c(Z, BO, 0) + mf_c(Z, BO, 1), cv_u(U, BO, 2) + ['s_nop 0'] + cv_u(U, BO, 3), per_gap=2)
    A('s_nop 0')
    interleave(A, mf_c(Z, BO, 2) + mf_c(Z, BO, 3), [])
    A('s_nop 1')
    for x in cv_z(Z, PK, 0): A(x)
    fin(Z, PK, 0)
    A('s_branch K_B_SIG')
    A('K_B_W0:')
    Z2, PK2 = 64, 96
    def mf_r(h, sp): return [lambda: mfma32(A, U+32*h+8*sp, XF+16*h+4*sp, M+8*h, None), lambda: mfma32(A, U+32*h+8*sp+4, XF+16*h+4*sp, M+8*h+4, None)]
    for sp in range(4):
        A(f's_waitcnt lgkmcnt({7 - 2*sp})')
        for m in mf_r(0, sp): m()
    A('s_waitcnt lgkmcnt(0)')
    interleave(A, sum((mf_r(1, sp) for sp in range(4)), []), sum((cv_u(U, BO, sp) for sp in range(4)), []), per_gap=2)
    interleave(A, sum((mf_c(Z, BO, sp) for sp in range(4)), []), sum((cv_u(U+32, BO+16, sp) for sp in range(4)), []), per_gap=2)
    interleave(A, sum((mf_c(Z2, BO+16, sp) for sp in range(4)), []), cv_z(Z, PK, 0), per_gap=1)
    fin(Z, PK, 0)
    for x in cv_z(Z2, PK2, 0): A(x)
    fin(Z2, PK2, 8*512)
    A('K_B_SIG:\n;@PAGE b')
    bstamp(A, cfg, 6, 1)
    bstamp(A, cfg, 3, 0)
    if cfg.pwb == 2: pwb()
    AM, SW, ZF, MF, ACC, T = 23, 24, 160, 32, 224, 32
    A('s_and_b32 s30, s5, 3')
    A(f'v_mul_u32_u24 v7, {PITCH}, v4\nv_lshl_add_u32 v12, v3, 4, v7\ns_mul_i32 s7, s3, {8*PITCH}\nv_add_u32 v12, s7, v12\nv_lshlrev_b32 v7, 15, v4\nv_lshl_add_u32 v13, v3, 4, v7\nv_xor_b32 v17, {3*32768}, v13\nv_lshlrev_b32 v7, 5, v3\nv_sub_u32 v19, v12, v7\nv_add_u32 v19, 240, v19')
    A('s_lshl_b32 s6, s96, 11\ns_lshl_b32 s7, s30, 8\ns_add_u32 s6, s6, s7\ns_lshl_b32 s7, s3, 18\ns_add_u32 s6, s6, s7\ns_add_u32 s34, s6, 1024')
    A(f's_sub_u32 s97, {2048*2048 - 3*32768 + 1024 + 768}, s6\nv_add_u32 v{AM}, {MAT}, v36\nv_mov_b32 v18, 0xffff')
    A(f's_and_b32 s33, s5, 4\ns_mul_i32 s33, s33, {4*ZSIG}')
    A('s_cmp_ge_u32 s3, 4\ns_cbranch_scc1 K_B_AUX')
    A(f'v_lshrrev_b32 v8, 1, v4\nv_and_b32 v9, 1, v4')
    A('s_sub_u32 s6, 16, s31\ns_and_b32 s6, s6, 15\ns_lshl_b32 s7, s3, 2\ns_sub_u32 s28, 13, s7\ns_sub_u32 s35, 3, s30')
    A('s_cmp_ge_u32 s3, 2\ns_cselect_b32 s6, s6, s31\ns_cselect_b32 s7, s28, s7\ns_cselect_b32 s35, s35, s30\ns_cselect_b32 s58, 0x80008000, 0\ns_cselect_b32 s28, 3, 0\ns_cselect_b32 s29, 7, 0')
    A(f's_mul_i32 s6, s6, {ZCLS}\ns_lshl_b32 s7, s7, 9\ns_add_u32 s6, s6, s7\ns_lshl_b32 s35, s35, 7\ns_add_u32 s35, s35, s6')
    A(f'v_mul_u32_u24 v7, {ZSIG}, v4\nv_lshl_add_u32 v7, v6, 4, v7\nv_bfe_u32 v10, v2, 3, 1\nv_lshlrev_b32 v10, 1, v10\nv_xor_b32 v10, s28, v10\nv_xor_b32 v11, 1, v10')
    A('v_lshl_add_u32 v10, v10, 9, v7\nv_lshl_add_u32 v11, v11, 9, v7')
    A(f'v_mul_u32_u24 v7, {PITCH}, v3\nv_lshl_add_u32 v7, v8, 2, v7\ns_lshl_b32 s6, s3, 3\nv_add_u32 v7, s6, v7\nv_lshlrev_b32 v9, 2, v9\nv_xor_b32 v9, s29, v9')
    for i in range(4): A(f'v_xor_b32 v8, {i}, v9\nv_lshl_add_u32 v{SW+i}, v8, 5, v7')
    A('v_mov_b32 v20, v10\nv_mov_b32 v21, v11\ns_sub_u32 s100, s35, s33\ns_add_u32 s35, s35, s33')
    A('s_cmp_lg_u32 s3, 2\ns_cbranch_scc1 K_B_RDY_X\nv_lshlrev_b32 v7, 2, v6')
    poll(A, 'K_B_RDY', 9, 7, 16, 0, 1)
    A('s_waitcnt vmcnt(0)')
    bstamp(A, cfg, 4, 0)
    A('s_barrier')
    A('s_cmp_lg_u32 s3, 3\ns_cbranch_scc1 K_B_NOSIG')
    A(f's_lshl_b32 s6, s4, 3\ns_add_u32 s6, s6, s5\ns_lshl_b32 s6, s6, 7\ns_add_u32 s6, s6, {BFLAG}')
    A('s_mov_b64 exec, 1\nbuffer_store_dword v15, v14, s[60:63], s6 offen sc1\ns_mov_b64 exec, -1')
    A('K_B_NOSIG:')
    if cfg.pwb == 3: pwb()
    for k in range(8):
        for tt in range(4): A(f'ds_read_b128 {vr(MF+16*k+4*tt,4)}, v{AM} offset:{tt*8192 + k*1024}')
    A(f's_cmp_lg_u32 s3, 3\ns_cbranch_scc1 K_B_POLL_X\ns_mov_b32 s7, {BFLAG}')
    poll(A, 'K_B_POLL', 9, 16, 60, 's7', 1)
    A('s_barrier')
    bstamp(A, cfg, 5, 0)
    for k in range(8):
        A(f's_add_u32 s7, s{35 if k < 4 else 100}, {k*4*ZSIG}')
        for a in range(2): A(f'buffer_load_dwordx4 {vr(ZF+8*k+4*a,4)}, v{20+a}, s[8:11], s7 offen sc1')
    for k in range(8):
        A(f's_waitcnt vmcnt({14-2*k}) lgkmcnt(0)')
        for a in range(2): A(f'v_xor_b32 v{ZF+8*k+4*a+2}, s58, v{ZF+8*k+4*a+2}\nv_xor_b32 v{ZF+8*k+4*a+3}, s58, v{ZF+8*k+4*a+3}')
        for a in range(2):
            for tt in range(4): mfma32(A, ACC+8*tt+4*a, ZF+8*k+4*a, MF+16*k+4*tt, ACC+8*tt+4*a if k else None)
    bstamp(A, cfg, 6, 0)
    A('s_cmp_lg_u32 s96, 0\ns_cbranch_scc1 K_B_NOX')
    A('v_mov_b32 v64, 0xbf803f80\nv_mov_b32 v65, 0xbf803f80\nv_mov_b32 v66, 0\nv_mov_b32 v67, 0\ns_nop 1')
    for k in range(8):
        for a in range(2): mfma32(A, 68+4*a, ZF+8*k+4*a, 64, 68+4*a if k else None)
    A('s_nop 7')
    for i in range(4):
        cvt(A, 76+i, 68+i, 72+i); A(f'ds_write_b32 v{SW+i}, v{76+i} offset:{64*PITCH}')
    A('K_B_NOX:\ns_nop 2')
    for tt in range(4):
        for i in range(4):
            cvt(A, T+4*tt+i, ACC+8*tt+i, ACC+8*tt+4+i); A(f'ds_write_b32 v{SW+i}, v{T+4*tt+i} offset:{tt*16*PITCH}')
    A('s_branch K_B_FIN')
    A('K_B_AUX:')
    gen_mat('K_B_GL2', 4 - cfg.gsplit)
    A(f's_sub_u32 s6, s3, 4\ns_lshl_b32 s7, s6, 13\nv_add_u32 v7, s7, v{AM}\ns_mul_i32 s6, s6, {16*PITCH}\nv_mul_u32_u24 v8, {PITCH}, v3\nv_add_u32 v8, s6, v8\nv_mul_u32_u24 v20, {ZSIG}, v4')
    for k in range(8): A(f'ds_read_b128 {vr(MF+4*k,4)}, v7 offset:{k*1024}')
    A(f's_add_u32 s6, s30, 1\ns_and_b32 s6, s6, 3\ns_lshl_b32 s6, s6, 7\ns_mul_i32 s7, s31, {ZCLS}\ns_add_u32 s6, s6, s7\ns_sub_u32 s100, s6, s33\ns_add_u32 s35, s6, s33\ns_setprio 3')
    A('s_waitcnt vmcnt(0) lgkmcnt(0)')
    bstamp(A, cfg, 4, 0)
    A('s_barrier')
    if cfg.pwb == 3: pwb()
    A('s_barrier')
    bstamp(A, cfg, 5, 0)
    for k in range(8):
        A(f's_add_u32 s7, s{35 if k < 4 else 100}, {k*4*ZSIG}\nbuffer_load_dwordx4 {vr(ZF+4*k,4)}, v20, s[8:11], s7 offen sc1')
    for k in range(8):
        A(f's_waitcnt vmcnt({7-k}) lgkmcnt(0)')
        mfma32(A, ACC, ZF+4*k, MF+4*k, ACC if k else None)
    A(f's_nop 7\nv_cvt_pk_bf16_f32 v{T}, v{ACC}, v{ACC}\nds_write_b16 v8, v{T} offset:256')
    if cfg.wb == 2: A('s_xor_b32 s6, s3, 7\ns_or_b32 s6, s6, s5\ns_cmp_lg_u32 s6, 0\ns_cbranch_scc1 K_B_NOWB\nbuffer_wbl2 sc1\nK_B_NOWB:')
    bstamp(A, cfg, 6, 0)
    A('K_B_FIN:')
    A('s_waitcnt lgkmcnt(0)\ns_barrier')
    for n in range(2): A(f'ds_read_b128 {vr(108+4*n,4)}, v12 offset:{4*n*PITCH}')
    for n in range(2): A(f'ds_read_b128 {vr(80+8*n,4)}, v19 offset:{4*n*PITCH}\nds_read_b32 v{84+8*n}, v19 offset:{4*n*PITCH + 16}')
    for n in range(2):
        A(f's_add_u32 s6, s34, {(4*n) << 15}\ns_waitcnt lgkmcnt({5-n})')
        A(f'buffer_store_dwordx4 {vr(108+4*n,4)}, v13, s[12:15], s6 offen{cfg.outflagb}')
    for n in range(2):
        b = 80 + 8 * n
        A(f's_sub_u32 s7, s97, {(4*n) << 15}\ns_waitcnt lgkmcnt({2-2*n})')
        for q in range(4): A(f'v_bfi_b32 v{96+4*n+q}, v18, v{b+4-q}, v{b+3-q}')
        A(f'buffer_store_dwordx4 {vr(96+4*n,4)}, v17, s[12:15], s7 offen{cfg.outflagb}')
    A('s_or_b32 s6, s96, s3\ns_cmp_lg_u32 s6, 0\ns_cbranch_scc1 K_B_NOX2')
    A(f'ds_read_b128 v[104:107], v12 offset:{64*PITCH}\ns_add_u32 s6, s34, {64 << 15}\ns_mov_b64 exec, 0xffff\ns_waitcnt lgkmcnt(0)')
    A(f'buffer_store_dwordx4 v[104:107], v13, s[12:15], s6 offen{cfg.outflagb}\ns_mov_b64 exec, -1')
    A('K_B_NOX2:')
    stamp_store(A, cfg, 8)
    A('s_endpgm')

def main():
    ap = argparse.ArgumentParser()
    ap.add_argument('-o', default=f'cdna_kernels/{NAME}.s')
    ap.add_argument('--diag', action='store_true')
    ap.add_argument('--xa', default='3,10,10,10,10,10,10,6')
    ap.add_argument('--pre', type=int, default=4); ap.add_argument('--opre', type=int, default=10)
    ap.add_argument('--outflag', default='sc1'); ap.add_argument('--outflagb', default='sc1')
    ap.add_argument('--rot', type=int, default=5); ap.add_argument('--rotx', type=int, default=1); ap.add_argument('--q3', type=int, default=0)
    ap.add_argument('--help_', dest='help', type=int, default=0); ap.add_argument('--help0', type=int, default=1)
    ap.add_argument('--hbar', type=int, default=1)
    ap.add_argument('--cpf', type=int, default=2)
    ap.add_argument('--swap', type=int, default=1); ap.add_argument('--hsplit', type=int, default=4)
    ap.add_argument('--gsplit', type=int, default=3); ap.add_argument('--goks', type=int, default=2)
    ap.add_argument('--xpf', type=int, default=1); ap.add_argument('--xprio', type=int, default=0)
    ap.add_argument('--c3', type=int, default=0)
    ap.add_argument('--chk', type=int, default=12)
    ap.add_argument('--cgx', type=int, default=1); ap.add_argument('--wopf', type=int, default=0)
    ap.add_argument('--batom', type=int, default=0)
    ap.add_argument('--clean', type=int, default=0); ap.add_argument('--b9', type=int, default=14)
    ap.add_argument('--chk2', type=int, default=10)
    ap.add_argument('--pk', type=int, default=1)
    ap.add_argument('--c3b', type=int, default=2); ap.add_argument('--c3n', type=int, default=6)
    ap.add_argument('--womall', type=int, default=1); ap.add_argument('--pwb', type=int, default=3)
    ap.add_argument('--gon', type=int, default=4)
    ap.add_argument('--rot0', type=int, default=0)
    ap.add_argument('--bfirst', type=int, default=0)
    ap.add_argument('--xs', type=int, default=8)
    ap.add_argument('--smap', type=int, default=0)
    ap.add_argument('--kst', type=int, default=0); ap.add_argument('--cprio', type=int, default=2)
    ap.add_argument('--c3a', type=int, default=1)
    ap.add_argument('--pwpos', type=int, default=0)
    ap.add_argument('--two', type=int, default=0); ap.add_argument('--lper', type=int, default=0)
    ap.add_argument('--wb', type=int, default=0)
    ap.add_argument('--lws', type=int, default=0)
    ap.add_argument('--align', type=int, default=1); ap.add_argument('--kw', type=int, default=3); ap.add_argument('--kn', type=int, default=1000)
    ap.add_argument('--lw8', type=int, default=1)
    ap.add_argument('--pages', type=int, default=1); ap.add_argument('--cpage', type=int, default=1)
    ap.add_argument('--bmove', type=int, default=1)
    ap.add_argument('--st0', type=int, default=0)
    ap.add_argument('--k8', type=int, default=1); ap.add_argument('--bprio', type=int, default=0); ap.add_argument('--wf', type=int, default=1)
    ap.add_argument('--bst', type=int, default=0)
    ap.add_argument('--warmat', type=int, default=7); ap.add_argument('--n1', type=int, default=60)
    cfg = ap.parse_args()
    cfg.xa = [int(x) for x in cfg.xa.split(',')]
    cfg.outflag = '' if cfg.outflag == 'plain' else ' ' + cfg.outflag.replace('+', ' ')
    cfg.outflagb = '' if cfg.outflagb == 'plain' else ' ' + cfg.outflagb.replace('+', ' ')
    A = Asm()
    A(f'; @launch grid=(256,1,1) block=(512,1,1) lds={LDS_TOTAL}')
    A('.amdgcn_target "amdgcn-amd-amdhsa--gfx950"\n.text')
    kernel(A, cfg)
    A(f""".section .rodata,"a"
.p2align 6
.amdhsa_kernel {NAME}_kernel
.amdhsa_next_free_vgpr 256
.amdhsa_next_free_sgpr 102
.amdhsa_accum_offset 256
.amdhsa_group_segment_fixed_size 0
.amdhsa_kernarg_size 88
.amdhsa_user_sgpr_count 2
.amdhsa_user_sgpr_kernarg_segment_ptr 1
.amdhsa_system_sgpr_workgroup_id_x 1
.end_amdhsa_kernel""")
    if cfg.align:
        sys.path.insert(0, 'dev'); import align
        A.L, nw, nn = align.align(A.L, cfg.kw, cfg.kn)
        print('aligned: widened', nw, 'nops', nn)
    if cfg.pages: A.L = align.pages(A.L)
    txt = A.text()
    if cfg.st0:
        txt = txt.replace('; @launch grid', f'; @launch kernel={NAME}_kernel grid', 1).replace('\n', '\n; @launch kernel=t_kernel grid=(1,1,1) block=(64,1,1) lds=0\n', 1)
        txt = txt.replace('.section .rodata,"a"\n', '''.globl t_kernel
.p2align 8
.type t_kernel,@function
t_kernel:
    s_memrealtime s[10:11]
    s_load_dwordx2 s[4:5], s[0:1], 80
    s_waitcnt lgkmcnt(0)
    s_add_u32 s16, s4, 0x800000
    s_addc_u32 s17, s5, 0
    s_mov_b32 s18, 0x100000
    s_mov_b32 s19, 0x20000
    v_mov_b32 v1, s10
    v_mov_b32 v2, 0x1000
    buffer_store_dword v1, v2, s[16:19], 0 offen
    s_endpgm
.section .rodata,"a"
''') + '''.p2align 6
.amdhsa_kernel t_kernel
.amdhsa_next_free_vgpr 8
.amdhsa_next_free_sgpr 24
.amdhsa_accum_offset 8
.amdhsa_group_segment_fixed_size 0
.amdhsa_kernarg_size 88
.amdhsa_user_sgpr_count 2
.amdhsa_user_sgpr_kernarg_segment_ptr 1
.amdhsa_system_sgpr_workgroup_id_x 1
.end_amdhsa_kernel
'''
    if not cfg.st0 and not cfg.diag: txt = HEADER + txt
    open(cfg.o, 'w').write(txt)
main()
```

```python
import sys, argparse
NAME = 'concat_heads__sliding_local_dilated__spectral_fnet__prompt'

HEADER = """; Kernarg layout (88 bytes, pointers only, base s[0:1]):
;
;    Hand-off: plain stores + local flag holding the XCC id (accepted only if all 8 ids equal the reader's own, i.e. same L2);
"""

class Asm:
    def __init__(self): self.L = []
    def __call__(self, s):
        for line in s.split('\n'):
            line = line.strip()
            if line: self.L.append(line if line.endswith(':') or line.startswith('.') or line.startswith(';') else '    ' + line)
    def text(self): return '\n'.join(self.L) + '\n'

def vr(b, n): return f'v[{b}:{b+n-1}]' if n > 1 else f'v{b}'
def srd(A, d, lo, size):
    A(f's_mov_b32 s{d}, s{lo}\ns_mov_b32 s{d+1}, s{lo+1}\ns_mov_b32 s{d+2}, {size:#x}\ns_mov_b32 s{d+3}, 0x20000')
def srd_off(A, d, lo, off, size):
    A(f's_add_u32 s{d}, s{lo}, {off:#x}\ns_addc_u32 s{d+1}, s{lo+1}, 0\ns_mov_b32 s{d+2}, {size:#x}\ns_mov_b32 s{d+3}, 0x20000')
def mfma32(A, d, a, b, c): A(f'v_mfma_f32_16x16x32_bf16 {vr(d,4)}, {vr(a,4)}, {vr(b,4)}, {vr(c,4) if c is not None else 0}')
def mfma16(A, d, a, b, c): A(f'v_mfma_f32_16x16x16_bf16 {vr(d,4)}, {vr(a,2)}, {vr(b,2)}, {vr(c,4) if c is not None else 0}')
def cvt(A, d, a, b): A(f'v_cvt_pk_bf16_f32 v{d}, v{a}, v{b}')

P_AX, P_WQKV, P_WO, P_BX, P_CR, P_CI, P_DR, P_DI, P_OUT, P_DBG, P_WS = 36, 38, 40, 42, 44, 46, 48, 50, 52, 54, 56
WS_O, O_SIZE, WS_Z, Z_SIZE, WS_FLAG, FLAG_SIZE, WS_DIAG = 0, 0x240000, 0x280000, 0x240000, 0x500000, 0x10000, 0x800000
ZSIG, ZCLS = 4608, 147456
GFLAG, BFLAG = 192 * 128, 384 * 128
LDS_TOTAL, LDS_WORD = 163840, 147456
OOB = 0x80000000
SPIN = 400000
SLEEP = 0

def interleave(A, mf, other, per_gap=1, start=0):
    oi = 0
    for i, m in enumerate(mf):
        m()
        if i >= start:
            for _ in range(per_gap):
                if oi < len(other): A(other[oi]); oi += 1
    while oi < len(other): A(other[oi]); oi += 1

def stamp(A, cfg, slot):
    if cfg.diag: A(f's_memrealtime s[{64+4*slot}:{65+4*slot}]\ns_memtime s[{66+4*slot}:{67+4*slot}]')
def stamp_store(A, cfg, nslots):
    if not cfg.diag: return
    A('s_waitcnt lgkmcnt(0) vmcnt(0)')
    stamp(A, cfg, nslots - 1)
    A('s_waitcnt lgkmcnt(0)')
    srd_off(A, 24, P_WS, WS_DIAG, 0x100000)
    A(f's_lshl_b32 s4, s2, 3\ns_add_u32 s4, s4, s3\ns_lshl_b32 s4, s4, 6')
    for i in range(8): A(f'v_mov_b32 v{8+i}, s{64+4*min(i, nslots-1)}\nv_mov_b32 v{16+i}, s{66+4*min(i, nslots-1)}')
    A('v_mov_b32 v1, 0\nv_and_b32 v2, 63, v0\nv_cmp_eq_u32 vcc, 0, v2\ns_and_saveexec_b64 s[6:7], vcc')
    for i in range(4): A(f'buffer_store_dwordx4 v[{8+4*i}:{11+4*i}], v1, s[24:27], s4 offen offset:{16*i}')


def loader_loop(A, items, ends, X, after=None):
    done = 0
    for c in range(len(ends)):
        upto = min(len(items), ends[c] + X[min(c, len(X) - 1)])
        while done < upto and items[done][1] <= c:
            items[done][0](); done += 1
        assert done >= ends[c]
        A(f's_waitcnt vmcnt({done - ends[c]})')
        A('s_barrier')
    if after: after()
    while done < len(items):
        items[done][0](); done += 1

def poll(A, label, vdst, vaddr, srdn, soff, want, first=True):
    A(f's_mov_b32 s28, 0')
    A(f'{label}:')
    A(f'buffer_load_dword v{vdst}, v{vaddr}, s[{srdn}:{srdn+3}], {soff} offen sc1')
    A(f's_add_u32 s28, s28, 1\ns_cmp_ge_u32 s28, {SPIN}\ns_cbranch_scc1 {label}_X')
    A('s_waitcnt vmcnt(0)')
    A(f'v_cmp_ne_u32 vcc, {want}, v{vdst}')
    A(f's_cmp_lg_u64 vcc, 0\ns_cbranch_scc1 {label}')
    A(f'{label}_X:')

A1_SLOT = 36864

def kernel(A, cfg):
    A(f'.globl {NAME}_kernel\n.p2align 12\n.p2align 8\n.type {NAME}_kernel,@function\n{NAME}_kernel:')
    A(('s_load_dwordx8 s[36:43], s[0:1], 0' if cfg.k8 else 's_load_dwordx16 s[36:51], s[0:1], 0') + '\ns_load_dwordx4 s[52:55], s[0:1], 64\ns_load_dwordx2 s[56:57], s[0:1], 80')
    A('s_cmp_ge_u32 s2, 256\ns_cbranch_scc1 K_END')
    stamp(A, cfg, 0)
    if cfg.st0: A('s_memrealtime s[64:65]')
    if cfg.cpf == 2:
        A(f's_getpc_b64 s[8:9]\nK_PC:\ns_sub_u32 s8, s8, K_PC-{NAME}_kernel\ns_subb_u32 s9, s9, 0\ns_mov_b32 s10, K_END-{NAME}_kernel\ns_mov_b32 s11, 0x20000')
        A('s_lshr_b32 s5, s2, 3\ns_lshl_b32 s5, s5, 10\nv_lshlrev_b32 v1, 4, v0\nv_cmp_gt_u32 vcc, 64, v0\ns_and_saveexec_b64 s[6:7], vcc\ns_cbranch_execz K_NOPF')
        A('buffer_load_dwordx4 v[248:251], v1, s[8:11], s5 offen\nK_NOPF:\ns_mov_b64 exec, s[6:7]')
    A('v_lshrrev_b32 v1, 6, v0\nv_and_b32 v2, 63, v0')
    A('v_readfirstlane_b32 s3, v1')
    A('s_and_b32 s4, s2, 7\ns_lshr_b32 s5, s2, 3')
    A('v_and_b32 v3, 15, v2\nv_lshrrev_b32 v4, 4, v2')
    A('v_lshrrev_b32 v5, 3, v2\nv_and_b32 v6, 7, v2')
    A('s_cmp_ge_u32 s5, 24\ns_cbranch_scc1 K_B')
    A('s_mul_i32 s7, s4, 3\ns_lshr_b32 s28, s5, 3\ns_add_u32 s59, s7, s28\ns_and_b32 s29, s5, 7')
    A('s_and_b32 s30, s59, 1\ns_lshr_b32 s31, s59, 1\ns_mul_i32 s32, s31, 88')
    if cfg.swap: A('s_xor_b32 s3, s3, 4')
    A('s_getreg_b32 s96, hwreg(HW_REG_XCC_ID, 0, 4)\ns_add_u32 s96, s96, 0x100')
    A('s_cmp_ge_u32 s3, 4\ns_cbranch_scc0 K_A_CONS')
    a_loader(A, cfg)
    A('K_A_CONS:')
    a_consumer(A, cfg)
    A(';@PAD b\nK_B:')
    b_all(A, cfg)
    A('K_END:\ns_endpgm')
    if cfg.bmove:
        i, j = A.L.index('K_B:'), A.L.index('K_B_GEN:')
        front = A.L[i:j] + ['    s_branch K_B_GEN']; del A.L[i:j]
        k = A.L.index(';@PAD e'); A.L[k:k] = front

def a_loader(A, cfg):
    AW, WF, OF, ACC, NB, NO = 24, 36, 180, 220, 9, 10
    STAGE = 2 * A1_SLOT
    A('s_mul_i32 s97, s28, 3')
    if cfg.rot == 1: A('s_mov_b32 s63, 0')
    elif cfg.rot == 2: A('s_xor_b32 s63, s28, s5\ns_and_b32 s63, s63, 1\ns_lshl_b32 s63, s63, 2')
    elif cfg.rot == 3: A('s_mov_b32 s63, s97')
    if cfg.rot == 5:
        def tri(b, g): return [b + (g + i) % 3 for i in range(3)]
        def pair(b, g): return [b + (g & 1), b + 1 - (g & 1)]
        def word(p, g):
            o = [tri(0, g) + tri(3, g) + pair(6, g), [0] + tri(1, g) + tri(4, g) + [7], pair(0, g) + tri(2, g) + tri(5, g)][p]
            return sum(c << (4 * i) for i, c in enumerate(o))
        A('s_mov_b32 s63, 0\ns_mul_i32 s6, s29, 11\ns_lshr_b32 s6, s6, 5\ns_mul_i32 s6, s6, 3\ns_sub_u32 s6, s29, s6\ns_add_u32 s6, s6, s97')
        A(f's_mov_b32 s101, {word(0, 0):#x}')
        for g in range(3):
            for p in range(3):
                if p or g: A(f's_cmp_eq_u32 s6, {p + 3*g}\ns_cselect_b32 s101, {word(p, g):#x}, s101')
        A('s_cmp_eq_u32 s29, 3\ns_cselect_b32 s101, 0x76543210, s101')
    if cfg.q3: A('s_cmp_eq_u32 s29, 3\ns_cselect_b32 s63, s97, s63')
    if cfg.rotx: A(f's_mul_i32 s62, s4, {cfg.rotx}\ns_add_u32 s63, s63, s62')
    if cfg.rotq: A('s_add_u32 s63, s63, s29')
    elif cfg.rot0: A(f's_add_u32 s63, s63, {cfg.rot0}')
    A('s_sub_u32 s33, s3, 4')
    A('s_mul_i32 s6, s33, 24')
    for j in range(3):
        A(f'v_add_u32 v7, s6, v5\nv_add_u32 v7, {8*j}, v7')
        A('v_lshrrev_b32 v8, 1, v7\nv_and_b32 v8, 7, v8\nv_xor_b32 v8, v8, v6\nv_lshlrev_b32 v8, 4, v8')
        A('v_add_u32 v7, s32, v7\nv_lshlrev_b32 v7, 1, v7\nv_add_u32 v7, s30, v7')
        A(f'v_lshl_add_u32 v{10+j}, v7, 10, v8')
    A('s_lshl_b32 s6, s33, 4\ns_lshl_b32 s7, s29, 7\ns_movk_i32 s28, 3072')
    for par in range(2):
        A(f'v_add_u32 v7, s6, v5\nv_add_u32 v7, {8*par}, v7')
        A('v_mul_lo_u32 v7, v7, s28\nv_add_u32 v7, s7, v7')
        A(f'v_and_b32 v8, 1, v4\nv_or_b32 v8, {2*par}, v8\nv_lshlrev_b32 v8, 1, v8\nv_xor_b32 v8, v8, v6')
        A(f'v_lshl_add_u32 v{13+par}, v8, 4, v7')
    A('s_mul_i32 s34, s33, 3072')
    A('s_mul_i32 s35, s33, 6144\ns_add_u32 s35, s35, 12288')
    A('s_waitcnt lgkmcnt(0)')
    srd(A, 8, P_AX, 0x200000); srd(A, 12, P_WQKV, 0x180000)
    stamp(A, cfg, 1)
    def issue(c, j):
        base = (c % 4) * A1_SLOT
        if j < 3:
            if j == 0 and cfg.rot == 5: A(f's_bfe_u32 s62, s101, {0x40000 + 4*c:#x}\ns_add_u32 s62, s62, s63\ns_and_b32 s62, s62, 7\ns_lshl_b32 s6, s62, 7')
            elif j == 0: A(f's_add_u32 s62, s63, {c}\ns_and_b32 s62, s62, 7\ns_lshl_b32 s6, s62, 7')
            A(f's_add_u32 m0, s34, {base + j*1024}\ns_nop 0')
            A(f'buffer_load_dwordx4 v{10+j}, s[8:11], s6 offen lds')
        else:
            par, seg = divmod(j - 3, 3)
            if j == 3: A(f's_mul_i32 s7, s62, 196608')
            if seg == 0: A(f's_add_u32 m0, s35, {base + par*3072}\ns_nop 0')
            A(f'buffer_load_dwordx4 v{13+par}, s[12:15], s7 offen offset:{seg*1024} lds')
    def late_setup():
        srd(A, 16, P_WO, 0x80000); srd_off(A, 20, P_WS, WS_O, O_SIZE)
        A('s_lshl_b32 s60, s33, 3\nv_add_u32 v7, s60, v5\ns_and_b32 s60, s33, 1\ns_lshl_b32 s60, s60, 1\ns_xor_b32 s61, s29, ' + str(cfg.cgx) + '\ns_lshl_b32 s61, s61, 7')
        A('v_and_b32 v8, 1, v4\nv_or_b32 v8, s60, v8\nv_lshlrev_b32 v8, 1, v8\nv_xor_b32 v8, v8, v6\nv_lshlrev_b32 v8, 4, v8')
        A('v_lshl_add_u32 v15, v7, 10, v8\nv_add_u32 v15, s61, v15')
        A('s_lshl_b32 s58, s33, 10')
        A(f's_mul_i32 s60, s33, 24\nv_add_u32 v7, s60, v2\nv_lshrrev_b32 v8, 4, v7\nv_lshlrev_b32 v8, 14, v8\nv_and_b32 v7, 15, v7\nv_lshl_add_u32 v7, v7, 7, v8')
        A(f'v_mov_b32 v8, {OOB:#x}\nv_cmp_le_u32 vcc, 24, v2\ns_mul_i32 s60, s59, {6*16384}\ns_lshl_b32 s61, s29, 11\ns_add_u32 s98, s60, s61\nv_cndmask_b32 v16, v7, v8, vcc')
        A(f'v_mov_b32 v17, {LDS_WORD}\nv_mov_b32 v18, 0\nv_mov_b32 v19, 0\nds_write_b64 v17, v[18:19]\nds_write_b64 v17, v[18:19] offset:8\nds_write_b64 v17, v[18:19] offset:16\nds_write_b64 v17, v[18:19] offset:24\ns_waitcnt lgkmcnt(0)\nv_mov_b32 v18, 1')
        srd(A, 44, P_OUT, 0x400000)
        A('v_bfe_u32 v7, v2, 2, 2\nv_lshrrev_b32 v8, 1, v7\nv_and_b32 v9, 1, v4\nv_lshl_or_b32 v8, v9, 1, v8')
        A('v_lshlrev_b32 v9, 10, v4\nv_lshl_add_u32 v9, v7, 7, v9\nv_and_b32 v7, 3, v2\nv_lshl_add_u32 v9, v7, 3, v9')
        for nt in range(4): A(f'v_xor_b32 v7, {nt}, v8\nv_lshl_add_u32 v{AW+nt}, v7, 5, v9')
        A('v_lshlrev_b32 v33, 4, v2')
        A(f's_mul_i32 s60, s33, {32*144}\ns_add_u32 s60, s60, {STAGE}')
        A('v_mul_u32_u24 v30, 144, v3\nv_lshl_add_u32 v30, v4, 3, v30\nv_add_u32 v30, s60, v30')
        A('v_mul_u32_u24 v31, 144, v5\nv_lshl_add_u32 v31, v6, 4, v31\nv_add_u32 v31, s60, v31')
        A('v_lshlrev_b32 v32, 12, v5\nv_lshl_add_u32 v32, v6, 4, v32')
        A('s_lshl_b32 s60, s32, 12\ns_lshl_b32 s61, s30, 11\ns_add_u32 s60, s60, s61\ns_xor_b32 s61, s29, ' + str(cfg.cgx) + '\ns_lshl_b32 s61, s61, 7\ns_add_u32 s42, s60, s61')
        A('s_lshl_b32 s60, s33, 16\ns_add_u32 s48, s42, s60\ns_add_u32 s49, s48, 0x8000\ns_lshr_b32 s61, s33, 1\ns_add_u32 s61, s61, 4\ns_lshl_b32 s60, s61, 16\ns_add_u32 s50, s42, s60\ns_add_u32 s51, s50, 0x8000')
        A(f's_mul_i32 s42, s59, {6*16384}\ns_lshl_b32 s60, s33, 14\ns_add_u32 s43, s42, s60\ns_lshl_b32 s60, s61, 14\ns_add_u32 s42, s42, s60')
        A(f's_lshr_b32 s60, s33, 1\ns_lshl_b32 s61, s60, 12\ns_add_u32 s61, s61, {STAGE + 4*32*144}\nv_add_u32 v28, s61, v33\ns_lshl_b32 s60, s60, 2\nv_add_u32 v29, s60, v17')
        A('s_cmp_lg_u32 s31, 0\ns_cselect_b32 s60, 1, 0\ns_cmp_eq_u32 s33, 0\ns_cselect_b32 s60, s60, 0\ns_cmp_lg_u32 s60, 0\ns_cselect_b32 s48, 0x40000000, s48')
    def wo(n):
        A(f's_add_u32 s62, s97, {n}\ns_and_b32 s62, s62, 15')
        A('s_lshl_b32 s6, s62, 12\ns_add_u32 m0, s58, s6\ns_lshl_b32 s6, s62, 15')
        A('buffer_load_dwordx4 v15, s[16:19], s6 offen lds')
    def side():
        srd_off(A, 88, P_WS, WS_FLAG, FLAG_SIZE); srd(A, 24, P_DBG, 256)
        A(f'v_lshlrev_b32 v20, 2, v6\nv_lshlrev_b32 v21, 7, v6\ns_lshl_b32 s100, s59, 10\ns_lshr_b32 s97, s5, 3\ns_mul_i32 s97, s97, 5\ns_mov_b64 exec, 0xff')
        A('buffer_load_dword v22, v20, s[24:27], 0 offen sc1\ns_mov_b64 exec, -1')
    def gocheck():
        A('s_mov_b64 exec, 0xff\nv_cmp_ne_u32 vcc, 1, v22\ns_cmp_eq_u64 vcc, 0\ns_cbranch_scc1 K_A_RDY_X')
        poll(A, 'K_A_RDY', 9, 20, 24, 0, 1)
        A('ds_write_b32 v17, v18 offset:24\ns_mov_b64 exec, -1')
    items = [(lambda c=c, j=j: issue(c, j), max(0, c - 2)) for c in range(8) for j in range(9)]
    ends = [9 * (c + 1) for c in range(8)]
    if cfg.xpf == 2:
        def xp(n):
            if n == 0:
                A('s_lshl_b32 s60, s29, 2\ns_add_u32 s60, s60, s33\ns_mul_i32 s60, s60, 3\ns_add_u32 s60, s60, s32\ns_lshl_b32 s60, s60, 1\ns_add_u32 s60, s60, s30\ns_lshl_b32 s60, s60, 10\nv_lshlrev_b32 v7, 4, v2')
                A('s_and_b32 s62, s63, 7' if cfg.rot != 5 else 's_and_b32 s62, s101, 7\ns_add_u32 s62, s62, s63\ns_and_b32 s62, s62, 7')
            if n == 2: A('s_add_u32 s60, s60, 4096')
            A(f'buffer_load_dwordx4 v[244:247], v7, s[8:11], s60 offen offset:{(n&1)*2048}')
        items = [(lambda n=n: xp(n), 0) for n in range(3)] + items[3:9] + items[0:3] + items[9:]
        ends = [e + 3 for e in ends]
    k0 = ends[0] + cfg.xa[0] - 1
    items[k0] = (lambda f=items[k0][0]: (f(), late_setup()), items[k0][1])
    items += [(side, 0), (lambda: A('s_mov_b64 exec, 0xff\nbuffer_load_dword v251, v21, s[88:91], s100 offen sc1\ns_mov_b64 exec, -1'), 0)]
    def wo2(n):
        if n == cfg.gon: A(f's_waitcnt vmcnt({n + 1 + (0 if cfg.pwb else cfg.pwpos <= n)})'); gocheck()
        wo(n)
    tail = [(lambda n=n: wo2(n), 7) for n in range(16)]
    if not cfg.pwb: tail.insert(cfg.pwpos, (lambda: A('buffer_load_dword v250, v16, s[20:23], s98 offen sc1'), 0))
    items += tail
    loader_loop(A, items, ends, cfg.xa)
    srd_off(A, 8, P_WS, WS_FLAG, FLAG_SIZE)
    stamp(A, cfg, 2)
    A(f'v_mov_b32 v8, v21\ns_mov_b32 s7, s100\ns_add_u32 s6, s7, {GFLAG}')
    A(f's_waitcnt vmcnt({1 if cfg.pwpos == 16 and not cfg.pwb else 0})\ns_mov_b64 exec, 1\nds_add_u32 v17, v18 offset:8\ns_mov_b64 exec, -1')
    order = [0, 1, 2, 3, 4, 5, 8, 9, 10, 11, 12, 13, 14, 15, 6, 7]
    def reads(st):
        if st > 15: return []
        f = WF + 16 * (st % NB); ks = order[st]
        return [f'ds_read_b64_tr_b16 {vr(f+4*nt+2*u,2)}, v{AW+nt} offset:{ks*4096+u*512}' for nt in range(4) for u in range(2)]
    def wait_flags(tag, masked):
        if cfg.pp:
            assert cfg.wf and not masked
            ld = lambda i: f'buffer_load_dwordx4 {vr(OF+4*i,4)}, v8, s[8:11], s100 offen sc1'
            A('s_mov_b64 exec, 0xff')
            for i in range(cfg.pp): A(ld(i) + ('\ns_nop 7\ns_nop 7' if i < cfg.pp - 1 and False else ''))
            A(f'K_A_PP{tag}:')
            for i in range(cfg.pp):
                b = OF + 4 * i
                A(f's_waitcnt vmcnt({cfg.pp - 1})\nv_and_b32 v12, v{b}, v{b+1}\nv_and_b32 v14, v{b+2}, v{b+3}\nv_and_b32 v9, v12, v14\nv_cmp_ne_u32 vcc, s96, v9\ns_cmp_eq_u64 vcc, 0\ns_cbranch_scc1 K_A_GO{tag}\n' + ld(i))
            A(f's_add_u32 s28, s28, 1\ns_cmp_lt_u32 s28, {cfg.n1}\ns_cbranch_scc1 K_A_PP{tag}')
        A(f's_mov_b64 exec, 0xff\nK_A_P1{tag}:')
        LD = 'buffer_load_dwordx4 v[12:15], v8, s[8:11], s100 offen sc1' if cfg.wf else 'buffer_load_dword v9, v8, s[8:11], s100 offen sc1'
        CB = '\nv_and_b32 v12, v12, v13\nv_and_b32 v14, v14, v15\nv_and_b32 v9, v12, v14' if cfg.wf else ''
        A(LD + '\ns_add_u32 s28, s28, 1\ns_waitcnt vmcnt(0)' + CB)
        A('v_cmp_ne_u32 vcc, s96, v9')
        if masked: A(f's_mov_b64 s[92:93], vcc\ns_and_b64 vcc, vcc, s[94:95]\ns_cbranch_scc0 K_A_GO{tag}')
        else: A(f's_cmp_eq_u64 vcc, 0\ns_cbranch_scc1 K_A_GO{tag}')
        A(f's_cmp_lt_u32 s28, {cfg.n1}\ns_cbranch_scc1 K_A_P1{tag}')
        A('ds_write_b32 v17, v18\ns_mov_b32 s99, 1\ns_mov_b64 s[92:93], 0\ns_waitcnt lgkmcnt(0)\ns_barrier')
        A(f'K_A_P2{tag}:')
        A(LD + '\nbuffer_load_dword v10, v8, s[8:11], s6 offen sc1\ns_add_u32 s28, s28, 1\ns_waitcnt vmcnt(0)' + CB)
        A(f'v_cmp_ne_u32 vcc, s96, v9\ns_cmp_eq_u64 vcc, 0\ns_cbranch_scc1 K_A_GO{tag}')
        A(f'v_cmp_ne_u32 vcc, 1, v10\ns_cmp_eq_u64 vcc, 0\ns_cbranch_scc1 K_A_GO{tag}')
        A(f's_cmp_lt_u32 s28, {SPIN}\ns_cbranch_scc1 K_A_P2{tag}')
        A(f'K_A_GO{tag}:\ns_mov_b64 exec, -1')
    A('s_bitcmp1_b32 s33, 0\ns_cbranch_scc1 K_A_ODD\ns_branch K_A_EVEN')
    PART = WF + 16 * 7
    def gemm2(odd):
        tag = 'O' if odd else 'E'
        has = lambda st: (st < 8) == bool(odd)
        L = [(st, a) for st in range(16) for a in range(2) if a == 0 or has(st)]
        reg = {x: OF + 4 * (i % NO) for i, x in enumerate(L)}
        first_q3 = min(i for i, x in enumerate(L) if x[0] >= 14) if cfg.two else len(L)
        need = lambda st: sum(1 for x in L if x[0] <= st)
        vq = []
        lq = []
        def oload(i):
            st, a = L[i]; ks = order[st]; vq.append(i)
            return f's_add_u32 s7, s{42 if a else 43}, {(ks & ~3)*1024}\nbuffer_load_dwordx4 {vr(reg[L[i]],4)}, v33, s[20:23], s7 offen offset:{(ks&3)*1024} sc1'
        def after(q, keys):
            pos = [k for k, x in enumerate(q) if x in keys]
            return len(q) - 1 - max(pos) if pos else None
        A(f'K_A_LW{tag}:\n' + (f's_sleep {cfg.lws}\n' if cfg.lws else '') + 'ds_read_b32 v9, v17 offset:8\ns_waitcnt lgkmcnt(0)\nv_cmp_ne_u32 vcc, ' + ('8' if cfg.lw8 else '4') + ', v9\ns_cmp_lg_u64 vcc, 0\ns_cbranch_scc1 K_A_LW' + tag)
        stamp(A, cfg, 3)
        for st in range(NB):
            for r in reads(st): A(r)
        A('s_mov_b32 s28, 0\ns_mov_b32 s99, 0\ns_mov_b32 s94, 0xf7f7f7f7\ns_mov_b32 s95, 0xf7f7f7f7')
        if cfg.lead:
            if (cfg.lead - 1) % 2 == odd:
                A(f's_cmp_lg_u32 s33, {cfg.lead - 1}\ns_cbranch_scc1 K_A_FW{tag}')
                wait_flags('A' + tag, False)
                A(f'ds_write_b32 v17, v18 offset:12\ns_branch K_A_FX{tag}')
            A(f'K_A_FW{tag}:\nds_read_b128 v[12:15], v17\ns_waitcnt lgkmcnt(0)\nv_cmp_ne_u32 vcc, 1, v15\ns_cmp_eq_u64 vcc, 0\ns_cbranch_scc1 K_A_FX{tag}')
            A(f'v_cmp_ne_u32 vcc, s99, v12\ns_cmp_eq_u64 vcc, 0\ns_cbranch_scc1 K_A_FW{tag}\ns_mov_b32 s99, 1\ns_barrier\ns_branch K_A_FW{tag}\nK_A_FX{tag}:')
        else:
            wait_flags('A' + tag, bool(cfg.two))
        stamp(A, cfg, 4)
        issued = min(cfg.opre, NO)
        for i in range(issued): A(oload(i))
        CHK = (cfg.chk2 if odd else cfg.chk) if cfg.two else 99
        for st in range(16):
            f = WF + 16 * (st % NB)
            if st == CHK:
                assert issued == first_q3 and len(L) - need(st - 1) <= NO
                A(f's_waitcnt vmcnt({after(vq, ["flag"])})\nv_cmp_ne_u32 vcc, s96, v9\ns_and_b64 vcc, vcc, s[92:93]\ns_cbranch_scc0 K_A_GOB{tag}')
                wait_flags('B' + tag, False)
                for i in range(first_q3, len(L)): A(oload(i))
                issued = len(L)
            keys = [('w', st)] + (['pw'] if odd and st == 11 else []) + (['pf'] if not odd and st == 15 else [])
            lg = 0 if st == 0 else after(lq, keys)
            A(f's_waitcnt vmcnt({after(vq, [need(st) - 1])})' + (f' lgkmcnt({min(lg, 14)})' if lg is not None else ''))
            if st == 0: stamp(A, cfg, 5)
            if odd and st == 11: A('ds_write_b32 v29, v18 offset:16'); lq.append('x')
            if not odd and st == 15:
                A('s_mov_b32 s28, 0\nK_A_PW:\nv_cmp_ne_u32 vcc, 1, v10\ns_cmp_eq_u64 vcc, 0\ns_cbranch_scc1 K_A_PWX\nds_read_b32 v10, v29 offset:16\ns_add_u32 s28, s28, 1')
                A('s_cmp_lg_u32 s28, 64\ns_cbranch_scc1 K_A_PWN\ns_cmp_lg_u32 s99, 0\ns_cbranch_scc1 K_A_PWN\ns_mov_b32 s99, 1\ns_barrier\nK_A_PWN:\ns_waitcnt lgkmcnt(0)\ns_branch K_A_PW\nK_A_PWX:')
            M = [lambda d=ACC+16*a+4*nt, x=f+4*nt, b=reg[(st, a)], z=(st & 7 if a else st): mfma32(A, d, x, b, d if z else None) for a in range(2) if (st, a) in reg for nt in range(4)]
            O = []
            while issued < first_q3 and issued < need(st - 1) + NO: O.append(oload(issued)); issued += 1
            if st == CHK - (4 if odd else 3):
                O.append('s_mov_b64 exec, 0xff\nbuffer_load_dword v9, v8, s[8:11], s100 offen sc1\ns_mov_b64 exec, -1'); vq.append('flag')
            if not odd and st == 14: O.append('ds_read_b32 v10, v29 offset:16'); lq.append('pf')
            rs = st + NB - 1 if odd else st + 2
            if NB <= rs <= 15:
                R = reads(rs); O += [R[2*i] + '\n' + R[2*i+1] for i in range(4)]; lq += [('w', rs)] * 8
            if odd and st in (9, 10): O += [f'ds_write_b128 v28, {vr(ACC+16+4*nt,4)} offset:{nt*1024}' for nt in (2*(st-9), 2*(st-9)+1)]; lq += ['pw'] * 2
            if not odd and st == 15: O += [f'ds_read_b128 {vr(PART+4*nt,4)}, v28 offset:{nt*1024}' for nt in range(4)]; lq += ['pr'] * 4
            interleave(A, M, O)
        stamp(A, cfg, 6)
        T = WF
        A('s_nop 7' if odd else 's_nop 3')
        for a in range(1 if odd else 2):
            if a:
                A('s_waitcnt lgkmcnt(6)')
                for i in range(16): A(f'v_add_f32 v{ACC+16+i}, v{ACC+16+i}, v{PART+i}')
            for nt in range(4):
                d = ACC + 16 * a + 4 * nt; p = T + 8 * a + 2 * nt
                cvt(A, p, d, d+1); cvt(A, p+1, d+2, d+3)
                A(f'ds_write_b64 v30, {vr(p,2)} offset:{a*16*144 + nt*32}')
            for n in (2*a, 2*a+1): A(f'ds_read_b128 {vr(T+16+4*n,4)}, v31 offset:{n*8*144}')
        N = 2 if odd else 4
        for n in range(N):
            A(f's_waitcnt lgkmcnt({(N-1-n) if (odd or n >= 2) else 7-n})')
            A(f'buffer_store_dwordx4 {vr(T+16+4*n,4)}, v32, s[44:47], s{48+n} offen{cfg.outflag}')
        A(f's_cmp_lg_u32 s99, 0\ns_cbranch_scc1 K_A_NOB{tag}\ns_barrier\nK_A_NOB{tag}:')
    A(';@PAD e\n;@PAGE e\nK_A_EVEN:')
    gemm2(0)
    stamp_store(A, cfg, 8)
    A('s_endpgm\n;@PAD o\n;@PAGE o\nK_A_ODD:')
    gemm2(1)
    stamp_store(A, cfg, 8)
    A('s_endpgm\n;@PAD c')

def a_consumer(A, cfg):
    AX, AW = 20, 28
    ST, MD, MP, BD, ONES = 32, 36, 40, 44, 46
    VX, V1, VS0 = 33, 34, 35
    FR, ACC = 48, 120
    A(f'v_mov_b32 v{VX}, s96\nv_mov_b32 v{V1}, 1\nv_mov_b32 v{VS0}, {OOB:#x}\nv_cmp_ne_u32 vcc, {256 if cfg.swap else 0}, v0\ns_nop 1\nv_cndmask_b32 v{VS0}, 0, v{VS0}, vcc')
    A('s_lshl_b32 s58, s59, 3\ns_add_u32 s58, s58, s29\ns_lshl_b32 s58, s58, 7')
    A('s_lshl_b32 s6, s29, 2\ns_add_u32 s6, s6, s3\ns_mul_i32 s6, s6, 3\ns_add_u32 s6, s6, s32\ns_lshl_b32 s6, s6, 1\ns_add_u32 s6, s6, s30\ns_lshl_b32 s60, s6, 10\nv_lshlrev_b32 v7, 4, v2')
    if cfg.xpf == 3: A(f's_mul_i32 s6, s4, {128*cfg.rotx}\nv_and_b32 v8, 0x1ff, v7\nv_add_u32 v8, s6, v8\nv_and_b32 v8, 0x3ff, v8\nv_lshrrev_b32 v9, 5, v2\nv_lshl_add_u32 v9, v9, 11, v8')
    if cfg.xprio: A('s_setprio 2')
    A('s_waitcnt lgkmcnt(0)')
    if cfg.xpf == 1:
        srd(A, 12, P_AX, 0x200000)
        for n in range(3): A(f's_add_u32 s7, s60, {n*2048}\nbuffer_load_dwordx4 v[244:247], v7, s[12:15], s7 offen')
    if cfg.xpf == 3:
        srd(A, 12, P_AX, 0x200000)
        A('buffer_load_dwordx4 v[244:247], v9, s[12:15], s60 offen\ns_add_u32 s7, s60, 4096\ns_mov_b32 exec_hi, 0\nbuffer_load_dwordx4 v[244:247], v9, s[12:15], s7 offen\ns_mov_b64 exec, -1')
    if cfg.c3:
        srd(A, 12, P_WQKV, 0x180000)
        A('s_lshl_b32 s7, s5, 2\ns_add_u32 s7, s7, s3\ns_lshl_b32 s7, s7, 14\nv_lshlrev_b32 v8, 10, v5\nv_lshl_add_u32 v8, v6, 4, v8')
        A('buffer_load_dwordx4 v[244:247], v8, s[12:15], s7 offen offset:384\ns_add_u32 s7, s7, 8192\nbuffer_load_dwordx4 v[244:247], v8, s[12:15], s7 offen offset:384')
    srd_off(A, 16, P_WS, WS_FLAG, FLAG_SIZE); srd_off(A, 8, P_WS, WS_O, O_SIZE)
    srd(A, 20, P_DBG, 256)
    A('s_cmp_lg_u32 s5, 0\ns_cbranch_scc1 K_A_NOCLR')
    A('v_mov_b32 v8, 0\nv_mov_b32 v9, 0\nv_mov_b32 v10, 0\nv_mov_b32 v11, 0\nv_lshlrev_b32 v7, 4, v2\ns_lshl_b32 s6, s4, 2\ns_add_u32 s6, s6, s3\ns_lshl_b32 s6, s6, 11')
    A('buffer_store_dwordx4 v[8:11], v7, s[16:19], s6 offen sc1\nbuffer_store_dwordx4 v[8:11], v7, s[16:19], s6 offen offset:1024 sc1\ns_nop 1')
    A('K_A_NOCLR:')
    A('s_lshl_b32 s35, s4, 2')
    A('v_lshrrev_b32 v7, 1, v3\nv_xor_b32 v7, v7, v4\nv_lshlrev_b32 v7, 4, v7\nv_lshl_add_u32 v7, v3, 7, v7')
    A('v_xor_b32 v8, 64, v7')
    for s in range(4):
        A(f'v_add_u32 v{AX+2*s}, {s*A1_SLOT}, v7\nv_add_u32 v{AX+2*s+1}, {s*A1_SLOT}, v8')
    A('v_bfe_u32 v7, v2, 2, 2')
    A('v_lshrrev_b32 v8, 1, v7\nv_and_b32 v9, 1, v4\nv_lshl_or_b32 v8, v9, 1, v8')
    A('v_xor_b32 v8, s3, v8\nv_lshlrev_b32 v8, 5, v8\nv_lshl_add_u32 v8, v7, 7, v8')
    A('v_and_b32 v9, 3, v2\nv_lshl_add_u32 v8, v9, 3, v8')
    A('v_mul_u32_u24 v9, 3072, v4\nv_add_u32 v8, v8, v9')
    for s in range(4): A(f'v_add_u32 v{AW+s}, {s*A1_SLOT+12288}, v8')
    A('v_lshlrev_b32 v7, 2, v4\nv_sub_u32 v7, v3, v7')
    A('v_mov_b32 v9, 0xf149f2ca')
    A('v_mov_b32 v10, 0xffff\nv_mov_b32 v11, 0xffff0000')
    for i in range(4):
        A(f'v_subrev_u32 v8, {i}, v7')
        A(f'v_cmp_le_u32 vcc, 8, v8\ns_nop 1\nv_cndmask_b32 v{MD+i}, 0, v9, vcc')
        A(f'v_cmp_lt_i32 vcc, -9, v8\ns_nop 1\nv_cndmask_b32 v{MP+i}, 0, v9, vcc')
        A(f'v_cmp_le_i32 vcc, 0, v8\ns_nop 1\nv_cndmask_b32 v{12+i}, 0, v{10+(i&1)}, vcc')
    A(f'v_or_b32 v{BD}, v12, v13\nv_or_b32 v{BD+1}, v14, v15')
    A(f'v_mov_b32 v{ONES}, 0x3f803f80\nv_mov_b32 v{ONES+1}, 0x3f803f80')
    A('s_lshl_b32 s6, s29, 2\ns_add_u32 s6, s6, s3\ns_lshl_b32 s6, s6, 9')
    A(f's_mul_i32 s7, s59, {6*16384}\ns_add_u32 s60, s6, s7\ns_add_u32 s61, s60, 0x8000\ns_add_u32 s62, s60, 0x10000')
    A('v_and_b32 v7, 1, v4\nv_lshlrev_b32 v7, 14, v7\nv_lshrrev_b32 v8, 1, v4\nv_lshl_add_u32 v7, v8, 8, v7')
    A(f'v_lshl_add_u32 v{ST}, v3, 4, v7')
    PKS = 24
    A(f'v_mov_b32 v17, {LDS_WORD}\ns_lshl_b32 s6, s3, 2\nv_mov_b32 v18, s6')
    A('s_mov_b32 s34, 0x3eb8aa3b\ns_mov_b32 s24, s34\ns_mov_b32 s25, s34')
    def reads(ks):
        c, h = divmod(ks, 2); s = c % 4; f = FR + 36 * (ks & 1); R = []
        def w(seg): return [f'ds_read_b64_tr_b16 {vr(f+24+4*seg+2*u,2)}, v{AW+s} offset:{h*12288+seg*1024+u*512}' for u in range(2)]
        R += w(0)
        R += [f'ds_read_b128 {vr(f+4*t,4)}, v{AX+2*s+h} offset:{t*2048}' for t in range(6)]
        R += w(1) + w(2)
        return R
    def mfmas(ks):
        f = FR + 36 * (ks & 1); M = []
        for seg in range(3):
            for t in range(6):
                d = ACC + 24 * seg + 4 * t; c = d
                if seg < 2: M.append(lambda d=d, a=f+24+4*seg, b=f+4*t, c=c: mfma32(A, d, a, b, c))
                else:       M.append(lambda d=d, a=f+4*t, b=f+24+4*seg, c=c: mfma32(A, d, a, b, c))
        return M
    for i in range(72): A(f'v_mov_b32 v{ACC+i}, 0')
    A(f's_mov_b32 s28, 0\ns_setprio {cfg.cprio}\ns_barrier')
    stamp(A, cfg, 1)
    for r in reads(0): A(r)
    A('K_A_ML:')
    for ks in list(range(8)) + [14, 15]:
        if ks == 6: A('s_cmp_lg_u32 s28, 0\ns_cbranch_scc1 K_A_MT')
        if ks == 14: A('s_mov_b32 s28, 1\ns_branch K_A_ML\nK_A_MT:')
        A('s_waitcnt lgkmcnt(0)')
        M = mfmas(ks)
        if ks == 15: interleave(A, M[:12], []); defer += M[12:]
        elif ks & 1:
            pre = cfg.pre
            for m in M[:pre]: m()
            if ks == cfg.cpage: A(';@PAGE c')
            A('s_barrier')
            interleave(A, M[pre:], reads(ks + 1), per_gap=2 if pre > 2 else 1)
        else:
            R = reads(ks + 1)
            if ks == 14: defer = M[12:]; M = M[:12]
            if ks == cfg.goks: R.append('s_waitcnt vmcnt(0)')
            if ks == cfg.goks + 2: R.append(f's_or_b32 s6, s5, s28\ns_cmp_lg_u32 s6, 0\ns_cbranch_scc1 K_A_NOGO\nbuffer_store_dword v{V1}, v{VS0}, s[20:23], s35 offen sc1\nK_A_NOGO:')
            interleave(A, M, R, per_gap=2 if ks == 14 else 1)
    stamp(A, cfg, 5 if cfg.kst else 2)
    QP, KP, VP, SD, SP, MX, PK, PO, OO, SM, OP = 192, 204, 240, 48, 72, 96, 108, 120, 144, 168, 192
    C = [f'v_cvt_pk_bf16_f32 v{QP+i}, v{ACC+2*i}, v{ACC+2*i+1}' for i in range(24)]
    for m in defer[:2]: m()
    interleave(A, defer[2:], C, per_gap=2)
    A(f'v_mov_b32 v{VP}, 0\nv_mov_b32 v{VP+1}, 0')
    M = []
    for t in range(6):
        M.append(lambda t=t: mfma16(A, SD+4*t, KP+2*t, QP+2*t, MD))
        if t: M.append(lambda t=t: mfma16(A, SP+4*t, KP+2*t-2, QP+2*t, MP))
    V = []
    for t in range(6):
        V.append(f'v_cvt_pk_bf16_f32 v{VP+2+2*t}, v{ACC+48+4*t}, v{ACC+48+4*t+1}')
        V.append(f'v_cvt_pk_bf16_f32 v{VP+3+2*t}, v{ACC+48+4*t+2}, v{ACC+48+4*t+3}')
    interleave(A, M, V)
    for t in range(6):
        if t:
            for i in range(4): A(f'v_max_f32 v{SD+4*t+i}, v{SD+4*t+i}, v{SP+4*t+i}')
        A(f'v_max3_f32 v{MX+t}, v{SD+4*t}, v{SD+4*t+1}, v{SD+4*t+2}')
        A(f'v_max_f32 v{MX+t}, v{MX+t}, v{SD+4*t+3}')
    A('s_nop 1')
    for u in range(3): A(f'v_permlane32_swap_b32 v{MX+2*u}, v{MX+2*u+1}')
    for u in range(3): A(f'v_max_f32 v{MX+2*u}, v{MX+2*u}, v{MX+2*u+1}')
    for u in range(3): A(f'v_mov_b32 v{MX+2*u+1}, v{MX+2*u}')
    A('s_nop 0')
    for u in range(3): A(f'v_permlane16_swap_b32 v{MX+2*u}, v{MX+2*u+1}')
    for u in range(3): A(f'v_max_f32 v{MX+2*u}, v{MX+2*u}, v{MX+2*u+1}')
    for u in range(3): A(f'v_mul_f32 v{MX+2*u}, s34, v{MX+2*u}')
    for u in range(3): A(f'v_mov_b32 v{MX+2*u+1}, v{MX+2*u}')
    A('s_nop 0')
    for u in range(3): A(f'v_permlane32_swap_b32 v{MX+2*u}, v{MX+2*u+1}')
    for t in range(6):
        if cfg.pk:
            for i in (0, 2): A(f'v_pk_fma_f32 {vr(SD+4*t+i,2)}, {vr(SD+4*t+i,2)}, s[{PKS}:{PKS+1}], {vr(MX+(t&~1),2)} op_sel:[0,0,{t&1}] op_sel_hi:[1,1,{t&1}] neg_lo:[0,0,1] neg_hi:[0,0,1]')
        else:
            for i in range(4): A(f'v_fma_f32 v{SD+4*t+i}, v{SD+4*t+i}, s34, -v{MX+t}')
    for t in range(6):
        for i in range(4): A(f'v_exp_f32 v{SD+4*t+i}, v{SD+4*t+i}')
    if cfg.wf: A('ds_read_b32 v19, v17 offset:24')
    for t in range(6):
        cvt(A, PK+2*t, SD+4*t, SD+4*t+1); cvt(A, PK+2*t+1, SD+4*t+2, SD+4*t+3)
    for t in range(6):
        A(f'v_and_b32 v{PO+4*t+2}, v{PK+2*t}, v{BD}\nv_and_b32 v{PO+4*t+3}, v{PK+2*t+1}, v{BD+1}')
        A(f'v_xor_b32 v{PO+4*t}, v{PK+2*t}, v{PO+4*t+2}\nv_xor_b32 v{PO+4*t+1}, v{PK+2*t+1}, v{PO+4*t+3}')
        mfma16(A, SM+4*t, ONES, PK+2*t, None)
    A('s_nop 0')
    for t in range(6): mfma32(A, OO+4*t, VP+2*t, PO+4*t, None)
    A('s_nop 1')
    for t in range(6): A(f'v_rcp_f32 v{MX+t}, v{SM+4*t}')
    if cfg.wf: A('K_A_CW:\ns_waitcnt lgkmcnt(0)\nv_cmp_eq_u32 vcc, 1, v19\ns_cmp_lg_u64 vcc, 0\ns_cbranch_scc1 K_A_CWX\nds_read_b32 v19, v17 offset:24\ns_branch K_A_CW\nK_A_CWX:')
    if cfg.lw8 == 2: A(f's_mov_b64 exec, 1\nds_add_u32 v17, v{V1} offset:8\ns_mov_b64 exec, -1')
    A('s_nop 1')
    for u in range(3):
        for t in (2*u, 2*u+1):
            if cfg.pk:
                for i in (0, 2): A(f'v_pk_mul_f32 {vr(OO+4*t+i,2)}, {vr(OO+4*t+i,2)}, {vr(MX+(t&~1),2)} op_sel:[0,{t&1}] op_sel_hi:[1,{t&1}]')
            else:
                for i in range(4): A(f'v_mul_f32 v{OO+4*t+i}, v{OO+4*t+i}, v{MX+t}')
        for t in (2*u, 2*u+1):
            cvt(A, OP+2*t, OO+4*t, OO+4*t+1); cvt(A, OP+2*t+1, OO+4*t+2, OO+4*t+3)
        A('s_nop 1')
        A(f'v_permlane16_swap_b32 v{OP+4*u}, v{OP+4*u+2}\nv_permlane16_swap_b32 v{OP+4*u+1}, v{OP+4*u+3}')
        A(f'buffer_store_dwordx4 {vr(OP+4*u,4)}, v{ST}, s[8:11], s{60+u} offen')
    if cfg.lw8 == 1: A(f's_mov_b64 exec, 1\nds_add_u32 v17, v{V1} offset:8\ns_mov_b64 exec, -1')
    if not cfg.kst: stamp(A, cfg, 3)
    A('s_waitcnt vmcnt(0)')
    if not cfg.kst: stamp(A, cfg, 4)
    if cfg.wf:
        A(f's_mov_b64 exec, 1\nbuffer_store_dword v{VX}, v18, s[16:19], s58 offen')
    else:
        A(f'v_mov_b32 v7, {LDS_WORD}\ns_mov_b64 exec, 1\nds_add_rtn_u32 v8, v7, v{V1} offset:12\nds_read_b32 v9, v7 offset:24\nv_mov_b32 v10, 0\ns_waitcnt lgkmcnt(0)')
        A('v_cmp_ne_u32 vcc, 3, v8\ns_cmp_lg_u64 vcc, 0\ns_cbranch_scc1 K_A_NOSIG')
        A('K_A_CW:\nv_cmp_eq_u32 vcc, 1, v9\ns_cmp_lg_u64 vcc, 0\ns_cbranch_scc1 K_A_SIG\nds_read_b32 v9, v7 offset:24\ns_waitcnt lgkmcnt(0)\ns_branch K_A_CW')
        A(f'K_A_SIG:\nbuffer_store_dword v{VX}, v10, s[16:19], s58 offen')
        if cfg.wb == 1: A('s_waitcnt vmcnt(0)\nbuffer_wbl2 sc1')
    A('K_A_NOSIG:\ns_mov_b64 exec, -1\ns_setprio 0')
    if cfg.st0:
        srd_off(A, 24, P_WS, WS_DIAG, 0x100000)
        A('s_lshl_b32 s6, s2, 2\ns_add_u32 s6, s6, s3\ns_lshl_b32 s6, s6, 2\nv_mov_b32 v8, s64\nv_mov_b32 v7, 0\ns_mov_b64 exec, 1\nbuffer_store_dword v8, v7, s[24:27], s6 offen sc1\ns_mov_b64 exec, -1')
    if not cfg.kst: stamp(A, cfg, 5)
    A(f'v_mov_b32 v7, {LDS_WORD}\ns_barrier\nds_read_b32 v8, v7\ns_waitcnt lgkmcnt(0)\nv_readfirstlane_b32 s6, v8\ns_cmp_eq_u32 s6, 0\ns_cbranch_scc1 ' + ('K_A_CLEAN' if cfg.clean else 'K_A_CDONE'))
    for u in range(3): A(f'buffer_store_dwordx4 {vr(OP+4*u,4)}, v{ST}, s[8:11], s{60+u} offen sc1')
    A(f'v_cmp_eq_u32 vcc, 0, v2\ns_and_saveexec_b64 s[6:7], vcc\ns_waitcnt vmcnt(0)\nds_add_rtn_u32 v8, v7, v{V1} offset:4\ns_waitcnt lgkmcnt(0)')
    A(f'v_readfirstlane_b32 s28, v8\ns_cmp_lg_u32 s28, 3\ns_cbranch_scc1 K_A_CDONE')
    A(f's_add_u32 s58, s58, {GFLAG}\nv_mov_b32 v7, 0\nbuffer_store_dword v{V1}, v7, s[16:19], s58 offen sc1')
    if cfg.clean:
        A('s_branch K_A_CDONE\nK_A_CLEAN:')
        for u in range(3): A(f'buffer_store_dwordx4 {vr(OP+4*u,4)}, v{ST}, s[8:11], s{60+u} offen sc1')
    A('K_A_CDONE:')
    A('s_mov_b64 exec, -1')
    stamp_store(A, cfg, 7)
    A('s_endpgm')

def bstamp(A, cfg, slot, mode):
    if cfg.bst == mode: stamp(A, cfg, slot)

def b_all(A, cfg):
    G, F, M = 32, 38, 44
    X1, MAT, PITCH = 65536, 98304, 272
    A('s_and_b32 s5, s5, 7')
    A('s_lshl_b32 s29, s4, 2\ns_lshr_b32 s6, s5, 1\ns_add_u32 s29, s29, s6')
    A('v_lshlrev_b32 v36, 4, v2\ns_lshr_b32 s32, s3, 1\ns_and_b32 s33, s3, 1\ns_lshl_b32 s35, s3, 13')
    A('v_mov_b32 v14, 0\nv_mov_b32 v15, 1\nv_lshlrev_b32 v16, 7, v2')
    def early(tag=''):
        A('s_and_b32 s30, s5, 1\ns_lshl_b32 s30, s30, 2\ns_add_u32 s58, s30, s32')
        A('s_and_b32 s6, s5, 4\ns_lshl_b32 s31, s6, 1\ns_lshl_b32 s96, s6, 8\ns_cmp_eq_u32 s4, 0\ns_cselect_b32 s31, s31, s4\ns_cselect_b32 s96, 0, s96\ns_add_u32 s96, s96, s31')
        A('v_lshrrev_b32 v7, 2, v2\nv_and_b32 v8, 3, v2\nv_lshlrev_b32 v7, 6, v7\nv_lshl_add_u32 v7, v8, 3, v7\nv_and_b32 v8, 1, v4\nv_lshl_add_u32 v7, v8, 5, v7\nv_add_u32 v17, s35, v7\nv_xor_b32 v26, 32, v17')
        A('v_bfe_u32 v7, v2, 3, 1\nv_lshl_add_u32 v7, v7, 2, v4\nv_xor_b32 v7, v7, v6\nv_lshlrev_b32 v7, 4, v7\nv_lshl_add_u32 v18, v6, 12, v7')
        A(f's_lshl_b32 s6, s3, 9\ns_add_u32 s6, s6, {X1}\nv_add_u32 v18, s6, v18\ns_mul_i32 s6, s33, 48\nv_xor_b32 v18, s6, v18\nv_xor_b32 v27, 32, v18')
        A('v_bfe_u32 v8, v2, 3, 1\nv_mul_u32_u24 v8, 3, v8\nv_and_b32 v9, 4, v2\nv_lshrrev_b32 v9, 1, v9\nv_xor_b32 v8, v8, v9\nv_xor_b32 v8, v8, v4')
        A(f'v_lshlrev_b32 v7, 6, v3\nv_lshl_add_u32 v7, v8, 4, v7\ns_lshl_b32 s6, s32, 5\nv_xor_b32 v7, s6, v7\ns_lshl_b32 s6, s32, 13\ns_add_u32 s6, s6, {X1}\nv_add_u32 v19, s6, v7\nv_xor_b32 v20, 16, v19')
        A(f's_mov_b32 s6, {4*ZCLS}\nv_mul_lo_u32 v7, v4, s6\nv_lshl_add_u32 v22, v3, 4, v7')
        A(f's_mul_i32 s101, s29, {ZSIG}\ns_lshl_b32 s6, s33, 8\ns_add_u32 s101, s101, s6\ns_lshl_b32 s6, s58, 9\ns_add_u32 s101, s101, s6')
        A('s_lshl_b32 s6, s30, 1\nv_add_u32 v9, s6, v6')
        A('v_cmp_eq_u32 vcc, 1, v9\nv_mov_b32 v23, 16\nv_cvt_f32_u32 v25, v3\nv_cndmask_b32 v9, v9, v23, vcc')
        A('v_lshrrev_b32 v7, 1, v9\nv_and_b32 v8, 1, v9\nv_cvt_f32_u32 v7, v7\nv_cvt_f32_u32 v8, v8\nv_cvt_f32_u32 v9, v4')
        A('v_mul_f32 v7, 0x3d800000, v7\nv_mul_f32 v25, 0x3d800000, v25\nv_mul_f32 v9, 4.0, v9\nv_mul_f32 v24, 0x3e800000, v8\nv_fmac_f32 v24, v7, v9\nv_mul_f32 v23, v25, v9')
        for i in range(4):
            A(f'v_cos_f32 v{96+i}, v24\nv_cos_f32 v{100+i}, v23\nv_sin_f32 v{104+i}, v23')
            if i < 3: A('v_add_f32 v24, v24, v7\nv_add_f32 v23, v23, v25')
        A('v_cmp_lt_u32 vcc, 7, v3')
        cvt(A, 24, 96, 97); cvt(A, 25, 98, 99)
        A(f'v_cndmask_b32 v{G}, v24, v14, vcc\nv_cndmask_b32 v{G+1}, v25, v14, vcc\nv_cndmask_b32 v{G+2}, v14, v24, vcc\nv_cndmask_b32 v{G+3}, v14, v25, vcc')
        for q in range(4): cvt(A, F+q, 100+2*q, 101+2*q)
        A(f'v_xor_b32 v{F+4}, 0x80008000, v{F}\nv_xor_b32 v{F+5}, 0x80008000, v{F+1}')
        def gen_m(dst, extra):
            A(f's_lshl_b32 s6, s33, 8\ns_add_u32 s6, s6, s58\ns_add_u32 s6, s6, {extra}\nv_lshl_add_u32 v7, v3, 4, s6\nv_cvt_f32_u32 v7, v7\nv_mul_f32 v7, 0xbb000000, v7')
            A('v_lshlrev_b32 v8, 2, v4\nv_cvt_f32_u32 v8, v8\nv_mul_f32 v8, v7, v8\nv_mul_f32 v9, 0x41500000, v7')
            for i in range(8):
                A(f'v_cos_f32 v{96+i}, v8\nv_sin_f32 v{104+i}, v8')
                if i < 7: A(f'v_add_f32 v8, v8, v{9 if i == 3 else 7}')
            A('s_nop 0')
            for q in range(8): cvt(A, dst+q, 96+2*q, 97+2*q)
        gen_m(M, 0)
        for i in range(4): A(f'v_xor_b32 v{M+8+i}, 0x80008000, v{M+4+i}')
        A('s_cmp_lg_u32 s58, 0\ns_cbranch_scc1 K_B_NOM8' + tag)
        gen_m(M + 8, 8)
        A('K_B_NOM8' + tag + ':')
    def gen_init():
        A('s_sub_u32 s6, s3, 4\ns_lshl_b32 s6, s6, 8\ns_add_u32 s6, s6, s96\nv_lshl_add_u32 v7, v3, 4, s6\nv_cvt_f32_u32 v7, v7\nv_mul_f32 v240, 0xba000000, v7\nv_mul_f32 v241, 0x41500000, v240')
        A('s_and_b32 s6, s5, 4\ns_lshl_b32 s6, s6, 4\nv_lshl_add_u32 v8, v4, 2, s6\nv_cvt_f32_u32 v242, v8')
        A(f's_lshl_b32 s6, s3, 13\ns_add_u32 s6, s6, {MAT - 32768}\nv_add_u32 v243, s6, v36')
    def gen_mat(label, n):
        if n == 0: return
        A(f's_mov_b32 s7, 0\ns_mov_b32 s6, 0x43000000\n{label}:')
        A('v_mul_f32 v9, v240, v242')
        for half in range(2):
            b = 96 + 8 * half
            for i in range(4):
                A(f'v_cos_f32 v{b+i}, v9\nv_sin_f32 v{b+4+i}, v9' + (f'\nv_add_f32 v9, v9, v{240 if i < 3 else 241}' if (i < 3 or half == 0) else ''))
        A('v_add_f32 v242, 0x42000000, v242')
        for half in range(2):
            for q in range(4): cvt(A, 112+4*half+q, 96+8*half+2*q, 97+8*half+2*q)
            A(f'ds_write_b128 v243, {vr(112+4*half,4)} offset:{half*1024}')
        A(f'v_cmp_le_f32 vcc, s6, v242\nv_add_u32 v243, 2048, v243\nv_subrev_f32 v9, s6, v242\ns_add_u32 s7, s7, 1\nv_cndmask_b32 v242, v242, v9, vcc\ns_cmp_lt_u32 s7, {n}\ns_cbranch_scc1 {label}')
    if cfg.bfirst: early()
    A('s_cmp_ge_u32 s3, 4\ns_cbranch_scc1 K_B_GEN')
    A('s_and_b32 s97, s5, 1\ns_lshl_b32 s97, s97, 2\ns_add_u32 s97, s97, s3\nv_and_b32 v37, 1, v4\nv_lshlrev_b32 v37, 5, v37\nv_xor_b32 v37, v37, v36')
    if cfg.smap: A('s_lshr_b32 s7, s97, 1\ns_lshl_b32 s7, s7, 5\ns_add_u32 s6, s29, s7\ns_lshl_b32 s7, s33, 10\ns_add_u32 s6, s6, s7\ns_lshl_b32 s34, s6, 10\ns_lshl_b32 s97, s97, 13')
    else: A('s_lshl_b32 s6, s29, 2\ns_lshr_b32 s7, s97, 1\ns_add_u32 s6, s6, s7\ns_lshl_b32 s7, s33, 10\ns_add_u32 s6, s6, s7\ns_lshl_b32 s34, s6, 10\ns_lshl_b32 s97, s97, 13')
    if cfg.cpf == 1:
        A(f's_getpc_b64 s[8:9]\nK_B_PC:\ns_sub_u32 s8, s8, K_B_PC-{NAME}_kernel\ns_subb_u32 s9, s9, 0\ns_mov_b32 s10, K_END-{NAME}_kernel\ns_mov_b32 s11, 0x20000')
        A('s_lshl_b32 s6, s3, 3\ns_add_u32 s6, s6, s5\ns_lshl_b32 s6, s6, 10\nbuffer_load_dwordx4 v[244:247], v36, s[8:11], s6 offen')
    if cfg.help:
        A('s_lshl_b32 s6, s5, 2\ns_add_u32 s6, s6, s3\ns_mul_i32 s28, s6, 9')
        A('s_lshl_b32 s100, s4, 5\ns_add_u32 s100, s100, s6\ns_mul_i32 s100, s100, 768')
    A('s_mov_b32 s7, 0\ns_waitcnt lgkmcnt(0)')
    srd(A, 20, P_BX, 0x200000)
    stamp(A, cfg, 1)
    if cfg.help:
        srd(A, 8, P_AX, 0x200000); srd(A, 12, P_WQKV, 0x180000)
        A('v_cmp_gt_u32 vcc, 48, v2\nv_mov_b32 v10, 0x80000000\ns_mul_i32 s59, s4, 3\nv_cndmask_b32 v10, v10, v36, vcc')
        for n in range(9):
            A(f's_add_u32 s6, s28, {n}\ns_mul_i32 s58, s6, 683\ns_lshr_b32 s58, s58, 16\ns_mul_i32 s30, s58, 96\ns_sub_u32 s6, s6, s30\ns_add_u32 s58, s58, s59')
            A('s_lshr_b32 s30, s58, 1\ns_mul_i32 s30, s30, 88\ns_add_u32 s6, s6, s30\ns_lshl_b32 s6, s6, 1\ns_and_b32 s58, s58, 1\ns_add_u32 s6, s6, s58\ns_lshl_b32 s6, s6, 10')
            A('buffer_load_dwordx4 v[244:247], v36, s[8:11], s6 offen')
            if cfg.help > 1 and 1 <= n <= 7: A(f's_add_u32 s6, s100, {n*196608}\nbuffer_load_dwordx4 v[244:247], v10, s[12:15], s6 offen')
    def c3b(m0, m1):
        if m0 == 0 and m1 > 0:
            srd(A, 12, P_WQKV, 0x180000)
            A(f's_lshl_b32 s59, s5, 2\ns_add_u32 s59, s59, s3\ns_lshl_b32 s59, s59, 13\ns_mul_i32 s28, s4, {cfg.rotx}\ns_add_u32 s28, s28, {cfg.rot0}\ns_and_b32 s28, s28, 7\ns_mul_i32 s28, s28, 196608\ns_add_u32 s59, s59, s28')
            A('v_lshlrev_b32 v10, 10, v5\nv_lshl_add_u32 v10, v6, 4, v10')
        for m in range(m0, m1):
            A('s_sub_u32 s28, s59, 0x180000\ns_cselect_b32 s59, s59, s28')
            A('buffer_load_dwordx4 v[244:247], v10, s[12:15], s59 offen offset:384\ns_add_u32 s59, s59, 0x40000')
    c3b(0, cfg.c3a)
    def xblock(n0, n1):
        for n in range(n0, n1):
            if n == 8: A(f's_xor_b32 s34, s34, {65536 if cfg.smap else 2048}\ns_xor_b32 s97, s97, 0x8000')
            A(f's_add_u32 m0, s97, {(n&7)*1024}\ns_add_u32 s6, s34, {(n&7)*131072}')
            A('buffer_load_dwordx4 v37, s[20:23], s6 offen lds')
    xblock(0, cfg.xs)
    if cfg.xs < 16:
        A('K_B_GEN:')
        early()
        A('s_cmp_ge_u32 s3, 4\ns_cbranch_scc1 K_B_GEN2')
        xblock(cfg.xs, 16)
    late = 0
    c3b(cfg.c3a, cfg.c3n); late += cfg.c3n - cfg.c3a
    if cfg.xpf == 3:
        srd(A, 12, P_AX, 0x200000)
        A(f's_mul_i32 s6, s4, {128*cfg.rotx}\ns_add_u32 s6, s6, 512\nv_and_b32 v11, 0x1ff, v36\nv_add_u32 v11, s6, v11\nv_and_b32 v11, 0x3ff, v11')
        A('s_lshl_b32 s6, s5, 2\ns_add_u32 s6, s6, s3\ns_mul_i32 s6, s6, 9\nv_lshrrev_b32 v12, 5, v2\nv_add_u32 v12, s6, v12\ns_mul_i32 s6, s4, 3')
        for n in range(5):
            A('v_mul_u32_u24 v8, 683, v12\nv_lshrrev_b32 v8, 16, v8\nv_mul_u32_u24 v9, 96, v8\nv_sub_u32 v7, v12, v9')
            A('v_add_u32 v8, s6, v8\nv_lshrrev_b32 v9, 1, v8\nv_mul_u32_u24 v9, 88, v9\nv_add_u32 v7, v7, v9\nv_and_b32 v8, 1, v8\nv_lshl_add_u32 v7, v7, 1, v8')
            A('v_lshl_add_u32 v7, v7, 10, v11\nv_add_u32 v12, 2, v12\nbuffer_load_dwordx4 v[244:247], v7, s[12:15], 0 offen')
        late += 5
    if cfg.womall:
        srd(A, 12, P_WO, 0x80000)
        A('s_lshl_b32 s28, s4, 3\ns_add_u32 s28, s28, s5\ns_lshl_b32 s28, s28, 2\ns_add_u32 s28, s28, s3\ns_lshl_b32 s28, s28, 11')
        A('buffer_load_dwordx4 v[244:247], v36, s[12:15], s28 offen\nbuffer_load_dwordx4 v[244:247], v36, s[12:15], s28 offen offset:1024'); late += 2
    if cfg.xs < 16: A('K_B_GEN2:')
    else:
        A('K_B_GEN:')
        if not cfg.bfirst: early()
    A(f's_waitcnt vmcnt({late})\ns_cmp_lt_u32 s3, 4\ns_cbranch_scc1 K_B_XOK')
    gen_init(); gen_mat('K_B_GL1', cfg.gsplit)
    stamp(A, cfg, 1)
    A('K_B_XOK:')
    A('s_waitcnt lgkmcnt(0)')
    srd_off(A, 8, P_WS, WS_Z, Z_SIZE); srd(A, 12, P_OUT, 0x400000); srd_off(A, 60, P_WS, WS_FLAG, FLAG_SIZE); srd(A, 16, P_DBG, 256); srd(A, 20, P_WO, 0x80000)
    A('s_lshl_b32 s28, s5, 3\ns_add_u32 s28, s28, s3\ns_lshl_b32 s28, s28, 13\ns_add_u32 s97, s28, 4096')
    def wopf(r):
        if cfg.wopf:
            for n in range(4): A(f'buffer_load_dwordx4 v[244:247], v36, s[20:23], s{r} offen offset:{n*1024}')
    A('s_barrier')
    stamp(A, cfg, 2)
    if cfg.bprio == 1: A('s_cmp_lt_u32 s3, 4\ns_cbranch_scc1 K_B_NP\ns_setprio 1\nK_B_NP:')
    DA, DD = 64, 96
    for p in range(4):
        for h in range(2):
            for rb in range(2): A(f'ds_read_b64_tr_b16 {vr(DA+8*p+4*h+2*rb,2)}, v{26 if h else 17} offset:{(2*p+rb)*1024}')
    wopf(28)
    def pwb():
        srd_off(A, 24, P_WS, WS_O, O_SIZE)
        A(f's_lshl_b32 s6, s4, 3\ns_add_u32 s6, s6, s5\ns_lshl_b32 s6, s6, 3\ns_add_u32 s6, s6, s3\ns_mul_i32 s6, s6, {36*128}\ns_mov_b32 exec_hi, 15')
        A('buffer_load_dword v31, v16, s[24:27], s6 offen sc1\ns_mov_b64 exec, -1')
    if cfg.pwb == 1: pwb()
    PA = 128
    def pk_a(p): return [f'v_cvt_pk_bf16_f32 v{PA+4*p+q}, v{DD+8*p+2*q}, v{DD+8*p+2*q+1}' for q in range(4)] + [f'ds_write_b128 v{27 if p >= 2 else 18}, {vr(PA+4*p,4)} offset:{p*128}']
    for i in range(8):
        A(f's_waitcnt lgkmcnt({14 - 2*i})')
        mfma32(A, DD+4*i, DA+4*i, G, None)
        if i >= 6:
            for x in pk_a(0)[2*(i-6):2*(i-6)+2]: A(x)
    bstamp(A, cfg, 3, 1)
    for x in pk_a(0)[4:] + pk_a(1) + pk_a(2) + pk_a(3): A(x)
    A('s_waitcnt lgkmcnt(0)')
    bstamp(A, cfg, 4, 1)
    A('s_barrier')
    bstamp(A, cfg, 5, 1)
    XF, U, BO, Z, PK = 64, 96, 160, 192, 224
    for sp in range(4):
        for h in range(2): A(f'ds_read_b128 {vr(XF+16*h+4*sp,4)}, v{19+h} offset:{h*4096+sp*1024}')
    wopf(97)
    def cv_u(u, bo, sp): return [f'v_cvt_pk_bf16_f32 v{bo+4*sp+q}, v{u+8*sp+2*q}, v{u+8*sp+2*q+1}' for q in range(4)]
    def mf_c(z, bo, sp): return [lambda part=part: mfma32(A, z+16*part+4*sp, F+2*part, bo+4*sp, None) for part in range(2)]
    def cv_z(z, pk, q): return [f'v_cvt_pk_bf16_f32 v{pk+4*i+2*part+q}, v{z+16*part+8*q+i}, v{z+16*part+8*q+4+i}' for i in range(4) for part in range(2)]
    def fin(z, pk, off):
        c = cv_z(z, pk, 1)
        for i in range(4):
            A(c[2*i]); A(c[2*i+1]); A(f's_add_u32 s7, s101, {i*ZCLS + off}\nbuffer_store_dwordx4 {vr(pk+4*i,4)}, v22, s[8:11], s7 offen sc1')
    A('s_cmp_eq_u32 s58, 0\ns_cbranch_scc1 K_B_W0')
    def mf_b(sp): return [lambda: mfma32(A, U+8*sp, XF+4*sp, M, None), lambda: mfma32(A, U+8*sp+4, XF+4*sp, M+4, None),
                          lambda: mfma32(A, U+8*sp, XF+16+4*sp, M+8, U+8*sp), lambda: mfma32(A, U+8*sp+4, XF+16+4*sp, M, U+8*sp+4)]
    for sp in range(4):
        A(f's_waitcnt lgkmcnt({6 - 2*sp})')
        interleave(A, mf_b(sp), cv_u(U, BO, sp - 3) + cv_u(U, BO, 1) if sp == 3 else [], per_gap=2)
    interleave(A, mf_c(Z, BO, 0) + mf_c(Z, BO, 1), cv_u(U, BO, 2) + ['s_nop 0'] + cv_u(U, BO, 3), per_gap=2)
    A('s_nop 0')
    interleave(A, mf_c(Z, BO, 2) + mf_c(Z, BO, 3), [])
    A('s_nop 1')
    for x in cv_z(Z, PK, 0): A(x)
    fin(Z, PK, 0)
    A('s_branch K_B_SIG')
    A('K_B_W0:')
    Z2, PK2 = 64, 96
    def mf_r(h, sp): return [lambda: mfma32(A, U+32*h+8*sp, XF+16*h+4*sp, M+8*h, None), lambda: mfma32(A, U+32*h+8*sp+4, XF+16*h+4*sp, M+8*h+4, None)]
    for sp in range(4):
        A(f's_waitcnt lgkmcnt({7 - 2*sp})')
        for m in mf_r(0, sp): m()
    A('s_waitcnt lgkmcnt(0)')
    interleave(A, sum((mf_r(1, sp) for sp in range(4)), []), sum((cv_u(U, BO, sp) for sp in range(4)), []), per_gap=2)
    interleave(A, sum((mf_c(Z, BO, sp) for sp in range(4)), []), sum((cv_u(U+32, BO+16, sp) for sp in range(4)), []), per_gap=2)
    interleave(A, sum((mf_c(Z2, BO+16, sp) for sp in range(4)), []), cv_z(Z, PK, 0), per_gap=1)
    fin(Z, PK, 0)
    for x in cv_z(Z2, PK2, 0): A(x)
    fin(Z2, PK2, 8*512)
    A('K_B_SIG:\n;@PAGE b')
    bstamp(A, cfg, 6, 1)
    bstamp(A, cfg, 3, 0)
    if cfg.pwb == 2: pwb()
    AM, SW, ZF, MF, ACC, T = 23, 24, 160, 32, 224, 32
    A('s_and_b32 s30, s5, 3')
    A(f'v_mul_u32_u24 v7, {PITCH}, v4\nv_lshl_add_u32 v12, v3, 4, v7\ns_mul_i32 s7, s3, {8*PITCH}\nv_add_u32 v12, s7, v12\nv_lshlrev_b32 v7, 15, v4\nv_lshl_add_u32 v13, v3, 4, v7\nv_xor_b32 v17, {3*32768}, v13\nv_lshlrev_b32 v7, 5, v3\nv_sub_u32 v19, v12, v7\nv_add_u32 v19, 240, v19')
    A('s_lshl_b32 s6, s96, 11\ns_lshl_b32 s7, s30, 8\ns_add_u32 s6, s6, s7\ns_lshl_b32 s7, s3, 18\ns_add_u32 s6, s6, s7\ns_add_u32 s34, s6, 1024')
    A(f's_sub_u32 s97, {2048*2048 - 3*32768 + 1024 + 768}, s6\nv_add_u32 v{AM}, {MAT}, v36\nv_mov_b32 v18, 0xffff')
    A(f's_and_b32 s33, s5, 4\ns_mul_i32 s33, s33, {4*ZSIG}')
    A('s_cmp_ge_u32 s3, 4\ns_cbranch_scc1 K_B_AUX')
    A(f'v_lshrrev_b32 v8, 1, v4\nv_and_b32 v9, 1, v4')
    A('s_sub_u32 s6, 16, s31\ns_and_b32 s6, s6, 15\ns_lshl_b32 s7, s3, 2\ns_sub_u32 s28, 13, s7\ns_sub_u32 s35, 3, s30')
    A('s_cmp_ge_u32 s3, 2\ns_cselect_b32 s6, s6, s31\ns_cselect_b32 s7, s28, s7\ns_cselect_b32 s35, s35, s30\ns_cselect_b32 s58, 0x80008000, 0\ns_cselect_b32 s28, 3, 0\ns_cselect_b32 s29, 7, 0')
    A(f's_mul_i32 s6, s6, {ZCLS}\ns_lshl_b32 s7, s7, 9\ns_add_u32 s6, s6, s7\ns_lshl_b32 s35, s35, 7\ns_add_u32 s35, s35, s6')
    A(f'v_mul_u32_u24 v7, {ZSIG}, v4\nv_lshl_add_u32 v7, v6, 4, v7\nv_bfe_u32 v10, v2, 3, 1\nv_lshlrev_b32 v10, 1, v10\nv_xor_b32 v10, s28, v10\nv_xor_b32 v11, 1, v10')
    A('v_lshl_add_u32 v10, v10, 9, v7\nv_lshl_add_u32 v11, v11, 9, v7')
    A(f'v_mul_u32_u24 v7, {PITCH}, v3\nv_lshl_add_u32 v7, v8, 2, v7\ns_lshl_b32 s6, s3, 3\nv_add_u32 v7, s6, v7\nv_lshlrev_b32 v9, 2, v9\nv_xor_b32 v9, s29, v9')
    for i in range(4): A(f'v_xor_b32 v8, {i}, v9\nv_lshl_add_u32 v{SW+i}, v8, 5, v7')
    A('v_mov_b32 v20, v10\nv_mov_b32 v21, v11\ns_sub_u32 s100, s35, s33\ns_add_u32 s35, s35, s33')
    A('s_cmp_lg_u32 s3, 2\ns_cbranch_scc1 K_B_RDY_X\nv_lshlrev_b32 v7, 2, v6')
    poll(A, 'K_B_RDY', 9, 7, 16, 0, 1)
    A('s_waitcnt vmcnt(0)')
    bstamp(A, cfg, 4, 0)
    A('s_barrier')
    A('s_cmp_lg_u32 s3, 3\ns_cbranch_scc1 K_B_NOSIG')
    A(f's_lshl_b32 s6, s4, 3\ns_add_u32 s6, s6, s5\ns_lshl_b32 s6, s6, 7\ns_add_u32 s6, s6, {BFLAG}')
    A('s_mov_b64 exec, 1\nbuffer_store_dword v15, v14, s[60:63], s6 offen sc1\ns_mov_b64 exec, -1')
    A('K_B_NOSIG:')
    if cfg.pwb == 3: pwb()
    for k in range(8):
        for tt in range(4): A(f'ds_read_b128 {vr(MF+16*k+4*tt,4)}, v{AM} offset:{tt*8192 + k*1024}')
    A(f's_cmp_lg_u32 s3, 3\ns_cbranch_scc1 K_B_POLL_X\ns_mov_b32 s7, {BFLAG}')
    poll(A, 'K_B_POLL', 9, 16, 60, 's7', 1)
    A('s_barrier')
    bstamp(A, cfg, 5, 0)
    for k in range(8):
        A(f's_add_u32 s7, s{35 if k < 4 else 100}, {k*4*ZSIG}')
        for a in range(2): A(f'buffer_load_dwordx4 {vr(ZF+8*k+4*a,4)}, v{20+a}, s[8:11], s7 offen sc1')
    for k in range(8):
        A(f's_waitcnt vmcnt({14-2*k}) lgkmcnt(0)')
        for a in range(2): A(f'v_xor_b32 v{ZF+8*k+4*a+2}, s58, v{ZF+8*k+4*a+2}\nv_xor_b32 v{ZF+8*k+4*a+3}, s58, v{ZF+8*k+4*a+3}')
        for a in range(2):
            for tt in range(4): mfma32(A, ACC+8*tt+4*a, ZF+8*k+4*a, MF+16*k+4*tt, ACC+8*tt+4*a if k else None)
    bstamp(A, cfg, 6, 0)
    A('s_cmp_lg_u32 s96, 0\ns_cbranch_scc1 K_B_NOX')
    A('v_mov_b32 v64, 0xbf803f80\nv_mov_b32 v65, 0xbf803f80\nv_mov_b32 v66, 0\nv_mov_b32 v67, 0\ns_nop 1')
    for k in range(8):
        for a in range(2): mfma32(A, 68+4*a, ZF+8*k+4*a, 64, 68+4*a if k else None)
    A('s_nop 7')
    for i in range(4):
        cvt(A, 76+i, 68+i, 72+i); A(f'ds_write_b32 v{SW+i}, v{76+i} offset:{64*PITCH}')
    A('K_B_NOX:\ns_nop 2')
    for tt in range(4):
        for i in range(4):
            cvt(A, T+4*tt+i, ACC+8*tt+i, ACC+8*tt+4+i); A(f'ds_write_b32 v{SW+i}, v{T+4*tt+i} offset:{tt*16*PITCH}')
    A('s_branch K_B_FIN')
    A('K_B_AUX:')
    gen_mat('K_B_GL2', 4 - cfg.gsplit)
    A(f's_sub_u32 s6, s3, 4\ns_lshl_b32 s7, s6, 13\nv_add_u32 v7, s7, v{AM}\ns_mul_i32 s6, s6, {16*PITCH}\nv_mul_u32_u24 v8, {PITCH}, v3\nv_add_u32 v8, s6, v8\nv_mul_u32_u24 v20, {ZSIG}, v4')
    for k in range(8): A(f'ds_read_b128 {vr(MF+4*k,4)}, v7 offset:{k*1024}')
    A(f's_add_u32 s6, s30, 1\ns_and_b32 s6, s6, 3\ns_lshl_b32 s6, s6, 7\ns_mul_i32 s7, s31, {ZCLS}\ns_add_u32 s6, s6, s7\ns_sub_u32 s100, s6, s33\ns_add_u32 s35, s6, s33\ns_setprio 3')
    A('s_waitcnt vmcnt(0) lgkmcnt(0)')
    bstamp(A, cfg, 4, 0)
    A('s_barrier')
    if cfg.pwb == 3: pwb()
    A('s_barrier')
    bstamp(A, cfg, 5, 0)
    for k in range(8):
        A(f's_add_u32 s7, s{35 if k < 4 else 100}, {k*4*ZSIG}\nbuffer_load_dwordx4 {vr(ZF+4*k,4)}, v20, s[8:11], s7 offen sc1')
    for k in range(8):
        A(f's_waitcnt vmcnt({7-k}) lgkmcnt(0)')
        mfma32(A, ACC, ZF+4*k, MF+4*k, ACC if k else None)
    A(f's_nop 7\nv_cvt_pk_bf16_f32 v{T}, v{ACC}, v{ACC}\nds_write_b16 v8, v{T} offset:256')
    if cfg.wb == 2: A('s_xor_b32 s6, s3, 7\ns_or_b32 s6, s6, s5\ns_cmp_lg_u32 s6, 0\ns_cbranch_scc1 K_B_NOWB\nbuffer_wbl2 sc1\nK_B_NOWB:')
    bstamp(A, cfg, 6, 0)
    A('K_B_FIN:')
    A('s_waitcnt lgkmcnt(0)\ns_barrier')
    for n in range(2): A(f'ds_read_b128 {vr(108+4*n,4)}, v12 offset:{4*n*PITCH}')
    for n in range(2): A(f'ds_read_b128 {vr(80+8*n,4)}, v19 offset:{4*n*PITCH}\nds_read_b32 v{84+8*n}, v19 offset:{4*n*PITCH + 16}')
    for n in range(2):
        A(f's_add_u32 s6, s34, {(4*n) << 15}\ns_waitcnt lgkmcnt({5-n})')
        A(f'buffer_store_dwordx4 {vr(108+4*n,4)}, v13, s[12:15], s6 offen{cfg.outflagb}')
    for n in range(2):
        b = 80 + 8 * n
        A(f's_sub_u32 s7, s97, {(4*n) << 15}\ns_waitcnt lgkmcnt({2-2*n})')
        for q in range(4): A(f'v_bfi_b32 v{96+4*n+q}, v18, v{b+4-q}, v{b+3-q}')
        A(f'buffer_store_dwordx4 {vr(96+4*n,4)}, v17, s[12:15], s7 offen{cfg.outflagb}')
    A('s_or_b32 s6, s96, s3\ns_cmp_lg_u32 s6, 0\ns_cbranch_scc1 K_B_NOX2')
    A(f'ds_read_b128 v[104:107], v12 offset:{64*PITCH}\ns_add_u32 s6, s34, {64 << 15}\ns_mov_b64 exec, 0xffff\ns_waitcnt lgkmcnt(0)')
    A(f'buffer_store_dwordx4 v[104:107], v13, s[12:15], s6 offen{cfg.outflagb}\ns_mov_b64 exec, -1')
    A('K_B_NOX2:')
    stamp_store(A, cfg, 8)
    A('s_endpgm')

def main():
    ap = argparse.ArgumentParser()
    ap.add_argument('-o', default=f'cdna_kernels/{NAME}.s')
    ap.add_argument('--diag', action='store_true')
    ap.add_argument('--xa', default='3,10,10,10,10,10,10,6')
    ap.add_argument('--pre', type=int, default=12); ap.add_argument('--opre', type=int, default=10)
    ap.add_argument('--outflag', default='sc1'); ap.add_argument('--outflagb', default='sc1')
    ap.add_argument('--rot', type=int, default=1); ap.add_argument('--rotx', type=int, default=1); ap.add_argument('--q3', type=int, default=0)
    ap.add_argument('--help_', dest='help', type=int, default=0); ap.add_argument('--help0', type=int, default=1)
    ap.add_argument('--hbar', type=int, default=1)
    ap.add_argument('--cpf', type=int, default=2)
    ap.add_argument('--swap', type=int, default=1); ap.add_argument('--hsplit', type=int, default=4)
    ap.add_argument('--gsplit', type=int, default=3); ap.add_argument('--goks', type=int, default=2)
    ap.add_argument('--xpf', type=int, default=0); ap.add_argument('--xprio', type=int, default=0)
    ap.add_argument('--c3', type=int, default=0)
    ap.add_argument('--chk', type=int, default=12)
    ap.add_argument('--cgx', type=int, default=1); ap.add_argument('--wopf', type=int, default=0)
    ap.add_argument('--batom', type=int, default=0)
    ap.add_argument('--clean', type=int, default=0); ap.add_argument('--b9', type=int, default=14)
    ap.add_argument('--chk2', type=int, default=10)
    ap.add_argument('--pk', type=int, default=1)
    ap.add_argument('--c3b', type=int, default=2); ap.add_argument('--c3n', type=int, default=6)
    ap.add_argument('--womall', type=int, default=1); ap.add_argument('--pwb', type=int, default=3)
    ap.add_argument('--gon', type=int, default=4)
    ap.add_argument('--rot0', type=int, default=0)
    ap.add_argument('--bfirst', type=int, default=0)
    ap.add_argument('--xs', type=int, default=8)
    ap.add_argument('--smap', type=int, default=0)
    ap.add_argument('--kst', type=int, default=0); ap.add_argument('--cprio', type=int, default=2)
    ap.add_argument('--c3a', type=int, default=1)
    ap.add_argument('--pwpos', type=int, default=0)
    ap.add_argument('--two', type=int, default=0); ap.add_argument('--lper', type=int, default=0)
    ap.add_argument('--wb', type=int, default=0)
    ap.add_argument('--lws', type=int, default=0)
    ap.add_argument('--align', type=int, default=1); ap.add_argument('--kw', type=int, default=3); ap.add_argument('--kn', type=int, default=1000)
    ap.add_argument('--lw8', type=int, default=1)
    ap.add_argument('--pages', type=int, default=1); ap.add_argument('--cpage', type=int, default=1)
    ap.add_argument('--bmove', type=int, default=1)
    ap.add_argument('--st0', type=int, default=0)
    ap.add_argument('--k8', type=int, default=1); ap.add_argument('--bprio', type=int, default=0); ap.add_argument('--wf', type=int, default=1)
    ap.add_argument('--pp', type=int, default=0)
    ap.add_argument('--lead', type=int, default=0)
    ap.add_argument('--rotq', type=int, default=1)
    ap.add_argument('--bst', type=int, default=0)
    ap.add_argument('--warmat', type=int, default=7); ap.add_argument('--n1', type=int, default=60)
    cfg = ap.parse_args()
    cfg.xa = [int(x) for x in cfg.xa.split(',')]
    if cfg.rotq: cfg.rot0 = 3
    cfg.outflag = '' if cfg.outflag == 'plain' else ' ' + cfg.outflag.replace('+', ' ')
    cfg.outflagb = '' if cfg.outflagb == 'plain' else ' ' + cfg.outflagb.replace('+', ' ')
    A = Asm()
    A(f'; @launch grid=(256,1,1) block=(512,1,1) lds={LDS_TOTAL}')
    A('.amdgcn_target "amdgcn-amd-amdhsa--gfx950"\n.text')
    kernel(A, cfg)
    A(f""".section .rodata,"a"
.p2align 6
.amdhsa_kernel {NAME}_kernel
.amdhsa_next_free_vgpr 256
.amdhsa_next_free_sgpr 102
.amdhsa_accum_offset 256
.amdhsa_group_segment_fixed_size 0
.amdhsa_kernarg_size 88
.amdhsa_user_sgpr_count 2
.amdhsa_user_sgpr_kernarg_segment_ptr 1
.amdhsa_system_sgpr_workgroup_id_x 1
.end_amdhsa_kernel""")
    if cfg.align:
        sys.path.insert(0, 'dev'); import align
        A.L, nw, nn = align.align(A.L, cfg.kw, cfg.kn)
        print('aligned: widened', nw, 'nops', nn)
    if cfg.pages: A.L = align.pages(A.L)
    NOTES = {'K_NOPF:': '; decode: s3 wave, s4 XCD slot, s5 index; v2 lane, v3 l&15, v4 l>>4, v5 l>>3, v6 l&7.  A loader waves fall through (LDS-DMA ring, 8 chunks of 64 k, then the wo slice)', 'K_B:': '; ---- branch B: waves 0..3 load 64 rows of x (and warm L2 for branch A), waves 4..7 build DFT factors', 'K_A_EVEN:': '; ---- A phase 2, even loader waves: own row tile + second K half of a shared tile', 'K_A_ODD:': '; ---- A phase 2, odd loader waves: own row tile + first K half of a shared tile (partial sums via LDS)', 'K_A_CONS:': '; ---- A consumer waves (one head each): set-up, qkv GEMM loop, attention, hand-off', 'K_A_ML:': '; qkv GEMM: 8 k-steps per pass over the 4 ring slots, two passes', 'K_A_MT:': '; last two k-steps, then attention: S^T = K Q^T (+ window masks), true max, exp2, P V, 1/sum', 'K_B_GEN:': '; 16-point factors G / F and the 32x32 hidden factors M', 'K_B_XOK:': '; stage a (16-point over the strided hidden index), LDS transpose, stage b (32-point), stage c (16-point over rows), write-through store of Z', 'K_B_SIG:': '; ---- B phase 2: 128-point sequence stage for one residue class, direct and mirrored stores'}
    A.L = [x for l in A.L for x in (([NOTES[l], l] if l != 'K_NOPF:' else [l, NOTES[l]]) if l in NOTES else [l])]
    txt = A.text()
    if cfg.st0:
        txt = txt.replace('; @launch grid', f'; @launch kernel={NAME}_kernel grid', 1).replace('\n', '\n; @launch kernel=t_kernel grid=(1,1,1) block=(64,1,1) lds=0\n', 1)
        txt = txt.replace('.section .rodata,"a"\n', '''.globl t_kernel
.p2align 8
.type t_kernel,@function
t_kernel:
    s_memrealtime s[10:11]
    s_load_dwordx2 s[4:5], s[0:1], 80
    s_waitcnt lgkmcnt(0)
    s_add_u32 s16, s4, 0x800000
    s_addc_u32 s17, s5, 0
    s_mov_b32 s18, 0x100000
    s_mov_b32 s19, 0x20000
    v_mov_b32 v1, s10
    v_mov_b32 v2, 0x1000
    buffer_store_dword v1, v2, s[16:19], 0 offen
    s_endpgm
.section .rodata,"a"
''') + '''.p2align 6
.amdhsa_kernel t_kernel
.amdhsa_next_free_vgpr 8
.amdhsa_next_free_sgpr 24
.amdhsa_accum_offset 8
.amdhsa_group_segment_fixed_size 0
.amdhsa_kernarg_size 88
.amdhsa_user_sgpr_count 2
.amdhsa_user_sgpr_kernarg_segment_ptr 1
.amdhsa_system_sgpr_workgroup_id_x 1
.end_amdhsa_kernel
'''
    if not cfg.st0 and not cfg.diag: txt = HEADER + txt
    open(cfg.o, 'w').write(txt)
main()
```

```python
import sys, argparse
NAME = 'concat_heads__sliding_local_dilated__spectral_fnet__prompt'

HEADER = """; Kernarg layout (88 bytes, pointers only, base s[0:1]):
;
;    Hand-off: plain stores + local flag holding the XCC id (accepted only if all 8 ids equal the reader's own, i.e. same L2);
"""

class Asm:
    def __init__(self): self.L = []
    def __call__(self, s):
        for line in s.split('\n'):
            line = line.strip()
            if line: self.L.append(line if line.endswith(':') or line.startswith('.') or line.startswith(';') else '    ' + line)
    def text(self): return '\n'.join(self.L) + '\n'

def vr(b, n): return f'v[{b}:{b+n-1}]' if n > 1 else f'v{b}'
def srd(A, d, lo, size):
    A(f's_mov_b32 s{d}, s{lo}\ns_mov_b32 s{d+1}, s{lo+1}\ns_mov_b32 s{d+2}, {size:#x}\ns_mov_b32 s{d+3}, 0x20000')
def srd_off(A, d, lo, off, size):
    A(f's_add_u32 s{d}, s{lo}, {off:#x}\ns_addc_u32 s{d+1}, s{lo+1}, 0\ns_mov_b32 s{d+2}, {size:#x}\ns_mov_b32 s{d+3}, 0x20000')
def mfma32(A, d, a, b, c): A(f'v_mfma_f32_16x16x32_bf16 {vr(d,4)}, {vr(a,4)}, {vr(b,4)}, {vr(c,4) if c is not None else 0}')
def mfma16(A, d, a, b, c): A(f'v_mfma_f32_16x16x16_bf16 {vr(d,4)}, {vr(a,2)}, {vr(b,2)}, {vr(c,4) if c is not None else 0}')
def cvt(A, d, a, b): A(f'v_cvt_pk_bf16_f32 v{d}, v{a}, v{b}')

P_AX, P_WQKV, P_WO, P_BX, P_CR, P_CI, P_DR, P_DI, P_OUT, P_DBG, P_WS = 36, 38, 40, 42, 44, 46, 48, 50, 52, 54, 56
WS_O, O_SIZE, WS_Z, Z_SIZE, WS_FLAG, FLAG_SIZE, WS_DIAG = 0, 0x240000, 0x280000, 0x240000, 0x500000, 0x10000, 0x800000
ZSIG, ZCLS = 4608, 147456
GFLAG, BFLAG = 192 * 128, 384 * 128
LDS_TOTAL, LDS_WORD = 163840, 147456
OOB = 0x80000000
SPIN = 400000
SLEEP = 0

def interleave(A, mf, other, per_gap=1, start=0):
    oi = 0
    for i, m in enumerate(mf):
        m()
        if i >= start:
            for _ in range(per_gap):
                if oi < len(other): A(other[oi]); oi += 1
    while oi < len(other): A(other[oi]); oi += 1

def stamp(A, cfg, slot):
    if cfg.diag: A(f's_memrealtime s[{64+4*slot}:{65+4*slot}]\ns_memtime s[{66+4*slot}:{67+4*slot}]')
def stamp_store(A, cfg, nslots):
    if not cfg.diag: return
    A('s_waitcnt lgkmcnt(0) vmcnt(0)')
    stamp(A, cfg, nslots - 1)
    A('s_waitcnt lgkmcnt(0)')
    srd_off(A, 24, P_WS, WS_DIAG, 0x100000)
    A(f's_lshl_b32 s4, s2, 3\ns_add_u32 s4, s4, s3\ns_lshl_b32 s4, s4, 6')
    for i in range(8): A(f'v_mov_b32 v{8+i}, s{64+4*min(i, nslots-1)}\nv_mov_b32 v{16+i}, s{66+4*min(i, nslots-1)}')
    A('v_mov_b32 v1, 0\nv_and_b32 v2, 63, v0\nv_cmp_eq_u32 vcc, 0, v2\ns_and_saveexec_b64 s[6:7], vcc')
    for i in range(4): A(f'buffer_store_dwordx4 v[{8+4*i}:{11+4*i}], v1, s[24:27], s4 offen offset:{16*i}')


def loader_loop(A, items, ends, X, after=None):
    done = 0
    for c in range(len(ends)):
        upto = min(len(items), ends[c] + X[min(c, len(X) - 1)])
        while done < upto and items[done][1] <= c:
            items[done][0](); done += 1
        assert done >= ends[c]
        A(f's_waitcnt vmcnt({done - ends[c]})')
        A('s_barrier')
    if after: after()
    while done < len(items):
        items[done][0](); done += 1

def poll(A, label, vdst, vaddr, srdn, soff, want, first=True):
    A(f's_mov_b32 s28, 0')
    A(f'{label}:')
    A(f'buffer_load_dword v{vdst}, v{vaddr}, s[{srdn}:{srdn+3}], {soff} offen sc1')
    A(f's_add_u32 s28, s28, 1\ns_cmp_ge_u32 s28, {SPIN}\ns_cbranch_scc1 {label}_X')
    A('s_waitcnt vmcnt(0)')
    A(f'v_cmp_ne_u32 vcc, {want}, v{vdst}')
    A(f's_cmp_lg_u64 vcc, 0\ns_cbranch_scc1 {label}')
    A(f'{label}_X:')

A1_SLOT = 36864

def kernel(A, cfg):
    A(f'.globl {NAME}_kernel\n.p2align 12\n.p2align 8\n.type {NAME}_kernel,@function\n{NAME}_kernel:')
    A(('s_load_dwordx8 s[36:43], s[0:1], 0' if cfg.k8 else 's_load_dwordx16 s[36:51], s[0:1], 0') + '\ns_load_dwordx4 s[52:55], s[0:1], 64\ns_load_dwordx2 s[56:57], s[0:1], 80')
    A('s_cmp_ge_u32 s2, 256\ns_cbranch_scc1 K_END')
    stamp(A, cfg, 0)
    if cfg.st0: A('s_memrealtime s[64:65]')
    if cfg.cpf == 2:
        A(f's_getpc_b64 s[8:9]\nK_PC:\ns_lshr_b32 s5, s2, 3\ns_lshl_b32 s5, s5, 10\ns_cmp_lt_u32 s5, K_PAD-{NAME}_kernel\ns_cselect_b32 s10, 64, 0')
        A(f's_sub_u32 s8, s8, K_PC-{NAME}_kernel\ns_subb_u32 s9, s9, 0\nv_lshl_add_u32 v1, v0, 4, s5\nv_mov_b32 v3, s9\nv_add_co_u32 v2, vcc, s8, v1\ns_nop 1\nv_addc_co_u32 v3, vcc, 0, v3, vcc')
        A('v_cmp_gt_u32 vcc, s10, v0\ns_and_saveexec_b64 s[6:7], vcc\ns_cbranch_execz K_NOPF')
        A('global_load_dwordx4 v[248:251], v[2:3], off\nK_NOPF:\ns_mov_b64 exec, s[6:7]')
    A('v_lshrrev_b32 v1, 6, v0\nv_and_b32 v2, 63, v0')
    A('v_readfirstlane_b32 s3, v1')
    A('s_and_b32 s4, s2, 7\ns_lshr_b32 s5, s2, 3')
    A('v_and_b32 v3, 15, v2\nv_lshrrev_b32 v4, 4, v2')
    A('v_lshrrev_b32 v5, 3, v2\nv_and_b32 v6, 7, v2')
    A('s_cmp_ge_u32 s5, 24\ns_cbranch_scc1 K_B')
    A('s_mul_i32 s7, s4, 3\ns_lshr_b32 s28, s5, 3\ns_add_u32 s59, s7, s28\ns_and_b32 s29, s5, 7')
    A('s_and_b32 s30, s59, 1\ns_lshr_b32 s31, s59, 1\ns_mul_i32 s32, s31, 88')
    if cfg.swap: A('s_xor_b32 s3, s3, 4')
    A('s_getreg_b32 s96, hwreg(HW_REG_XCC_ID, 0, 4)\ns_add_u32 s96, s96, 0x100')
    A('s_cmp_ge_u32 s3, 4\ns_cbranch_scc0 K_A_CONS')
    a_loader(A, cfg)
    A('K_A_CONS:')
    a_consumer(A, cfg)
    A(';@PAD b\nK_B:')
    b_all(A, cfg)
    A('K_END:\ns_endpgm\n;@PAD z\n;@PAGE z\nK_PAD:\ns_endpgm')
    if cfg.bmove:
        i, j = A.L.index('K_B:'), A.L.index('K_B_GEN:')
        front = A.L[i:j] + ['    s_branch K_B_GEN']; del A.L[i:j]
        if cfg.bmove == 2:
            k = A.L.index('    s_cbranch_scc1 K_B'); A.L[k:k+1] = ['    s_cbranch_scc0 K_A'] + front + ['K_A:']
        else:
            k = A.L.index(';@PAD e'); A.L[k:k] = front

def a_loader(A, cfg):
    AW, WF, OF, ACC, NB, NO = 24, 36, 180, 220, 9, 10
    STAGE = 2 * A1_SLOT
    A('s_mul_i32 s97, s28, 3')
    if cfg.rot == 1: A('s_mov_b32 s63, 0')
    elif cfg.rot == 2: A('s_xor_b32 s63, s28, s5\ns_and_b32 s63, s63, 1\ns_lshl_b32 s63, s63, 2')
    elif cfg.rot == 3: A('s_mov_b32 s63, s97')
    if cfg.rot == 5:
        def tri(b, g): return [b + (g + i) % 3 for i in range(3)]
        def pair(b, g): return [b + (g & 1), b + 1 - (g & 1)]
        def word(p, g):
            o = [tri(0, g) + tri(3, g) + pair(6, g), [0] + tri(1, g) + tri(4, g) + [7], pair(0, g) + tri(2, g) + tri(5, g)][p]
            return sum(c << (4 * i) for i, c in enumerate(o))
        A('s_mov_b32 s63, 0\ns_mul_i32 s6, s29, 11\ns_lshr_b32 s6, s6, 5\ns_mul_i32 s6, s6, 3\ns_sub_u32 s6, s29, s6\ns_add_u32 s6, s6, s97')
        A(f's_mov_b32 s101, {word(0, 0):#x}')
        for g in range(3):
            for p in range(3):
                if p or g: A(f's_cmp_eq_u32 s6, {p + 3*g}\ns_cselect_b32 s101, {word(p, g):#x}, s101')
        A('s_cmp_eq_u32 s29, 3\ns_cselect_b32 s101, 0x76543210, s101')
    if cfg.q3: A('s_cmp_eq_u32 s29, 3\ns_cselect_b32 s63, s97, s63')
    if cfg.rotx: A(f's_mul_i32 s62, s4, {cfg.rotx}\ns_add_u32 s63, s63, s62')
    if cfg.rotq: A('s_add_u32 s63, s63, s29')
    elif cfg.rot0: A(f's_add_u32 s63, s63, {cfg.rot0}')
    A('s_sub_u32 s33, s3, 4')
    A('s_mul_i32 s6, s33, 24')
    for j in range(3):
        A(f'v_add_u32 v7, s6, v5\nv_add_u32 v7, {8*j}, v7')
        A('v_lshrrev_b32 v8, 1, v7\nv_and_b32 v8, 7, v8\nv_xor_b32 v8, v8, v6\nv_lshlrev_b32 v8, 4, v8')
        A('v_add_u32 v7, s32, v7\nv_lshlrev_b32 v7, 1, v7\nv_add_u32 v7, s30, v7')
        A(f'v_lshl_add_u32 v{10+j}, v7, 10, v8')
    A('s_lshl_b32 s6, s33, 4\ns_lshl_b32 s7, s29, 7\ns_movk_i32 s28, 3072')
    for par in range(2):
        A(f'v_add_u32 v7, s6, v5\nv_add_u32 v7, {8*par}, v7')
        A('v_mul_lo_u32 v7, v7, s28\nv_add_u32 v7, s7, v7')
        A(f'v_and_b32 v8, 1, v4\nv_or_b32 v8, {2*par}, v8\nv_lshlrev_b32 v8, 1, v8\nv_xor_b32 v8, v8, v6')
        A(f'v_lshl_add_u32 v{13+par}, v8, 4, v7')
    A('s_mul_i32 s34, s33, 3072')
    A('s_mul_i32 s35, s33, 6144\ns_add_u32 s35, s35, 12288')
    A('s_waitcnt lgkmcnt(0)')
    srd(A, 8, P_AX, 0x200000); srd(A, 12, P_WQKV, 0x180000)
    stamp(A, cfg, 1)
    def issue(c, j):
        base = (c % 4) * A1_SLOT
        if j < 3:
            if j == 0 and cfg.rot == 5: A(f's_bfe_u32 s62, s101, {0x40000 + 4*c:#x}\ns_add_u32 s62, s62, s63\ns_and_b32 s62, s62, 7\ns_lshl_b32 s6, s62, 7')
            elif j == 0: A(f's_add_u32 s62, s63, {c}\ns_and_b32 s62, s62, 7\ns_lshl_b32 s6, s62, 7')
            A(f's_add_u32 m0, s34, {base + j*1024}\ns_nop 0')
            A(f'buffer_load_dwordx4 v{10+j}, s[8:11], s6 offen lds')
        else:
            par, seg = divmod(j - 3, 3)
            if j == 3: A(f's_mul_i32 s7, s62, 196608')
            if seg == 0: A(f's_add_u32 m0, s35, {base + par*3072}\ns_nop 0')
            A(f'buffer_load_dwordx4 v{13+par}, s[12:15], s7 offen offset:{seg*1024} lds')
    def late_setup():
        srd(A, 16, P_WO, 0x80000); srd_off(A, 20, P_WS, WS_O, O_SIZE)
        A('s_lshl_b32 s60, s33, 3\nv_add_u32 v7, s60, v5\ns_and_b32 s60, s33, 1\ns_lshl_b32 s60, s60, 1\ns_xor_b32 s61, s29, ' + str(cfg.cgx) + '\ns_lshl_b32 s61, s61, 7')
        A('v_and_b32 v8, 1, v4\nv_or_b32 v8, s60, v8\nv_lshlrev_b32 v8, 1, v8\nv_xor_b32 v8, v8, v6\nv_lshlrev_b32 v8, 4, v8')
        A('v_lshl_add_u32 v15, v7, 10, v8\nv_add_u32 v15, s61, v15')
        A('s_lshl_b32 s58, s33, 10')
        A(f's_mul_i32 s60, s33, 24\nv_add_u32 v7, s60, v2\nv_lshrrev_b32 v8, 4, v7\nv_lshlrev_b32 v8, 14, v8\nv_and_b32 v7, 15, v7\nv_lshl_add_u32 v7, v7, 7, v8')
        A(f'v_mov_b32 v8, {OOB:#x}\nv_cmp_le_u32 vcc, 24, v2\ns_mul_i32 s60, s59, {6*16384}\ns_lshl_b32 s61, s29, 11\ns_add_u32 s98, s60, s61\nv_cndmask_b32 v16, v7, v8, vcc')
        A(f'v_mov_b32 v17, {LDS_WORD}\nv_mov_b32 v18, 0\nv_mov_b32 v19, 0\nds_write_b64 v17, v[18:19]\nds_write_b64 v17, v[18:19] offset:8\nds_write_b64 v17, v[18:19] offset:16\nds_write_b64 v17, v[18:19] offset:24\ns_waitcnt lgkmcnt(0)\nv_mov_b32 v18, 1')
        srd(A, 44, P_OUT, 0x400000)
        A('v_bfe_u32 v7, v2, 2, 2\nv_lshrrev_b32 v8, 1, v7\nv_and_b32 v9, 1, v4\nv_lshl_or_b32 v8, v9, 1, v8')
        A('v_lshlrev_b32 v9, 10, v4\nv_lshl_add_u32 v9, v7, 7, v9\nv_and_b32 v7, 3, v2\nv_lshl_add_u32 v9, v7, 3, v9')
        for nt in range(4): A(f'v_xor_b32 v7, {nt}, v8\nv_lshl_add_u32 v{AW+nt}, v7, 5, v9')
        A('v_lshlrev_b32 v33, 4, v2')
        A(f's_mul_i32 s60, s33, {32*144}\ns_add_u32 s60, s60, {STAGE}')
        A('v_mul_u32_u24 v30, 144, v3\nv_lshl_add_u32 v30, v4, 3, v30\nv_add_u32 v30, s60, v30')
        A('v_mul_u32_u24 v31, 144, v5\nv_lshl_add_u32 v31, v6, 4, v31\nv_add_u32 v31, s60, v31')
        A('v_lshlrev_b32 v32, 12, v5\nv_lshl_add_u32 v32, v6, 4, v32')
        A('s_lshl_b32 s60, s32, 12\ns_lshl_b32 s61, s30, 11\ns_add_u32 s60, s60, s61\ns_xor_b32 s61, s29, ' + str(cfg.cgx) + '\ns_lshl_b32 s61, s61, 7\ns_add_u32 s42, s60, s61')
        A('s_lshl_b32 s60, s33, 16\ns_add_u32 s48, s42, s60\ns_add_u32 s49, s48, 0x8000\ns_lshr_b32 s61, s33, 1\ns_add_u32 s61, s61, 4\ns_lshl_b32 s60, s61, 16\ns_add_u32 s50, s42, s60\ns_add_u32 s51, s50, 0x8000')
        A(f's_mul_i32 s42, s59, {6*16384}\ns_lshl_b32 s60, s33, 14\ns_add_u32 s43, s42, s60\ns_lshl_b32 s60, s61, 14\ns_add_u32 s42, s42, s60')
        A(f's_lshr_b32 s60, s33, 1\ns_lshl_b32 s61, s60, 12\ns_add_u32 s61, s61, {STAGE + 4*32*144}\nv_add_u32 v28, s61, v33\ns_lshl_b32 s60, s60, 2\nv_add_u32 v29, s60, v17')
        A('s_cmp_lg_u32 s31, 0\ns_cselect_b32 s60, 1, 0\ns_cmp_eq_u32 s33, 0\ns_cselect_b32 s60, s60, 0\ns_cmp_lg_u32 s60, 0\ns_cselect_b32 s48, 0x40000000, s48')
    def wo(n):
        A(f's_add_u32 s62, s97, {n}\ns_and_b32 s62, s62, 15')
        A('s_lshl_b32 s6, s62, 12\ns_add_u32 m0, s58, s6\ns_lshl_b32 s6, s62, 15')
        A('buffer_load_dwordx4 v15, s[16:19], s6 offen lds')
    def side():
        srd_off(A, 88, P_WS, WS_FLAG, FLAG_SIZE); srd(A, 24, P_DBG, 256)
        A(f'v_lshlrev_b32 v20, 2, v6\nv_lshlrev_b32 v21, 7, v6\ns_lshl_b32 s100, s59, 10\ns_lshr_b32 s97, s5, 3\ns_mul_i32 s97, s97, 5\ns_mov_b64 exec, 0xff')
        A('buffer_load_dword v22, v20, s[24:27], 0 offen sc1\ns_mov_b64 exec, -1')
    def gocheck():
        A('s_mov_b64 exec, 0xff\nv_cmp_ne_u32 vcc, 1, v22\ns_cmp_eq_u64 vcc, 0\ns_cbranch_scc1 K_A_RDY_X')
        poll(A, 'K_A_RDY', 9, 20, 24, 0, 1)
        A('ds_write_b32 v17, v18 offset:24\ns_mov_b64 exec, -1')
    items = [(lambda c=c, j=j: issue(c, j), max(0, c - 2)) for c in range(8) for j in range(9)]
    ends = [9 * (c + 1) for c in range(8)]
    if cfg.xpf == 2:
        def xp(n):
            if n == 0:
                A('s_lshl_b32 s60, s29, 2\ns_add_u32 s60, s60, s33\ns_mul_i32 s60, s60, 3\ns_add_u32 s60, s60, s32\ns_lshl_b32 s60, s60, 1\ns_add_u32 s60, s60, s30\ns_lshl_b32 s60, s60, 10\nv_lshlrev_b32 v7, 4, v2')
                A('s_and_b32 s62, s63, 7' if cfg.rot != 5 else 's_and_b32 s62, s101, 7\ns_add_u32 s62, s62, s63\ns_and_b32 s62, s62, 7')
            if n == 2: A('s_add_u32 s60, s60, 4096')
            A(f'buffer_load_dwordx4 v[244:247], v7, s[8:11], s60 offen offset:{(n&1)*2048}')
        items = [(lambda n=n: xp(n), 0) for n in range(3)] + items[3:9] + items[0:3] + items[9:]
        ends = [e + 3 for e in ends]
    k0 = ends[0] + cfg.xa[0] - 1
    items[k0] = (lambda f=items[k0][0]: (f(), late_setup()), items[k0][1])
    items += [(side, 0), (lambda: A('s_mov_b64 exec, 0xff\nbuffer_load_dword v251, v21, s[88:91], s100 offen sc1\ns_mov_b64 exec, -1'), 0)]
    def wo2(n):
        if n == cfg.gon: A(f's_waitcnt vmcnt({n + 1 + (0 if cfg.pwb else cfg.pwpos <= n)})'); gocheck()
        wo(n)
    tail = [(lambda n=n: wo2(n), 7) for n in range(16)]
    if not cfg.pwb: tail.insert(cfg.pwpos, (lambda: A('buffer_load_dword v250, v16, s[20:23], s98 offen sc1'), 0))
    items += tail
    loader_loop(A, items, ends, cfg.xa)
    srd_off(A, 8, P_WS, WS_FLAG, FLAG_SIZE)
    stamp(A, cfg, 2)
    A(f'v_mov_b32 v8, v21\ns_mov_b32 s7, s100\ns_add_u32 s6, s7, {GFLAG}')
    A(f's_waitcnt vmcnt({1 if cfg.pwpos == 16 and not cfg.pwb else 0})\ns_mov_b64 exec, 1\nds_add_u32 v17, v18 offset:8\ns_mov_b64 exec, -1')
    order = [0, 1, 2, 3, 4, 5, 8, 9, 10, 11, 12, 13, 14, 15, 6, 7]
    def reads(st):
        if st > 15: return []
        f = WF + 16 * (st % NB); ks = order[st]
        return [f'ds_read_b64_tr_b16 {vr(f+4*nt+2*u,2)}, v{AW+nt} offset:{ks*4096+u*512}' for nt in range(4) for u in range(2)]
    def wait_flags(tag, masked):
        if cfg.pp:
            assert cfg.wf and not masked
            ld = lambda i: f'buffer_load_dwordx4 {vr(OF+4*i,4)}, v8, s[8:11], s100 offen sc1'
            A('s_mov_b64 exec, 0xff')
            for i in range(cfg.pp): A(ld(i) + ('\ns_nop 7\ns_nop 7' if i < cfg.pp - 1 and False else ''))
            A(f'K_A_PP{tag}:')
            for i in range(cfg.pp):
                b = OF + 4 * i
                A(f's_waitcnt vmcnt({cfg.pp - 1})\nv_and_b32 v12, v{b}, v{b+1}\nv_and_b32 v14, v{b+2}, v{b+3}\nv_and_b32 v9, v12, v14\nv_cmp_ne_u32 vcc, s96, v9\ns_cmp_eq_u64 vcc, 0\ns_cbranch_scc1 K_A_GO{tag}\n' + ld(i))
            A(f's_add_u32 s28, s28, 1\ns_cmp_lt_u32 s28, {cfg.n1}\ns_cbranch_scc1 K_A_PP{tag}')
        A(f's_mov_b64 exec, 0xff\nK_A_P1{tag}:')
        LD = 'buffer_load_dwordx4 v[12:15], v8, s[8:11], s100 offen sc1' if cfg.wf else 'buffer_load_dword v9, v8, s[8:11], s100 offen sc1'
        CB = '\nv_and_b32 v12, v12, v13\nv_and_b32 v14, v14, v15\nv_and_b32 v9, v12, v14' if cfg.wf else ''
        A(LD + '\ns_add_u32 s28, s28, 1\ns_waitcnt vmcnt(0)' + CB)
        A('v_cmp_ne_u32 vcc, s96, v9')
        if masked: A(f's_mov_b64 s[92:93], vcc\ns_and_b64 vcc, vcc, s[94:95]\ns_cbranch_scc0 K_A_GO{tag}')
        else: A(f's_cmp_eq_u64 vcc, 0\ns_cbranch_scc1 K_A_GO{tag}')
        A(f's_cmp_lt_u32 s28, {cfg.n1}\ns_cbranch_scc1 K_A_P1{tag}')
        A('ds_write_b32 v17, v18\ns_mov_b32 s99, 1\ns_mov_b64 s[92:93], 0\ns_waitcnt lgkmcnt(0)\ns_barrier')
        A(f'K_A_P2{tag}:')
        A(LD + '\nbuffer_load_dword v10, v8, s[8:11], s6 offen sc1\ns_add_u32 s28, s28, 1\ns_waitcnt vmcnt(0)' + CB)
        A(f'v_cmp_ne_u32 vcc, s96, v9\ns_cmp_eq_u64 vcc, 0\ns_cbranch_scc1 K_A_GO{tag}')
        A(f'v_cmp_ne_u32 vcc, 1, v10\ns_cmp_eq_u64 vcc, 0\ns_cbranch_scc1 K_A_GO{tag}')
        A(f's_cmp_lt_u32 s28, {SPIN}\ns_cbranch_scc1 K_A_P2{tag}')
        A(f'K_A_GO{tag}:\ns_mov_b64 exec, -1')
    A('s_bitcmp1_b32 s33, 0\ns_cbranch_scc1 K_A_ODD\ns_branch K_A_EVEN')
    PART = WF + 16 * 7
    def gemm2(odd):
        tag = 'O' if odd else 'E'
        has = lambda st: (st < 8) == bool(odd)
        L = [(st, a) for st in range(16) for a in range(2) if a == 0 or has(st)]
        reg = {x: OF + 4 * (i % NO) for i, x in enumerate(L)}
        first_q3 = min(i for i, x in enumerate(L) if x[0] >= 14) if cfg.two else len(L)
        need = lambda st: sum(1 for x in L if x[0] <= st)
        vq = []
        lq = []
        def oload(i):
            st, a = L[i]; ks = order[st]; vq.append(i)
            return f's_add_u32 s7, s{42 if a else 43}, {(ks & ~3)*1024}\nbuffer_load_dwordx4 {vr(reg[L[i]],4)}, v33, s[20:23], s7 offen offset:{(ks&3)*1024} sc1'
        def after(q, keys):
            pos = [k for k, x in enumerate(q) if x in keys]
            return len(q) - 1 - max(pos) if pos else None
        A(f'K_A_LW{tag}:\n' + (f's_sleep {cfg.lws}\n' if cfg.lws else '') + 'ds_read_b32 v9, v17 offset:8\ns_waitcnt lgkmcnt(0)\nv_cmp_ne_u32 vcc, ' + ('8' if cfg.lw8 else '4') + ', v9\ns_cmp_lg_u64 vcc, 0\ns_cbranch_scc1 K_A_LW' + tag)
        stamp(A, cfg, 3)
        for st in range(NB):
            for r in reads(st): A(r)
        A('s_mov_b32 s28, 0\ns_mov_b32 s99, 0\ns_mov_b32 s94, 0xf7f7f7f7\ns_mov_b32 s95, 0xf7f7f7f7')
        if cfg.lead:
            if (cfg.lead - 1) % 2 == odd:
                A(f's_cmp_lg_u32 s33, {cfg.lead - 1}\ns_cbranch_scc1 K_A_FW{tag}')
                wait_flags('A' + tag, False)
                A(f'ds_write_b32 v17, v18 offset:12\ns_branch K_A_FX{tag}')
            A(f'K_A_FW{tag}:\nds_read_b128 v[12:15], v17\ns_waitcnt lgkmcnt(0)\nv_cmp_ne_u32 vcc, 1, v15\ns_cmp_eq_u64 vcc, 0\ns_cbranch_scc1 K_A_FX{tag}')
            A(f'v_cmp_ne_u32 vcc, s99, v12\ns_cmp_eq_u64 vcc, 0\ns_cbranch_scc1 K_A_FW{tag}\ns_mov_b32 s99, 1\ns_barrier\ns_branch K_A_FW{tag}\nK_A_FX{tag}:')
        else:
            wait_flags('A' + tag, bool(cfg.two))
        stamp(A, cfg, 4)
        issued = min(cfg.opre, NO)
        for i in range(issued): A(oload(i))
        CHK = (cfg.chk2 if odd else cfg.chk) if cfg.two else 99
        for st in range(16):
            f = WF + 16 * (st % NB)
            if st == CHK:
                assert issued == first_q3 and len(L) - need(st - 1) <= NO
                A(f's_waitcnt vmcnt({after(vq, ["flag"])})\nv_cmp_ne_u32 vcc, s96, v9\ns_and_b64 vcc, vcc, s[92:93]\ns_cbranch_scc0 K_A_GOB{tag}')
                wait_flags('B' + tag, False)
                for i in range(first_q3, len(L)): A(oload(i))
                issued = len(L)
            keys = [('w', st)] + (['pw'] if odd and st == 11 else []) + (['pf'] if not odd and st == 15 else [])
            lg = 0 if st == 0 else after(lq, keys)
            A(f's_waitcnt vmcnt({after(vq, [need(st) - 1])})' + (f' lgkmcnt({min(lg, 14)})' if lg is not None else ''))
            if st == 0: stamp(A, cfg, 5)
            if odd and st == 11: A('ds_write_b32 v29, v18 offset:16'); lq.append('x')
            if not odd and st == 15:
                A('s_mov_b32 s28, 0\nK_A_PW:\nv_cmp_ne_u32 vcc, 1, v10\ns_cmp_eq_u64 vcc, 0\ns_cbranch_scc1 K_A_PWX\nds_read_b32 v10, v29 offset:16\ns_add_u32 s28, s28, 1')
                A('s_cmp_lg_u32 s28, 64\ns_cbranch_scc1 K_A_PWN\ns_cmp_lg_u32 s99, 0\ns_cbranch_scc1 K_A_PWN\ns_mov_b32 s99, 1\ns_barrier\nK_A_PWN:\ns_waitcnt lgkmcnt(0)\ns_branch K_A_PW\nK_A_PWX:')
            M = [lambda d=ACC+16*a+4*nt, x=f+4*nt, b=reg[(st, a)], z=(st & 7 if a else st): mfma32(A, d, x, b, d if z else None) for a in range(2) if (st, a) in reg for nt in range(4)]
            O = []
            while issued < first_q3 and issued < need(st - 1) + NO: O.append(oload(issued)); issued += 1
            if st == CHK - (4 if odd else 3):
                O.append('s_mov_b64 exec, 0xff\nbuffer_load_dword v9, v8, s[8:11], s100 offen sc1\ns_mov_b64 exec, -1'); vq.append('flag')
            if not odd and st == 14: O.append('ds_read_b32 v10, v29 offset:16'); lq.append('pf')
            rs = st + NB - 1 if odd else st + 2
            if NB <= rs <= 15:
                R = reads(rs); O += [R[2*i] + '\n' + R[2*i+1] for i in range(4)]; lq += [('w', rs)] * 8
            if odd and st in (9, 10): O += [f'ds_write_b128 v28, {vr(ACC+16+4*nt,4)} offset:{nt*1024}' for nt in (2*(st-9), 2*(st-9)+1)]; lq += ['pw'] * 2
            if not odd and st == 15: O += [f'ds_read_b128 {vr(PART+4*nt,4)}, v28 offset:{nt*1024}' for nt in range(4)]; lq += ['pr'] * 4
            interleave(A, M, O)
        stamp(A, cfg, 6)
        T = WF
        A('s_nop 7' if odd else 's_nop 3')
        for a in range(1 if odd else 2):
            if a:
                A('s_waitcnt lgkmcnt(6)')
                for i in range(16): A(f'v_add_f32 v{ACC+16+i}, v{ACC+16+i}, v{PART+i}')
            for nt in range(4):
                d = ACC + 16 * a + 4 * nt; p = T + 8 * a + 2 * nt
                cvt(A, p, d, d+1); cvt(A, p+1, d+2, d+3)
                A(f'ds_write_b64 v30, {vr(p,2)} offset:{a*16*144 + nt*32}')
            for n in (2*a, 2*a+1): A(f'ds_read_b128 {vr(T+16+4*n,4)}, v31 offset:{n*8*144}')
        N = 2 if odd else 4
        for n in range(N):
            A(f's_waitcnt lgkmcnt({(N-1-n) if (odd or n >= 2) else 7-n})')
            A(f'buffer_store_dwordx4 {vr(T+16+4*n,4)}, v32, s[44:47], s{48+n} offen{cfg.outflag}')
        A(f's_cmp_lg_u32 s99, 0\ns_cbranch_scc1 K_A_NOB{tag}\ns_barrier\nK_A_NOB{tag}:')
    A(';@PAD e\n;@PAGE e\nK_A_EVEN:')
    gemm2(0)
    stamp_store(A, cfg, 8)
    A('s_endpgm\n;@PAD o\n;@PAGE o\nK_A_ODD:')
    gemm2(1)
    stamp_store(A, cfg, 8)
    A('s_endpgm\n;@PAD c')

def a_consumer(A, cfg):
    AX, AW = 20, 28
    ST, MD, MP, BD, ONES = 32, 36, 40, 44, 46
    VX, V1, VS0 = 33, 34, 35
    FR, ACC = 48, 120
    A(f'v_mov_b32 v{VX}, s96\nv_mov_b32 v{V1}, 1\nv_mov_b32 v{VS0}, {OOB:#x}\nv_cmp_ne_u32 vcc, {256 if cfg.swap else 0}, v0\ns_nop 1\nv_cndmask_b32 v{VS0}, 0, v{VS0}, vcc')
    A('s_lshl_b32 s58, s59, 3\ns_add_u32 s58, s58, s29\ns_lshl_b32 s58, s58, 7')
    A('s_lshl_b32 s6, s29, 2\ns_add_u32 s6, s6, s3\ns_mul_i32 s6, s6, 3\ns_add_u32 s6, s6, s32\ns_lshl_b32 s6, s6, 1\ns_add_u32 s6, s6, s30\ns_lshl_b32 s60, s6, 10\nv_lshlrev_b32 v7, 4, v2')
    if cfg.xpf == 3: A(f's_mul_i32 s6, s4, {128*cfg.rotx}\nv_and_b32 v8, 0x1ff, v7\nv_add_u32 v8, s6, v8\nv_and_b32 v8, 0x3ff, v8\nv_lshrrev_b32 v9, 5, v2\nv_lshl_add_u32 v9, v9, 11, v8')
    if cfg.xprio: A('s_setprio 2')
    A('s_waitcnt lgkmcnt(0)')
    if cfg.xpf == 1:
        srd(A, 12, P_AX, 0x200000)
        for n in range(3): A(f's_add_u32 s7, s60, {n*2048}\nbuffer_load_dwordx4 v[244:247], v7, s[12:15], s7 offen')
    if cfg.xpf == 3:
        srd(A, 12, P_AX, 0x200000)
        A('buffer_load_dwordx4 v[244:247], v9, s[12:15], s60 offen\ns_add_u32 s7, s60, 4096\ns_mov_b32 exec_hi, 0\nbuffer_load_dwordx4 v[244:247], v9, s[12:15], s7 offen\ns_mov_b64 exec, -1')
    if cfg.c3:
        srd(A, 12, P_WQKV, 0x180000)
        A('s_lshl_b32 s7, s5, 2\ns_add_u32 s7, s7, s3\ns_lshl_b32 s7, s7, 14\nv_lshlrev_b32 v8, 10, v5\nv_lshl_add_u32 v8, v6, 4, v8')
        A('buffer_load_dwordx4 v[244:247], v8, s[12:15], s7 offen offset:384\ns_add_u32 s7, s7, 8192\nbuffer_load_dwordx4 v[244:247], v8, s[12:15], s7 offen offset:384')
    srd_off(A, 16, P_WS, WS_FLAG, FLAG_SIZE); srd_off(A, 8, P_WS, WS_O, O_SIZE)
    srd(A, 20, P_DBG, 256)
    A('s_cmp_lg_u32 s5, 0\ns_cbranch_scc1 K_A_NOCLR')
    A('v_mov_b32 v8, 0\nv_mov_b32 v9, 0\nv_mov_b32 v10, 0\nv_mov_b32 v11, 0\nv_lshlrev_b32 v7, 4, v2\ns_lshl_b32 s6, s4, 2\ns_add_u32 s6, s6, s3\ns_lshl_b32 s6, s6, 11')
    A('buffer_store_dwordx4 v[8:11], v7, s[16:19], s6 offen sc1\nbuffer_store_dwordx4 v[8:11], v7, s[16:19], s6 offen offset:1024 sc1\ns_nop 1')
    A('K_A_NOCLR:')
    A('s_lshl_b32 s35, s4, 2')
    A('v_lshrrev_b32 v7, 1, v3\nv_xor_b32 v7, v7, v4\nv_lshlrev_b32 v7, 4, v7\nv_lshl_add_u32 v7, v3, 7, v7')
    A('v_xor_b32 v8, 64, v7')
    for s in range(4):
        A(f'v_add_u32 v{AX+2*s}, {s*A1_SLOT}, v7\nv_add_u32 v{AX+2*s+1}, {s*A1_SLOT}, v8')
    A('v_bfe_u32 v7, v2, 2, 2')
    A('v_lshrrev_b32 v8, 1, v7\nv_and_b32 v9, 1, v4\nv_lshl_or_b32 v8, v9, 1, v8')
    A('v_xor_b32 v8, s3, v8\nv_lshlrev_b32 v8, 5, v8\nv_lshl_add_u32 v8, v7, 7, v8')
    A('v_and_b32 v9, 3, v2\nv_lshl_add_u32 v8, v9, 3, v8')
    A('v_mul_u32_u24 v9, 3072, v4\nv_add_u32 v8, v8, v9')
    for s in range(4): A(f'v_add_u32 v{AW+s}, {s*A1_SLOT+12288}, v8')
    A('v_lshlrev_b32 v7, 2, v4\nv_sub_u32 v7, v3, v7')
    A('v_mov_b32 v9, 0xf149f2ca')
    A('v_mov_b32 v10, 0xffff\nv_mov_b32 v11, 0xffff0000')
    for i in range(4):
        A(f'v_subrev_u32 v8, {i}, v7')
        A(f'v_cmp_le_u32 vcc, 8, v8\ns_nop 1\nv_cndmask_b32 v{MD+i}, 0, v9, vcc')
        A(f'v_cmp_lt_i32 vcc, -9, v8\ns_nop 1\nv_cndmask_b32 v{MP+i}, 0, v9, vcc')
        A(f'v_cmp_le_i32 vcc, 0, v8\ns_nop 1\nv_cndmask_b32 v{12+i}, 0, v{10+(i&1)}, vcc')
    A(f'v_or_b32 v{BD}, v12, v13\nv_or_b32 v{BD+1}, v14, v15')
    A(f'v_mov_b32 v{ONES}, 0x3f803f80\nv_mov_b32 v{ONES+1}, 0x3f803f80')
    A('s_lshl_b32 s6, s29, 2\ns_add_u32 s6, s6, s3\ns_lshl_b32 s6, s6, 9')
    A(f's_mul_i32 s7, s59, {6*16384}\ns_add_u32 s60, s6, s7\ns_add_u32 s61, s60, 0x8000\ns_add_u32 s62, s60, 0x10000')
    A('v_and_b32 v7, 1, v4\nv_lshlrev_b32 v7, 14, v7\nv_lshrrev_b32 v8, 1, v4\nv_lshl_add_u32 v7, v8, 8, v7')
    A(f'v_lshl_add_u32 v{ST}, v3, 4, v7')
    PKS = 24
    A(f'v_mov_b32 v17, {LDS_WORD}\ns_lshl_b32 s6, s3, 2\nv_mov_b32 v18, s6')
    A('s_mov_b32 s34, 0x3eb8aa3b\ns_mov_b32 s24, s34\ns_mov_b32 s25, s34')
    def reads(ks):
        c, h = divmod(ks, 2); s = c % 4; f = FR + 36 * (ks & 1); R = []
        def w(seg): return [f'ds_read_b64_tr_b16 {vr(f+24+4*seg+2*u,2)}, v{AW+s} offset:{h*12288+seg*1024+u*512}' for u in range(2)]
        R += w(0)
        R += [f'ds_read_b128 {vr(f+4*t,4)}, v{AX+2*s+h} offset:{t*2048}' for t in range(6)]
        R += w(1) + w(2)
        return R
    def mfmas(ks):
        f = FR + 36 * (ks & 1); M = []
        for seg in range(3):
            for t in range(6):
                d = ACC + 24 * seg + 4 * t; c = d
                if seg < 2: M.append(lambda d=d, a=f+24+4*seg, b=f+4*t, c=c: mfma32(A, d, a, b, c))
                else:       M.append(lambda d=d, a=f+4*t, b=f+24+4*seg, c=c: mfma32(A, d, a, b, c))
        return M
    for i in range(72): A(f'v_mov_b32 v{ACC+i}, 0')
    A(f's_mov_b32 s28, 0\ns_setprio {cfg.cprio}\ns_barrier')
    stamp(A, cfg, 1)
    for r in reads(0): A(r)
    A('K_A_ML:')
    for ks in list(range(8)) + [14, 15]:
        if ks == 6: A('s_cmp_lg_u32 s28, 0\ns_cbranch_scc1 K_A_MT')
        if ks == 14: A('s_mov_b32 s28, 1\ns_branch K_A_ML\nK_A_MT:')
        A('s_waitcnt lgkmcnt(0)')
        M = mfmas(ks)
        if ks == 15: interleave(A, M[:12], []); defer += M[12:]
        elif ks & 1:
            pre = cfg.pre
            for m in M[:pre]: m()
            if ks == cfg.cpage: A(';@PAGE c')
            A('s_barrier')
            interleave(A, M[pre:], reads(ks + 1), per_gap=2 if pre > 2 else 1)
        else:
            R = reads(ks + 1)
            if ks == 14: defer = M[12:]; M = M[:12]
            if ks == cfg.goks: R.append('s_waitcnt vmcnt(0)')
            if ks == cfg.goks + 2: R.append(f's_or_b32 s6, s5, s28\ns_cmp_lg_u32 s6, 0\ns_cbranch_scc1 K_A_NOGO\nbuffer_store_dword v{V1}, v{VS0}, s[20:23], s35 offen sc1\nK_A_NOGO:')
            interleave(A, M, R, per_gap=2 if ks == 14 else 1)
    stamp(A, cfg, 5 if cfg.kst else 2)
    QP, KP, VP, SD, SP, MX, PK, PO, OO, SM, OP = 192, 204, 240, 48, 72, 96, 108, 120, 144, 168, 192
    C = [f'v_cvt_pk_bf16_f32 v{QP+i}, v{ACC+2*i}, v{ACC+2*i+1}' for i in range(24)]
    for m in defer[:2]: m()
    interleave(A, defer[2:], C, per_gap=2)
    A(f'v_mov_b32 v{VP}, 0\nv_mov_b32 v{VP+1}, 0')
    M = []
    for t in range(6):
        M.append(lambda t=t: mfma16(A, SD+4*t, KP+2*t, QP+2*t, MD))
        if t: M.append(lambda t=t: mfma16(A, SP+4*t, KP+2*t-2, QP+2*t, MP))
    V = []
    for t in range(6):
        V.append(f'v_cvt_pk_bf16_f32 v{VP+2+2*t}, v{ACC+48+4*t}, v{ACC+48+4*t+1}')
        V.append(f'v_cvt_pk_bf16_f32 v{VP+3+2*t}, v{ACC+48+4*t+2}, v{ACC+48+4*t+3}')
    interleave(A, M, V)
    for t in range(6):
        if t:
            for i in range(4): A(f'v_max_f32 v{SD+4*t+i}, v{SD+4*t+i}, v{SP+4*t+i}')
        A(f'v_max3_f32 v{MX+t}, v{SD+4*t}, v{SD+4*t+1}, v{SD+4*t+2}')
        A(f'v_max_f32 v{MX+t}, v{MX+t}, v{SD+4*t+3}')
    A('s_nop 1')
    for u in range(3): A(f'v_permlane32_swap_b32 v{MX+2*u}, v{MX+2*u+1}')
    for u in range(3): A(f'v_max_f32 v{MX+2*u}, v{MX+2*u}, v{MX+2*u+1}')
    for u in range(3): A(f'v_mov_b32 v{MX+2*u+1}, v{MX+2*u}')
    A('s_nop 0')
    for u in range(3): A(f'v_permlane16_swap_b32 v{MX+2*u}, v{MX+2*u+1}')
    for u in range(3): A(f'v_max_f32 v{MX+2*u}, v{MX+2*u}, v{MX+2*u+1}')
    for u in range(3): A(f'v_mul_f32 v{MX+2*u}, s34, v{MX+2*u}')
    for u in range(3): A(f'v_mov_b32 v{MX+2*u+1}, v{MX+2*u}')
    A('s_nop 0')
    for u in range(3): A(f'v_permlane32_swap_b32 v{MX+2*u}, v{MX+2*u+1}')
    for t in range(6):
        if cfg.pk:
            for i in (0, 2): A(f'v_pk_fma_f32 {vr(SD+4*t+i,2)}, {vr(SD+4*t+i,2)}, s[{PKS}:{PKS+1}], {vr(MX+(t&~1),2)} op_sel:[0,0,{t&1}] op_sel_hi:[1,1,{t&1}] neg_lo:[0,0,1] neg_hi:[0,0,1]')
        else:
            for i in range(4): A(f'v_fma_f32 v{SD+4*t+i}, v{SD+4*t+i}, s34, -v{MX+t}')
    for t in range(6):
        for i in range(4): A(f'v_exp_f32 v{SD+4*t+i}, v{SD+4*t+i}')
    if cfg.wf: A('ds_read_b32 v19, v17 offset:24')
    for t in range(6):
        cvt(A, PK+2*t, SD+4*t, SD+4*t+1); cvt(A, PK+2*t+1, SD+4*t+2, SD+4*t+3)
    for t in range(6):
        A(f'v_and_b32 v{PO+4*t+2}, v{PK+2*t}, v{BD}\nv_and_b32 v{PO+4*t+3}, v{PK+2*t+1}, v{BD+1}')
        A(f'v_xor_b32 v{PO+4*t}, v{PK+2*t}, v{PO+4*t+2}\nv_xor_b32 v{PO+4*t+1}, v{PK+2*t+1}, v{PO+4*t+3}')
        mfma16(A, SM+4*t, ONES, PK+2*t, None)
    A('s_nop 0')
    for t in range(6): mfma32(A, OO+4*t, VP+2*t, PO+4*t, None)
    A('s_nop 1')
    for t in range(6): A(f'v_rcp_f32 v{MX+t}, v{SM+4*t}')
    if cfg.wf: A('K_A_CW:\ns_waitcnt lgkmcnt(0)\nv_cmp_eq_u32 vcc, 1, v19\ns_cmp_lg_u64 vcc, 0\ns_cbranch_scc1 K_A_CWX\nds_read_b32 v19, v17 offset:24\ns_branch K_A_CW\nK_A_CWX:')
    if cfg.lw8 == 2: A(f's_mov_b64 exec, 1\nds_add_u32 v17, v{V1} offset:8\ns_mov_b64 exec, -1')
    A('s_nop 1')
    for u in range(3):
        for t in (2*u, 2*u+1):
            if cfg.pk:
                for i in (0, 2): A(f'v_pk_mul_f32 {vr(OO+4*t+i,2)}, {vr(OO+4*t+i,2)}, {vr(MX+(t&~1),2)} op_sel:[0,{t&1}] op_sel_hi:[1,{t&1}]')
            else:
                for i in range(4): A(f'v_mul_f32 v{OO+4*t+i}, v{OO+4*t+i}, v{MX+t}')
        for t in (2*u, 2*u+1):
            cvt(A, OP+2*t, OO+4*t, OO+4*t+1); cvt(A, OP+2*t+1, OO+4*t+2, OO+4*t+3)
        A('s_nop 1')
        A(f'v_permlane16_swap_b32 v{OP+4*u}, v{OP+4*u+2}\nv_permlane16_swap_b32 v{OP+4*u+1}, v{OP+4*u+3}')
        A(f'buffer_store_dwordx4 {vr(OP+4*u,4)}, v{ST}, s[8:11], s{60+u} offen')
    if cfg.lw8 == 1: A(f's_mov_b64 exec, 1\nds_add_u32 v17, v{V1} offset:8\ns_mov_b64 exec, -1')
    if not cfg.kst: stamp(A, cfg, 3)
    A('s_waitcnt vmcnt(0)')
    if not cfg.kst: stamp(A, cfg, 4)
    if cfg.wf:
        A(f's_mov_b64 exec, 1\nbuffer_store_dword v{VX}, v18, s[16:19], s58 offen')
    else:
        A(f'v_mov_b32 v7, {LDS_WORD}\ns_mov_b64 exec, 1\nds_add_rtn_u32 v8, v7, v{V1} offset:12\nds_read_b32 v9, v7 offset:24\nv_mov_b32 v10, 0\ns_waitcnt lgkmcnt(0)')
        A('v_cmp_ne_u32 vcc, 3, v8\ns_cmp_lg_u64 vcc, 0\ns_cbranch_scc1 K_A_NOSIG')
        A('K_A_CW:\nv_cmp_eq_u32 vcc, 1, v9\ns_cmp_lg_u64 vcc, 0\ns_cbranch_scc1 K_A_SIG\nds_read_b32 v9, v7 offset:24\ns_waitcnt lgkmcnt(0)\ns_branch K_A_CW')
        A(f'K_A_SIG:\nbuffer_store_dword v{VX}, v10, s[16:19], s58 offen')
        if cfg.wb == 1: A('s_waitcnt vmcnt(0)\nbuffer_wbl2 sc1')
    A('K_A_NOSIG:\ns_mov_b64 exec, -1\ns_setprio 0')
    if cfg.st0:
        srd_off(A, 24, P_WS, WS_DIAG, 0x100000)
        A('s_lshl_b32 s6, s2, 2\ns_add_u32 s6, s6, s3\ns_lshl_b32 s6, s6, 2\nv_mov_b32 v8, s64\nv_mov_b32 v7, 0\ns_mov_b64 exec, 1\nbuffer_store_dword v8, v7, s[24:27], s6 offen sc1\ns_mov_b64 exec, -1')
    if not cfg.kst: stamp(A, cfg, 5)
    A(f'v_mov_b32 v7, {LDS_WORD}\ns_barrier\nds_read_b32 v8, v7\ns_waitcnt lgkmcnt(0)\nv_readfirstlane_b32 s6, v8\ns_cmp_eq_u32 s6, 0\ns_cbranch_scc1 ' + ('K_A_CLEAN' if cfg.clean else 'K_A_CDONE'))
    for u in range(3): A(f'buffer_store_dwordx4 {vr(OP+4*u,4)}, v{ST}, s[8:11], s{60+u} offen sc1')
    A(f'v_cmp_eq_u32 vcc, 0, v2\ns_and_saveexec_b64 s[6:7], vcc\ns_waitcnt vmcnt(0)\nds_add_rtn_u32 v8, v7, v{V1} offset:4\ns_waitcnt lgkmcnt(0)')
    A(f'v_readfirstlane_b32 s28, v8\ns_cmp_lg_u32 s28, 3\ns_cbranch_scc1 K_A_CDONE')
    A(f's_add_u32 s58, s58, {GFLAG}\nv_mov_b32 v7, 0\nbuffer_store_dword v{V1}, v7, s[16:19], s58 offen sc1')
    if cfg.clean:
        A('s_branch K_A_CDONE\nK_A_CLEAN:')
        for u in range(3): A(f'buffer_store_dwordx4 {vr(OP+4*u,4)}, v{ST}, s[8:11], s{60+u} offen sc1')
    A('K_A_CDONE:')
    A('s_mov_b64 exec, -1')
    stamp_store(A, cfg, 7)
    A('s_endpgm')

def bstamp(A, cfg, slot, mode):
    if cfg.bst == mode: stamp(A, cfg, slot)

def b_all(A, cfg):
    G, F, M = 32, 38, 44
    X1, MAT, PITCH = 65536, 98304, 272
    A('s_and_b32 s5, s5, 7')
    A('s_lshl_b32 s29, s4, 2\ns_lshr_b32 s6, s5, 1\ns_add_u32 s29, s29, s6')
    A('v_lshlrev_b32 v36, 4, v2\ns_lshr_b32 s32, s3, 1\ns_and_b32 s33, s3, 1\ns_lshl_b32 s35, s3, 13')
    A('v_mov_b32 v14, 0\nv_mov_b32 v15, 1\nv_lshlrev_b32 v16, 7, v2')
    def early(tag=''):
        A('s_and_b32 s30, s5, 1\ns_lshl_b32 s30, s30, 2\ns_add_u32 s58, s30, s32')
        A('s_and_b32 s6, s5, 4\ns_lshl_b32 s31, s6, 1\ns_lshl_b32 s96, s6, 8\ns_cmp_eq_u32 s4, 0\ns_cselect_b32 s31, s31, s4\ns_cselect_b32 s96, 0, s96\ns_add_u32 s96, s96, s31')
        A('v_lshrrev_b32 v7, 2, v2\nv_and_b32 v8, 3, v2\nv_lshlrev_b32 v7, 6, v7\nv_lshl_add_u32 v7, v8, 3, v7\nv_and_b32 v8, 1, v4\nv_lshl_add_u32 v7, v8, 5, v7\nv_add_u32 v17, s35, v7\nv_xor_b32 v26, 32, v17')
        A('v_bfe_u32 v7, v2, 3, 1\nv_lshl_add_u32 v7, v7, 2, v4\nv_xor_b32 v7, v7, v6\nv_lshlrev_b32 v7, 4, v7\nv_lshl_add_u32 v18, v6, 12, v7')
        A(f's_lshl_b32 s6, s3, 9\ns_add_u32 s6, s6, {X1}\nv_add_u32 v18, s6, v18\ns_mul_i32 s6, s33, 48\nv_xor_b32 v18, s6, v18\nv_xor_b32 v27, 32, v18')
        A('v_bfe_u32 v8, v2, 3, 1\nv_mul_u32_u24 v8, 3, v8\nv_and_b32 v9, 4, v2\nv_lshrrev_b32 v9, 1, v9\nv_xor_b32 v8, v8, v9\nv_xor_b32 v8, v8, v4')
        A(f'v_lshlrev_b32 v7, 6, v3\nv_lshl_add_u32 v7, v8, 4, v7\ns_lshl_b32 s6, s32, 5\nv_xor_b32 v7, s6, v7\ns_lshl_b32 s6, s32, 13\ns_add_u32 s6, s6, {X1}\nv_add_u32 v19, s6, v7\nv_xor_b32 v20, 16, v19')
        A(f's_mov_b32 s6, {4*ZCLS}\nv_mul_lo_u32 v7, v4, s6\nv_lshl_add_u32 v22, v3, 4, v7')
        A(f's_mul_i32 s101, s29, {ZSIG}\ns_lshl_b32 s6, s33, 8\ns_add_u32 s101, s101, s6\ns_lshl_b32 s6, s58, 9\ns_add_u32 s101, s101, s6')
        A('s_lshl_b32 s6, s30, 1\nv_add_u32 v9, s6, v6')
        A('v_cmp_eq_u32 vcc, 1, v9\nv_mov_b32 v23, 16\nv_cvt_f32_u32 v25, v3\nv_cndmask_b32 v9, v9, v23, vcc')
        A('v_lshrrev_b32 v7, 1, v9\nv_and_b32 v8, 1, v9\nv_cvt_f32_u32 v7, v7\nv_cvt_f32_u32 v8, v8\nv_cvt_f32_u32 v9, v4')
        A('v_mul_f32 v7, 0x3d800000, v7\nv_mul_f32 v25, 0x3d800000, v25\nv_mul_f32 v9, 4.0, v9\nv_mul_f32 v24, 0x3e800000, v8\nv_fmac_f32 v24, v7, v9\nv_mul_f32 v23, v25, v9')
        for i in range(4):
            A(f'v_cos_f32 v{96+i}, v24\nv_cos_f32 v{100+i}, v23\nv_sin_f32 v{104+i}, v23')
            if i < 3: A('v_add_f32 v24, v24, v7\nv_add_f32 v23, v23, v25')
        A('v_cmp_lt_u32 vcc, 7, v3')
        cvt(A, 24, 96, 97); cvt(A, 25, 98, 99)
        A(f'v_cndmask_b32 v{G}, v24, v14, vcc\nv_cndmask_b32 v{G+1}, v25, v14, vcc\nv_cndmask_b32 v{G+2}, v14, v24, vcc\nv_cndmask_b32 v{G+3}, v14, v25, vcc')
        for q in range(4): cvt(A, F+q, 100+2*q, 101+2*q)
        A(f'v_xor_b32 v{F+4}, 0x80008000, v{F}\nv_xor_b32 v{F+5}, 0x80008000, v{F+1}')
        def gen_m(dst, extra):
            A(f's_lshl_b32 s6, s33, 8\ns_add_u32 s6, s6, s58\ns_add_u32 s6, s6, {extra}\nv_lshl_add_u32 v7, v3, 4, s6\nv_cvt_f32_u32 v7, v7\nv_mul_f32 v7, 0xbb000000, v7')
            A('v_lshlrev_b32 v8, 2, v4\nv_cvt_f32_u32 v8, v8\nv_mul_f32 v8, v7, v8\nv_mul_f32 v9, 0x41500000, v7')
            for i in range(8):
                A(f'v_cos_f32 v{96+i}, v8\nv_sin_f32 v{104+i}, v8')
                if i < 7: A(f'v_add_f32 v8, v8, v{9 if i == 3 else 7}')
            A('s_nop 0')
            for q in range(8): cvt(A, dst+q, 96+2*q, 97+2*q)
        gen_m(M, 0)
        for i in range(4): A(f'v_xor_b32 v{M+8+i}, 0x80008000, v{M+4+i}')
        A('s_cmp_lg_u32 s58, 0\ns_cbranch_scc1 K_B_NOM8' + tag)
        gen_m(M + 8, 8)
        A('K_B_NOM8' + tag + ':')
    def gen_init():
        A('s_sub_u32 s6, s3, 4\ns_lshl_b32 s6, s6, 8\ns_add_u32 s6, s6, s96\nv_lshl_add_u32 v7, v3, 4, s6\nv_cvt_f32_u32 v7, v7\nv_mul_f32 v240, 0xba000000, v7\nv_mul_f32 v241, 0x41500000, v240')
        A('s_and_b32 s6, s5, 4\ns_lshl_b32 s6, s6, 4\nv_lshl_add_u32 v8, v4, 2, s6\nv_cvt_f32_u32 v242, v8')
        A(f's_lshl_b32 s6, s3, 13\ns_add_u32 s6, s6, {MAT - 32768}\nv_add_u32 v243, s6, v36')
    def gen_mat(label, n):
        if n == 0: return
        A(f's_mov_b32 s7, 0\ns_mov_b32 s6, 0x43000000\n{label}:')
        A('v_mul_f32 v9, v240, v242')
        for half in range(2):
            b = 96 + 8 * half
            for i in range(4):
                A(f'v_cos_f32 v{b+i}, v9\nv_sin_f32 v{b+4+i}, v9' + (f'\nv_add_f32 v9, v9, v{240 if i < 3 else 241}' if (i < 3 or half == 0) else ''))
        A('v_add_f32 v242, 0x42000000, v242')
        for half in range(2):
            for q in range(4): cvt(A, 112+4*half+q, 96+8*half+2*q, 97+8*half+2*q)
            A(f'ds_write_b128 v243, {vr(112+4*half,4)} offset:{half*1024}')
        A(f'v_cmp_le_f32 vcc, s6, v242\nv_add_u32 v243, 2048, v243\nv_subrev_f32 v9, s6, v242\ns_add_u32 s7, s7, 1\nv_cndmask_b32 v242, v242, v9, vcc\ns_cmp_lt_u32 s7, {n}\ns_cbranch_scc1 {label}')
    if cfg.bfirst: early()
    A('s_cmp_ge_u32 s3, 4\ns_cbranch_scc1 K_B_GEN')
    A('s_and_b32 s97, s5, 1\ns_lshl_b32 s97, s97, 2\ns_add_u32 s97, s97, s3\nv_and_b32 v37, 1, v4\nv_lshlrev_b32 v37, 5, v37\nv_xor_b32 v37, v37, v36')
    if cfg.smap: A('s_lshr_b32 s7, s97, 1\ns_lshl_b32 s7, s7, 5\ns_add_u32 s6, s29, s7\ns_lshl_b32 s7, s33, 10\ns_add_u32 s6, s6, s7\ns_lshl_b32 s34, s6, 10\ns_lshl_b32 s97, s97, 13')
    else: A('s_lshl_b32 s6, s29, 2\ns_lshr_b32 s7, s97, 1\ns_add_u32 s6, s6, s7\ns_lshl_b32 s7, s33, 10\ns_add_u32 s6, s6, s7\ns_lshl_b32 s34, s6, 10\ns_lshl_b32 s97, s97, 13')
    if cfg.cpf == 1:
        A(f's_getpc_b64 s[8:9]\nK_B_PC:\ns_sub_u32 s8, s8, K_B_PC-{NAME}_kernel\ns_subb_u32 s9, s9, 0\ns_mov_b32 s10, K_END-{NAME}_kernel\ns_mov_b32 s11, 0x20000')
        A('s_lshl_b32 s6, s3, 3\ns_add_u32 s6, s6, s5\ns_lshl_b32 s6, s6, 10\nbuffer_load_dwordx4 v[244:247], v36, s[8:11], s6 offen')
    if cfg.help:
        A('s_lshl_b32 s6, s5, 2\ns_add_u32 s6, s6, s3\ns_mul_i32 s28, s6, 9')
        A('s_lshl_b32 s100, s4, 5\ns_add_u32 s100, s100, s6\ns_mul_i32 s100, s100, 768')
    A('s_mov_b32 s7, 0\ns_waitcnt lgkmcnt(0)')
    srd(A, 20, P_BX, 0x200000)
    stamp(A, cfg, 1)
    if cfg.help:
        srd(A, 8, P_AX, 0x200000); srd(A, 12, P_WQKV, 0x180000)
        A('v_cmp_gt_u32 vcc, 48, v2\nv_mov_b32 v10, 0x80000000\ns_mul_i32 s59, s4, 3\nv_cndmask_b32 v10, v10, v36, vcc')
        for n in range(9):
            A(f's_add_u32 s6, s28, {n}\ns_mul_i32 s58, s6, 683\ns_lshr_b32 s58, s58, 16\ns_mul_i32 s30, s58, 96\ns_sub_u32 s6, s6, s30\ns_add_u32 s58, s58, s59')
            A('s_lshr_b32 s30, s58, 1\ns_mul_i32 s30, s30, 88\ns_add_u32 s6, s6, s30\ns_lshl_b32 s6, s6, 1\ns_and_b32 s58, s58, 1\ns_add_u32 s6, s6, s58\ns_lshl_b32 s6, s6, 10')
            A('buffer_load_dwordx4 v[244:247], v36, s[8:11], s6 offen')
            if cfg.help > 1 and 1 <= n <= 7: A(f's_add_u32 s6, s100, {n*196608}\nbuffer_load_dwordx4 v[244:247], v10, s[12:15], s6 offen')
    def c3b(m0, m1):
        if m0 == 0 and m1 > 0:
            srd(A, 12, P_WQKV, 0x180000)
            A(f's_lshl_b32 s59, s5, 2\ns_add_u32 s59, s59, s3\ns_lshl_b32 s59, s59, 13\ns_mul_i32 s28, s4, {cfg.rotx}\ns_add_u32 s28, s28, {cfg.rot0}\ns_and_b32 s28, s28, 7\ns_mul_i32 s28, s28, 196608\ns_add_u32 s59, s59, s28')
            A('v_lshlrev_b32 v10, 10, v5\nv_lshl_add_u32 v10, v6, 4, v10')
        for m in range(m0, m1):
            A('s_sub_u32 s28, s59, 0x180000\ns_cselect_b32 s59, s59, s28')
            A('buffer_load_dwordx4 v[244:247], v10, s[12:15], s59 offen offset:384\ns_add_u32 s59, s59, 0x40000')
    c3b(0, cfg.c3a)
    def xblock(n0, n1):
        for n in range(n0, n1):
            if n == 8: A(f's_xor_b32 s34, s34, {65536 if cfg.smap else 2048}\ns_xor_b32 s97, s97, 0x8000')
            A(f's_add_u32 m0, s97, {(n&7)*1024}\ns_add_u32 s6, s34, {(n&7)*131072}')
            A('buffer_load_dwordx4 v37, s[20:23], s6 offen lds')
    xblock(0, cfg.xs)
    if cfg.xs < 16:
        A('K_B_GEN:')
        early()
        A('s_cmp_ge_u32 s3, 4\ns_cbranch_scc1 K_B_GEN2')
        xblock(cfg.xs, 16)
    late = 0
    c3b(cfg.c3a, cfg.c3n); late += cfg.c3n - cfg.c3a
    if cfg.xpf == 3:
        srd(A, 12, P_AX, 0x200000)
        A(f's_mul_i32 s6, s4, {128*cfg.rotx}\ns_add_u32 s6, s6, 512\nv_and_b32 v11, 0x1ff, v36\nv_add_u32 v11, s6, v11\nv_and_b32 v11, 0x3ff, v11')
        A('s_lshl_b32 s6, s5, 2\ns_add_u32 s6, s6, s3\ns_mul_i32 s6, s6, 9\nv_lshrrev_b32 v12, 5, v2\nv_add_u32 v12, s6, v12\ns_mul_i32 s6, s4, 3')
        for n in range(5):
            A('v_mul_u32_u24 v8, 683, v12\nv_lshrrev_b32 v8, 16, v8\nv_mul_u32_u24 v9, 96, v8\nv_sub_u32 v7, v12, v9')
            A('v_add_u32 v8, s6, v8\nv_lshrrev_b32 v9, 1, v8\nv_mul_u32_u24 v9, 88, v9\nv_add_u32 v7, v7, v9\nv_and_b32 v8, 1, v8\nv_lshl_add_u32 v7, v7, 1, v8')
            A('v_lshl_add_u32 v7, v7, 10, v11\nv_add_u32 v12, 2, v12\nbuffer_load_dwordx4 v[244:247], v7, s[12:15], 0 offen')
        late += 5
    if cfg.womall:
        srd(A, 12, P_WO, 0x80000)
        A('s_lshl_b32 s28, s4, 3\ns_add_u32 s28, s28, s5\ns_lshl_b32 s28, s28, 2\ns_add_u32 s28, s28, s3\ns_lshl_b32 s28, s28, 11')
        A('buffer_load_dwordx4 v[244:247], v36, s[12:15], s28 offen\nbuffer_load_dwordx4 v[244:247], v36, s[12:15], s28 offen offset:1024'); late += 2
    if cfg.xs < 16: A('K_B_GEN2:')
    else:
        A('K_B_GEN:')
        if not cfg.bfirst: early()
    A(f's_waitcnt vmcnt({late})\ns_cmp_lt_u32 s3, 4\ns_cbranch_scc1 K_B_XOK')
    gen_init(); gen_mat('K_B_GL1', cfg.gsplit)
    stamp(A, cfg, 1)
    A('K_B_XOK:')
    A('s_waitcnt lgkmcnt(0)')
    srd_off(A, 8, P_WS, WS_Z, Z_SIZE); srd(A, 12, P_OUT, 0x400000); srd_off(A, 60, P_WS, WS_FLAG, FLAG_SIZE); srd(A, 16, P_DBG, 256); srd(A, 20, P_WO, 0x80000)
    A('s_lshl_b32 s28, s5, 3\ns_add_u32 s28, s28, s3\ns_lshl_b32 s28, s28, 13\ns_add_u32 s97, s28, 4096')
    def wopf(r):
        if cfg.wopf:
            for n in range(4): A(f'buffer_load_dwordx4 v[244:247], v36, s[20:23], s{r} offen offset:{n*1024}')
    A('s_barrier')
    stamp(A, cfg, 2)
    if cfg.bprio == 1: A('s_cmp_lt_u32 s3, 4\ns_cbranch_scc1 K_B_NP\ns_setprio 1\nK_B_NP:')
    DA, DD = 64, 96
    for p in range(4):
        for h in range(2):
            for rb in range(2): A(f'ds_read_b64_tr_b16 {vr(DA+8*p+4*h+2*rb,2)}, v{26 if h else 17} offset:{(2*p+rb)*1024}')
    wopf(28)
    def pwb():
        srd_off(A, 24, P_WS, WS_O, O_SIZE)
        A(f's_lshl_b32 s6, s4, 3\ns_add_u32 s6, s6, s5\ns_lshl_b32 s6, s6, 3\ns_add_u32 s6, s6, s3\ns_mul_i32 s6, s6, {36*128}\ns_mov_b32 exec_hi, 15')
        A('buffer_load_dword v31, v16, s[24:27], s6 offen sc1\ns_mov_b64 exec, -1')
    if cfg.pwb == 1: pwb()
    PA = 128
    def pk_a(p): return [f'v_cvt_pk_bf16_f32 v{PA+4*p+q}, v{DD+8*p+2*q}, v{DD+8*p+2*q+1}' for q in range(4)] + [f'ds_write_b128 v{27 if p >= 2 else 18}, {vr(PA+4*p,4)} offset:{p*128}']
    for i in range(8):
        A(f's_waitcnt lgkmcnt({14 - 2*i})')
        mfma32(A, DD+4*i, DA+4*i, G, None)
        if i >= 6:
            for x in pk_a(0)[2*(i-6):2*(i-6)+2]: A(x)
    bstamp(A, cfg, 3, 1)
    for x in pk_a(0)[4:] + pk_a(1) + pk_a(2) + pk_a(3): A(x)
    A('s_waitcnt lgkmcnt(0)')
    bstamp(A, cfg, 4, 1)
    A('s_barrier')
    bstamp(A, cfg, 5, 1)
    XF, U, BO, Z, PK = 64, 96, 160, 192, 224
    for sp in range(4):
        for h in range(2): A(f'ds_read_b128 {vr(XF+16*h+4*sp,4)}, v{19+h} offset:{h*4096+sp*1024}')
    wopf(97)
    def cv_u(u, bo, sp): return [f'v_cvt_pk_bf16_f32 v{bo+4*sp+q}, v{u+8*sp+2*q}, v{u+8*sp+2*q+1}' for q in range(4)]
    def mf_c(z, bo, sp): return [lambda part=part: mfma32(A, z+16*part+4*sp, F+2*part, bo+4*sp, None) for part in range(2)]
    def cv_z(z, pk, q): return [f'v_cvt_pk_bf16_f32 v{pk+4*i+2*part+q}, v{z+16*part+8*q+i}, v{z+16*part+8*q+4+i}' for i in range(4) for part in range(2)]
    def fin(z, pk, off):
        c = cv_z(z, pk, 1)
        for i in range(4):
            A(c[2*i]); A(c[2*i+1]); A(f's_add_u32 s7, s101, {i*ZCLS + off}\nbuffer_store_dwordx4 {vr(pk+4*i,4)}, v22, s[8:11], s7 offen sc1')
    A('s_cmp_eq_u32 s58, 0\ns_cbranch_scc1 K_B_W0')
    def mf_b(sp): return [lambda: mfma32(A, U+8*sp, XF+4*sp, M, None), lambda: mfma32(A, U+8*sp+4, XF+4*sp, M+4, None),
                          lambda: mfma32(A, U+8*sp, XF+16+4*sp, M+8, U+8*sp), lambda: mfma32(A, U+8*sp+4, XF+16+4*sp, M, U+8*sp+4)]
    for sp in range(4):
        A(f's_waitcnt lgkmcnt({6 - 2*sp})')
        interleave(A, mf_b(sp), cv_u(U, BO, sp - 3) + cv_u(U, BO, 1) if sp == 3 else [], per_gap=2)
    interleave(A, mf_c(Z, BO, 0) + mf_c(Z, BO, 1), cv_u(U, BO, 2) + ['s_nop 0'] + cv_u(U, BO, 3), per_gap=2)
    A('s_nop 0')
    interleave(A, mf_c(Z, BO, 2) + mf_c(Z, BO, 3), [])
    A('s_nop 1')
    for x in cv_z(Z, PK, 0): A(x)
    fin(Z, PK, 0)
    A('s_branch K_B_SIG')
    A('K_B_W0:')
    Z2, PK2 = 64, 96
    def mf_r(h, sp): return [lambda: mfma32(A, U+32*h+8*sp, XF+16*h+4*sp, M+8*h, None), lambda: mfma32(A, U+32*h+8*sp+4, XF+16*h+4*sp, M+8*h+4, None)]
    for sp in range(4):
        A(f's_waitcnt lgkmcnt({7 - 2*sp})')
        for m in mf_r(0, sp): m()
    A('s_waitcnt lgkmcnt(0)')
    interleave(A, sum((mf_r(1, sp) for sp in range(4)), []), sum((cv_u(U, BO, sp) for sp in range(4)), []), per_gap=2)
    interleave(A, sum((mf_c(Z, BO, sp) for sp in range(4)), []), sum((cv_u(U+32, BO+16, sp) for sp in range(4)), []), per_gap=2)
    interleave(A, sum((mf_c(Z2, BO+16, sp) for sp in range(4)), []), cv_z(Z, PK, 0), per_gap=1)
    fin(Z, PK, 0)
    for x in cv_z(Z2, PK2, 0): A(x)
    fin(Z2, PK2, 8*512)
    A('K_B_SIG:\n;@PAGE b')
    bstamp(A, cfg, 6, 1)
    bstamp(A, cfg, 3, 0)
    if cfg.pwb == 2: pwb()
    AM, SW, ZF, MF, ACC, T = 23, 24, 160, 32, 224, 32
    A('s_and_b32 s30, s5, 3')
    A(f'v_mul_u32_u24 v7, {PITCH}, v4\nv_lshl_add_u32 v12, v3, 4, v7\ns_mul_i32 s7, s3, {8*PITCH}\nv_add_u32 v12, s7, v12\nv_lshlrev_b32 v7, 15, v4\nv_lshl_add_u32 v13, v3, 4, v7\nv_xor_b32 v17, {3*32768}, v13\nv_lshlrev_b32 v7, 5, v3\nv_sub_u32 v19, v12, v7\nv_add_u32 v19, 240, v19')
    A('s_lshl_b32 s6, s96, 11\ns_lshl_b32 s7, s30, 8\ns_add_u32 s6, s6, s7\ns_lshl_b32 s7, s3, 18\ns_add_u32 s6, s6, s7\ns_add_u32 s34, s6, 1024')
    A(f's_sub_u32 s97, {2048*2048 - 3*32768 + 1024 + 768}, s6\nv_add_u32 v{AM}, {MAT}, v36\nv_mov_b32 v18, 0xffff')
    A(f's_and_b32 s33, s5, 4\ns_mul_i32 s33, s33, {4*ZSIG}')
    A('s_cmp_ge_u32 s3, 4\ns_cbranch_scc1 K_B_AUX')
    A(f'v_lshrrev_b32 v8, 1, v4\nv_and_b32 v9, 1, v4')
    A('s_sub_u32 s6, 16, s31\ns_and_b32 s6, s6, 15\ns_lshl_b32 s7, s3, 2\ns_sub_u32 s28, 13, s7\ns_sub_u32 s35, 3, s30')
    A('s_cmp_ge_u32 s3, 2\ns_cselect_b32 s6, s6, s31\ns_cselect_b32 s7, s28, s7\ns_cselect_b32 s35, s35, s30\ns_cselect_b32 s58, 0x80008000, 0\ns_cselect_b32 s28, 3, 0\ns_cselect_b32 s29, 7, 0')
    A(f's_mul_i32 s6, s6, {ZCLS}\ns_lshl_b32 s7, s7, 9\ns_add_u32 s6, s6, s7\ns_lshl_b32 s35, s35, 7\ns_add_u32 s35, s35, s6')
    A(f'v_mul_u32_u24 v7, {ZSIG}, v4\nv_lshl_add_u32 v7, v6, 4, v7\nv_bfe_u32 v10, v2, 3, 1\nv_lshlrev_b32 v10, 1, v10\nv_xor_b32 v10, s28, v10\nv_xor_b32 v11, 1, v10')
    A('v_lshl_add_u32 v10, v10, 9, v7\nv_lshl_add_u32 v11, v11, 9, v7')
    A(f'v_mul_u32_u24 v7, {PITCH}, v3\nv_lshl_add_u32 v7, v8, 2, v7\ns_lshl_b32 s6, s3, 3\nv_add_u32 v7, s6, v7\nv_lshlrev_b32 v9, 2, v9\nv_xor_b32 v9, s29, v9')
    for i in range(4): A(f'v_xor_b32 v8, {i}, v9\nv_lshl_add_u32 v{SW+i}, v8, 5, v7')
    A('v_mov_b32 v20, v10\nv_mov_b32 v21, v11\ns_sub_u32 s100, s35, s33\ns_add_u32 s35, s35, s33')
    A('s_cmp_lg_u32 s3, 2\ns_cbranch_scc1 K_B_RDY_X\nv_lshlrev_b32 v7, 2, v6')
    poll(A, 'K_B_RDY', 9, 7, 16, 0, 1)
    A('s_waitcnt vmcnt(0)')
    bstamp(A, cfg, 4, 0)
    A('s_barrier')
    A('s_cmp_lg_u32 s3, 3\ns_cbranch_scc1 K_B_NOSIG')
    A(f's_lshl_b32 s6, s4, 3\ns_add_u32 s6, s6, s5\ns_lshl_b32 s6, s6, 7\ns_add_u32 s6, s6, {BFLAG}')
    A('s_mov_b64 exec, 1\nbuffer_store_dword v15, v14, s[60:63], s6 offen sc1\ns_mov_b64 exec, -1')
    A('K_B_NOSIG:')
    if cfg.pwb == 3: pwb()
    for k in range(8):
        for tt in range(4): A(f'ds_read_b128 {vr(MF+16*k+4*tt,4)}, v{AM} offset:{tt*8192 + k*1024}')
    A(f's_cmp_lg_u32 s3, 3\ns_cbranch_scc1 K_B_POLL_X\ns_mov_b32 s7, {BFLAG}')
    poll(A, 'K_B_POLL', 9, 16, 60, 's7', 1)
    A('s_barrier')
    bstamp(A, cfg, 5, 0)
    for k in range(8):
        A(f's_add_u32 s7, s{35 if k < 4 else 100}, {k*4*ZSIG}')
        for a in range(2): A(f'buffer_load_dwordx4 {vr(ZF+8*k+4*a,4)}, v{20+a}, s[8:11], s7 offen sc1')
    for k in range(8):
        A(f's_waitcnt vmcnt({14-2*k}) lgkmcnt(0)')
        for a in range(2): A(f'v_xor_b32 v{ZF+8*k+4*a+2}, s58, v{ZF+8*k+4*a+2}\nv_xor_b32 v{ZF+8*k+4*a+3}, s58, v{ZF+8*k+4*a+3}')
        for a in range(2):
            for tt in range(4): mfma32(A, ACC+8*tt+4*a, ZF+8*k+4*a, MF+16*k+4*tt, ACC+8*tt+4*a if k else None)
    bstamp(A, cfg, 6, 0)
    A('s_cmp_lg_u32 s96, 0\ns_cbranch_scc1 K_B_NOX')
    A('v_mov_b32 v64, 0xbf803f80\nv_mov_b32 v65, 0xbf803f80\nv_mov_b32 v66, 0\nv_mov_b32 v67, 0\ns_nop 1')
    for k in range(8):
        for a in range(2): mfma32(A, 68+4*a, ZF+8*k+4*a, 64, 68+4*a if k else None)
    A('s_nop 7')
    for i in range(4):
        cvt(A, 76+i, 68+i, 72+i); A(f'ds_write_b32 v{SW+i}, v{76+i} offset:{64*PITCH}')
    A('K_B_NOX:\ns_nop 2')
    for tt in range(4):
        for i in range(4):
            cvt(A, T+4*tt+i, ACC+8*tt+i, ACC+8*tt+4+i); A(f'ds_write_b32 v{SW+i}, v{T+4*tt+i} offset:{tt*16*PITCH}')
    A('s_branch K_B_FIN')
    A('K_B_AUX:')
    gen_mat('K_B_GL2', 4 - cfg.gsplit)
    A(f's_sub_u32 s6, s3, 4\ns_lshl_b32 s7, s6, 13\nv_add_u32 v7, s7, v{AM}\ns_mul_i32 s6, s6, {16*PITCH}\nv_mul_u32_u24 v8, {PITCH}, v3\nv_add_u32 v8, s6, v8\nv_mul_u32_u24 v20, {ZSIG}, v4')
    for k in range(8): A(f'ds_read_b128 {vr(MF+4*k,4)}, v7 offset:{k*1024}')
    A(f's_add_u32 s6, s30, 1\ns_and_b32 s6, s6, 3\ns_lshl_b32 s6, s6, 7\ns_mul_i32 s7, s31, {ZCLS}\ns_add_u32 s6, s6, s7\ns_sub_u32 s100, s6, s33\ns_add_u32 s35, s6, s33\ns_setprio 3')
    A('s_waitcnt vmcnt(0) lgkmcnt(0)')
    bstamp(A, cfg, 4, 0)
    A('s_barrier')
    if cfg.pwb == 3: pwb()
    A('s_barrier')
    bstamp(A, cfg, 5, 0)
    for k in range(8):
        A(f's_add_u32 s7, s{35 if k < 4 else 100}, {k*4*ZSIG}\nbuffer_load_dwordx4 {vr(ZF+4*k,4)}, v20, s[8:11], s7 offen sc1')
    for k in range(8):
        A(f's_waitcnt vmcnt({7-k}) lgkmcnt(0)')
        mfma32(A, ACC, ZF+4*k, MF+4*k, ACC if k else None)
    A(f's_nop 7\nv_cvt_pk_bf16_f32 v{T}, v{ACC}, v{ACC}\nds_write_b16 v8, v{T} offset:256')
    if cfg.wb == 2: A('s_xor_b32 s6, s3, 7\ns_or_b32 s6, s6, s5\ns_cmp_lg_u32 s6, 0\ns_cbranch_scc1 K_B_NOWB\nbuffer_wbl2 sc1\nK_B_NOWB:')
    bstamp(A, cfg, 6, 0)
    A('K_B_FIN:')
    A('s_waitcnt lgkmcnt(0)\ns_barrier')
    for n in range(2): A(f'ds_read_b128 {vr(108+4*n,4)}, v12 offset:{4*n*PITCH}')
    for n in range(2): A(f'ds_read_b128 {vr(80+8*n,4)}, v19 offset:{4*n*PITCH}\nds_read_b32 v{84+8*n}, v19 offset:{4*n*PITCH + 16}')
    for n in range(2):
        A(f's_add_u32 s6, s34, {(4*n) << 15}\ns_waitcnt lgkmcnt({5-n})')
        A(f'buffer_store_dwordx4 {vr(108+4*n,4)}, v13, s[12:15], s6 offen{cfg.outflagb}')
    for n in range(2):
        b = 80 + 8 * n
        A(f's_sub_u32 s7, s97, {(4*n) << 15}\ns_waitcnt lgkmcnt({2-2*n})')
        for q in range(4): A(f'v_bfi_b32 v{96+4*n+q}, v18, v{b+4-q}, v{b+3-q}')
        A(f'buffer_store_dwordx4 {vr(96+4*n,4)}, v17, s[12:15], s7 offen{cfg.outflagb}')
    A('s_or_b32 s6, s96, s3\ns_cmp_lg_u32 s6, 0\ns_cbranch_scc1 K_B_NOX2')
    A(f'ds_read_b128 v[104:107], v12 offset:{64*PITCH}\ns_add_u32 s6, s34, {64 << 15}\ns_mov_b64 exec, 0xffff\ns_waitcnt lgkmcnt(0)')
    A(f'buffer_store_dwordx4 v[104:107], v13, s[12:15], s6 offen{cfg.outflagb}\ns_mov_b64 exec, -1')
    A('K_B_NOX2:')
    stamp_store(A, cfg, 8)
    A('s_endpgm')

def main():
    ap = argparse.ArgumentParser()
    ap.add_argument('-o', default=f'cdna_kernels/{NAME}.s')
    ap.add_argument('--diag', action='store_true')
    ap.add_argument('--xa', default='3,10,10,10,10,10,10,6')
    ap.add_argument('--pre', type=int, default=12); ap.add_argument('--opre', type=int, default=10)
    ap.add_argument('--outflag', default='sc1'); ap.add_argument('--outflagb', default='sc1')
    ap.add_argument('--rot', type=int, default=1); ap.add_argument('--rotx', type=int, default=1); ap.add_argument('--q3', type=int, default=0)
    ap.add_argument('--help_', dest='help', type=int, default=0); ap.add_argument('--help0', type=int, default=1)
    ap.add_argument('--hbar', type=int, default=1)
    ap.add_argument('--cpf', type=int, default=2)
    ap.add_argument('--swap', type=int, default=1); ap.add_argument('--hsplit', type=int, default=4)
    ap.add_argument('--gsplit', type=int, default=3); ap.add_argument('--goks', type=int, default=2)
    ap.add_argument('--xpf', type=int, default=0); ap.add_argument('--xprio', type=int, default=0)
    ap.add_argument('--c3', type=int, default=0)
    ap.add_argument('--chk', type=int, default=12)
    ap.add_argument('--cgx', type=int, default=1); ap.add_argument('--wopf', type=int, default=0)
    ap.add_argument('--batom', type=int, default=0)
    ap.add_argument('--clean', type=int, default=0); ap.add_argument('--b9', type=int, default=14)
    ap.add_argument('--chk2', type=int, default=10)
    ap.add_argument('--pk', type=int, default=1)
    ap.add_argument('--c3b', type=int, default=2); ap.add_argument('--c3n', type=int, default=6)
    ap.add_argument('--womall', type=int, default=1); ap.add_argument('--pwb', type=int, default=3)
    ap.add_argument('--gon', type=int, default=4)
    ap.add_argument('--rot0', type=int, default=0)
    ap.add_argument('--bfirst', type=int, default=0)
    ap.add_argument('--xs', type=int, default=8)
    ap.add_argument('--smap', type=int, default=0)
    ap.add_argument('--kst', type=int, default=0); ap.add_argument('--cprio', type=int, default=2)
    ap.add_argument('--c3a', type=int, default=1)
    ap.add_argument('--pwpos', type=int, default=0)
    ap.add_argument('--two', type=int, default=0); ap.add_argument('--lper', type=int, default=0)
    ap.add_argument('--wb', type=int, default=0)
    ap.add_argument('--lws', type=int, default=0)
    ap.add_argument('--align', type=int, default=1); ap.add_argument('--kw', type=int, default=3); ap.add_argument('--kn', type=int, default=1000)
    ap.add_argument('--lw8', type=int, default=1)
    ap.add_argument('--pages', type=int, default=1); ap.add_argument('--cpage', type=int, default=1)
    ap.add_argument('--bmove', type=int, default=1)
    ap.add_argument('--st0', type=int, default=0)
    ap.add_argument('--k8', type=int, default=1); ap.add_argument('--bprio', type=int, default=0); ap.add_argument('--wf', type=int, default=1)
    ap.add_argument('--pp', type=int, default=0)
    ap.add_argument('--lead', type=int, default=0)
    ap.add_argument('--rotq', type=int, default=1)
    ap.add_argument('--bst', type=int, default=0)
    ap.add_argument('--warmat', type=int, default=7); ap.add_argument('--n1', type=int, default=60)
    cfg = ap.parse_args()
    cfg.xa = [int(x) for x in cfg.xa.split(',')]
    if cfg.rotq: cfg.rot0 = 3
    cfg.outflag = '' if cfg.outflag == 'plain' else ' ' + cfg.outflag.replace('+', ' ')
    cfg.outflagb = '' if cfg.outflagb == 'plain' else ' ' + cfg.outflagb.replace('+', ' ')
    A = Asm()
    A(f'; @launch grid=(256,1,1) block=(512,1,1) lds={LDS_TOTAL}')
    A('.amdgcn_target "amdgcn-amd-amdhsa--gfx950"\n.text')
    kernel(A, cfg)
    A(f""".section .rodata,"a"
.p2align 6
.amdhsa_kernel {NAME}_kernel
.amdhsa_next_free_vgpr 256
.amdhsa_next_free_sgpr 102
.amdhsa_accum_offset 256
.amdhsa_group_segment_fixed_size 0
.amdhsa_kernarg_size 88
.amdhsa_user_sgpr_count 2
.amdhsa_user_sgpr_kernarg_segment_ptr 1
.amdhsa_system_sgpr_workgroup_id_x 1
.end_amdhsa_kernel""")
    if cfg.align:
        sys.path.insert(0, 'dev'); import align
        A.L, nw, nn = align.align(A.L, cfg.kw, cfg.kn)
        print('aligned: widened', nw, 'nops', nn)
    if cfg.pages: A.L = align.pages(A.L)
    NOTES = {'K_NOPF:': '; decode: s3 wave, s4 XCD slot, s5 index; v2 lane, v3 l&15, v4 l>>4, v5 l>>3, v6 l&7.  A loader waves fall through (LDS-DMA ring, 8 chunks of 64 k, then the wo slice)', 'K_B:': '; ---- branch B: waves 0..3 load 64 rows of x (and warm L2 for branch A), waves 4..7 build DFT factors', 'K_A_EVEN:': '; ---- A phase 2, even loader waves: own row tile + second K half of a shared tile', 'K_A_ODD:': '; ---- A phase 2, odd loader waves: own row tile + first K half of a shared tile (partial sums via LDS)', 'K_A_CONS:': '; ---- A consumer waves (one head each): set-up, qkv GEMM loop, attention, hand-off', 'K_A_ML:': '; qkv GEMM: 8 k-steps per pass over the 4 ring slots, two passes', 'K_A_MT:': '; last two k-steps, then attention: S^T = K Q^T (+ window masks), true max, exp2, P V, 1/sum', 'K_B_GEN:': '; 16-point factors G / F and the 32x32 hidden factors M', 'K_B_XOK:': '; stage a (16-point over the strided hidden index), LDS transpose, stage b (32-point), stage c (16-point over rows), write-through store of Z', 'K_B_SIG:': '; ---- B phase 2: 128-point sequence stage for one residue class, direct and mirrored stores'}
    A.L = [x for l in A.L for x in (([NOTES[l], l] if l != 'K_NOPF:' else [l, NOTES[l]]) if l in NOTES else [l])]
    txt = A.text()
    if cfg.st0:
        txt = txt.replace('; @launch grid', f'; @launch kernel={NAME}_kernel grid', 1).replace('\n', '\n; @launch kernel=t_kernel grid=(1,1,1) block=(64,1,1) lds=0\n', 1)
        txt = txt.replace('.section .rodata,"a"\n', '''.globl t_kernel
.p2align 8
.type t_kernel,@function
t_kernel:
    s_memrealtime s[10:11]
    s_load_dwordx2 s[4:5], s[0:1], 80
    s_waitcnt lgkmcnt(0)
    s_add_u32 s16, s4, 0x800000
    s_addc_u32 s17, s5, 0
    s_mov_b32 s18, 0x100000
    s_mov_b32 s19, 0x20000
    v_mov_b32 v1, s10
    v_mov_b32 v2, 0x1000
    buffer_store_dword v1, v2, s[16:19], 0 offen
    s_endpgm
.section .rodata,"a"
''') + '''.p2align 6
.amdhsa_kernel t_kernel
.amdhsa_next_free_vgpr 8
.amdhsa_next_free_sgpr 24
.amdhsa_accum_offset 8
.amdhsa_group_segment_fixed_size 0
.amdhsa_kernarg_size 88
.amdhsa_user_sgpr_count 2
.amdhsa_user_sgpr_kernarg_segment_ptr 1
.amdhsa_system_sgpr_workgroup_id_x 1
.end_amdhsa_kernel
'''
    if not cfg.st0 and not cfg.diag: txt = HEADER + txt
    open(cfg.o, 'w').write(txt)
main()
```

```python
import sys, argparse
NAME = 'concat_heads__sliding_local_dilated__spectral_fnet__prompt'

HEADER = """; Kernarg layout (88 bytes, pointers only, base s[0:1]):
;
;    Hand-off: plain stores + local flag holding the XCC id (accepted only if all 8 ids equal the reader's own, i.e. same L2);
"""

class Asm:
    def __init__(self): self.L = []
    def __call__(self, s):
        for line in s.split('\n'):
            line = line.strip()
            if line: self.L.append(line if line.endswith(':') or line.startswith('.') or line.startswith(';') else '    ' + line)
    def text(self): return '\n'.join(self.L) + '\n'

def vr(b, n): return f'v[{b}:{b+n-1}]' if n > 1 else f'v{b}'
def srd(A, d, lo, size):
    A(f's_mov_b32 s{d}, s{lo}\ns_mov_b32 s{d+1}, s{lo+1}\ns_mov_b32 s{d+2}, {size:#x}\ns_mov_b32 s{d+3}, 0x20000')
def srd_off(A, d, lo, off, size):
    A(f's_add_u32 s{d}, s{lo}, {off:#x}\ns_addc_u32 s{d+1}, s{lo+1}, 0\ns_mov_b32 s{d+2}, {size:#x}\ns_mov_b32 s{d+3}, 0x20000')
def mfma32(A, d, a, b, c): A(f'v_mfma_f32_16x16x32_bf16 {vr(d,4)}, {vr(a,4)}, {vr(b,4)}, {vr(c,4) if c is not None else 0}')
def mfma16(A, d, a, b, c): A(f'v_mfma_f32_16x16x16_bf16 {vr(d,4)}, {vr(a,2)}, {vr(b,2)}, {vr(c,4) if c is not None else 0}')
def cvt(A, d, a, b): A(f'v_cvt_pk_bf16_f32 v{d}, v{a}, v{b}')

P_AX, P_WQKV, P_WO, P_BX, P_CR, P_CI, P_DR, P_DI, P_OUT, P_DBG, P_WS = 36, 38, 40, 42, 44, 46, 48, 50, 52, 54, 56
WS_O, O_SIZE, WS_Z, Z_SIZE, WS_FLAG, FLAG_SIZE, WS_DIAG = 0, 0x240000, 0x280000, 0x240000, 0x500000, 0x10000, 0x800000
ZSIG, ZCLS = 4608, 147456
GFLAG, BFLAG = 192 * 128, 384 * 128
LDS_TOTAL, LDS_WORD = 163840, 147456
OOB = 0x80000000
SPIN = 400000
SLEEP = 0

def interleave(A, mf, other, per_gap=1, start=0):
    oi = 0
    for i, m in enumerate(mf):
        m()
        if i >= start:
            for _ in range(per_gap):
                if oi < len(other): A(other[oi]); oi += 1
    while oi < len(other): A(other[oi]); oi += 1

def stamp(A, cfg, slot):
    if cfg.diag: A(f's_memrealtime s[{64+4*slot}:{65+4*slot}]\ns_memtime s[{66+4*slot}:{67+4*slot}]')
def stamp_store(A, cfg, nslots):
    if not cfg.diag: return
    A('s_waitcnt lgkmcnt(0) vmcnt(0)')
    stamp(A, cfg, nslots - 1)
    A('s_waitcnt lgkmcnt(0)')
    srd_off(A, 24, P_WS, WS_DIAG, 0x100000)
    A(f's_lshl_b32 s4, s2, 3\ns_add_u32 s4, s4, s3\ns_lshl_b32 s4, s4, 6')
    for i in range(8): A(f'v_mov_b32 v{8+i}, s{64+4*min(i, nslots-1)}\nv_mov_b32 v{16+i}, s{66+4*min(i, nslots-1)}')
    A('v_mov_b32 v1, 0\nv_and_b32 v2, 63, v0\nv_cmp_eq_u32 vcc, 0, v2\ns_and_saveexec_b64 s[6:7], vcc')
    for i in range(4): A(f'buffer_store_dwordx4 v[{8+4*i}:{11+4*i}], v1, s[24:27], s4 offen offset:{16*i}')


def loader_loop(A, items, ends, X, after=None):
    done = 0
    for c in range(len(ends)):
        upto = min(len(items), ends[c] + X[min(c, len(X) - 1)])
        while done < upto and items[done][1] <= c:
            items[done][0](); done += 1
        assert done >= ends[c]
        A(f's_waitcnt vmcnt({done - ends[c]})')
        A('s_barrier')
    if after: after()
    while done < len(items):
        items[done][0](); done += 1

def poll(A, label, vdst, vaddr, srdn, soff, want, first=True):
    A(f's_mov_b32 s28, 0')
    A(f'{label}:')
    A(f'buffer_load_dword v{vdst}, v{vaddr}, s[{srdn}:{srdn+3}], {soff} offen sc1')
    A(f's_add_u32 s28, s28, 1\ns_cmp_ge_u32 s28, {SPIN}\ns_cbranch_scc1 {label}_X')
    A('s_waitcnt vmcnt(0)')
    A(f'v_cmp_ne_u32 vcc, {want}, v{vdst}')
    A(f's_cmp_lg_u64 vcc, 0\ns_cbranch_scc1 {label}')
    A(f'{label}_X:')

A1_SLOT = 36864

def kernel(A, cfg):
    A(f'.globl {NAME}_kernel\n.p2align 12\n.p2align 8\n.type {NAME}_kernel,@function\n{NAME}_kernel:')
    A(('s_load_dwordx8 s[36:43], s[0:1], 0' if cfg.k8 else 's_load_dwordx16 s[36:51], s[0:1], 0') + '\ns_load_dwordx4 s[52:55], s[0:1], 64\ns_load_dwordx2 s[56:57], s[0:1], 80')
    A('s_cmp_ge_u32 s2, 256\ns_cbranch_scc1 K_END')
    stamp(A, cfg, 0)
    if cfg.st0: A('s_memrealtime s[64:65]')
    if cfg.cpf == 2:
        A(f's_getpc_b64 s[8:9]\nK_PC:\ns_lshr_b32 s5, s2, 3\ns_lshl_b32 s5, s5, 10\ns_cmp_lt_u32 s5, K_PAD-{NAME}_kernel\ns_cselect_b32 s10, 64, 0')
        A(f's_sub_u32 s8, s8, K_PC-{NAME}_kernel\ns_subb_u32 s9, s9, 0\nv_lshl_add_u32 v1, v0, 4, s5\nv_mov_b32 v3, s9\nv_add_co_u32 v2, vcc, s8, v1\ns_nop 1\nv_addc_co_u32 v3, vcc, 0, v3, vcc')
        A('v_cmp_gt_u32 vcc, s10, v0\ns_and_saveexec_b64 s[6:7], vcc\ns_cbranch_execz K_NOPF')
        A('global_load_dwordx4 v[248:251], v[2:3], off\nK_NOPF:\ns_mov_b64 exec, s[6:7]')
    A('v_lshrrev_b32 v1, 6, v0\nv_and_b32 v2, 63, v0')
    A('v_readfirstlane_b32 s3, v1')
    A('s_and_b32 s4, s2, 7\ns_lshr_b32 s5, s2, 3')
    A('v_and_b32 v3, 15, v2\nv_lshrrev_b32 v4, 4, v2')
    A('v_lshrrev_b32 v5, 3, v2\nv_and_b32 v6, 7, v2')
    A('s_cmp_ge_u32 s5, 24\ns_cbranch_scc1 K_B')
    A('s_mul_i32 s7, s4, 3\ns_lshr_b32 s28, s5, 3\ns_add_u32 s59, s7, s28\ns_and_b32 s29, s5, 7')
    A('s_and_b32 s30, s59, 1\ns_lshr_b32 s31, s59, 1\ns_mul_i32 s32, s31, 88')
    if cfg.swap: A('s_xor_b32 s3, s3, 4')
    A('s_getreg_b32 s96, hwreg(HW_REG_XCC_ID, 0, 4)\ns_add_u32 s96, s96, 0x100')
    A('s_cmp_ge_u32 s3, 4\ns_cbranch_scc0 K_A_CONS')
    a_loader(A, cfg)
    A('K_A_CONS:')
    a_consumer(A, cfg)
    A(';@PAD b\nK_B:')
    b_all(A, cfg)
    A('K_END:\ns_endpgm\n;@PAD z\n;@PAGE z\nK_PAD:\ns_endpgm')
    if cfg.bmove:
        i, j = A.L.index('K_B:'), A.L.index('K_B_GEN:')
        front = A.L[i:j] + ['    s_branch K_B_GEN']; del A.L[i:j]
        k = A.L.index(';@PAD e'); A.L[k:k] = front

def a_loader(A, cfg):
    AW, WF, OF, ACC, NB, NO = 24, 36, 180, 220, 9, 10
    STAGE = 2 * A1_SLOT
    A('s_mul_i32 s97, s28, 3')
    if cfg.rot == 1: A('s_mov_b32 s63, 0')
    elif cfg.rot == 2: A('s_xor_b32 s63, s28, s5\ns_and_b32 s63, s63, 1\ns_lshl_b32 s63, s63, 2')
    elif cfg.rot == 3: A('s_mov_b32 s63, s97')
    if cfg.rot == 5:
        def tri(b, g): return [b + (g + i) % 3 for i in range(3)]
        def pair(b, g): return [b + (g & 1), b + 1 - (g & 1)]
        def word(p, g):
            o = [tri(0, g) + tri(3, g) + pair(6, g), [0] + tri(1, g) + tri(4, g) + [7], pair(0, g) + tri(2, g) + tri(5, g)][p]
            return sum(c << (4 * i) for i, c in enumerate(o))
        A('s_mov_b32 s63, 0\ns_mul_i32 s6, s29, 11\ns_lshr_b32 s6, s6, 5\ns_mul_i32 s6, s6, 3\ns_sub_u32 s6, s29, s6\ns_add_u32 s6, s6, s97')
        A(f's_mov_b32 s101, {word(0, 0):#x}')
        for g in range(3):
            for p in range(3):
                if p or g: A(f's_cmp_eq_u32 s6, {p + 3*g}\ns_cselect_b32 s101, {word(p, g):#x}, s101')
        A('s_cmp_eq_u32 s29, 3\ns_cselect_b32 s101, 0x76543210, s101')
    if cfg.q3: A('s_cmp_eq_u32 s29, 3\ns_cselect_b32 s63, s97, s63')
    if cfg.rotx: A(f's_mul_i32 s62, s4, {cfg.rotx}\ns_add_u32 s63, s63, s62')
    if cfg.rotq: A('s_add_u32 s63, s63, s29')
    elif cfg.rot0: A(f's_add_u32 s63, s63, {cfg.rot0}')
    A('s_sub_u32 s33, s3, 4')
    A('s_mul_i32 s6, s33, 24')
    for j in range(3):
        A(f'v_add_u32 v7, s6, v5\nv_add_u32 v7, {8*j}, v7')
        A('v_lshrrev_b32 v8, 1, v7\nv_and_b32 v8, 7, v8\nv_xor_b32 v8, v8, v6\nv_lshlrev_b32 v8, 4, v8')
        A('v_add_u32 v7, s32, v7\nv_lshlrev_b32 v7, 1, v7\nv_add_u32 v7, s30, v7')
        A(f'v_lshl_add_u32 v{10+j}, v7, 10, v8')
    A('s_lshl_b32 s6, s33, 4\ns_lshl_b32 s7, s29, 7\ns_movk_i32 s28, 3072')
    for par in range(2):
        A(f'v_add_u32 v7, s6, v5\nv_add_u32 v7, {8*par}, v7')
        A('v_mul_lo_u32 v7, v7, s28\nv_add_u32 v7, s7, v7')
        A(f'v_and_b32 v8, 1, v4\nv_or_b32 v8, {2*par}, v8\nv_lshlrev_b32 v8, 1, v8\nv_xor_b32 v8, v8, v6')
        A(f'v_lshl_add_u32 v{13+par}, v8, 4, v7')
    A('s_mul_i32 s34, s33, 3072')
    A('s_mul_i32 s35, s33, 6144\ns_add_u32 s35, s35, 12288')
    A('s_waitcnt lgkmcnt(0)')
    srd(A, 8, P_AX, 0x200000); srd(A, 12, P_WQKV, 0x180000)
    stamp(A, cfg, 1)
    def issue(c, j):
        base = (c % 4) * A1_SLOT
        if j < 3:
            if j == 0 and cfg.rot == 5: A(f's_bfe_u32 s62, s101, {0x40000 + 4*c:#x}\ns_add_u32 s62, s62, s63\ns_and_b32 s62, s62, 7\ns_lshl_b32 s6, s62, 7')
            elif j == 0: A(f's_add_u32 s62, s63, {c}\ns_and_b32 s62, s62, 7\ns_lshl_b32 s6, s62, 7')
            A(f's_add_u32 m0, s34, {base + j*1024}\ns_nop 0')
            A(f'buffer_load_dwordx4 v{10+j}, s[8:11], s6 offen lds')
        else:
            par, seg = divmod(j - 3, 3)
            if j == 3: A(f's_mul_i32 s7, s62, 196608')
            if seg == 0: A(f's_add_u32 m0, s35, {base + par*3072}\ns_nop 0')
            A(f'buffer_load_dwordx4 v{13+par}, s[12:15], s7 offen offset:{seg*1024} lds')
    def late_setup():
        srd(A, 16, P_WO, 0x80000); srd_off(A, 20, P_WS, WS_O, O_SIZE)
        A('s_lshl_b32 s60, s33, 3\nv_add_u32 v7, s60, v5\ns_and_b32 s60, s33, 1\ns_lshl_b32 s60, s60, 1\ns_xor_b32 s61, s29, ' + str(cfg.cgx) + '\ns_lshl_b32 s61, s61, 7')
        A('v_and_b32 v8, 1, v4\nv_or_b32 v8, s60, v8\nv_lshlrev_b32 v8, 1, v8\nv_xor_b32 v8, v8, v6\nv_lshlrev_b32 v8, 4, v8')
        A('v_lshl_add_u32 v15, v7, 10, v8\nv_add_u32 v15, s61, v15')
        A('s_lshl_b32 s58, s33, 10')
        A(f's_mul_i32 s60, s33, 24\nv_add_u32 v7, s60, v2\nv_lshrrev_b32 v8, 4, v7\nv_lshlrev_b32 v8, 14, v8\nv_and_b32 v7, 15, v7\nv_lshl_add_u32 v7, v7, 7, v8')
        A(f'v_mov_b32 v8, {OOB:#x}\nv_cmp_le_u32 vcc, 24, v2\ns_mul_i32 s60, s59, {6*16384}\ns_lshl_b32 s61, s29, 11\ns_add_u32 s98, s60, s61\nv_cndmask_b32 v16, v7, v8, vcc')
        A(f'v_mov_b32 v17, {LDS_WORD}\nv_mov_b32 v18, 0\nv_mov_b32 v19, 0\nds_write_b64 v17, v[18:19]\nds_write_b64 v17, v[18:19] offset:8\nds_write_b64 v17, v[18:19] offset:16\nds_write_b64 v17, v[18:19] offset:24\ns_waitcnt lgkmcnt(0)\nv_mov_b32 v18, 1')
        srd(A, 44, P_OUT, 0x400000)
        A('v_bfe_u32 v7, v2, 2, 2\nv_lshrrev_b32 v8, 1, v7\nv_and_b32 v9, 1, v4\nv_lshl_or_b32 v8, v9, 1, v8')
        A('v_lshlrev_b32 v9, 10, v4\nv_lshl_add_u32 v9, v7, 7, v9\nv_and_b32 v7, 3, v2\nv_lshl_add_u32 v9, v7, 3, v9')
        for nt in range(4): A(f'v_xor_b32 v7, {nt}, v8\nv_lshl_add_u32 v{AW+nt}, v7, 5, v9')
        A('v_lshlrev_b32 v33, 4, v2')
        A(f's_mul_i32 s60, s33, {32*144}\ns_add_u32 s60, s60, {STAGE}')
        A('v_mul_u32_u24 v30, 144, v3\nv_lshl_add_u32 v30, v4, 3, v30\nv_add_u32 v30, s60, v30')
        A('v_mul_u32_u24 v31, 144, v5\nv_lshl_add_u32 v31, v6, 4, v31\nv_add_u32 v31, s60, v31')
        A('v_lshlrev_b32 v32, 12, v5\nv_lshl_add_u32 v32, v6, 4, v32')
        A('s_lshl_b32 s60, s32, 12\ns_lshl_b32 s61, s30, 11\ns_add_u32 s60, s60, s61\ns_xor_b32 s61, s29, ' + str(cfg.cgx) + '\ns_lshl_b32 s61, s61, 7\ns_add_u32 s42, s60, s61')
        A('s_lshl_b32 s60, s33, 16\ns_add_u32 s48, s42, s60\ns_add_u32 s49, s48, 0x8000\ns_lshr_b32 s61, s33, 1\ns_add_u32 s61, s61, 4\ns_lshl_b32 s60, s61, 16\ns_add_u32 s50, s42, s60\ns_add_u32 s51, s50, 0x8000')
        A(f's_mul_i32 s42, s59, {6*16384}\ns_lshl_b32 s60, s33, 14\ns_add_u32 s43, s42, s60\ns_lshl_b32 s60, s61, 14\ns_add_u32 s42, s42, s60')
        A(f's_lshr_b32 s60, s33, 1\ns_lshl_b32 s61, s60, 12\ns_add_u32 s61, s61, {STAGE + 4*32*144}\nv_add_u32 v28, s61, v33\ns_lshl_b32 s60, s60, 2\nv_add_u32 v29, s60, v17')
        A('s_cmp_lg_u32 s31, 0\ns_cselect_b32 s60, 1, 0\ns_cmp_eq_u32 s33, 0\ns_cselect_b32 s60, s60, 0\ns_cmp_lg_u32 s60, 0\ns_cselect_b32 s48, 0x40000000, s48')
    def wo(n):
        A(f's_add_u32 s62, s97, {n}\ns_and_b32 s62, s62, 15')
        A('s_lshl_b32 s6, s62, 12\ns_add_u32 m0, s58, s6\ns_lshl_b32 s6, s62, 15')
        A('buffer_load_dwordx4 v15, s[16:19], s6 offen lds')
    def side():
        srd_off(A, 88, P_WS, WS_FLAG, FLAG_SIZE); srd(A, 24, P_DBG, 256)
        A(f'v_lshlrev_b32 v20, 2, v6\nv_lshlrev_b32 v21, 7, v6\ns_lshl_b32 s100, s59, 10\ns_lshr_b32 s97, s5, 3\ns_mul_i32 s97, s97, 5\ns_mov_b64 exec, 0xff')
        A('buffer_load_dword v22, v20, s[24:27], 0 offen sc1\ns_mov_b64 exec, -1')
    def gocheck():
        A('s_mov_b64 exec, 0xff\nv_cmp_ne_u32 vcc, 1, v22\ns_cmp_eq_u64 vcc, 0\ns_cbranch_scc1 K_A_RDY_X')
        poll(A, 'K_A_RDY', 9, 20, 24, 0, 1)
        A('ds_write_b32 v17, v18 offset:24\ns_mov_b64 exec, -1')
    items = [(lambda c=c, j=j: issue(c, j), max(0, c - 2)) for c in range(8) for j in range(9)]
    ends = [9 * (c + 1) for c in range(8)]
    if cfg.xpf == 2:
        def xp(n):
            if n == 0:
                A('s_lshl_b32 s60, s29, 2\ns_add_u32 s60, s60, s33\ns_mul_i32 s60, s60, 3\ns_add_u32 s60, s60, s32\ns_lshl_b32 s60, s60, 1\ns_add_u32 s60, s60, s30\ns_lshl_b32 s60, s60, 10\nv_lshlrev_b32 v7, 4, v2')
                A('s_and_b32 s62, s63, 7' if cfg.rot != 5 else 's_and_b32 s62, s101, 7\ns_add_u32 s62, s62, s63\ns_and_b32 s62, s62, 7')
            if n == 2: A('s_add_u32 s60, s60, 4096')
            A(f'buffer_load_dwordx4 v[244:247], v7, s[8:11], s60 offen offset:{(n&1)*2048}')
        items = [(lambda n=n: xp(n), 0) for n in range(3)] + items[3:9] + items[0:3] + items[9:]
        ends = [e + 3 for e in ends]
    k0 = ends[0] + cfg.xa[0] - 1
    items[k0] = (lambda f=items[k0][0]: (f(), late_setup()), items[k0][1])
    items += [(side, 0), (lambda: A('s_mov_b64 exec, 0xff\nbuffer_load_dword v251, v21, s[88:91], s100 offen sc1\ns_mov_b64 exec, -1'), 0)]
    def wo2(n):
        if n == cfg.gon: A(f's_waitcnt vmcnt({n + 1 + (0 if cfg.pwb else cfg.pwpos <= n)})'); gocheck()
        wo(n)
    tail = [(lambda n=n: wo2(n), 7) for n in range(16)]
    if not cfg.pwb: tail.insert(cfg.pwpos, (lambda: A('buffer_load_dword v250, v16, s[20:23], s98 offen sc1'), 0))
    items += tail
    loader_loop(A, items, ends, cfg.xa)
    srd_off(A, 8, P_WS, WS_FLAG, FLAG_SIZE)
    stamp(A, cfg, 2)
    A(f'v_mov_b32 v8, v21\ns_mov_b32 s7, s100\ns_add_u32 s6, s7, {GFLAG}')
    A(f's_waitcnt vmcnt({1 if cfg.pwpos == 16 and not cfg.pwb else 0})\ns_mov_b64 exec, 1\nds_add_u32 v17, v18 offset:8\ns_mov_b64 exec, -1')
    order = [0, 1, 2, 3, 4, 5, 8, 9, 10, 11, 12, 13, 14, 15, 6, 7]
    def reads(st):
        if st > 15: return []
        f = WF + 16 * (st % NB); ks = order[st]
        return [f'ds_read_b64_tr_b16 {vr(f+4*nt+2*u,2)}, v{AW+nt} offset:{ks*4096+u*512}' for nt in range(4) for u in range(2)]
    def wait_flags(tag, masked):
        if cfg.pp:
            assert cfg.wf and not masked
            ld = lambda i: f'buffer_load_dwordx4 {vr(OF+4*i,4)}, v8, s[8:11], s100 offen sc1'
            A('s_mov_b64 exec, 0xff')
            for i in range(cfg.pp): A(ld(i) + ('\ns_nop 7\ns_nop 7' if i < cfg.pp - 1 and False else ''))
            A(f'K_A_PP{tag}:')
            for i in range(cfg.pp):
                b = OF + 4 * i
                A(f's_waitcnt vmcnt({cfg.pp - 1})\nv_and_b32 v12, v{b}, v{b+1}\nv_and_b32 v14, v{b+2}, v{b+3}\nv_and_b32 v9, v12, v14\nv_cmp_ne_u32 vcc, s96, v9\ns_cmp_eq_u64 vcc, 0\ns_cbranch_scc1 K_A_GO{tag}\n' + ld(i))
            A(f's_add_u32 s28, s28, 1\ns_cmp_lt_u32 s28, {cfg.n1}\ns_cbranch_scc1 K_A_PP{tag}')
        A(f's_mov_b64 exec, 0xff\nK_A_P1{tag}:')
        LD = 'buffer_load_dwordx4 v[12:15], v8, s[8:11], s100 offen sc1' if cfg.wf else 'buffer_load_dword v9, v8, s[8:11], s100 offen sc1'
        CB = '\nv_and_b32 v12, v12, v13\nv_and_b32 v14, v14, v15\nv_and_b32 v9, v12, v14' if cfg.wf else ''
        A(LD + '\ns_add_u32 s28, s28, 1\ns_waitcnt vmcnt(0)' + CB)
        A('v_cmp_ne_u32 vcc, s96, v9')
        if masked: A(f's_mov_b64 s[92:93], vcc\ns_and_b64 vcc, vcc, s[94:95]\ns_cbranch_scc0 K_A_GO{tag}')
        else: A(f's_cmp_eq_u64 vcc, 0\ns_cbranch_scc1 K_A_GO{tag}')
        A(f's_cmp_lt_u32 s28, {cfg.n1}\ns_cbranch_scc1 K_A_P1{tag}')
        A('ds_write_b32 v17, v18\ns_mov_b32 s99, 1\ns_mov_b64 s[92:93], 0\ns_waitcnt lgkmcnt(0)\ns_barrier')
        A(f'K_A_P2{tag}:')
        A(LD + '\nbuffer_load_dword v10, v8, s[8:11], s6 offen sc1\ns_add_u32 s28, s28, 1\ns_waitcnt vmcnt(0)' + CB)
        A(f'v_cmp_ne_u32 vcc, s96, v9\ns_cmp_eq_u64 vcc, 0\ns_cbranch_scc1 K_A_GO{tag}')
        A(f'v_cmp_ne_u32 vcc, 1, v10\ns_cmp_eq_u64 vcc, 0\ns_cbranch_scc1 K_A_GO{tag}')
        A(f's_cmp_lt_u32 s28, {SPIN}\ns_cbranch_scc1 K_A_P2{tag}')
        A(f'K_A_GO{tag}:\ns_mov_b64 exec, -1')
    A('s_bitcmp1_b32 s33, 0\ns_cbranch_scc1 K_A_ODD\ns_branch K_A_EVEN')
    PART = WF + 16 * 7
    def gemm2(odd):
        tag = 'O' if odd else 'E'
        has = lambda st: (st < 8) == bool(odd)
        L = [(st, a) for st in range(16) for a in range(2) if a == 0 or has(st)]
        reg = {x: OF + 4 * (i % NO) for i, x in enumerate(L)}
        first_q3 = min(i for i, x in enumerate(L) if x[0] >= 14) if cfg.two else len(L)
        need = lambda st: sum(1 for x in L if x[0] <= st)
        vq = []
        lq = []
        def oload(i):
            st, a = L[i]; ks = order[st]; vq.append(i)
            return f's_add_u32 s7, s{42 if a else 43}, {(ks & ~3)*1024}\nbuffer_load_dwordx4 {vr(reg[L[i]],4)}, v33, s[20:23], s7 offen offset:{(ks&3)*1024} sc1'
        def after(q, keys):
            pos = [k for k, x in enumerate(q) if x in keys]
            return len(q) - 1 - max(pos) if pos else None
        A(f'K_A_LW{tag}:\n' + (f's_sleep {cfg.lws}\n' if cfg.lws else '') + 'ds_read_b32 v9, v17 offset:8\ns_waitcnt lgkmcnt(0)\nv_cmp_ne_u32 vcc, ' + ('8' if cfg.lw8 else '4') + ', v9\ns_cmp_lg_u64 vcc, 0\ns_cbranch_scc1 K_A_LW' + tag)
        stamp(A, cfg, 3)
        for st in range(NB):
            for r in reads(st): A(r)
        A('s_mov_b32 s28, 0\ns_mov_b32 s99, 0\ns_mov_b32 s94, 0xf7f7f7f7\ns_mov_b32 s95, 0xf7f7f7f7')
        if cfg.lead:
            if (cfg.lead - 1) % 2 == odd:
                A(f's_cmp_lg_u32 s33, {cfg.lead - 1}\ns_cbranch_scc1 K_A_FW{tag}')
                wait_flags('A' + tag, False)
                A(f'ds_write_b32 v17, v18 offset:12\ns_branch K_A_FX{tag}')
            A(f'K_A_FW{tag}:\nds_read_b128 v[12:15], v17\ns_waitcnt lgkmcnt(0)\nv_cmp_ne_u32 vcc, 1, v15\ns_cmp_eq_u64 vcc, 0\ns_cbranch_scc1 K_A_FX{tag}')
            A(f'v_cmp_ne_u32 vcc, s99, v12\ns_cmp_eq_u64 vcc, 0\ns_cbranch_scc1 K_A_FW{tag}\ns_mov_b32 s99, 1\ns_barrier\ns_branch K_A_FW{tag}\nK_A_FX{tag}:')
        else:
            wait_flags('A' + tag, bool(cfg.two))
        stamp(A, cfg, 4)
        issued = min(cfg.opre, NO)
        for i in range(issued): A(oload(i))
        CHK = (cfg.chk2 if odd else cfg.chk) if cfg.two else 99
        for st in range(16):
            f = WF + 16 * (st % NB)
            if st == CHK:
                assert issued == first_q3 and len(L) - need(st - 1) <= NO
                A(f's_waitcnt vmcnt({after(vq, ["flag"])})\nv_cmp_ne_u32 vcc, s96, v9\ns_and_b64 vcc, vcc, s[92:93]\ns_cbranch_scc0 K_A_GOB{tag}')
                wait_flags('B' + tag, False)
                for i in range(first_q3, len(L)): A(oload(i))
                issued = len(L)
            keys = [('w', st)] + (['pw'] if odd and st == 11 else []) + (['pf'] if not odd and st == 15 else [])
            lg = 0 if st == 0 else after(lq, keys)
            A(f's_waitcnt vmcnt({after(vq, [need(st) - 1])})' + (f' lgkmcnt({min(lg, 14)})' if lg is not None else ''))
            if st == 0: stamp(A, cfg, 5)
            if odd and st == 11: A('ds_write_b32 v29, v18 offset:16'); lq.append('x')
            if not odd and st == 15:
                A('s_mov_b32 s28, 0\nK_A_PW:\nv_cmp_ne_u32 vcc, 1, v10\ns_cmp_eq_u64 vcc, 0\ns_cbranch_scc1 K_A_PWX\nds_read_b32 v10, v29 offset:16\ns_add_u32 s28, s28, 1')
                A('s_cmp_lg_u32 s28, 64\ns_cbranch_scc1 K_A_PWN\ns_cmp_lg_u32 s99, 0\ns_cbranch_scc1 K_A_PWN\ns_mov_b32 s99, 1\ns_barrier\nK_A_PWN:\ns_waitcnt lgkmcnt(0)\ns_branch K_A_PW\nK_A_PWX:')
            M = [lambda d=ACC+16*a+4*nt, x=f+4*nt, b=reg[(st, a)], z=(st & 7 if a else st): mfma32(A, d, x, b, d if z else None) for a in range(2) if (st, a) in reg for nt in range(4)]
            O = []
            while issued < first_q3 and issued < need(st - 1) + NO: O.append(oload(issued)); issued += 1
            if st == CHK - (4 if odd else 3):
                O.append('s_mov_b64 exec, 0xff\nbuffer_load_dword v9, v8, s[8:11], s100 offen sc1\ns_mov_b64 exec, -1'); vq.append('flag')
            if not odd and st == 14: O.append('ds_read_b32 v10, v29 offset:16'); lq.append('pf')
            rs = st + NB - 1 if odd else st + 2
            if NB <= rs <= 15:
                R = reads(rs); O += [R[2*i] + '\n' + R[2*i+1] for i in range(4)]; lq += [('w', rs)] * 8
            if odd and st in (9, 10): O += [f'ds_write_b128 v28, {vr(ACC+16+4*nt,4)} offset:{nt*1024}' for nt in (2*(st-9), 2*(st-9)+1)]; lq += ['pw'] * 2
            if not odd and st == 15: O += [f'ds_read_b128 {vr(PART+4*nt,4)}, v28 offset:{nt*1024}' for nt in range(4)]; lq += ['pr'] * 4
            interleave(A, M, O)
        stamp(A, cfg, 6)
        T = WF
        A('s_nop 7' if odd else 's_nop 3')
        for a in range(1 if odd else 2):
            if a:
                A('s_waitcnt lgkmcnt(6)')
                for i in range(16): A(f'v_add_f32 v{ACC+16+i}, v{ACC+16+i}, v{PART+i}')
            for nt in range(4):
                d = ACC + 16 * a + 4 * nt; p = T + 8 * a + 2 * nt
                cvt(A, p, d, d+1); cvt(A, p+1, d+2, d+3)
                A(f'ds_write_b64 v30, {vr(p,2)} offset:{a*16*144 + nt*32}')
            for n in (2*a, 2*a+1): A(f'ds_read_b128 {vr(T+16+4*n,4)}, v31 offset:{n*8*144}')
        N = 2 if odd else 4
        for n in range(N):
            A(f's_waitcnt lgkmcnt({(N-1-n) if (odd or n >= 2) else 7-n})')
            A(f'buffer_store_dwordx4 {vr(T+16+4*n,4)}, v32, s[44:47], s{48+n} offen{cfg.outflag}')
        A(f's_cmp_lg_u32 s99, 0\ns_cbranch_scc1 K_A_NOB{tag}\ns_barrier\nK_A_NOB{tag}:')
    A(';@PAD e\n;@PAGE e\nK_A_EVEN:')
    gemm2(0)
    stamp_store(A, cfg, 8)
    A('s_endpgm\n;@PAD o\n;@PAGE o\nK_A_ODD:')
    gemm2(1)
    stamp_store(A, cfg, 8)
    A('s_endpgm\n;@PAD c')

def a_consumer(A, cfg):
    AX, AW = 20, 28
    ST, MD, MP, BD, ONES = 32, 36, 40, 44, 46
    VX, V1, VS0 = 33, 34, 35
    FR, ACC = 48, 120
    A(f'v_mov_b32 v{VX}, s96\nv_mov_b32 v{V1}, 1\nv_mov_b32 v{VS0}, {OOB:#x}\nv_cmp_ne_u32 vcc, {256 if cfg.swap else 0}, v0\ns_nop 1\nv_cndmask_b32 v{VS0}, 0, v{VS0}, vcc')
    A('s_lshl_b32 s58, s59, 3\ns_add_u32 s58, s58, s29\ns_lshl_b32 s58, s58, 7')
    A('s_lshl_b32 s6, s29, 2\ns_add_u32 s6, s6, s3\ns_mul_i32 s6, s6, 3\ns_add_u32 s6, s6, s32\ns_lshl_b32 s6, s6, 1\ns_add_u32 s6, s6, s30\ns_lshl_b32 s60, s6, 10\nv_lshlrev_b32 v7, 4, v2')
    if cfg.xpf == 3: A(f's_mul_i32 s6, s4, {128*cfg.rotx}\nv_and_b32 v8, 0x1ff, v7\nv_add_u32 v8, s6, v8\nv_and_b32 v8, 0x3ff, v8\nv_lshrrev_b32 v9, 5, v2\nv_lshl_add_u32 v9, v9, 11, v8')
    if cfg.xprio: A('s_setprio 2')
    A('s_waitcnt lgkmcnt(0)')
    if cfg.xpf == 1:
        srd(A, 12, P_AX, 0x200000)
        for n in range(3): A(f's_add_u32 s7, s60, {n*2048}\nbuffer_load_dwordx4 v[244:247], v7, s[12:15], s7 offen')
    if cfg.xpf == 3:
        srd(A, 12, P_AX, 0x200000)
        A('buffer_load_dwordx4 v[244:247], v9, s[12:15], s60 offen\ns_add_u32 s7, s60, 4096\ns_mov_b32 exec_hi, 0\nbuffer_load_dwordx4 v[244:247], v9, s[12:15], s7 offen\ns_mov_b64 exec, -1')
    if cfg.c3:
        srd(A, 12, P_WQKV, 0x180000)
        A('s_lshl_b32 s7, s5, 2\ns_add_u32 s7, s7, s3\ns_lshl_b32 s7, s7, 14\nv_lshlrev_b32 v8, 10, v5\nv_lshl_add_u32 v8, v6, 4, v8')
        A('buffer_load_dwordx4 v[244:247], v8, s[12:15], s7 offen offset:384\ns_add_u32 s7, s7, 8192\nbuffer_load_dwordx4 v[244:247], v8, s[12:15], s7 offen offset:384')
    srd_off(A, 16, P_WS, WS_FLAG, FLAG_SIZE); srd_off(A, 8, P_WS, WS_O, O_SIZE)
    srd(A, 20, P_DBG, 256)
    A('s_cmp_lg_u32 s5, 0\ns_cbranch_scc1 K_A_NOCLR')
    A('v_mov_b32 v8, 0\nv_mov_b32 v9, 0\nv_mov_b32 v10, 0\nv_mov_b32 v11, 0\nv_lshlrev_b32 v7, 4, v2\ns_lshl_b32 s6, s4, 2\ns_add_u32 s6, s6, s3\ns_lshl_b32 s6, s6, 11')
    A('buffer_store_dwordx4 v[8:11], v7, s[16:19], s6 offen sc1\nbuffer_store_dwordx4 v[8:11], v7, s[16:19], s6 offen offset:1024 sc1\ns_nop 1')
    A('K_A_NOCLR:')
    A('s_lshl_b32 s35, s4, 2')
    A('v_lshrrev_b32 v7, 1, v3\nv_xor_b32 v7, v7, v4\nv_lshlrev_b32 v7, 4, v7\nv_lshl_add_u32 v7, v3, 7, v7')
    A('v_xor_b32 v8, 64, v7')
    for s in range(4):
        A(f'v_add_u32 v{AX+2*s}, {s*A1_SLOT}, v7\nv_add_u32 v{AX+2*s+1}, {s*A1_SLOT}, v8')
    A('v_bfe_u32 v7, v2, 2, 2')
    A('v_lshrrev_b32 v8, 1, v7\nv_and_b32 v9, 1, v4\nv_lshl_or_b32 v8, v9, 1, v8')
    A('v_xor_b32 v8, s3, v8\nv_lshlrev_b32 v8, 5, v8\nv_lshl_add_u32 v8, v7, 7, v8')
    A('v_and_b32 v9, 3, v2\nv_lshl_add_u32 v8, v9, 3, v8')
    A('v_mul_u32_u24 v9, 3072, v4\nv_add_u32 v8, v8, v9')
    for s in range(4): A(f'v_add_u32 v{AW+s}, {s*A1_SLOT+12288}, v8')
    A('v_lshlrev_b32 v7, 2, v4\nv_sub_u32 v7, v3, v7')
    A('v_mov_b32 v9, 0xf149f2ca')
    A('v_mov_b32 v10, 0xffff\nv_mov_b32 v11, 0xffff0000')
    for i in range(4):
        A(f'v_subrev_u32 v8, {i}, v7')
        A(f'v_cmp_le_u32 vcc, 8, v8\ns_nop 1\nv_cndmask_b32 v{MD+i}, 0, v9, vcc')
        A(f'v_cmp_lt_i32 vcc, -9, v8\ns_nop 1\nv_cndmask_b32 v{MP+i}, 0, v9, vcc')
        A(f'v_cmp_le_i32 vcc, 0, v8\ns_nop 1\nv_cndmask_b32 v{12+i}, 0, v{10+(i&1)}, vcc')
    A(f'v_or_b32 v{BD}, v12, v13\nv_or_b32 v{BD+1}, v14, v15')
    A(f'v_mov_b32 v{ONES}, 0x3f803f80\nv_mov_b32 v{ONES+1}, 0x3f803f80')
    A('s_lshl_b32 s6, s29, 2\ns_add_u32 s6, s6, s3\ns_lshl_b32 s6, s6, 9')
    A(f's_mul_i32 s7, s59, {6*16384}\ns_add_u32 s60, s6, s7\ns_add_u32 s61, s60, 0x8000\ns_add_u32 s62, s60, 0x10000')
    A('v_and_b32 v7, 1, v4\nv_lshlrev_b32 v7, 14, v7\nv_lshrrev_b32 v8, 1, v4\nv_lshl_add_u32 v7, v8, 8, v7')
    A(f'v_lshl_add_u32 v{ST}, v3, 4, v7')
    PKS = 24
    A(f'v_mov_b32 v17, {LDS_WORD}\ns_lshl_b32 s6, s3, 2\nv_mov_b32 v18, s6')
    A('s_mov_b32 s34, 0x3eb8aa3b\ns_mov_b32 s24, s34\ns_mov_b32 s25, s34')
    def reads(ks):
        c, h = divmod(ks, 2); s = c % 4; f = FR + 36 * (ks & 1); R = []
        def w(seg): return [f'ds_read_b64_tr_b16 {vr(f+24+4*seg+2*u,2)}, v{AW+s} offset:{h*12288+seg*1024+u*512}' for u in range(2)]
        R += w(0)
        R += [f'ds_read_b128 {vr(f+4*t,4)}, v{AX+2*s+h} offset:{t*2048}' for t in range(6)]
        R += w(1) + w(2)
        return R
    def mfmas(ks):
        f = FR + 36 * (ks & 1); M = []
        for seg in range(3):
            for t in range(6):
                d = ACC + 24 * seg + 4 * t; c = d
                if seg < 2: M.append(lambda d=d, a=f+24+4*seg, b=f+4*t, c=c: mfma32(A, d, a, b, c))
                else:       M.append(lambda d=d, a=f+4*t, b=f+24+4*seg, c=c: mfma32(A, d, a, b, c))
        return M
    for i in range(72): A(f'v_mov_b32 v{ACC+i}, 0')
    A(f's_mov_b32 s28, 0\ns_setprio {cfg.cprio}\ns_barrier')
    stamp(A, cfg, 1)
    for r in reads(0): A(r)
    A('K_A_ML:')
    for ks in list(range(8)) + [14, 15]:
        if ks == 6: A('s_cmp_lg_u32 s28, 0\ns_cbranch_scc1 K_A_MT')
        if ks == 14: A('s_mov_b32 s28, 1\ns_branch K_A_ML\nK_A_MT:')
        A('s_waitcnt lgkmcnt(0)')
        M = mfmas(ks)
        if ks == 15: interleave(A, M[:12], []); defer += M[12:]
        elif ks & 1:
            pre = cfg.pre
            for m in M[:pre]: m()
            if ks == cfg.cpage: A(';@PAGE c')
            A('s_barrier')
            interleave(A, M[pre:], reads(ks + 1), per_gap=2 if pre > 2 else 1)
        else:
            R = reads(ks + 1)
            if ks == 14: defer = M[12:]; M = M[:12]
            if ks == cfg.goks: R.append('s_waitcnt vmcnt(0)')
            if ks == cfg.goks + 2: R.append(f's_or_b32 s6, s5, s28\ns_cmp_lg_u32 s6, 0\ns_cbranch_scc1 K_A_NOGO\nbuffer_store_dword v{V1}, v{VS0}, s[20:23], s35 offen sc1\nK_A_NOGO:')
            interleave(A, M, R, per_gap=2 if ks == 14 else 1)
    stamp(A, cfg, 5 if cfg.kst else 2)
    QP, KP, VP, SD, SP, MX, PK, PO, OO, SM, OP = 192, 204, 240, 48, 72, 96, 108, 120, 144, 168, 192
    C = [f'v_cvt_pk_bf16_f32 v{QP+i}, v{ACC+2*i}, v{ACC+2*i+1}' for i in range(24)]
    for m in defer[:2]: m()
    interleave(A, defer[2:], C, per_gap=2)
    A(f'v_mov_b32 v{VP}, 0\nv_mov_b32 v{VP+1}, 0')
    M = []
    for t in range(6):
        M.append(lambda t=t: mfma16(A, SD+4*t, KP+2*t, QP+2*t, MD))
        if t: M.append(lambda t=t: mfma16(A, SP+4*t, KP+2*t-2, QP+2*t, MP))
    V = []
    for t in range(6):
        V.append(f'v_cvt_pk_bf16_f32 v{VP+2+2*t}, v{ACC+48+4*t}, v{ACC+48+4*t+1}')
        V.append(f'v_cvt_pk_bf16_f32 v{VP+3+2*t}, v{ACC+48+4*t+2}, v{ACC+48+4*t+3}')
    interleave(A, M, V)
    for t in range(6):
        if t:
            for i in range(4): A(f'v_max_f32 v{SD+4*t+i}, v{SD+4*t+i}, v{SP+4*t+i}')
        A(f'v_max3_f32 v{MX+t}, v{SD+4*t}, v{SD+4*t+1}, v{SD+4*t+2}')
        A(f'v_max_f32 v{MX+t}, v{MX+t}, v{SD+4*t+3}')
    A('s_nop 1')
    for u in range(3): A(f'v_permlane32_swap_b32 v{MX+2*u}, v{MX+2*u+1}')
    for u in range(3): A(f'v_max_f32 v{MX+2*u}, v{MX+2*u}, v{MX+2*u+1}')
    for u in range(3): A(f'v_mov_b32 v{MX+2*u+1}, v{MX+2*u}')
    A('s_nop 0')
    for u in range(3): A(f'v_permlane16_swap_b32 v{MX+2*u}, v{MX+2*u+1}')
    for u in range(3): A(f'v_max_f32 v{MX+2*u}, v{MX+2*u}, v{MX+2*u+1}')
    for u in range(3): A(f'v_mul_f32 v{MX+2*u}, s34, v{MX+2*u}')
    for u in range(3): A(f'v_mov_b32 v{MX+2*u+1}, v{MX+2*u}')
    A('s_nop 0')
    for u in range(3): A(f'v_permlane32_swap_b32 v{MX+2*u}, v{MX+2*u+1}')
    for t in range(6):
        if cfg.pk:
            for i in (0, 2): A(f'v_pk_fma_f32 {vr(SD+4*t+i,2)}, {vr(SD+4*t+i,2)}, s[{PKS}:{PKS+1}], {vr(MX+(t&~1),2)} op_sel:[0,0,{t&1}] op_sel_hi:[1,1,{t&1}] neg_lo:[0,0,1] neg_hi:[0,0,1]')
        else:
            for i in range(4): A(f'v_fma_f32 v{SD+4*t+i}, v{SD+4*t+i}, s34, -v{MX+t}')
    for t in range(6):
        for i in range(4): A(f'v_exp_f32 v{SD+4*t+i}, v{SD+4*t+i}')
    if cfg.wf: A('ds_read_b32 v19, v17 offset:24')
    for t in range(6):
        cvt(A, PK+2*t, SD+4*t, SD+4*t+1); cvt(A, PK+2*t+1, SD+4*t+2, SD+4*t+3)
    for t in range(6):
        A(f'v_and_b32 v{PO+4*t+2}, v{PK+2*t}, v{BD}\nv_and_b32 v{PO+4*t+3}, v{PK+2*t+1}, v{BD+1}')
        A(f'v_xor_b32 v{PO+4*t}, v{PK+2*t}, v{PO+4*t+2}\nv_xor_b32 v{PO+4*t+1}, v{PK+2*t+1}, v{PO+4*t+3}')
        mfma16(A, SM+4*t, ONES, PK+2*t, None)
    A('s_nop 0')
    for t in range(6): mfma32(A, OO+4*t, VP+2*t, PO+4*t, None)
    A('s_nop 1')
    for t in range(6): A(f'v_rcp_f32 v{MX+t}, v{SM+4*t}')
    if cfg.wf: A('K_A_CW:\ns_waitcnt lgkmcnt(0)\nv_cmp_eq_u32 vcc, 1, v19\ns_cmp_lg_u64 vcc, 0\ns_cbranch_scc1 K_A_CWX\nds_read_b32 v19, v17 offset:24\ns_branch K_A_CW\nK_A_CWX:')
    if cfg.lw8 == 2: A(f's_mov_b64 exec, 1\nds_add_u32 v17, v{V1} offset:8\ns_mov_b64 exec, -1')
    A('s_nop 1')
    for u in range(3):
        for t in (2*u, 2*u+1):
            if cfg.pk:
                for i in (0, 2): A(f'v_pk_mul_f32 {vr(OO+4*t+i,2)}, {vr(OO+4*t+i,2)}, {vr(MX+(t&~1),2)} op_sel:[0,{t&1}] op_sel_hi:[1,{t&1}]')
            else:
                for i in range(4): A(f'v_mul_f32 v{OO+4*t+i}, v{OO+4*t+i}, v{MX+t}')
        for t in (2*u, 2*u+1):
            cvt(A, OP+2*t, OO+4*t, OO+4*t+1); cvt(A, OP+2*t+1, OO+4*t+2, OO+4*t+3)
        A('s_nop 1')
        A(f'v_permlane16_swap_b32 v{OP+4*u}, v{OP+4*u+2}\nv_permlane16_swap_b32 v{OP+4*u+1}, v{OP+4*u+3}')
        A(f'buffer_store_dwordx4 {vr(OP+4*u,4)}, v{ST}, s[8:11], s{60+u} offen')
    if cfg.lw8 == 1: A(f's_mov_b64 exec, 1\nds_add_u32 v17, v{V1} offset:8\ns_mov_b64 exec, -1')
    if not cfg.kst: stamp(A, cfg, 3)
    A('s_waitcnt vmcnt(0)')
    if not cfg.kst: stamp(A, cfg, 4)
    if cfg.wf:
        A(f's_mov_b64 exec, 1\nbuffer_store_dword v{VX}, v18, s[16:19], s58 offen')
    else:
        A(f'v_mov_b32 v7, {LDS_WORD}\ns_mov_b64 exec, 1\nds_add_rtn_u32 v8, v7, v{V1} offset:12\nds_read_b32 v9, v7 offset:24\nv_mov_b32 v10, 0\ns_waitcnt lgkmcnt(0)')
        A('v_cmp_ne_u32 vcc, 3, v8\ns_cmp_lg_u64 vcc, 0\ns_cbranch_scc1 K_A_NOSIG')
        A('K_A_CW:\nv_cmp_eq_u32 vcc, 1, v9\ns_cmp_lg_u64 vcc, 0\ns_cbranch_scc1 K_A_SIG\nds_read_b32 v9, v7 offset:24\ns_waitcnt lgkmcnt(0)\ns_branch K_A_CW')
        A(f'K_A_SIG:\nbuffer_store_dword v{VX}, v10, s[16:19], s58 offen')
        if cfg.wb == 1: A('s_waitcnt vmcnt(0)\nbuffer_wbl2 sc1')
    A('K_A_NOSIG:\ns_mov_b64 exec, -1\ns_setprio 0')
    if cfg.st0:
        srd_off(A, 24, P_WS, WS_DIAG, 0x100000)
        A('s_lshl_b32 s6, s2, 2\ns_add_u32 s6, s6, s3\ns_lshl_b32 s6, s6, 2\nv_mov_b32 v8, s64\nv_mov_b32 v7, 0\ns_mov_b64 exec, 1\nbuffer_store_dword v8, v7, s[24:27], s6 offen sc1\ns_mov_b64 exec, -1')
    if not cfg.kst: stamp(A, cfg, 5)
    A(f'v_mov_b32 v7, {LDS_WORD}\ns_barrier\nds_read_b32 v8, v7\ns_waitcnt lgkmcnt(0)\nv_readfirstlane_b32 s6, v8\ns_cmp_eq_u32 s6, 0\ns_cbranch_scc1 ' + ('K_A_CLEAN' if cfg.clean else 'K_A_CDONE'))
    for u in range(3): A(f'buffer_store_dwordx4 {vr(OP+4*u,4)}, v{ST}, s[8:11], s{60+u} offen sc1')
    A(f'v_cmp_eq_u32 vcc, 0, v2\ns_and_saveexec_b64 s[6:7], vcc\ns_waitcnt vmcnt(0)\nds_add_rtn_u32 v8, v7, v{V1} offset:4\ns_waitcnt lgkmcnt(0)')
    A(f'v_readfirstlane_b32 s28, v8\ns_cmp_lg_u32 s28, 3\ns_cbranch_scc1 K_A_CDONE')
    A(f's_add_u32 s58, s58, {GFLAG}\nv_mov_b32 v7, 0\nbuffer_store_dword v{V1}, v7, s[16:19], s58 offen sc1')
    if cfg.clean:
        A('s_branch K_A_CDONE\nK_A_CLEAN:')
        for u in range(3): A(f'buffer_store_dwordx4 {vr(OP+4*u,4)}, v{ST}, s[8:11], s{60+u} offen sc1')
    A('K_A_CDONE:')
    A('s_mov_b64 exec, -1')
    stamp_store(A, cfg, 7)
    A('s_endpgm')

def bstamp(A, cfg, slot, mode):
    if cfg.bst == mode: stamp(A, cfg, slot)

def b_all(A, cfg):
    G, F, M = 32, 38, 44
    X1, MAT, PITCH = 65536, 98304, 272
    A('s_and_b32 s5, s5, 7')
    A('s_lshl_b32 s29, s4, 2\ns_lshr_b32 s6, s5, 1\ns_add_u32 s29, s29, s6')
    A('v_lshlrev_b32 v36, 4, v2\ns_lshr_b32 s32, s3, 1\ns_and_b32 s33, s3, 1\ns_lshl_b32 s35, s3, 13')
    A('v_mov_b32 v14, 0\nv_mov_b32 v15, 1\nv_lshlrev_b32 v16, 7, v2')
    def early(tag=''):
        A('s_and_b32 s30, s5, 1\ns_lshl_b32 s30, s30, 2\ns_add_u32 s58, s30, s32')
        A('s_and_b32 s6, s5, 4\ns_lshl_b32 s31, s6, 1\ns_lshl_b32 s96, s6, 8\ns_cmp_eq_u32 s4, 0\ns_cselect_b32 s31, s31, s4\ns_cselect_b32 s96, 0, s96\ns_add_u32 s96, s96, s31')
        A('v_lshrrev_b32 v7, 2, v2\nv_and_b32 v8, 3, v2\nv_lshlrev_b32 v7, 6, v7\nv_lshl_add_u32 v7, v8, 3, v7\nv_and_b32 v8, 1, v4\nv_lshl_add_u32 v7, v8, 5, v7\nv_add_u32 v17, s35, v7\nv_xor_b32 v26, 32, v17')
        A('v_bfe_u32 v7, v2, 3, 1\nv_lshl_add_u32 v7, v7, 2, v4\nv_xor_b32 v7, v7, v6\nv_lshlrev_b32 v7, 4, v7\nv_lshl_add_u32 v18, v6, 12, v7')
        A(f's_lshl_b32 s6, s3, 9\ns_add_u32 s6, s6, {X1}\nv_add_u32 v18, s6, v18\ns_mul_i32 s6, s33, 48\nv_xor_b32 v18, s6, v18\nv_xor_b32 v27, 32, v18')
        A('v_bfe_u32 v8, v2, 3, 1\nv_mul_u32_u24 v8, 3, v8\nv_and_b32 v9, 4, v2\nv_lshrrev_b32 v9, 1, v9\nv_xor_b32 v8, v8, v9\nv_xor_b32 v8, v8, v4')
        A(f'v_lshlrev_b32 v7, 6, v3\nv_lshl_add_u32 v7, v8, 4, v7\ns_lshl_b32 s6, s32, 5\nv_xor_b32 v7, s6, v7\ns_lshl_b32 s6, s32, 13\ns_add_u32 s6, s6, {X1}\nv_add_u32 v19, s6, v7\nv_xor_b32 v20, 16, v19')
        A(f's_mov_b32 s6, {4*ZCLS}\nv_mul_lo_u32 v7, v4, s6\nv_lshl_add_u32 v22, v3, 4, v7')
        A(f's_mul_i32 s101, s29, {ZSIG}\ns_lshl_b32 s6, s33, 8\ns_add_u32 s101, s101, s6\ns_lshl_b32 s6, s58, 9\ns_add_u32 s101, s101, s6')
        A('s_lshl_b32 s6, s30, 1\nv_add_u32 v9, s6, v6')
        A('v_cmp_eq_u32 vcc, 1, v9\nv_mov_b32 v23, 16\nv_cvt_f32_u32 v25, v3\nv_cndmask_b32 v9, v9, v23, vcc')
        A('v_lshrrev_b32 v7, 1, v9\nv_and_b32 v8, 1, v9\nv_cvt_f32_u32 v7, v7\nv_cvt_f32_u32 v8, v8\nv_cvt_f32_u32 v9, v4')
        A('v_mul_f32 v7, 0x3d800000, v7\nv_mul_f32 v25, 0x3d800000, v25\nv_mul_f32 v9, 4.0, v9\nv_mul_f32 v24, 0x3e800000, v8\nv_fmac_f32 v24, v7, v9\nv_mul_f32 v23, v25, v9')
        for i in range(4):
            A(f'v_cos_f32 v{96+i}, v24\nv_cos_f32 v{100+i}, v23\nv_sin_f32 v{104+i}, v23')
            if i < 3: A('v_add_f32 v24, v24, v7\nv_add_f32 v23, v23, v25')
        A('v_cmp_lt_u32 vcc, 7, v3')
        cvt(A, 24, 96, 97); cvt(A, 25, 98, 99)
        A(f'v_cndmask_b32 v{G}, v24, v14, vcc\nv_cndmask_b32 v{G+1}, v25, v14, vcc\nv_cndmask_b32 v{G+2}, v14, v24, vcc\nv_cndmask_b32 v{G+3}, v14, v25, vcc')
        for q in range(4): cvt(A, F+q, 100+2*q, 101+2*q)
        A(f'v_xor_b32 v{F+4}, 0x80008000, v{F}\nv_xor_b32 v{F+5}, 0x80008000, v{F+1}')
        def gen_m(dst, extra):
            A(f's_lshl_b32 s6, s33, 8\ns_add_u32 s6, s6, s58\ns_add_u32 s6, s6, {extra}\nv_lshl_add_u32 v7, v3, 4, s6\nv_cvt_f32_u32 v7, v7\nv_mul_f32 v7, 0xbb000000, v7')
            A('v_lshlrev_b32 v8, 2, v4\nv_cvt_f32_u32 v8, v8\nv_mul_f32 v8, v7, v8\nv_mul_f32 v9, 0x41500000, v7')
            for i in range(8):
                A(f'v_cos_f32 v{96+i}, v8\nv_sin_f32 v{104+i}, v8')
                if i < 7: A(f'v_add_f32 v8, v8, v{9 if i == 3 else 7}')
            A('s_nop 0')
            for q in range(8): cvt(A, dst+q, 96+2*q, 97+2*q)
        gen_m(M, 0)
        for i in range(4): A(f'v_xor_b32 v{M+8+i}, 0x80008000, v{M+4+i}')
        A('s_cmp_lg_u32 s58, 0\ns_cbranch_scc1 K_B_NOM8' + tag)
        gen_m(M + 8, 8)
        A('K_B_NOM8' + tag + ':')
    def gen_init():
        A('s_sub_u32 s6, s3, 4\ns_lshl_b32 s6, s6, 8\ns_add_u32 s6, s6, s96\nv_lshl_add_u32 v7, v3, 4, s6\nv_cvt_f32_u32 v7, v7\nv_mul_f32 v240, 0xba000000, v7\nv_mul_f32 v241, 0x41500000, v240')
        A('s_and_b32 s6, s5, 4\ns_lshl_b32 s6, s6, 4\nv_lshl_add_u32 v8, v4, 2, s6\nv_cvt_f32_u32 v242, v8')
        A(f's_lshl_b32 s6, s3, 13\ns_add_u32 s6, s6, {MAT - 32768}\nv_add_u32 v243, s6, v36')
    def gen_mat(label, n):
        if n == 0: return
        A(f's_mov_b32 s7, 0\ns_mov_b32 s6, 0x43000000\n{label}:')
        A('v_mul_f32 v9, v240, v242')
        for half in range(2):
            b = 96 + 8 * half
            for i in range(4):
                A(f'v_cos_f32 v{b+i}, v9\nv_sin_f32 v{b+4+i}, v9' + (f'\nv_add_f32 v9, v9, v{240 if i < 3 else 241}' if (i < 3 or half == 0) else ''))
        A('v_add_f32 v242, 0x42000000, v242')
        for half in range(2):
            for q in range(4): cvt(A, 112+4*half+q, 96+8*half+2*q, 97+8*half+2*q)
            A(f'ds_write_b128 v243, {vr(112+4*half,4)} offset:{half*1024}')
        A(f'v_cmp_le_f32 vcc, s6, v242\nv_add_u32 v243, 2048, v243\nv_subrev_f32 v9, s6, v242\ns_add_u32 s7, s7, 1\nv_cndmask_b32 v242, v242, v9, vcc\ns_cmp_lt_u32 s7, {n}\ns_cbranch_scc1 {label}')
    if cfg.bfirst: early()
    A('s_cmp_ge_u32 s3, 4\ns_cbranch_scc1 K_B_GEN')
    A('s_and_b32 s97, s5, 1\ns_lshl_b32 s97, s97, 2\ns_add_u32 s97, s97, s3\nv_and_b32 v37, 1, v4\nv_lshlrev_b32 v37, 5, v37\nv_xor_b32 v37, v37, v36')
    if cfg.smap: A('s_lshr_b32 s7, s97, 1\ns_lshl_b32 s7, s7, 5\ns_add_u32 s6, s29, s7\ns_lshl_b32 s7, s33, 10\ns_add_u32 s6, s6, s7\ns_lshl_b32 s34, s6, 10\ns_lshl_b32 s97, s97, 13')
    else: A('s_lshl_b32 s6, s29, 2\ns_lshr_b32 s7, s97, 1\ns_add_u32 s6, s6, s7\ns_lshl_b32 s7, s33, 10\ns_add_u32 s6, s6, s7\ns_lshl_b32 s34, s6, 10\ns_lshl_b32 s97, s97, 13')
    if cfg.cpf == 1:
        A(f's_getpc_b64 s[8:9]\nK_B_PC:\ns_sub_u32 s8, s8, K_B_PC-{NAME}_kernel\ns_subb_u32 s9, s9, 0\ns_mov_b32 s10, K_END-{NAME}_kernel\ns_mov_b32 s11, 0x20000')
        A('s_lshl_b32 s6, s3, 3\ns_add_u32 s6, s6, s5\ns_lshl_b32 s6, s6, 10\nbuffer_load_dwordx4 v[244:247], v36, s[8:11], s6 offen')
    if cfg.help:
        A('s_lshl_b32 s6, s5, 2\ns_add_u32 s6, s6, s3\ns_mul_i32 s28, s6, 9')
        A('s_lshl_b32 s100, s4, 5\ns_add_u32 s100, s100, s6\ns_mul_i32 s100, s100, 768')
    A('s_mov_b32 s7, 0\ns_waitcnt lgkmcnt(0)')
    srd(A, 20, P_BX, 0x200000)
    stamp(A, cfg, 1)
    if cfg.help:
        srd(A, 8, P_AX, 0x200000); srd(A, 12, P_WQKV, 0x180000)
        A('v_cmp_gt_u32 vcc, 48, v2\nv_mov_b32 v10, 0x80000000\ns_mul_i32 s59, s4, 3\nv_cndmask_b32 v10, v10, v36, vcc')
        for n in range(9):
            A(f's_add_u32 s6, s28, {n}\ns_mul_i32 s58, s6, 683\ns_lshr_b32 s58, s58, 16\ns_mul_i32 s30, s58, 96\ns_sub_u32 s6, s6, s30\ns_add_u32 s58, s58, s59')
            A('s_lshr_b32 s30, s58, 1\ns_mul_i32 s30, s30, 88\ns_add_u32 s6, s6, s30\ns_lshl_b32 s6, s6, 1\ns_and_b32 s58, s58, 1\ns_add_u32 s6, s6, s58\ns_lshl_b32 s6, s6, 10')
            A('buffer_load_dwordx4 v[244:247], v36, s[8:11], s6 offen')
            if cfg.help > 1 and 1 <= n <= 7: A(f's_add_u32 s6, s100, {n*196608}\nbuffer_load_dwordx4 v[244:247], v10, s[12:15], s6 offen')
    def c3b(m0, m1):
        if m0 == 0 and m1 > 0:
            srd(A, 12, P_WQKV, 0x180000)
            A(f's_lshl_b32 s59, s5, 2\ns_add_u32 s59, s59, s3\ns_lshl_b32 s59, s59, 13\ns_mul_i32 s28, s4, {cfg.rotx}\ns_add_u32 s28, s28, {cfg.rot0}\ns_and_b32 s28, s28, 7\ns_mul_i32 s28, s28, 196608\ns_add_u32 s59, s59, s28')
            A('v_lshlrev_b32 v10, 10, v5\nv_lshl_add_u32 v10, v6, 4, v10')
        for m in range(m0, m1):
            A('s_sub_u32 s28, s59, 0x180000\ns_cselect_b32 s59, s59, s28')
            A('buffer_load_dwordx4 v[244:247], v10, s[12:15], s59 offen offset:384\ns_add_u32 s59, s59, 0x40000')
    c3b(0, cfg.c3a)
    def xblock(n0, n1):
        for n in range(n0, n1):
            if n == 8: A(f's_xor_b32 s34, s34, {65536 if cfg.smap else 2048}\ns_xor_b32 s97, s97, 0x8000')
            A(f's_add_u32 m0, s97, {(n&7)*1024}\ns_add_u32 s6, s34, {(n&7)*131072}')
            A('buffer_load_dwordx4 v37, s[20:23], s6 offen lds')
    xblock(0, cfg.xs)
    if cfg.xs < 16:
        A('K_B_GEN:')
        early()
        A('s_cmp_ge_u32 s3, 4\ns_cbranch_scc1 K_B_GEN2')
        xblock(cfg.xs, 16)
    late = 0
    c3b(cfg.c3a, cfg.c3n); late += cfg.c3n - cfg.c3a
    if cfg.xpf == 3:
        srd(A, 12, P_AX, 0x200000)
        A(f's_mul_i32 s6, s4, {128*cfg.rotx}\ns_add_u32 s6, s6, 512\nv_and_b32 v11, 0x1ff, v36\nv_add_u32 v11, s6, v11\nv_and_b32 v11, 0x3ff, v11')
        A('s_lshl_b32 s6, s5, 2\ns_add_u32 s6, s6, s3\ns_mul_i32 s6, s6, 9\nv_lshrrev_b32 v12, 5, v2\nv_add_u32 v12, s6, v12\ns_mul_i32 s6, s4, 3')
        for n in range(5):
            A('v_mul_u32_u24 v8, 683, v12\nv_lshrrev_b32 v8, 16, v8\nv_mul_u32_u24 v9, 96, v8\nv_sub_u32 v7, v12, v9')
            A('v_add_u32 v8, s6, v8\nv_lshrrev_b32 v9, 1, v8\nv_mul_u32_u24 v9, 88, v9\nv_add_u32 v7, v7, v9\nv_and_b32 v8, 1, v8\nv_lshl_add_u32 v7, v7, 1, v8')
            A('v_lshl_add_u32 v7, v7, 10, v11\nv_add_u32 v12, 2, v12\nbuffer_load_dwordx4 v[244:247], v7, s[12:15], 0 offen')
        late += 5
    if cfg.womall:
        srd(A, 12, P_WO, 0x80000)
        A('s_lshl_b32 s28, s4, 3\ns_add_u32 s28, s28, s5\ns_lshl_b32 s28, s28, 2\ns_add_u32 s28, s28, s3\ns_lshl_b32 s28, s28, 11')
        A('buffer_load_dwordx4 v[244:247], v36, s[12:15], s28 offen\nbuffer_load_dwordx4 v[244:247], v36, s[12:15], s28 offen offset:1024'); late += 2
    if cfg.xs < 16: A('K_B_GEN2:')
    else:
        A('K_B_GEN:')
        if not cfg.bfirst: early()
    A(f's_waitcnt vmcnt({late})\ns_cmp_lt_u32 s3, 4\ns_cbranch_scc1 K_B_XOK')
    gen_init(); gen_mat('K_B_GL1', cfg.gsplit)
    stamp(A, cfg, 1)
    A('K_B_XOK:')
    A('s_waitcnt lgkmcnt(0)')
    srd_off(A, 8, P_WS, WS_Z, Z_SIZE); srd(A, 12, P_OUT, 0x400000); srd_off(A, 60, P_WS, WS_FLAG, FLAG_SIZE); srd(A, 16, P_DBG, 256); srd(A, 20, P_WO, 0x80000)
    A('s_lshl_b32 s28, s5, 3\ns_add_u32 s28, s28, s3\ns_lshl_b32 s28, s28, 13\ns_add_u32 s97, s28, 4096')
    def wopf(r):
        if cfg.wopf:
            for n in range(4): A(f'buffer_load_dwordx4 v[244:247], v36, s[20:23], s{r} offen offset:{n*1024}')
    A('s_barrier')
    stamp(A, cfg, 2)
    if cfg.bprio == 1: A('s_cmp_lt_u32 s3, 4\ns_cbranch_scc1 K_B_NP\ns_setprio 1\nK_B_NP:')
    DA, DD = 64, 96
    for p in range(4):
        for h in range(2):
            for rb in range(2): A(f'ds_read_b64_tr_b16 {vr(DA+8*p+4*h+2*rb,2)}, v{26 if h else 17} offset:{(2*p+rb)*1024}')
    wopf(28)
    def pwb():
        srd_off(A, 24, P_WS, WS_O, O_SIZE)
        A(f's_lshl_b32 s6, s4, 3\ns_add_u32 s6, s6, s5\ns_lshl_b32 s6, s6, 3\ns_add_u32 s6, s6, s3\ns_mul_i32 s6, s6, {36*128}\ns_mov_b32 exec_hi, 15')
        A('buffer_load_dword v31, v16, s[24:27], s6 offen sc1\ns_mov_b64 exec, -1')
    if cfg.pwb == 1: pwb()
    PA = 128
    def pk_a(p): return [f'v_cvt_pk_bf16_f32 v{PA+4*p+q}, v{DD+8*p+2*q}, v{DD+8*p+2*q+1}' for q in range(4)] + [f'ds_write_b128 v{27 if p >= 2 else 18}, {vr(PA+4*p,4)} offset:{p*128}']
    for i in range(8):
        A(f's_waitcnt lgkmcnt({14 - 2*i})')
        mfma32(A, DD+4*i, DA+4*i, G, None)
        if i >= 6:
            for x in pk_a(0)[2*(i-6):2*(i-6)+2]: A(x)
    bstamp(A, cfg, 3, 1)
    for x in pk_a(0)[4:] + pk_a(1) + pk_a(2) + pk_a(3): A(x)
    A('s_waitcnt lgkmcnt(0)')
    bstamp(A, cfg, 4, 1)
    A('s_barrier')
    bstamp(A, cfg, 5, 1)
    XF, U, BO, Z, PK = 64, 96, 160, 192, 224
    for sp in range(4):
        for h in range(2): A(f'ds_read_b128 {vr(XF+16*h+4*sp,4)}, v{19+h} offset:{h*4096+sp*1024}')
    wopf(97)
    def cv_u(u, bo, sp): return [f'v_cvt_pk_bf16_f32 v{bo+4*sp+q}, v{u+8*sp+2*q}, v{u+8*sp+2*q+1}' for q in range(4)]
    def mf_c(z, bo, sp): return [lambda part=part: mfma32(A, z+16*part+4*sp, F+2*part, bo+4*sp, None) for part in range(2)]
    def cv_z(z, pk, q): return [f'v_cvt_pk_bf16_f32 v{pk+4*i+2*part+q}, v{z+16*part+8*q+i}, v{z+16*part+8*q+4+i}' for i in range(4) for part in range(2)]
    def fin(z, pk, off):
        c = cv_z(z, pk, 1)
        for i in range(4):
            A(c[2*i]); A(c[2*i+1]); A(f's_add_u32 s7, s101, {i*ZCLS + off}\nbuffer_store_dwordx4 {vr(pk+4*i,4)}, v22, s[8:11], s7 offen sc1')
    A('s_cmp_eq_u32 s58, 0\ns_cbranch_scc1 K_B_W0')
    def mf_b(sp): return [lambda: mfma32(A, U+8*sp, XF+4*sp, M, None), lambda: mfma32(A, U+8*sp+4, XF+4*sp, M+4, None),
                          lambda: mfma32(A, U+8*sp, XF+16+4*sp, M+8, U+8*sp), lambda: mfma32(A, U+8*sp+4, XF+16+4*sp, M, U+8*sp+4)]
    for sp in range(4):
        A(f's_waitcnt lgkmcnt({6 - 2*sp})')
        interleave(A, mf_b(sp), cv_u(U, BO, sp - 3) + cv_u(U, BO, 1) if sp == 3 else [], per_gap=2)
    interleave(A, mf_c(Z, BO, 0) + mf_c(Z, BO, 1), cv_u(U, BO, 2) + ['s_nop 0'] + cv_u(U, BO, 3), per_gap=2)
    A('s_nop 0')
    interleave(A, mf_c(Z, BO, 2) + mf_c(Z, BO, 3), [])
    A('s_nop 1')
    for x in cv_z(Z, PK, 0): A(x)
    fin(Z, PK, 0)
    A('s_branch K_B_SIG')
    A('K_B_W0:')
    Z2, PK2 = 64, 96
    def mf_r(h, sp): return [lambda: mfma32(A, U+32*h+8*sp, XF+16*h+4*sp, M+8*h, None), lambda: mfma32(A, U+32*h+8*sp+4, XF+16*h+4*sp, M+8*h+4, None)]
    for sp in range(4):
        A(f's_waitcnt lgkmcnt({7 - 2*sp})')
        for m in mf_r(0, sp): m()
    A('s_waitcnt lgkmcnt(0)')
    interleave(A, sum((mf_r(1, sp) for sp in range(4)), []), sum((cv_u(U, BO, sp) for sp in range(4)), []), per_gap=2)
    interleave(A, sum((mf_c(Z, BO, sp) for sp in range(4)), []), sum((cv_u(U+32, BO+16, sp) for sp in range(4)), []), per_gap=2)
    interleave(A, sum((mf_c(Z2, BO+16, sp) for sp in range(4)), []), cv_z(Z, PK, 0), per_gap=1)
    fin(Z, PK, 0)
    for x in cv_z(Z2, PK2, 0): A(x)
    fin(Z2, PK2, 8*512)
    A('K_B_SIG:\n;@PAGE b')
    bstamp(A, cfg, 6, 1)
    bstamp(A, cfg, 3, 0)
    if cfg.pwb == 2: pwb()
    AM, SW, ZF, MF, ACC, T = 23, 24, 160, 32, 224, 32
    A('s_and_b32 s30, s5, 3')
    A(f'v_mul_u32_u24 v7, {PITCH}, v4\nv_lshl_add_u32 v12, v3, 4, v7\ns_mul_i32 s7, s3, {8*PITCH}\nv_add_u32 v12, s7, v12\nv_lshlrev_b32 v7, 15, v4\nv_lshl_add_u32 v13, v3, 4, v7\nv_xor_b32 v17, {3*32768}, v13\nv_lshlrev_b32 v7, 5, v3\nv_sub_u32 v19, v12, v7\nv_add_u32 v19, 240, v19')
    A('s_lshl_b32 s6, s96, 11\ns_lshl_b32 s7, s30, 8\ns_add_u32 s6, s6, s7\ns_lshl_b32 s7, s3, 18\ns_add_u32 s6, s6, s7\ns_add_u32 s34, s6, 1024')
    A(f's_sub_u32 s97, {2048*2048 - 3*32768 + 1024 + 768}, s6\nv_add_u32 v{AM}, {MAT}, v36\nv_mov_b32 v18, 0xffff')
    A(f's_and_b32 s33, s5, 4\ns_mul_i32 s33, s33, {4*ZSIG}')
    A('s_cmp_ge_u32 s3, 4\ns_cbranch_scc1 K_B_AUX')
    A(f'v_lshrrev_b32 v8, 1, v4\nv_and_b32 v9, 1, v4')
    A('s_sub_u32 s6, 16, s31\ns_and_b32 s6, s6, 15\ns_lshl_b32 s7, s3, 2\ns_sub_u32 s28, 13, s7\ns_sub_u32 s35, 3, s30')
    A('s_cmp_ge_u32 s3, 2\ns_cselect_b32 s6, s6, s31\ns_cselect_b32 s7, s28, s7\ns_cselect_b32 s35, s35, s30\ns_cselect_b32 s58, 0x80008000, 0\ns_cselect_b32 s28, 3, 0\ns_cselect_b32 s29, 7, 0')
    A(f's_mul_i32 s6, s6, {ZCLS}\ns_lshl_b32 s7, s7, 9\ns_add_u32 s6, s6, s7\ns_lshl_b32 s35, s35, 7\ns_add_u32 s35, s35, s6')
    A(f'v_mul_u32_u24 v7, {ZSIG}, v4\nv_lshl_add_u32 v7, v6, 4, v7\nv_bfe_u32 v10, v2, 3, 1\nv_lshlrev_b32 v10, 1, v10\nv_xor_b32 v10, s28, v10\nv_xor_b32 v11, 1, v10')
    A('v_lshl_add_u32 v10, v10, 9, v7\nv_lshl_add_u32 v11, v11, 9, v7')
    A(f'v_mul_u32_u24 v7, {PITCH}, v3\nv_lshl_add_u32 v7, v8, 2, v7\ns_lshl_b32 s6, s3, 3\nv_add_u32 v7, s6, v7\nv_lshlrev_b32 v9, 2, v9\nv_xor_b32 v9, s29, v9')
    for i in range(4): A(f'v_xor_b32 v8, {i}, v9\nv_lshl_add_u32 v{SW+i}, v8, 5, v7')
    A('v_mov_b32 v20, v10\nv_mov_b32 v21, v11\ns_sub_u32 s100, s35, s33\ns_add_u32 s35, s35, s33')
    A('s_cmp_lg_u32 s3, 2\ns_cbranch_scc1 K_B_RDY_X\nv_lshlrev_b32 v7, 2, v6')
    poll(A, 'K_B_RDY', 9, 7, 16, 0, 1)
    A('s_waitcnt vmcnt(0)')
    bstamp(A, cfg, 4, 0)
    A('s_barrier')
    A('s_cmp_lg_u32 s3, 3\ns_cbranch_scc1 K_B_NOSIG')
    A(f's_lshl_b32 s6, s4, 3\ns_add_u32 s6, s6, s5\ns_lshl_b32 s6, s6, 7\ns_add_u32 s6, s6, {BFLAG}')
    A('s_mov_b64 exec, 1\nbuffer_store_dword v15, v14, s[60:63], s6 offen sc1\ns_mov_b64 exec, -1')
    A('K_B_NOSIG:')
    if cfg.pwb == 3: pwb()
    for k in range(8):
        for tt in range(4): A(f'ds_read_b128 {vr(MF+16*k+4*tt,4)}, v{AM} offset:{tt*8192 + k*1024}')
    A(f's_cmp_lg_u32 s3, 3\ns_cbranch_scc1 K_B_POLL_X\ns_mov_b32 s7, {BFLAG}')
    poll(A, 'K_B_POLL', 9, 16, 60, 's7', 1)
    A('s_barrier')
    bstamp(A, cfg, 5, 0)
    for k in range(8):
        A(f's_add_u32 s7, s{35 if k < 4 else 100}, {k*4*ZSIG}')
        for a in range(2): A(f'buffer_load_dwordx4 {vr(ZF+8*k+4*a,4)}, v{20+a}, s[8:11], s7 offen sc1')
    for k in range(8):
        A(f's_waitcnt vmcnt({14-2*k}) lgkmcnt(0)')
        for a in range(2): A(f'v_xor_b32 v{ZF+8*k+4*a+2}, s58, v{ZF+8*k+4*a+2}\nv_xor_b32 v{ZF+8*k+4*a+3}, s58, v{ZF+8*k+4*a+3}')
        for a in range(2):
            for tt in range(4): mfma32(A, ACC+8*tt+4*a, ZF+8*k+4*a, MF+16*k+4*tt, ACC+8*tt+4*a if k else None)
    bstamp(A, cfg, 6, 0)
    A('s_cmp_lg_u32 s96, 0\ns_cbranch_scc1 K_B_NOX')
    A('v_mov_b32 v64, 0xbf803f80\nv_mov_b32 v65, 0xbf803f80\nv_mov_b32 v66, 0\nv_mov_b32 v67, 0\ns_nop 1')
    for k in range(8):
        for a in range(2): mfma32(A, 68+4*a, ZF+8*k+4*a, 64, 68+4*a if k else None)
    A('s_nop 7')
    for i in range(4):
        cvt(A, 76+i, 68+i, 72+i); A(f'ds_write_b32 v{SW+i}, v{76+i} offset:{64*PITCH}')
    A('K_B_NOX:\ns_nop 2')
    for tt in range(4):
        for i in range(4):
            cvt(A, T+4*tt+i, ACC+8*tt+i, ACC+8*tt+4+i); A(f'ds_write_b32 v{SW+i}, v{T+4*tt+i} offset:{tt*16*PITCH}')
    A('s_branch K_B_FIN')
    A('K_B_AUX:')
    gen_mat('K_B_GL2', 4 - cfg.gsplit)
    A(f's_sub_u32 s6, s3, 4\ns_lshl_b32 s7, s6, 13\nv_add_u32 v7, s7, v{AM}\ns_mul_i32 s6, s6, {16*PITCH}\nv_mul_u32_u24 v8, {PITCH}, v3\nv_add_u32 v8, s6, v8\nv_mul_u32_u24 v20, {ZSIG}, v4')
    for k in range(8): A(f'ds_read_b128 {vr(MF+4*k,4)}, v7 offset:{k*1024}')
    A(f's_add_u32 s6, s30, 1\ns_and_b32 s6, s6, 3\ns_lshl_b32 s6, s6, 7\ns_mul_i32 s7, s31, {ZCLS}\ns_add_u32 s6, s6, s7\ns_sub_u32 s100, s6, s33\ns_add_u32 s35, s6, s33\ns_setprio 3')
    A('s_waitcnt vmcnt(0) lgkmcnt(0)')
    bstamp(A, cfg, 4, 0)
    A('s_barrier')
    if cfg.pwb == 3: pwb()
    A('s_barrier')
    bstamp(A, cfg, 5, 0)
    for k in range(8):
        A(f's_add_u32 s7, s{35 if k < 4 else 100}, {k*4*ZSIG}\nbuffer_load_dwordx4 {vr(ZF+4*k,4)}, v20, s[8:11], s7 offen sc1')
    for k in range(8):
        A(f's_waitcnt vmcnt({7-k}) lgkmcnt(0)')
        mfma32(A, ACC, ZF+4*k, MF+4*k, ACC if k else None)
    A(f's_nop 7\nv_cvt_pk_bf16_f32 v{T}, v{ACC}, v{ACC}\nds_write_b16 v8, v{T} offset:256')
    if cfg.wb == 2: A('s_xor_b32 s6, s3, 7\ns_or_b32 s6, s6, s5\ns_cmp_lg_u32 s6, 0\ns_cbranch_scc1 K_B_NOWB\nbuffer_wbl2 sc1\nK_B_NOWB:')
    bstamp(A, cfg, 6, 0)
    A('K_B_FIN:')
    A('s_waitcnt lgkmcnt(0)\ns_barrier')
    for n in range(2): A(f'ds_read_b128 {vr(108+4*n,4)}, v12 offset:{4*n*PITCH}')
    for n in range(2): A(f'ds_read_b128 {vr(80+8*n,4)}, v19 offset:{4*n*PITCH}\nds_read_b32 v{84+8*n}, v19 offset:{4*n*PITCH + 16}')
    for n in range(2):
        A(f's_add_u32 s6, s34, {(4*n) << 15}\ns_waitcnt lgkmcnt({5-n})')
        A(f'buffer_store_dwordx4 {vr(108+4*n,4)}, v13, s[12:15], s6 offen{cfg.outflagb}')
    for n in range(2):
        b = 80 + 8 * n
        A(f's_sub_u32 s7, s97, {(4*n) << 15}\ns_waitcnt lgkmcnt({2-2*n})')
        for q in range(4): A(f'v_bfi_b32 v{96+4*n+q}, v18, v{b+4-q}, v{b+3-q}')
        A(f'buffer_store_dwordx4 {vr(96+4*n,4)}, v17, s[12:15], s7 offen{cfg.outflagb}')
    A('s_or_b32 s6, s96, s3\ns_cmp_lg_u32 s6, 0\ns_cbranch_scc1 K_B_NOX2')
    A(f'ds_read_b128 v[104:107], v12 offset:{64*PITCH}\ns_add_u32 s6, s34, {64 << 15}\ns_mov_b64 exec, 0xffff\ns_waitcnt lgkmcnt(0)')
    A(f'buffer_store_dwordx4 v[104:107], v13, s[12:15], s6 offen{cfg.outflagb}\ns_mov_b64 exec, -1')
    A('K_B_NOX2:')
    stamp_store(A, cfg, 8)
    A('s_endpgm')

def main():
    ap = argparse.ArgumentParser()
    ap.add_argument('-o', default=f'cdna_kernels/{NAME}.s')
    ap.add_argument('--diag', action='store_true')
    ap.add_argument('--xa', default='3,10,10,10,10,10,10,6')
    ap.add_argument('--pre', type=int, default=12); ap.add_argument('--opre', type=int, default=10)
    ap.add_argument('--outflag', default='sc1'); ap.add_argument('--outflagb', default='sc1')
    ap.add_argument('--rot', type=int, default=1); ap.add_argument('--rotx', type=int, default=1); ap.add_argument('--q3', type=int, default=0)
    ap.add_argument('--help_', dest='help', type=int, default=0); ap.add_argument('--help0', type=int, default=1)
    ap.add_argument('--hbar', type=int, default=1)
    ap.add_argument('--cpf', type=int, default=2)
    ap.add_argument('--swap', type=int, default=1); ap.add_argument('--hsplit', type=int, default=4)
    ap.add_argument('--gsplit', type=int, default=3); ap.add_argument('--goks', type=int, default=2)
    ap.add_argument('--xpf', type=int, default=0); ap.add_argument('--xprio', type=int, default=0)
    ap.add_argument('--c3', type=int, default=0)
    ap.add_argument('--chk', type=int, default=12)
    ap.add_argument('--cgx', type=int, default=1); ap.add_argument('--wopf', type=int, default=0)
    ap.add_argument('--batom', type=int, default=0)
    ap.add_argument('--clean', type=int, default=0); ap.add_argument('--b9', type=int, default=14)
    ap.add_argument('--chk2', type=int, default=10)
    ap.add_argument('--pk', type=int, default=1)
    ap.add_argument('--c3b', type=int, default=2); ap.add_argument('--c3n', type=int, default=6)
    ap.add_argument('--womall', type=int, default=1); ap.add_argument('--pwb', type=int, default=3)
    ap.add_argument('--gon', type=int, default=4)
    ap.add_argument('--rot0', type=int, default=0)
    ap.add_argument('--bfirst', type=int, default=0)
    ap.add_argument('--xs', type=int, default=8)
    ap.add_argument('--smap', type=int, default=0)
    ap.add_argument('--kst', type=int, default=0); ap.add_argument('--cprio', type=int, default=2)
    ap.add_argument('--c3a', type=int, default=1)
    ap.add_argument('--pwpos', type=int, default=0)
    ap.add_argument('--two', type=int, default=0); ap.add_argument('--lper', type=int, default=0)
    ap.add_argument('--wb', type=int, default=0)
    ap.add_argument('--lws', type=int, default=0)
    ap.add_argument('--align', type=int, default=1); ap.add_argument('--kw', type=int, default=3); ap.add_argument('--kn', type=int, default=1000)
    ap.add_argument('--lw8', type=int, default=1)
    ap.add_argument('--pages', type=int, default=1); ap.add_argument('--cpage', type=int, default=1)
    ap.add_argument('--bmove', type=int, default=1)
    ap.add_argument('--st0', type=int, default=0)
    ap.add_argument('--k8', type=int, default=1); ap.add_argument('--bprio', type=int, default=0); ap.add_argument('--wf', type=int, default=1)
    ap.add_argument('--pp', type=int, default=0)
    ap.add_argument('--lead', type=int, default=0)
    ap.add_argument('--rotq', type=int, default=1)
    ap.add_argument('--bst', type=int, default=0)
    ap.add_argument('--warmat', type=int, default=7); ap.add_argument('--n1', type=int, default=60)
    cfg = ap.parse_args()
    cfg.xa = [int(x) for x in cfg.xa.split(',')]
    if cfg.rotq: cfg.rot0 = 3
    cfg.outflag = '' if cfg.outflag == 'plain' else ' ' + cfg.outflag.replace('+', ' ')
    cfg.outflagb = '' if cfg.outflagb == 'plain' else ' ' + cfg.outflagb.replace('+', ' ')
    A = Asm()
    A(f'; @launch grid=(256,1,1) block=(512,1,1) lds={LDS_TOTAL}')
    A('.amdgcn_target "amdgcn-amd-amdhsa--gfx950"\n.text')
    kernel(A, cfg)
    A(f""".section .rodata,"a"
.p2align 6
.amdhsa_kernel {NAME}_kernel
.amdhsa_next_free_vgpr 256
.amdhsa_next_free_sgpr 102
.amdhsa_accum_offset 256
.amdhsa_group_segment_fixed_size 0
.amdhsa_kernarg_size 88
.amdhsa_user_sgpr_count 2
.amdhsa_user_sgpr_kernarg_segment_ptr 1
.amdhsa_system_sgpr_workgroup_id_x 1
.end_amdhsa_kernel""")
    if cfg.align:
        sys.path.insert(0, 'dev'); import align
        A.L, nw, nn = align.align(A.L, cfg.kw, cfg.kn)
        print('aligned: widened', nw, 'nops', nn)
    if cfg.pages: A.L = align.pages(A.L)
    NOTES = {'K_NOPF:': '; decode: s3 wave, s4 XCD slot, s5 index; v2 lane, v3 l&15, v4 l>>4, v5 l>>3, v6 l&7.  A loader waves fall through (LDS-DMA ring, 8 chunks of 64 k, then the wo slice)', 'K_B:': '; ---- branch B: waves 0..3 load 64 rows of x (and warm L2 for branch A), waves 4..7 build DFT factors', 'K_A_EVEN:': '; ---- A phase 2, even loader waves: own row tile + second K half of a shared tile', 'K_A_ODD:': '; ---- A phase 2, odd loader waves: own row tile + first K half of a shared tile (partial sums via LDS)', 'K_A_CONS:': '; ---- A consumer waves (one head each): set-up, qkv GEMM loop, attention, hand-off', 'K_A_ML:': '; qkv GEMM: 8 k-steps per pass over the 4 ring slots, two passes', 'K_A_MT:': '; last two k-steps, then attention: S^T = K Q^T (+ window masks), true max, exp2, P V, 1/sum', 'K_B_GEN:': '; 16-point factors G / F and the 32x32 hidden factors M', 'K_B_XOK:': '; stage a (16-point over the strided hidden index), LDS transpose, stage b (32-point), stage c (16-point over rows), write-through store of Z', 'K_B_SIG:': '; ---- B phase 2: 128-point sequence stage for one residue class, direct and mirrored stores'}
    A.L = [x for l in A.L for x in (([NOTES[l], l] if l != 'K_NOPF:' else [l, NOTES[l]]) if l in NOTES else [l])]
    txt = A.text()
    if cfg.st0:
        txt = txt.replace('; @launch grid', f'; @launch kernel={NAME}_kernel grid', 1).replace('\n', '\n; @launch kernel=t_kernel grid=(1,1,1) block=(64,1,1) lds=0\n', 1)
        txt = txt.replace('.section .rodata,"a"\n', '''.globl t_kernel
.p2align 8
.type t_kernel,@function
t_kernel:
    s_memrealtime s[10:11]
    s_load_dwordx2 s[4:5], s[0:1], 80
    s_waitcnt lgkmcnt(0)
    s_add_u32 s16, s4, 0x800000
    s_addc_u32 s17, s5, 0
    s_mov_b32 s18, 0x100000
    s_mov_b32 s19, 0x20000
    v_mov_b32 v1, s10
    v_mov_b32 v2, 0x1000
    buffer_store_dword v1, v2, s[16:19], 0 offen
    s_endpgm
.section .rodata,"a"
''') + '''.p2align 6
.amdhsa_kernel t_kernel
.amdhsa_next_free_vgpr 8
.amdhsa_next_free_sgpr 24
.amdhsa_accum_offset 8
.amdhsa_group_segment_fixed_size 0
.amdhsa_kernarg_size 88
.amdhsa_user_sgpr_count 2
.amdhsa_user_sgpr_kernarg_segment_ptr 1
.amdhsa_system_sgpr_workgroup_id_x 1
.end_amdhsa_kernel
'''
    if not cfg.st0 and not cfg.diag: txt = HEADER + txt
    open(cfg.o, 'w').write(txt)
main()
```
